```python
import torch

def _softmax(x, axis=-1):
    return torch.softmax(x, dim=axis)
def _gelu(x):
    return torch.nn.functional.gelu(x, approximate="tanh")
def _silu(x):
    return torch.nn.functional.silu(x)
def _sigmoid(x):
    return torch.sigmoid(x)
def _layernorm(x, axis=-1, eps=1e-5):
    m = x.mean(dim=axis, keepdim=True)
    v = x.var(dim=axis, keepdim=True, unbiased=False)
    return (x - m) / torch.sqrt(v + eps)
def _scatter_add(tgt, idx, src, axis=0):
    return tgt.clone().index_add_(axis, idx, src)
def _segment_sum(src, seg, n):
    out = torch.zeros((n,) + src.shape[1:], dtype=src.dtype)
    return out.index_add_(0, seg, src)
def _pad(x, pw):
    flat = tuple(v for pair in reversed(pw) for v in pair)
    return torch.nn.functional.pad(x, flat)

kernel_name = 'gated_mix__sliding_block__softmax_full_mha__prompt'

def setup_inputs():

    _w = (lambda a: (lambda t: t.to(torch.bfloat16) if t.is_floating_point() else t)(torch.as_tensor(a)))
    def _A_setup():
        B, S, D = 1, 2048, 576
        return {
            "x": _w((lambda *s: torch.randn(*s, dtype=torch.bfloat16) * 0.05)(B, S, D)),
            "wqkv": _w((lambda *s: torch.randn(*s, dtype=torch.bfloat16) * 3.2)(D, 3 * D)),
            "wo": _w((lambda *s: torch.randn(*s, dtype=torch.bfloat16) * 0.1)(D, D)),
        }
    _A_in = _A_setup()

    def _B_setup():
        B, S, D = 1, 2048, 576
        return {
            "x": _w((lambda *s: torch.randn(*s, dtype=torch.bfloat16) * 0.05)(B, S, D)),
            "wqkv": _w((lambda *s: torch.randn(*s, dtype=torch.bfloat16) * 1.6)(D, 3 * D)),
            "wo": _w((lambda *s: torch.randn(*s, dtype=torch.bfloat16) * 0.2)(D, D)),
        }
    _B_in = _B_setup()

    return {
        "A_x": _A_in["x"],
        "A_wqkv": _A_in["wqkv"],
        "A_wo": _A_in["wo"],
        "B_x": _B_in["x"],
        "B_wqkv": _B_in["wqkv"],
        "B_wo": _B_in["wo"],
        "gate_w": _w((lambda *s: torch.randn(*s, dtype=torch.bfloat16) * 0.05)(576) * 16.0),
    }

def reference(A_x, A_wqkv, A_wo, B_x, B_wqkv, B_wo, gate_w):
    def _A_ref(x, wqkv, wo):
        B, S, D = x.shape
        H = 32; Dh = D // H; W = 256
        qkv = (lambda x, *d: x.permute(*d))((x @ wqkv).reshape(B, S, 3, H, Dh), 2, 0, 3, 1, 4)
        q, k, v = qkv[0], qkv[1], qkv[2]
        scores = torch.einsum("bhqd,bhkd->bhqk", q, k) * (Dh ** -0.5)
        idx = torch.arange(S)
        mask = (idx[:, None] - idx[None, :] >= 0) & (idx[:, None] - idx[None, :] < W)
        scores = torch.where(mask[None, None], scores, -1e9)
        p = _softmax(scores, axis=-1)
        o = torch.einsum("bhqk,bhkd->bhqd", p, v)
        return (lambda x, *d: x.permute(*d))(o, 0, 2, 1, 3).reshape(B, S, D) @ wo

    def _B_ref(x, wqkv, wo):
        B, S, D = x.shape
        H = 32; Dh = D // H
        qkv = (lambda x, *d: x.permute(*d))((x @ wqkv).reshape(B, S, 3, H, Dh), 2, 0, 3, 1, 4)
        q, k, v = qkv[0], qkv[1], qkv[2]
        scale = Dh ** -0.5
        scores = torch.einsum("bhqd,bhkd->bhqk", q, k) * scale
        p = _softmax(scores, axis=-1)
        o = torch.einsum("bhqk,bhkd->bhqd", p, v)
        return (lambda x, *d: x.permute(*d))(o, 0, 2, 1, 3).reshape(B, S, D) @ wo

    x = A_x
    g = _sigmoid((x * gate_w).sum(-1, keepdims=True))
    a = _A_ref(x, A_wqkv, A_wo)
    b = _B_ref(x, B_wqkv, B_wo)
    return g * a + (1 - g) * b
```

```python
import re

TRANS = ("v_exp_f32", "v_log_f32", "v_rcp_f32", "v_rsq_f32", "v_sqrt_f32", "v_sin_f32", "v_cos_f32", "v_exp_f16", "v_rcp_iflag_f32")
SB = 1000
VCC = {SB + 106, SB + 107}
EXEC = {SB + 126, SB + 127}
M0 = SB + 124

def regs_of(tok):
    tok = tok.strip()
    neg = tok.lstrip('-')
    if neg.startswith('abs(') or neg.startswith('|'):
        neg = neg.strip('|')
        if neg.startswith('abs('): neg = neg[4:-1]
    t = neg
    m = re.fullmatch(r'([vas])(\d+)', t)
    if m:
        b = {'v': 0, 'a': 256, 's': SB}[m.group(1)]
        return {b + int(m.group(2))}
    m = re.fullmatch(r'([vas])\[(\d+):(\d+)\]', t)
    if m:
        b = {'v': 0, 'a': 256, 's': SB}[m.group(1)]
        return set(range(b + int(m.group(2)), b + int(m.group(3)) + 1))
    if t == 'vcc': return set(VCC)
    if t == 'vcc_lo': return {SB + 106}
    if t == 'vcc_hi': return {SB + 107}
    if t == 'exec': return set(EXEC)
    if t == 'exec_lo': return {SB + 126}
    if t == 'exec_hi': return {SB + 127}
    if t == 'm0': return {M0}
    return set()

def split_ops(s):
    out = []; depth = 0; cur = ''
    for ch in s:
        if ch in '[(': depth += 1
        if ch in '])': depth -= 1
        if ch == ',' and depth == 0:
            out.append(cur); cur = ''
        else:
            cur += ch
    if cur.strip(): out.append(cur)
    return [o.strip() for o in out]

class Ins:
    def __init__(self, text):
        self.text = text
        t = text.split(';')[0].strip()
        self.label = None
        self.kind = None
        self.wr = set(); self.rd = set()
        self.A = set(); self.B = set(); self.C = set()
        self.states = 1
        self.passes = 0
        self.target = None
        if t.endswith(':'):
            self.label = t[:-1]; self.kind = 'label'; self.states = 0; return
        if t == '' or t.startswith('.'):
            self.kind = 'dir'; self.states = 0; return
        parts = t.split(None, 1)
        mn = parts[0]; self.mn = mn
        rest = parts[1] if len(parts) > 1 else ''
        ops = split_ops(rest)
        mods = ''
        if ops:
            last = ops[-1].split()
            ops[-1] = last[0] if last else ''
            mods = ' '.join(last[1:])
        self.ops = ops; self.mods = mods
        R = [regs_of(o) for o in ops]
        if mn.startswith('v_mfma'):
            self.kind = 'mfma'
            self.wr = R[0]; self.A = R[1]; self.B = R[2]; self.C = R[3]
            self.rd = self.A | self.B | self.C
            if '32x32x16' in mn or '32x32x8' in mn: self.passes = 8
            elif '16x16x32' in mn or '16x16x16' in mn: self.passes = 4
            elif '4x4x4' in mn: self.passes = 2
            else: raise ValueError(mn)
        elif mn.startswith('v_'):
            self.kind = 'valu'
            self.trans = any(mn.startswith(x) for x in TRANS)
            self.dpp = 'row_' in mods or 'quad_perm' in mods or '_dpp' in mn
            self.sdwa = '_sdwa' in mn
            if mn.startswith('v_cmp'):
                self.wr = R[0]; self.rd = set().union(*R[1:])
            elif mn.startswith(('v_add_co', 'v_sub_co', 'v_subrev_co', 'v_addc_co', 'v_subb_co', 'v_mad_u64', 'v_div_scale')):
                self.wr = R[0] | R[1]; self.rd = set().union(*R[2:])
            elif mn.startswith('v_permlane') and 'swap' in mn:
                self.wr = R[0] | R[1]; self.rd = R[0] | R[1]
            else:
                self.wr = R[0]; self.rd = set().union(*R[1:]) if len(R) > 1 else set()
                if mn.startswith(('v_fmac', 'v_dot2c', 'v_mac', 'v_writelane')) or 'UNUSED_PRESERVE' in mods or '_d16' in mn or mn.startswith('v_cvt_pk_fp8') :
                    self.rd |= R[0]
                if mn.startswith('v_cndmask') and len(ops) == 3:
                    self.rd |= VCC
        elif mn.startswith('ds_'):
            self.kind = 'ds'
            if mn.startswith(('ds_read', 'ds_bpermute', 'ds_permute', 'ds_swizzle')):
                self.wr = R[0]; self.rd = set().union(*R[1:])
            else:
                self.rd = set().union(*R)
        elif mn.startswith(('buffer_', 'global_', 'flat_')):
            self.kind = 'vmem'
            self.lds = ' lds' in (' ' + mods) or 'load_lds' in mn
            self.store = 'store' in mn
            self.wide = self.store and ('x3' in mn or 'x4' in mn)
            if mn in ('buffer_inv', 'buffer_wbl2'):
                pass
            elif self.lds:
                self.rd = set().union(*R) | {M0}
            elif self.store:
                self.rd = set().union(*R)
                self.data = R[0] if mn.startswith('buffer_') else R[1]
            elif 'atomic' in mn:
                self.rd = set().union(*R)
                if 'sc0' in mods: self.wr = R[0]
            else:
                self.wr = R[0]; self.rd = set().union(*R[1:])
                if 'd16' in mn: self.rd |= R[0]
        elif mn.startswith('s_'):
            self.kind = 'salu'
            if mn == 's_nop':
                self.states = int(ops[0], 0) + 1
            elif mn.startswith(('s_cbranch', 's_branch')):
                self.target = ops[0]
            elif mn.startswith(('s_cmp', 's_waitcnt', 's_barrier', 's_endpgm', 's_setprio', 's_sleep', 's_bitcmp')):
                self.rd = set().union(*R) if R else set()
            else:
                self.wr = R[0] if R else set()
                self.rd = set().union(*R[1:]) if len(R) > 1 else set()
                if 'saveexec' in mn: self.wr |= EXEC
        else:
            raise ValueError('unknown instruction: ' + text)

def need(P, C):
    n = 0
    vg = lambda s: {r for r in s if r < SB}
    sg = lambda s: {r for r in s if r >= SB}
    if P.kind == 'valu':
        pw = vg(P.wr); ps = sg(P.wr)
        if pw:
            if C.kind == 'mfma' and pw & C.rd: n = max(n, 2)
            if C.kind == 'valu':
                if pw & C.rd:
                    if C.mn.startswith('v_permlane'): n = max(n, 2)
                    if C.dpp: n = max(n, 2)
                    if C.mn.startswith(('v_readlane', 'v_readfirstlane')): n = max(n, 1)
                    if P.trans and not C.trans: n = max(n, 1)
                    if P.sdwa: n = max(n, 1)
        if ps:
            if C.kind == 'valu' and ps & C.rd:
                n = max(n, 4 if C.mn.startswith(('v_readlane', 'v_writelane')) else 2)
            if C.kind == 'vmem' and ps & C.rd: n = max(n, 5)
            if C.kind == 'salu' and ps & C.rd: n = max(n, 2)
            if C.kind == 'mfma' and ps & EXEC: n = max(n, 4)
    if P.kind == 'mfma':
        p = P.passes
        rawv = {2: 5, 4: 8, 8: 12}[p]
        if C.kind == 'mfma':
            if P.wr & (C.A | C.B): n = max(n, rawv)
            if P.wr & C.C:
                if not (P.wr == C.C and P.passes == C.passes): n = max(n, {2: 4, 4: 6, 8: 10}[p])
                elif p == 2: n = max(n, 2)
            if (P.wr & C.wr) and not (P.wr & C.C) : n = max(n, rawv)
        elif C.kind in ('valu', 'ds', 'vmem'):
            if P.wr & (C.rd | C.wr): n = max(n, rawv)
            if C.kind == 'valu' and (P.C & C.wr): n = max(n, {2: 1, 4: 3, 8: 7}[p])
    if P.kind == 'salu' and M0 in P.wr and C.kind == 'vmem' and getattr(C, 'lds', False): n = max(n, 1)
    if P.kind == 'vmem' and getattr(P, 'wide', False):
        if C.kind == 'valu' and (P.data & C.wr): n = max(n, 2)
        elif C.kind in ('ds', 'vmem', 'mfma') and (P.data & C.wr): n = max(n, 1)
    return n

WINDOW = 14

class Asm:
    def __init__(self):
        self.lines = []
    def __call__(self, text):
        for l in text.split('\n'):
            if l.strip(): self.lines.append(l.strip())
    def label(self, name): self.lines.append(name + ':')
    def finish(self, verbose=False):
        ins = [Ins(l) for l in self.lines]
        out = []
        nins = 0
        for c in ins:
            if c.kind in ('label', 'dir'):
                out.append(c); continue
            req = 0
            dist = 0
            for p in reversed(out):
                if p.kind in ('label', 'dir'): continue
                if dist >= WINDOW: break
                r = need(p, c)
                if r > dist: req = max(req, r - dist)
                if p.kind == 'salu' and p.mn in ('s_branch', 's_endpgm'): break
                dist += p.states
            if req > 0:
                while req > 0:
                    k = min(req, 16)
                    n = Ins(f's_nop {k-1}'); n.auto = True
                    out.append(n); nins += 1; req -= k
            out.append(c)
        idx = {c.label: i for i, c in enumerate(out) if c.kind == 'label'}
        problems = []
        for i, b in enumerate(out):
            if b.kind == 'salu' and b.target:
                if b.target not in idx: continue
                j = idx[b.target]
                prods = []; dist = 0
                k = i
                while k >= 0 and dist < WINDOW:
                    p = out[k]
                    if p.kind not in ('label', 'dir'):
                        prods.append((p, dist)); dist += p.states
                        if k != i and p.kind == 'salu' and p.mn in ('s_branch', 's_endpgm'): break
                    k -= 1
                d2 = 0; k = j
                while k < len(out) and d2 < WINDOW:
                    c = out[k]
                    if c.kind not in ('label', 'dir'):
                        for p, dp in prods:
                            between = dp - 0 + d2 - 0
                            r = need(p, c)
                            if r > (dp + d2):
                                problems.append((p.text, c.text, r, dp + d2, b.text))
                        d2 += c.states
                        if c.kind == 'salu' and c.mn in ('s_branch', 's_endpgm'): break
                    k += 1
        if problems:
            for p in problems: print('HAZARD across branch:', p)
            raise SystemExit('hazards across branches')
        if verbose: print(f'; {nins} s_nop inserted')
        txt = []
        for c in out:
            if c.kind == 'label': txt.append(c.text)
            elif c.kind == 'dir': txt.append(c.text)
            else: txt.append('    ' + c.text + ('    ; auto' if getattr(c, 'auto', False) else ''))
        return '\n'.join(txt) + '\n'

def v(a, n=1):
    return f'v{a}' if n == 1 else f'v[{a}:{a+n-1}]'
def s(a, n=1):
    return f's{a}' if n == 1 else f's[{a}:{a+n-1}]'
def a(x, n=1):
    return f'a{x}' if n == 1 else f'a[{x}:{x+n-1}]'
```

```python
T = 2048; D = 576; H = 32; DH = 18
WS_QM = 0x000000
WS_KM = 0x400000
WS_V  = 0x800000
V_HEAD = 77824
V_TILE = 1216
WS_QX = 0xD00000
WS_KX = 0xD80000
WS_G  = 0xE00000
WS_OM = 0x1000000
WS_OX = 0x1400000
WS_SIZE = 0x1600000
QSCALE = 1.4426950408889634 / (18 ** 0.5)
import struct
def f2u(x): return struct.unpack('<I', struct.pack('<f', x))[0]
ARG = dict(A_x=0, A_wqkv=8, A_wo=16, B_x=24, B_wqkv=32, B_wo=40, gate_w=48, out=56, dbg=64, ws=72)

def kdesc(name, nv, ns, acc=None):
    acc = acc if acc is not None else (nv + 3) // 4 * 4
    return f""".section .rodata,"a"
.p2align 6
.amdhsa_kernel {name}
  .amdhsa_next_free_vgpr {nv}
  .amdhsa_next_free_sgpr {ns}
  .amdhsa_accum_offset {acc}
  .amdhsa_group_segment_fixed_size 0
  .amdhsa_kernarg_size 80
  .amdhsa_user_sgpr_count 2
  .amdhsa_user_sgpr_kernarg_segment_ptr 1
  .amdhsa_system_sgpr_workgroup_id_x 1
.end_amdhsa_kernel
.text
"""
def khead(name):
    return f""".globl {name}
.p2align 8
.type {name},@function
{name}:
"""
def srd(A, base, ptr_lo, ptr_hi, nbytes):
    A(f"s_mov_b32 s{base}, s{ptr_lo}")
    A(f"s_and_b32 s{base+1}, s{ptr_hi}, 0xffff")
    A(f"s_mov_b32 s{base+2}, {nbytes}")
    A(f"s_mov_b32 s{base+3}, 0x00020000")

WS_PROF = 0x1500000
import os
PROF = int(os.environ.get("PROF", "0"))
def stamp(A, i, base=64):
    if PROF:
        A(f"s_memtime s[{base+2*i}:{base+2*i+1}]")
        A(f"s_waitcnt lgkmcnt(0)")
def stamps_out(A, kidx, n, sWS, sWave, vt, base=64):
    if not PROF: return
    A(f"s_lshl_b32 s{base+30}, s2, 4")
    A(f"s_add_u32 s{base+30}, s{base+30}, s{sWave}")
    A(f"s_lshl_b32 s{base+30}, s{base+30}, 5")
    A(f"s_add_u32 s{base+30}, s{base+30}, {WS_PROF + kidx*0x40000}")
    A(f"v_mov_b32 v{vt+8}, 0")
    for i in range(8):
        if i < n:
            A(f"s_sub_u32 s{base+31}, s{base+2*i}, s{base}" if i else f"s_mov_b32 s{base+31}, s{base}")
            A(f"v_mov_b32 v{vt+i}, s{base+31}")
        else:
            A(f"v_mov_b32 v{vt+i}, 0")
    A(f"s_bfm_b64 exec, 1, 0")
    A(f"buffer_store_dwordx4 v[{vt}:{vt+3}], v{vt+8}, s[{sWS}:{sWS+3}], s{base+30} offen")
    A(f"buffer_store_dwordx4 v[{vt+4}:{vt+7}], v{vt+8}, s[{sWS}:{sWS+3}], s{base+30} offen offset:16")
    A(f"s_mov_b64 exec, -1")
```

```python
from asmlib import *
from common import *

K1_W0 = 32768
K1_STAGE = 49152
K1_LDS = 3 * K1_STAGE
K1_THREADS = 896
K1_GRID = 224

def gen_k1(name):
    A = Asm()
    sX, sWS, sG = 8, 16, 20
    sCG, sTB, sWV, sCH = 24, 25, 26, 27
    sOff, sOffI, sOffC = 28, 29, 30
    sM0, sM0I = 31, 32
    sStL = 33
    sDelta = 34
    sStR = 35
    sT0, sT1, sT2, sT3 = 36, 37, 38, 39
    sFP, sTP, sBLK, sBR, sBETA, sTY = 40, 41, 42, 43, 50, 51
    vLane = 1
    vLo = 2
    vAX = 6
    vAW0, vAW1 = 10, 11
    vT = 12
    vXF = 24
    vWF = 40
    vACC = 56
    vSO = 120
    vP = 24
    NV = 128

    A(f"s_cmp_ge_u32 s2, {K1_GRID}")
    A(f"s_cbranch_scc1 {name}_end")
    stamp(A, 0)
    rt_begin(A)
    A(f"s_load_dwordx4 s[4:7], s[0:1], 0")
    A(f"s_load_dwordx2 s[44:45], s[0:1], {ARG['B_wqkv']}")
    A(f"s_load_dwordx2 s[46:47], s[0:1], {ARG['gate_w']}")
    A(f"s_load_dwordx2 s[48:49], s[0:1], {ARG['ws']}")
    A(f"v_and_b32 v{vLane}, 63, v0")
    A(f"v_lshrrev_b32 v{vT}, 6, v0")
    A(f"s_and_b32 s{sT0}, s2, 7")
    A(f"v_readfirstlane_b32 s{sWV}, v{vT}")
    A(f"s_lshr_b32 s{sT1}, s2, 3")
    A(f"s_lshr_b32 s{sT2}, s{sT0}, 2")
    A(f"s_lshl_b32 s{sT2}, s{sT2}, 2")
    A(f"s_and_b32 s{sT3}, s{sT1}, 3")
    A(f"s_add_u32 s{sTB}, s{sT2}, s{sT3}")
    A(f"s_and_b32 s{sT2}, s{sT0}, 3")
    A(f"s_mul_i32 s{sT2}, s{sT2}, 7")
    A(f"s_lshr_b32 s{sT3}, s{sT1}, 2")
    A(f"s_add_u32 s{sCG}, s{sT2}, s{sT3}")
    A(f"s_cmp_ge_u32 s{sCG}, 27")
    A(f"s_cbranch_scc1 {name}_end")
    A(f"s_cmp_ge_u32 s{sWV}, 8")
    A(f"s_cbranch_scc0 {name}_comp")
    A(f"s_cmp_ge_u32 s{sWV}, 12")
    A(f"s_cbranch_scc1 {name}_ldw")

    A(f"s_sub_u32 s{sT3}, s{sWV}, 8")
    A(f"v_lshrrev_b32 v{vT}, 3, v{vLane}")
    A(f"s_lshl_b32 s{sT0}, s{sT3}, 3")
    A(f"v_add_u32 v{vT}, s{sT0}, v{vT}")
    A(f"v_mul_u32_u24 v{vLo}, 1152, v{vT}")
    A(f"v_lshrrev_b32 v{vT+1}, 4, v{vLane}")
    A(f"s_and_b32 s{sT0}, s{sT3}, 1")
    A(f"s_lshl_b32 s{sT0}, s{sT0}, 2")
    A(f"v_add_u32 v{vT+1}, s{sT0}, v{vT+1}")
    A(f"v_and_b32 v{vT+2}, 7, v{vLane}")
    A(f"v_xor_b32 v{vT+2}, v{vT+2}, v{vT+1}")
    A(f"v_lshl_add_u32 v{vLo}, v{vT+2}, 4, v{vLo}")
    A(f"s_lshl_b32 s{sM0}, s{sT3}, 10")
    A(f"s_mov_b32 s{sM0I}, 4096")
    A(f"s_mul_i32 s{sOff}, s{sTB}, {256*1152}")
    A(f"s_mov_b32 s{sOffI}, {32*1152}")
    A(f"s_mov_b32 s{sOffC}, 128")
    A("s_waitcnt lgkmcnt(0)")
    srd(A, sX, 4, 5, T * D * 2)
    A(f"s_branch {name}_ld")
    A.label(f"{name}_ldw")
    A(f"s_sub_u32 s{sT3}, s{sWV}, 12")
    A(f"s_lshl_b32 s{sBLK}, s{sCG}, 1")
    A(f"s_add_u32 s{sBLK}, s{sBLK}, s{sT3}")
    A(f"s_cmp_ge_u32 s{sBLK}, 27")
    A(f"s_cselect_b32 s{sBR}, 1, 0")
    A(f"s_mul_i32 s{sT0}, s{sBR}, 27")
    A(f"s_sub_u32 s{sBETA}, s{sBLK}, s{sT0}")
    A(f"v_lshrrev_b32 v{vT}, 3, v{vLane}")
    A(f"v_mul_u32_u24 v{vLo}, 3456, v{vT}")
    A(f"v_bfe_u32 v{vT+1}, v{vLane}, 4, 1")
    A(f"v_lshlrev_b32 v{vT+1}, 2, v{vT+1}")
    A(f"v_and_b32 v{vT+2}, 7, v{vLane}")
    A(f"v_xor_b32 v{vT+2}, v{vT+2}, v{vT+1}")
    A(f"v_lshl_add_u32 v{vLo}, v{vT+2}, 4, v{vLo}")
    A(f"s_lshl_b32 s{sM0}, s{sT3}, 13")
    A(f"s_add_u32 s{sM0}, s{sM0}, {K1_W0}")
    A(f"s_mov_b32 s{sM0I}, 1024")
    A(f"s_lshl_b32 s{sOff}, s{sBETA}, 7")
    A(f"s_mov_b32 s{sOffI}, {8*3456}")
    A(f"s_mov_b32 s{sOffC}, {64*3456}")
    A("s_waitcnt lgkmcnt(0)")
    A(f"s_cmp_eq_u32 s{sBR}, 0")
    A(f"s_cselect_b32 s{sX}, s6, s44")
    A(f"s_cselect_b32 s{sX+1}, s7, s45")
    A(f"s_and_b32 s{sX+1}, s{sX+1}, 0xffff")
    A(f"s_mov_b32 s{sX+2}, {D*3*D*2}")
    A(f"s_mov_b32 s{sX+3}, 0x00020000")
    A.label(f"{name}_ld")
    def issue():
        A(f"s_add_u32 m0, s{sStL}, s{sM0}")
        A(f"s_mov_b32 s{sT1}, s{sOff}")
        for j in range(8):
            A(f"buffer_load_dwordx4 v{vLo}, s[{sX}:{sX+3}], s{sT1} offen lds")
            if j < 7:
                A(f"s_add_u32 m0, m0, s{sM0I}")
                A(f"s_add_u32 s{sT1}, s{sT1}, s{sOffI}")
        A(f"s_add_u32 s{sOff}, s{sOff}, s{sOffC}")
        A(f"s_add_u32 s{sStL}, s{sStL}, {K1_STAGE}")
        A(f"s_cmp_eq_u32 s{sStL}, {3*K1_STAGE}")
        A(f"s_cselect_b32 s{sStL}, 0, s{sStL}")
    stamp(A, 1)
    A(f"s_mov_b32 s{sStL}, 0")
    A(f"s_mov_b32 s{sCH}, -2")
    A.label(f"{name}_ld_loop")
    A(f"s_cmp_lt_i32 s{sCH}, 0")
    A(f"s_cbranch_scc1 {name}_ld_issue")
    A(f"s_cmp_eq_u32 s{sCH}, 8")
    A(f"s_cbranch_scc1 {name}_ld_last")
    A(f"s_waitcnt vmcnt(8)")
    if PROF:
        A(f"s_cmp_eq_u32 s{sCH}, 0")
        A(f"s_cbranch_scc0 {name}_ld_ns")
        stamp(A, 2)
        A.label(f"{name}_ld_ns")
    A(f"s_barrier")
    A(f"s_cmp_eq_u32 s{sCH}, 7")
    A(f"s_cbranch_scc1 {name}_ld_skip")
    A.label(f"{name}_ld_issue")
    issue()
    A.label(f"{name}_ld_skip")
    A(f"s_add_u32 s{sCH}, s{sCH}, 1")
    A(f"s_branch {name}_ld_loop")
    A.label(f"{name}_ld_last")
    A(f"s_waitcnt vmcnt(0)")
    A(f"s_barrier")
    if PROF:
        stamp(A, 3)
        A("s_load_dwordx2 s[48:49], s[0:1], 72")
        A("s_waitcnt lgkmcnt(0)")
        srd(A, sWS, 48, 49, WS_SIZE)
        stamps_out(A, 0, 4, sWS, sWV, vP)
    A(f"s_endpgm")

    A.label(f"{name}_comp")
    A(f"s_lshr_b32 s{sFP}, s{sWV}, 2")
    A(f"s_and_b32 s{sTP}, s{sWV}, 3")
    A(f"s_lshl_b32 s{sBLK}, s{sCG}, 1")
    A(f"s_add_u32 s{sBLK}, s{sBLK}, s{sFP}")
    A(f"s_cmp_ge_u32 s{sBLK}, 27")
    A(f"s_cselect_b32 s{sBR}, 1, 0")
    A(f"s_mul_i32 s{sT0}, s{sBR}, 27")
    A(f"s_sub_u32 s{sBETA}, s{sBLK}, s{sT0}")
    A(f"s_mov_b32 s{sTY}, 0")
    A(f"s_cmp_ge_u32 s{sBETA}, 9")
    A(f"s_addc_u32 s{sTY}, s{sTY}, 0")
    A(f"s_cmp_ge_u32 s{sBETA}, 18")
    A(f"s_addc_u32 s{sTY}, s{sTY}, 0")
    vG = vACC
    for i in range(32): A(f"v_mov_b32 v{vG+i}, 0")
    A("s_waitcnt lgkmcnt(0)")
    srd(A, sX, 4, 5, T * D * 2)
    srd(A, sWS, 48, 49, WS_SIZE)
    srd(A, sG, 46, 47, D * 2)
    A(f"s_cmp_ge_u32 s{sCG}, 16")
    A(f"s_cbranch_scc1 {name}_nog1")
    A(f"s_lshl_b32 s{sT0}, s{sTB}, 8")
    A(f"s_lshl_b32 s{sT1}, s{sCG}, 4")
    A(f"s_add_u32 s{sT0}, s{sT0}, s{sT1}")
    A(f"s_lshl_b32 s{sT1}, s{sWV}, 1")
    A(f"s_add_u32 s52, s{sT0}, s{sT1}")
    A(f"s_mul_i32 s{sT0}, s52, 1152")
    A(f"v_lshlrev_b32 v{vT}, 5, v{vLane}")
    A(f"s_bfm_b64 exec, 36, 0")
    A(f"buffer_load_dwordx4 v[{vG}:{vG+3}], v{vT}, s[{sX}:{sX+3}], s{sT0} offen")
    A(f"buffer_load_dwordx4 v[{vG+4}:{vG+7}], v{vT}, s[{sX}:{sX+3}], s{sT0} offen offset:16")
    A(f"buffer_load_dwordx4 v[{vG+8}:{vG+11}], v{vT}, s[{sX}:{sX+3}], s{sT0} offen offset:1152")
    A(f"buffer_load_dwordx4 v[{vG+12}:{vG+15}], v{vT}, s[{sX}:{sX+3}], s{sT0} offen offset:1168")
    A(f"buffer_load_dwordx4 v[{vG+16}:{vG+19}], v{vT}, s[{sG}:{sG+3}], 0 offen")
    A(f"buffer_load_dwordx4 v[{vG+20}:{vG+23}], v{vT}, s[{sG}:{sG+3}], 0 offen offset:16")
    A(f"s_mov_b64 exec, -1")
    A.label(f"{name}_nog1")
    A(f"v_and_b32 v{vT}, 31, v{vLane}")
    A(f"v_lshrrev_b32 v{vT+1}, 5, v{vLane}")
    A(f"v_bfe_u32 v{vT+2}, v{vLane}, 1, 3")
    A(f"v_xor_b32 v{vT+2}, v{vT+2}, v{vT+1}")
    A(f"v_lshlrev_b32 v{vT+2}, 4, v{vT+2}")
    A(f"s_lshl_b32 s{sT0}, s{sTP}, 6")
    A(f"v_add_u32 v{vT}, s{sT0}, v{vT}")
    A(f"v_lshlrev_b32 v{vT}, 7, v{vT}")
    for s_ in range(4):
        A(f"v_xor_b32 v{vT+3}, {32*s_}, v{vT+2}")
        A(f"v_add_u32 v{vAX+s_}, v{vT}, v{vT+3}")
    A(f"v_bfe_u32 v{vT+2}, v{vLane}, 2, 2")
    A(f"v_lshl_add_u32 v{vT+3}, v{vT+1}, 3, v{vT+2}")
    A(f"v_lshlrev_b32 v{vT+3}, 7, v{vT+3}")
    A(f"v_bfe_u32 v{vT+4}, v{vLane}, 4, 1")
    A(f"v_lshlrev_b32 v{vT+4}, 5, v{vT+4}")
    A(f"v_and_b32 v{vT+5}, 3, v{vLane}")
    A(f"v_lshl_add_u32 v{vT+4}, v{vT+5}, 3, v{vT+4}")
    A(f"v_lshrrev_b32 v{vT+2}, 1, v{vT+2}")
    A(f"v_lshlrev_b32 v{vT+2}, 6, v{vT+2}")
    A(f"v_xor_b32 v{vT+4}, v{vT+4}, v{vT+2}")
    A(f"s_lshl_b32 s{sT0}, s{sFP}, 13")
    A(f"s_add_u32 s{sT0}, s{sT0}, {K1_W0}")
    A(f"v_add3_u32 v{vAW0}, v{vT+3}, v{vT+4}, s{sT0}")
    A(f"v_xor_b32 v{vAW1}, 64, v{vAW0}")
    A(f"s_lshl_b32 s{sT0}, s{sTB}, 3")
    A(f"s_lshl_b32 s{sT1}, s{sTP}, 1")
    A(f"s_add_u32 s53, s{sT0}, s{sT1}")
    A(f"s_cmp_eq_u32 s{sTY}, 2")
    A(f"s_cbranch_scc1 {name}_sov")
    A(f"s_mul_i32 s{sT0}, s{sTY}, 9")
    A(f"s_sub_u32 s{sT0}, s{sBETA}, s{sT0}")
    A(f"s_lshl_b32 s{sT0}, s{sT0}, 4")
    A(f"s_mul_i32 s{sT1}, s{sTY}, {WS_KM-WS_QM}")
    A(f"s_lshl_b32 s{sT2}, s{sBR}, 21")
    A(f"s_add_u32 s{sT1}, s{sT1}, s{sT2}")
    A(f"s_lshl_b32 s{sT2}, s53, 10")
    A(f"s_add_u32 s{sT1}, s{sT1}, s{sT2}")
    A(f"s_add_u32 s54, s{sT1}, {WS_QM}")
    A(f"s_mul_i32 s{sT1}, s{sTY}, {WS_KX-WS_QX}")
    A(f"s_lshl_b32 s{sT2}, s{sBR}, 18")
    A(f"s_add_u32 s{sT1}, s{sT1}, s{sT2}")
    A(f"s_lshl_b32 s{sT2}, s53, 8")
    A(f"s_add_u32 s{sT1}, s{sT1}, s{sT2}")
    A(f"s_add_u32 s55, s{sT1}, {WS_QX}")
    A(f"v_and_b32 v{vT}, 31, v{vLane}")
    A(f"v_lshlrev_b32 v{vT+6}, 4, v{vT}")
    A(f"v_add_u32 v{vT+6}, s54, v{vT+6}")
    A(f"v_lshlrev_b32 v{vT+7}, 3, v{vT}")
    A(f"v_add_u32 v{vT+7}, s55, v{vT+7}")
    A(f"v_add_u32 v{vT+8}, s{sT0}, v{vT+1}")
    for t in range(2):
        for i in range(4):
            d = vSO + 4*t + i
            A(f"v_add_u32 v{vT}, {8*t+2*i}, v{vT+8}")
            A(f"v_mul_u32_u24 v{vT+2}, 7282, v{vT}")
            A(f"v_lshrrev_b32 v{vT+2}, 16, v{vT+2}")
            A(f"v_mul_u32_u24 v{vT+3}, 9, v{vT+2}")
            A(f"v_sub_u32 v{vT+3}, v{vT}, v{vT+3}")
            A(f"v_cmp_lt_u32 vcc, 4, v{vT+3}")
            A(f"v_cndmask_b32 v{vT+4}, 0, 1, vcc")
            A(f"v_lshl_add_u32 v{vT+5}, v{vT+2}, 1, v{vT+4}")
            A(f"v_lshlrev_b32 v{vT+5}, 16, v{vT+5}")
            A(f"v_mul_u32_u24 v{vT+4}, 5, v{vT+4}")
            A(f"v_sub_u32 v{vT+4}, v{vT+3}, v{vT+4}")
            A(f"v_and_b32 v{vT+9}, 1, v{vT+4}")
            A(f"v_lshl_add_u32 v{vT+5}, v{vT+9}, 3, v{vT+5}")
            A(f"v_lshrrev_b32 v{vT+9}, 1, v{vT+4}")
            A(f"v_lshl_add_u32 v{vT+5}, v{vT+9}, 9, v{vT+5}")
            A(f"v_add_u32 v{vT+5}, v{vT+5}, v{vT+6}")
            A(f"v_lshl_add_u32 v{vT+9}, v{vT+2}, 14, v{vT+7}")
            A(f"v_cmp_eq_u32 vcc, 4, v{vT+3}")
            A(f"v_cndmask_b32 v{d}, v{vT+5}, v{vT+9}, vcc")
            A(f"v_cndmask_b32 v{vT+9}, 0, 1, vcc")
            A(f"v_or_b32 v{d}, v{d}, v{vT+9}")
    A(f"s_branch {name}_sod")
    A.label(f"{name}_sov")
    A(f"s_sub_u32 s{sT0}, s{sBETA}, 18")
    A(f"s_lshl_b32 s{sT0}, s{sT0}, 6")
    A(f"s_mul_i32 s{sT1}, s{sBR}, {32*V_HEAD}")
    A(f"s_mul_i32 s{sT2}, s53, {V_TILE}")
    A(f"s_add_u32 s{sT1}, s{sT1}, s{sT2}")
    A(f"s_add_u32 s54, s{sT1}, {WS_V}")
    A(f"v_mul_u32_u24 v{vT+6}, 304, v{vT+1}")
    A(f"v_add_u32 v{vT+6}, s54, v{vT+6}")
    A(f"v_and_b32 v{vT+7}, 31, v{vLane}")
    A(f"v_add_u32 v{vT+7}, s{sT0}, v{vT+7}")
    A(f"s_mov_b32 s55, {V_HEAD}")
    for t in range(2):
        d = vSO + t
        A(f"v_add_u32 v{vT}, {32*t}, v{vT+7}")
        A(f"v_mul_u32_u24 v{vT+2}, 3641, v{vT}")
        A(f"v_lshrrev_b32 v{vT+2}, 16, v{vT+2}")
        A(f"v_mul_u32_u24 v{vT+3}, 18, v{vT+2}")
        A(f"v_sub_u32 v{vT+3}, v{vT}, v{vT+3}")
        A(f"v_and_b32 v{vT+4}, 1, v{vT+2}")
        A(f"v_add_u32 v{vT+5}, 16, v{vT+3}")
        A(f"v_subrev_u32 v{vT+9}, 18, v{vT+5}")
        A(f"v_min_u32 v{vT+5}, v{vT+5}, v{vT+9}")
        A(f"v_cmp_eq_u32 vcc, 1, v{vT+4}")
        A(f"v_cndmask_b32 v{vT+5}, v{vT+3}, v{vT+5}, vcc")
        A(f"v_mul_lo_u32 v{vT+2}, v{vT+2}, s55")
        A(f"v_lshl_add_u32 v{vT+5}, v{vT+5}, 4, v{vT+2}")
        A(f"v_add_u32 v{d}, v{vT+5}, v{vT+6}")
        A(f"v_cmp_eq_u32 vcc, 17, v{vT+3}")
        A(f"v_cndmask_b32 v{vSO+2+t}, 0, 1, vcc")
        A(f"v_add_u32 v{vT+9}, {18*16}, v{vT+2}")
        A(f"v_add_u32 v{vSO+4+t}, v{vT+9}, v{vT+6}")
    A.label(f"{name}_sod")
    A(f"s_cmp_ge_u32 s{sCG}, 16")
    A(f"s_cbranch_scc1 {name}_nog2")
    A(f"s_waitcnt vmcnt(0)")
    for tk in range(2):
        A(f"v_mov_b32 v{vT}, 0")
        for i in range(8): A(f"v_dot2c_f32_bf16 v{vT}, v{vG+8*tk+i}, v{vG+16+i}")
        A(f"s_nop 2")
        A(f"v_add_f32_dpp v{vT}, v{vT}, v{vT} quad_perm:[1,0,3,2] row_mask:0xf bank_mask:0xf")
        A(f"v_add_f32_dpp v{vT}, v{vT}, v{vT} quad_perm:[2,3,0,1] row_mask:0xf bank_mask:0xf")
        A(f"v_add_f32_dpp v{vT}, v{vT}, v{vT} row_half_mirror row_mask:0xf bank_mask:0xf")
        A(f"v_add_f32_dpp v{vT}, v{vT}, v{vT} row_mirror row_mask:0xf bank_mask:0xf")
        A(f"v_readlane_b32 s56, v{vT}, 0")
        A(f"v_readlane_b32 s57, v{vT}, 16")
        A(f"v_readlane_b32 s58, v{vT}, 32")
        A(f"v_mov_b32 v{vT+1}, s56")
        A(f"v_add_f32 v{vT+1}, s57, v{vT+1}")
        A(f"v_add_f32 v{vT+1}, s58, v{vT+1}")
        A(f"v_mul_f32 v{vT+1}, {f2u(-1.4426950408889634)}, v{vT+1}")
        A(f"v_exp_f32 v{vT+1}, v{vT+1}")
        A(f"v_add_f32 v{vT+1}, 1.0, v{vT+1}")
        A(f"v_rcp_f32 v{vT+1}, v{vT+1}")
        A(f"s_lshl_b32 s{sT0}, s52, 2")
        A(f"s_add_u32 s{sT0}, s{sT0}, {WS_G + 4*tk}")
        A(f"v_mov_b32 v{vT+2}, 0")
        A(f"s_bfm_b64 exec, 1, 0")
        A(f"buffer_store_dword v{vT+1}, v{vT+2}, s[{sWS}:{sWS+3}], s{sT0} offen")
        A(f"s_mov_b64 exec, -1")
    A.label(f"{name}_nog2")
    for i in range(64): A(f"v_mov_b32 v{vACC+i}, 0")
    for i in range(8):
        A(f"v_mov_b32 v{vXF+8+i}, 0")
        A(f"v_mov_b32 v{vWF+8+i}, 0")
    A(f"s_mov_b32 s56, {(-2*K1_STAGE) & 0xffffffff}")
    A(f"s_mov_b32 s57, {K1_STAGE}")
    stamp(A, 1)
    A(f"s_mov_b32 s{sCH}, 0")
    A(f"s_mov_b32 s{sStR}, 0")
    A(f"s_cmp_eq_u32 s{sTY}, 2")
    A(f"s_cbranch_scc1 {name}_loop1")

    def reads(s_, buf):
        xf = vXF + 8*buf; wf = vWF + 8*buf
        A(f"ds_read_b128 v[{xf}:{xf+3}], v{vAX+s_}")
        A(f"ds_read_b128 v[{xf+4}:{xf+7}], v{vAX+s_} offset:4096")
        A(f"ds_read_b64_tr_b16 v[{wf}:{wf+1}], v{vAW0} offset:{s_*2048}")
        A(f"ds_read_b64_tr_b16 v[{wf+2}:{wf+3}], v{vAW0} offset:{s_*2048+512}")
        A(f"ds_read_b64_tr_b16 v[{wf+4}:{wf+5}], v{vAW1} offset:{s_*2048}")
        A(f"ds_read_b64_tr_b16 v[{wf+6}:{wf+7}], v{vAW1} offset:{s_*2048+512}")
    def mfmas(mode, buf):
        xf = vXF + 8*buf; wf = vWF + 8*buf
        for t in range(2):
            for tt in range(2):
                acc = vACC + (t*2+tt)*16
                W = f"v[{wf+4*t}:{wf+4*t+3}]"; X = f"v[{xf+4*tt}:{xf+4*tt+3}]"
                if mode == 1:
                    A(f"v_mfma_f32_32x32x16_bf16 v[{acc}:{acc+15}], {X}, {W}, v[{acc}:{acc+15}]")
                else:
                    A(f"v_mfma_f32_32x32x16_bf16 v[{acc}:{acc+15}], {W}, {X}, v[{acc}:{acc+15}]")

    for mode in range(2):
        L = f"{name}_loop{mode}"
        A.label(L)
        A(f"s_barrier")
        if PROF:
            A(f"s_cmp_eq_u32 s{sCH}, 0")
            A(f"s_cbranch_scc0 {L}_ns")
            stamp(A, 2)
            A.label(f"{L}_ns")
        reads(0, 0)
        mfmas(mode, 1)
        for s_ in range(3):
            reads(s_+1, (s_+1) % 2)
            A(f"s_waitcnt lgkmcnt(6)")
            mfmas(mode, s_ % 2)
        A(f"s_add_u32 s{sStR}, s{sStR}, 1")
        A(f"s_cmp_eq_u32 s{sStR}, 3")
        A(f"s_cselect_b32 s{sDelta}, s56, s57")
        A(f"s_cselect_b32 s{sStR}, 0, s{sStR}")
        for r in [vAX, vAX+1, vAX+2, vAX+3, vAW0, vAW1]:
            A(f"v_add_u32 v{r}, s{sDelta}, v{r}")
        A(f"s_add_u32 s{sCH}, s{sCH}, 1")
        A(f"s_cmp_lt_u32 s{sCH}, 9")
        A(f"s_waitcnt lgkmcnt(0)")
        A(f"s_cbranch_scc1 {L}")
        mfmas(mode, 1)
        A(f"s_nop 15")
        A(f"s_branch {name}_epi{mode}")

    A.label(f"{name}_epi0")
    stamp(A, 3)
    A(f"s_mov_b32 s{sT0}, 1.0")
    A(f"s_cmp_eq_u32 s{sTY}, 0")
    A(f"s_cselect_b32 s{sT0}, {f2u(QSCALE)}, s{sT0}")
    for q in range(8):
        d = vSO + q
        A(f"v_and_b32 v{vT}, 1, v{d}")
        A(f"v_xor_b32 v{d}, v{d}, v{vT}")
        A(f"v_mul_u32_u24 v{vT}, 768, v{vT}")
        A(f"v_sub_u32 v{vT+1+q}, 1024, v{vT}")
        A(f"v_add_u32 v{vT+1+q}, v{vT+1+q}, v{d}")
    k = 0
    for t in range(2):
        for tt in range(2):
            acc = vACC + (t*2+tt)*16
            for i in range(16): A(f"v_mul_f32 v{acc+i}, s{sT0}, v{acc+i}")
            p = vP + 8*(k % 4); k += 1
            for i in range(8): A(f"v_cvt_pk_bf16_f32 v{p+i}, v{acc+2*i}, v{acc+2*i+1}")
            for i in range(4):
                ad = (vSO + 4*t + i) if tt == 0 else (vT + 1 + 4*t + i)
                A(f"buffer_store_dwordx2 v[{p+2*i}:{p+2*i+1}], v{ad}, s[{sWS}:{sWS+3}], 0 offen")
    A(f"s_branch {name}_fin")
    A.label(f"{name}_epi1")
    stamp(A, 3)
    k = 0
    for t in range(2):
        for tt in range(2):
            acc = vACC + (t*2+tt)*16
            p = vP + 8*(k % 4); k += 1
            for i in range(8): A(f"v_cvt_pk_bf16_f32 v{p+i}, v{acc+2*i}, v{acc+2*i+1}")
            A(f"buffer_store_dwordx4 v[{p}:{p+3}], v{vSO+t}, s[{sWS}:{sWS+3}], 0 offen offset:{tt*V_TILE}")
            A(f"buffer_store_dwordx4 v[{p+4}:{p+7}], v{vSO+t}, s[{sWS}:{sWS+3}], 0 offen offset:{tt*V_TILE+608}")
    for i in range(4): A(f"v_mov_b32 v{vT+i}, 0x3f803f80")
    for t in range(2):
        A(f"v_cmp_eq_u32 vcc, 1, v{vSO+2+t}")
        A(f"s_and_saveexec_b64 s[58:59], vcc")
        A(f"s_cbranch_execz {name}_no1_{t}")
        for tt in range(2):
            for g in range(2):
                A(f"buffer_store_dwordx4 v[{vT}:{vT+3}], v{vSO+4+t}, s[{sWS}:{sWS+3}], 0 offen offset:{tt*V_TILE+g*608}")
        A.label(f"{name}_no1_{t}")
        A(f"s_mov_b64 exec, s[58:59]")
    A.label(f"{name}_fin")
    if PROF:
        stamp(A, 4)
        A("s_waitcnt vmcnt(0)")
        stamp(A, 5)
        stamps_out(A, 0, 6, sWS, sWV, vP)
    rt_end(A, 0, sWV, vP)
    A.label(f"{name}_end")
    A(f"s_endpgm")
    return khead(name) + A.finish(True) , kdesc(name, NV, 100)
```

```python
from asmlib import *
from common import *
import os

L_KM = 0
L_V = 65536
L_KX = 65536 + 64*1216
K2_LDS = L_KX + 64*256
NEG = f2u(-1.0e30)

DBG = int(os.environ.get("DBG", "0"))
def gen_k2(name):
    A = Asm()
    def dump(regs, slot):
        if not DBG: return
        lab = f"{name}_dump{dump.n}"; dump.n += 1
        A(f"s_nop 15")
        A(f"s_cmp_lg_u32 s2, 0")
        A(f"s_cbranch_scc1 {lab}")
        A(f"s_cmp_lg_u32 s14, 0")
        A(f"s_cbranch_scc1 {lab}")
        A(f"v_lshlrev_b32 v174, 2, v1")
        for i, r in enumerate(regs):
            A(f"s_mov_b32 s40, {WS_PROF + 0x80000 + slot*8192 + i*256}")
            A(f"buffer_store_dword v{r}, v174, s[8:11], s40 offen")
        A(f"s_waitcnt vmcnt(0)")
        A.label(lab)
    dump.n = 0
    sWS = 8
    sH, sQB, sWV, sTQ = 12, 13, 14, 15
    sT0, sT1, sT2, sT3 = 16, 17, 18, 19
    sCnt, sI = 20, 21
    sPass = 22
    sKMs, sVs, sKXs = 24, 25, 26
    vLane = 1
    vL16 = 2
    vKa, vVa, vXa = 3, 4, 5
    vKa0, vVa0, vXa0 = 6, 7, 8
    vG = 9
    vT = 10
    vQA, vQB = 20, 28
    vKF = 36
    vVF = 52
    vS = 68
    vP = 100
    vO = 108
    vMF, vMD = 124, 140
    vCM = 156
    vM = 172
    NV = 176

    A(f"s_cmp_ge_u32 s2, 256")
    A(f"s_cbranch_scc1 {name}_end")
    stamp(A, 0)
    rt_begin(A)
    A(f"s_load_dwordx2 s[4:5], s[0:1], {ARG['ws']}")
    A(f"v_and_b32 v{vLane}, 63, v0")
    A(f"v_lshrrev_b32 v{vT}, 6, v0")
    A(f"s_and_b32 s{sT0}, s2, 7")
    A(f"v_readfirstlane_b32 s{sWV}, v{vT}")
    A(f"s_lshr_b32 s{sT1}, s2, 3")
    A(f"s_lshl_b32 s{sT0}, s{sT0}, 2")
    A(f"s_and_b32 s{sT2}, s{sT1}, 3")
    A(f"s_add_u32 s{sH}, s{sT0}, s{sT2}")
    A(f"s_lshr_b32 s{sQB}, s{sT1}, 2")
    A(f"s_lshl_b32 s{sTQ}, s{sQB}, 3")
    A(f"s_add_u32 s{sTQ}, s{sTQ}, s{sWV}")
    A(f"v_lshlrev_b32 v{vL16}, 4, v{vLane}")
    A("s_waitcnt lgkmcnt(0)")
    srd(A, sWS, 4, 5, WS_SIZE)

    A(f"s_lshl_b32 s{sT0}, s{sH}, 16")
    A(f"s_lshl_b32 s{sT1}, s{sTQ}, 10")
    A(f"s_add_u32 s{sT0}, s{sT0}, s{sT1}")
    A(f"buffer_load_dwordx4 v[{vQA}:{vQA+3}], v{vL16}, s[{sWS}:{sWS+3}], s{sT0} offen")
    A(f"s_add_u32 s{sT0}, s{sT0}, {WS_QM + (32<<16)}")
    A(f"buffer_load_dwordx4 v[{vQB}:{vQB+3}], v{vL16}, s[{sWS}:{sWS+3}], s{sT0} offen")
    A(f"v_and_b32 v{vT}, 31, v{vLane}")
    A(f"v_lshlrev_b32 v{vT+1}, 3, v{vT}")
    A(f"s_lshr_b32 s{sT0}, s{sH}, 1")
    A(f"s_lshl_b32 s{sT0}, s{sT0}, 14")
    A(f"s_and_b32 s{sT1}, s{sH}, 1")
    A(f"s_lshl_b32 s{sT1}, s{sT1}, 2")
    A(f"s_add_u32 s27, s{sT0}, s{sT1}")
    A(f"s_lshl_b32 s{sT1}, s{sTQ}, 8")
    A(f"s_add_u32 s{sT0}, s27, s{sT1}")
    A(f"s_add_u32 s{sT0}, s{sT0}, {WS_QX}")
    A(f"buffer_load_dword v{vQA+4}, v{vT+1}, s[{sWS}:{sWS+3}], s{sT0} offen")
    A(f"s_add_u32 s{sT0}, s{sT0}, {16*16384}")
    A(f"buffer_load_dword v{vQB+4}, v{vT+1}, s[{sWS}:{sWS+3}], s{sT0} offen")
    A(f"v_lshlrev_b32 v{vT+2}, 2, v{vT}")
    A(f"s_lshl_b32 s{sT0}, s{sTQ}, 7")
    A(f"s_add_u32 s{sT0}, s{sT0}, {WS_G}")
    A(f"buffer_load_dword v{vG}, v{vT+2}, s[{sWS}:{sWS+3}], s{sT0} offen")

    def dma_group(ldsbase, sreg, n):
        A(f"s_lshl_b32 s{sT2}, s{sWV}, 10")
        A(f"s_add_u32 s{sT3}, s{sreg}, s{sT2}")
        A(f"s_add_u32 m0, s{sT2}, {ldsbase}")
        full = n // 8; rem = n % 8
        for j in range(full):
            A(f"s_nop 0")
            A(f"buffer_load_dwordx4 v{vL16}, s[{sWS}:{sWS+3}], s{sT3} offen lds")
            if j < full - 1 or rem:
                A(f"s_add_u32 m0, m0, 8192")
                A(f"s_add_u32 s{sT3}, s{sT3}, 8192")
        if rem:
            lab = f"{name}_dg{dma_group.n}"; dma_group.n += 1
            A(f"s_cmp_lt_u32 s{sWV}, {rem}")
            A(f"s_cbranch_scc0 {lab}")
            A(f"buffer_load_dwordx4 v{vL16}, s[{sWS}:{sWS+3}], s{sT3} offen lds")
            A.label(lab)
    dma_group.n = 0
    A(f"s_lshl_b32 s{sI}, s{sQB}, 3")
    A(f"s_sub_u32 s{sI}, s{sI}, 8")
    A(f"s_lshl_b32 s{sT0}, s{sH}, 16")
    A(f"s_add_u32 s{sKMs}, s{sT0}, {WS_KM}")
    A(f"s_mul_i32 s{sT0}, s{sH}, {V_HEAD}")
    A(f"s_add_u32 s{sVs}, s{sT0}, {WS_V}")
    A(f"s_lshr_b32 s{sT0}, s{sH}, 1")
    A(f"s_lshl_b32 s{sT0}, s{sT0}, 14")
    A(f"s_add_u32 s{sKXs}, s{sT0}, {WS_KX}")
    A(f"s_lshl_b32 s{sT0}, s{sI}, 10")
    A(f"s_add_u32 s28, s{sKMs}, s{sT0}")
    dma_group(L_KM + 48*1024, 28, 16)
    A(f"s_mul_i32 s{sT0}, s{sI}, {V_TILE}")
    A(f"s_add_u32 s28, s{sVs}, s{sT0}")
    dma_group(L_V + 48*V_TILE, 28, 19)
    A(f"s_lshl_b32 s{sT0}, s{sI}, 8")
    A(f"s_add_u32 s28, s{sKXs}, s{sT0}")
    dma_group(L_KX + 48*256, 28, 4)
    A(f"s_add_u32 s{sKMs}, s{sKMs}, {32<<16}")
    A(f"s_add_u32 s{sVs}, s{sVs}, {32*V_HEAD}")
    A(f"s_add_u32 s{sKXs}, s{sKXs}, {16*16384}")
    dma_group(L_KM, sKMs, 48)
    dma_group(L_V, sVs, 57)
    dma_group(L_KX, sKXs, 12)
    NB1 = 6 + 7 + 1

    A(f"v_and_b32 v{vT}, 31, v{vLane}")
    A(f"v_lshrrev_b32 v{vT+1}, 5, v{vLane}")
    A(f"v_mov_b32 v{vT+2}, 4")
    A(f"v_subrev_u32 v{vT+3}, 20, v{vT}")
    A(f"v_cmp_gt_u32 vcc, 8, v{vT+3}")
    A(f"v_cndmask_b32 v{vT+2}, v{vT+2}, 0, vcc")
    A(f"v_cmp_gt_u32 vcc, 19, v{vT}")
    A(f"v_cndmask_b32 v{vT+2}, v{vT+2}, v{vT}, vcc")
    A(f"v_mul_u32_u24 v{vVa0}, 304, v{vT+1}")
    A(f"v_lshl_add_u32 v{vVa0}, v{vT+2}, 4, v{vVa0}")
    A(f"v_add_u32 v{vVa0}, {L_V}, v{vVa0}")
    A(f"v_mov_b32 v{vKa0}, v{vL16}")
    A(f"s_and_b32 s{sT0}, s{sH}, 1")
    A(f"s_lshl_b32 s{sT0}, s{sT0}, 2")
    A(f"s_add_u32 s{sT0}, s{sT0}, {L_KX}")
    A(f"v_lshlrev_b32 v{vXa0}, 3, v{vT}")
    A(f"v_add_u32 v{vXa0}, s{sT0}, v{vXa0}")
    A(f"v_mov_b32 v{vKF+5}, 0x3f80")
    A(f"v_mov_b32 v{vKF+8+5}, 0x3f80")
    A(f"v_lshlrev_b32 v{vT+4}, 2, v{vT+1}")
    A(f"v_sub_u32 v{vT+4}, v{vT}, v{vT+4}")
    A(f"s_mov_b32 s29, {NEG}")
    for r in range(16):
        c = 8*(r//4) + r % 4
        A(f"v_subrev_u32 v{vT+5}, {c}, v{vT+4}")
        A(f"v_ashrrev_i32 v{vT+5}, 31, v{vT+5}")
        A(f"v_and_b32 v{vMD+r}, s29, v{vT+5}")
        A(f"v_xor_b32 v{vMF+r}, s29, v{vMD+r}")
    def qext_fix(q):
        A(f"v_cmp_gt_u32 vcc, 32, v{vLane}")
        A(f"v_cndmask_b32 v{q+4}, 0, v{q+4}, vcc")
        A(f"v_mov_b32 v{q+5}, 0")
    A(f"s_waitcnt vmcnt({NB1})")
    qext_fix(vQA); qext_fix(vQB)
    A(f"s_barrier")
    stamp(A, 1)

    def kreads(buf, off_slot):
        kf = vKF + 8*buf
        A(f"ds_read_b128 v[{kf}:{kf+3}], v{vKa} offset:{off_slot*1024}")
        A(f"ds_read_b32 v{kf+4}, v{vXa} offset:{off_slot*256}")
    def vreads(buf, off_slot):
        vf = vVF + 8*buf
        A(f"ds_read_b128 v[{vf}:{vf+3}], v{vVa} offset:{off_slot*V_TILE}")
        A(f"ds_read_b128 v[{vf+4}:{vf+7}], v{vVa} offset:{off_slot*V_TILE+608}")
    def qk(sbuf, kbuf, q, cop):
        sd = vS + 16*sbuf; kf = vKF + 8*kbuf
        A(f"v_mfma_f32_32x32x16_bf16 v[{sd}:{sd+15}], v[{kf}:{kf+3}], v[{q}:{q+3}], {cop}")
        A(f"v_mfma_f32_32x32x8_bf16 v[{sd}:{sd+15}], v[{kf+4}:{kf+5}], v[{q+4}:{q+5}], v[{sd}:{sd+15}]")
    def setaddr(slot_sreg_or_imm, sreg=False):
        if not sreg:
            sl = slot_sreg_or_imm
            A(f"v_add_u32 v{vKa}, {L_KM + sl*1024}, v{vKa0}")
            A(f"v_add_u32 v{vVa}, {sl*V_TILE}, v{vVa0}")
            A(f"v_add_u32 v{vXa}, {sl*256}, v{vXa0}")
        else:
            sr = slot_sreg_or_imm
            A(f"s_lshl_b32 s{sT0}, s{sr}, 10")
            A(f"v_add_u32 v{vKa}, s{sT0}, v{vKa0}")
            A(f"s_mul_i32 s{sT0}, s{sr}, {V_TILE}")
            A(f"v_add_u32 v{vVa}, s{sT0}, v{vVa0}")
            A(f"s_lshl_b32 s{sT0}, s{sr}, 8")
            A(f"v_add_u32 v{vXa}, s{sT0}, v{vXa0}")
    def adv(n):
        A(f"v_add_u32 v{vKa}, {n*1024}, v{vKa}")
        A(f"v_add_u32 v{vVa}, {n*V_TILE}, v{vVa}")
        A(f"v_add_u32 v{vXa}, {n*256}, v{vXa}")
    def maxtile(sbuf):
        sd = vS + 16*sbuf
        for i in range(8):
            A(f"v_max3_f32 v{vM}, v{sd+2*i}, v{sd+2*i+1}, v{vM}")
    def finish_max(q):
        A(f"v_mov_b32 v{vT}, v{vM}")
        A(f"v_permlane32_swap_b32 v{vM}, v{vT}")
        A(f"v_max_f32 v{vM}, v{vM}, v{vT}")
        A(f"v_sub_f32 v{vT}, 0, v{vM}")
        A(f"v_cvt_pk_bf16_f32 v{vT}, v{vT}, 0")
        A(f"v_cmp_gt_u32 vcc, 32, v{vLane}")
        A(f"v_cndmask_b32 v{q+5}, 0, v{vT}, vcc")
    def expcvt(sbuf, lo, hi):
        sd = vS + 16*sbuf
        for i in range(lo, hi):
            A(f"v_exp_f32 v{sd+i}, v{sd+i}")
    def cvt(sbuf, lo, hi):
        sd = vS + 16*sbuf
        for i in range(lo, hi):
            A(f"v_cvt_pk_bf16_f32 v{vP+i}, v{sd+2*i}, v{sd+2*i+1}")
    def pv(g, vbuf):
        vf = vVF + 8*vbuf + 4*g
        A(f"v_mfma_f32_32x32x16_bf16 v[{vO}:{vO+15}], v[{vf}:{vf+3}], v[{vP+4*g}:{vP+4*g+3}], v[{vO}:{vO+15}]")
    def epilogue(br):
        A(f"v_mov_b32 v{vT}, v{vO+10}")
        A(f"v_mov_b32 v{vT+1}, v{vO+10}")
        A(f"v_permlane32_swap_b32 v{vT}, v{vT+1}")
        A(f"v_rcp_f32 v{vT+2}, v{vT}")
        if br == 0:
            A(f"v_mul_f32 v{vT+2}, v{vT+2}, v{vG}")
        else:
            A(f"v_sub_f32 v{vT+3}, 1.0, v{vG}")
            A(f"v_mul_f32 v{vT+2}, v{vT+2}, v{vT+3}")
        for i in range(10): A(f"v_mul_f32 v{vO+i}, v{vO+i}, v{vT+2}")
        for i in range(5): A(f"v_cvt_pk_bf16_f32 v{vP+i}, v{vO+2*i}, v{vO+2*i+1}")
        A(f"s_lshl_b32 s{sT0}, s{sTQ}, 5")
        A(f"s_add_u32 s{sT0}, s{sT0}, s{sH}")
        A(f"s_lshl_b32 s{sT1}, s{sT0}, 10")
        A(f"s_add_u32 s{sT1}, s{sT1}, {WS_OM + br*64*32*1024}")
        A(f"buffer_store_dwordx4 v[{vP}:{vP+3}], v{vL16}, s[{sWS}:{sWS+3}], s{sT1} offen")
        A(f"s_lshl_b32 s{sT1}, s{sT0}, 7")
        A(f"s_add_u32 s{sT1}, s{sT1}, {WS_OX + br*64*32*128}")
        A(f"v_lshlrev_b32 v{vT+4}, 2, v{vLane}")
        A(f"s_bfm_b64 exec, 32, 0")
        A(f"buffer_store_dword v{vP+4}, v{vT+4}, s[{sWS}:{sWS+3}], s{sT1} offen")
        A(f"s_mov_b64 exec, -1")

    A(f"s_sub_u32 s{sI}, 8, s{sTQ}")
    A(f"s_cmp_ge_u32 s{sTQ}, 8")
    A(f"s_cselect_b32 s{sI}, 0, s{sI}")
    A(f"s_mov_b32 s30, s{sI}")
    A(f"s_add_u32 s31, s{sWV}, 48")
    def set_cm_for(i_sreg):
        lab = f"{name}_cm{set_cm_for.n}"; set_cm_for.n += 1
        A(f"s_cmp_eq_u32 s{i_sreg}, 8")
        A(f"s_cbranch_scc1 {lab}_d")
        A(f"s_cmp_eq_u32 s{i_sreg}, 0")
        A(f"s_cbranch_scc1 {lab}_f")
        for r in range(16): A(f"v_mov_b32 v{vCM+r}, 0")
        A(f"s_branch {lab}_e")
        A.label(f"{lab}_d")
        for r in range(16): A(f"v_mov_b32 v{vCM+r}, v{vMD+r}")
        A(f"s_branch {lab}_e")
        A.label(f"{lab}_f")
        for r in range(16): A(f"v_mov_b32 v{vCM+r}, v{vMF+r}")
        A.label(f"{lab}_e")
    set_cm_for.n = 0
    A(f"v_mov_b32 v{vM}, s29")
    A.label(f"{name}_a1")
    A(f"s_add_u32 s{sT1}, s31, s{sI}")
    setaddr(sT1, True)
    kreads(0, 0)
    set_cm_for(sI)
    A(f"s_waitcnt lgkmcnt(0)")
    qk(0, 0, vQA, f"v[{vCM}:{vCM+15}]")
    dump(list(range(vS, vS+16)) + list(range(vKF, vKF+6)) + list(range(vQA, vQA+6)), 0)
    maxtile(0)
    A(f"s_add_u32 s{sI}, s{sI}, 1")
    A(f"s_cmp_le_u32 s{sI}, 8")
    A(f"s_cbranch_scc1 {name}_a1")
    finish_max(vQA)
    dump([vM, vQA+5] + list(range(vCM, vCM+16)), 1)
    for r in range(16): A(f"v_mov_b32 v{vO+r}, 0")
    A(f"s_mov_b32 s{sI}, s30")
    A.label(f"{name}_a2")
    A(f"s_add_u32 s{sT1}, s31, s{sI}")
    setaddr(sT1, True)
    kreads(0, 0)
    vreads(0, 0)
    set_cm_for(sI)
    A(f"s_waitcnt lgkmcnt(2)")
    qk(0, 0, vQA, f"v[{vCM}:{vCM+15}]")
    expcvt(0, 0, 16)
    cvt(0, 0, 8)
    A(f"s_waitcnt lgkmcnt(0)")
    pv(0, 0); pv(1, 0)
    A(f"s_add_u32 s{sI}, s{sI}, 1")
    A(f"s_cmp_le_u32 s{sI}, 8")
    A(f"s_cbranch_scc1 {name}_a2")
    epilogue(0)
    stamp(A, 2)

    A(f"s_waitcnt vmcnt(0)")
    A(f"s_barrier")
    A(f"s_add_u32 s28, s{sKMs}, {48*1024}")
    dma_group(L_KM + 48*1024, 28, 16)
    A(f"s_add_u32 s28, s{sVs}, {48*V_TILE}")
    dma_group(L_V + 48*V_TILE, 28, 19)
    A(f"s_add_u32 s28, s{sKXs}, {48*256}")
    dma_group(L_KX + 48*256, 28, 4)
    A(f"s_mov_b32 s{sPass}, 0")
    setaddr(0)
    kreads(0, 0)
    A(f"v_mov_b32 v{vM}, s29")
    A(f"s_waitcnt lgkmcnt(0)")
    qk(0, 0, vQB, "0")
    maxtile(0)
    finish_max(vQB)
    A.label(f"{name}_bmain")
    for r in range(16): A(f"v_mov_b32 v{vO+r}, 0")
    setaddr(0)
    kreads(0, 0)
    kreads(1, 1)
    vreads(0, 0)
    A(f"s_waitcnt lgkmcnt(4)")
    qk(0, 0, vQB, "0")
    stamp(A, 3)
    A(f"s_mov_b32 s{sCnt}, 11")
    A(f"s_mov_b32 s{sI}, 0")
    UN = 4
    A.label(f"{name}_bloop")
    for u in range(UN):
        sb = u % 2; nb = (u + 1) % 2
        A(f"s_waitcnt lgkmcnt(2)")
        qk(nb, nb, vQB, "0")
        kreads(sb, u + 2)
        expcvt(sb, 0, 8)
        cvt(sb, 0, 4)
        vreads(nb, u + 1)
        expcvt(sb, 8, 12)
        A(f"s_waitcnt lgkmcnt(4)")
        pv(0, sb)
        expcvt(sb, 12, 16)
        cvt(sb, 4, 8)
        pv(1, sb)
    adv(UN)
    A(f"s_sub_u32 s{sCnt}, s{sCnt}, 1")
    A(f"s_cmp_lg_u32 s{sCnt}, 0")
    A(f"s_cbranch_scc1 {name}_bloop")
    A(f"s_cmp_eq_u32 s{sI}, 1")
    A(f"s_cbranch_scc1 {name}_bdone")
    A(f"s_mov_b32 s{sI}, 1")
    A(f"s_mov_b32 s{sCnt}, 5")
    A(f"s_waitcnt vmcnt(0)")
    A(f"s_barrier")
    A(f"s_branch {name}_bloop")
    A.label(f"{name}_bdone")
    stamp(A, 4)
    A(f"s_cmp_eq_u32 s{sPass}, 1")
    A(f"s_cbranch_scc1 {name}_bfin")
    A(f"s_nop 12")
    A(f"v_mov_b32 v{vT}, {f2u(2.0**100)}")
    A(f"v_cmp_nlt_f32 vcc, v{vO+10}, v{vT}")
    A(f"s_bfm_b64 s[32:33], 32, 0")
    A(f"s_and_b64 vcc, vcc, s[32:33]")
    A(f"s_cbranch_scc0 {name}_bfin")
    A(f"s_mov_b32 s{sPass}, 1")
    A(f"v_mov_b32 v{vQB+5}, 0")
    A(f"v_mov_b32 v{vM}, s29")
    setaddr(0)
    A(f"s_mov_b32 s{sCnt}, 64")
    A.label(f"{name}_bx")
    kreads(0, 0)
    A(f"s_waitcnt lgkmcnt(0)")
    qk(0, 0, vQB, "0")
    maxtile(0)
    adv(1)
    A(f"s_sub_u32 s{sCnt}, s{sCnt}, 1")
    A(f"s_cmp_lg_u32 s{sCnt}, 0")
    A(f"s_cbranch_scc1 {name}_bx")
    finish_max(vQB)
    for r in range(16): A(f"v_mov_b32 v{vO+r}, 0")
    setaddr(0)
    kreads(0, 0)
    kreads(1, 1)
    vreads(0, 0)
    A(f"s_waitcnt lgkmcnt(4)")
    qk(0, 0, vQB, "0")
    A(f"s_mov_b32 s{sCnt}, 16")
    A(f"s_mov_b32 s{sI}, 1")
    A(f"s_nop 4")
    A(f"s_branch {name}_bloop")
    A.label(f"{name}_bfin")
    A(f"s_nop 12")
    epilogue(1)
    if PROF:
        stamp(A, 5)
        stamps_out(A, 1, 6, sWS, sWV, vS)
    rt_end(A, 1, sWV, vS)
    A.label(f"{name}_end")
    A(f"s_endpgm")
    return khead(name) + A.finish(True), kdesc(name, NV, 100)
```

```python
from asmlib import *
from common import *

K3_LDS = 2 * 576 * 128
K3_THREADS = 512
K3_GRID = 216
NCH = 3

def gen_k3(name):
    A = Asm()
    sWS, sW, sOUT = 8, 12, 16
    sTG, sCG, sWV, sBR, sTT, sTILE = 20, 21, 22, 23, 24, 25
    sT0, sT1, sT2, sT3 = 26, 27, 28, 29
    sCH = 30
    vLane = 1
    vL16 = 2
    vLm, vLe = 3, 4
    vAW0, vAW1 = 5, 6
    vT = 8
    vWF = 16
    vACC = 32
    vOF = 64
    NV = 208

    A(f"s_cmp_ge_u32 s2, {K3_GRID}")
    A(f"s_cbranch_scc1 {name}_end")
    stamp(A, 0)
    rt_begin(A)
    A(f"s_load_dwordx2 s[4:5], s[0:1], {ARG['ws']}")
    A(f"s_load_dwordx2 s[6:7], s[0:1], {ARG['A_wo']}")
    A(f"s_load_dwordx2 s[32:33], s[0:1], {ARG['B_wo']}")
    A(f"s_load_dwordx2 s[34:35], s[0:1], {ARG['out']}")
    A(f"v_and_b32 v{vLane}, 63, v0")
    A(f"v_lshrrev_b32 v{vT}, 6, v0")
    A(f"s_and_b32 s{sT0}, s2, 7")
    A(f"v_readfirstlane_b32 s{sWV}, v{vT}")
    A(f"s_lshr_b32 s{sT1}, s2, 3")
    A(f"s_mul_i32 s{sT2}, s{sT1}, 57")
    A(f"s_lshr_b32 s{sT2}, s{sT2}, 9")
    A(f"s_mul_i32 s{sT3}, s{sT2}, 9")
    A(f"s_sub_u32 s{sCG}, s{sT1}, s{sT3}")
    A(f"s_lshl_b32 s{sT2}, s{sT2}, 3")
    A(f"s_add_u32 s{sTG}, s{sT0}, s{sT2}")
    A(f"s_cmp_ge_u32 s{sTG}, 22")
    A(f"s_cbranch_scc1 {name}_end")
    A(f"s_cmp_ge_u32 s{sWV}, 6")
    A(f"s_cbranch_scc0 {name}_comp")

    A(f"s_sub_u32 s{sBR}, s{sWV}, 6")
    A(f"v_lshrrev_b32 v{vT}, 3, v{vLane}")
    A(f"v_and_b32 v{vT+1}, 7, v{vLane}")
    A(f"v_bfe_u32 v{vT+2}, v{vLane}, 4, 1")
    A(f"v_lshlrev_b32 v{vT+3}, 2, v{vT+2}")
    A(f"v_xor_b32 v{vT+1}, v{vT+1}, v{vT+3}")
    A(f"v_lshlrev_b32 v{vT+1}, 4, v{vT+1}")
    A(f"v_lshrrev_b32 v{vT+3}, 2, v{vT}")
    A(f"v_lshlrev_b32 v{vT+3}, 3, v{vT+3}")
    A(f"v_and_b32 v{vT+4}, 3, v{vT}")
    A(f"v_add_u32 v{vT+3}, v{vT+3}, v{vT+4}")
    A(f"v_mul_u32_u24 v{vLm}, 1152, v{vT+3}")
    A(f"v_add_u32 v{vLm}, v{vLm}, v{vT+1}")
    A(f"v_lshrrev_b32 v{vT+3}, 1, v{vT}")
    A(f"v_mul_u32_u24 v{vT+3}, 18, v{vT+3}")
    A(f"v_lshlrev_b32 v{vT+4}, 4, v{vT+2}")
    A(f"v_sub_u32 v{vT+4}, 16, v{vT+4}")
    A(f"v_and_b32 v{vT+5}, 1, v{vT}")
    A(f"v_add3_u32 v{vT+3}, v{vT+3}, v{vT+4}, v{vT+5}")
    A(f"v_mul_u32_u24 v{vLe}, 1152, v{vT+3}")
    A(f"v_add_u32 v{vLe}, v{vLe}, v{vT+1}")
    A("s_waitcnt lgkmcnt(0)")
    A(f"s_cmp_eq_u32 s{sBR}, 0")
    A(f"s_cselect_b32 s{sW}, s6, s32")
    A(f"s_cselect_b32 s{sW+1}, s7, s33")
    A(f"s_and_b32 s{sW+1}, s{sW+1}, 0xffff")
    A(f"s_mov_b32 s{sW+2}, {D*D*2}")
    A(f"s_mov_b32 s{sW+3}, 0x00020000")
    A(f"s_mul_i32 s{sT0}, s{sBR}, {576*128}")
    A(f"s_mov_b32 m0, s{sT0}")
    A(f"s_lshl_b32 s{sT1}, s{sCG}, 7")
    def ld(vreg, soff_imm):
        A(f"s_add_u32 s{sT2}, s{sT1}, {soff_imm}")
        A(f"buffer_load_dwordx4 v{vreg}, s[{sW}:{sW+3}], s{sT2} offen lds")
        A(f"s_add_u32 m0, m0, 1024")
    for s_ in range(36):
        for hk in range(2):
            if s_ < 32: ld(vLm, (18*s_ + 2*(s_ % 2) + 4*hk) * 1152)
            else: ld(vLe, 18*(8*(s_-32) + 4*hk) * 1152)
    A(f"s_waitcnt vmcnt(48)")
    A(f"s_barrier")
    A(f"s_waitcnt vmcnt(24)")
    A(f"s_barrier")
    A(f"s_waitcnt vmcnt(0)")
    A(f"s_barrier")
    A(f"s_barrier")
    A(f"s_barrier")
    A(f"s_endpgm")

    A.label(f"{name}_comp")
    A(f"s_cmp_ge_u32 s{sWV}, 3")
    A(f"s_cselect_b32 s{sBR}, 1, 0")
    A(f"s_mul_i32 s{sT0}, s{sBR}, 3")
    A(f"s_sub_u32 s{sTT}, s{sWV}, s{sT0}")
    A(f"s_mul_i32 s{sTILE}, s{sTG}, 3")
    A(f"s_add_u32 s{sTILE}, s{sTILE}, s{sTT}")
    A(f"s_min_u32 s{sT3}, s{sTILE}, 63")
    A(f"v_lshlrev_b32 v{vL16}, 4, v{vLane}")
    A("s_waitcnt lgkmcnt(0)")
    srd(A, sWS, 4, 5, WS_SIZE)
    srd(A, sOUT, 34, 35, T*D*2)
    A(f"s_lshl_b32 s{sT0}, s{sBR}, 6")
    A(f"s_add_u32 s{sT0}, s{sT0}, s{sT3}")
    A(f"s_lshl_b32 s{sT1}, s{sT0}, 15")
    A(f"s_add_u32 s{sT1}, s{sT1}, {WS_OM}")
    for s_ in range(32):
        r = vOF + 4*s_
        if s_ % 4 == 0 and s_:
            A(f"s_add_u32 s{sT1}, s{sT1}, 4096")
        A(f"buffer_load_dwordx4 v[{r}:{r+3}], v{vL16}, s[{sWS}:{sWS+3}], s{sT1} offen offset:{(s_ % 4)*1024}")
    A(f"v_and_b32 v{vT}, 31, v{vLane}")
    A(f"v_lshlrev_b32 v{vT}, 2, v{vT}")
    A(f"v_lshrrev_b32 v{vT+1}, 5, v{vLane}")
    A(f"v_lshl_add_u32 v{vT}, v{vT+1}, 9, v{vT}")
    A(f"s_lshl_b32 s{sT1}, s{sT0}, 12")
    A(f"s_add_u32 s{sT1}, s{sT1}, {WS_OX}")
    for sp in range(4):
        for i in range(4):
            r = vOF + 4*(32+sp) + i
            A(f"buffer_load_dword v{r}, v{vT}, s[{sWS}:{sWS+3}], s{sT1} offen offset:{sp*1024 + i*128}")
    A(f"v_bfe_u32 v{vT+2}, v{vLane}, 2, 2")
    A(f"v_lshl_add_u32 v{vT+3}, v{vT+1}, 3, v{vT+2}")
    A(f"v_lshlrev_b32 v{vT+3}, 7, v{vT+3}")
    A(f"v_bfe_u32 v{vT+4}, v{vLane}, 4, 1")
    A(f"v_lshlrev_b32 v{vT+4}, 5, v{vT+4}")
    A(f"v_and_b32 v{vT+5}, 1, v{vLane}")
    A(f"v_lshlrev_b32 v{vT+5}, 1, v{vT+5}")
    A(f"v_bfe_u32 v{vT+6}, v{vLane}, 1, 1")
    A(f"v_or_b32 v{vT+5}, v{vT+5}, v{vT+6}")
    A(f"v_lshl_add_u32 v{vT+4}, v{vT+5}, 3, v{vT+4}")
    A(f"v_lshrrev_b32 v{vT+2}, 1, v{vT+2}")
    A(f"v_lshlrev_b32 v{vT+2}, 6, v{vT+2}")
    A(f"v_xor_b32 v{vT+4}, v{vT+4}, v{vT+2}")
    A(f"s_mul_i32 s{sT0}, s{sBR}, {576*128}")
    A(f"v_add3_u32 v{vAW0}, v{vT+3}, v{vT+4}, s{sT0}")
    A(f"v_xor_b32 v{vAW1}, 64, v{vAW0}")
    for i in range(32): A(f"v_mov_b32 v{vACC+i}, 0")
    stamp(A, 1)
    def wreads(s_, buf):
        wf = vWF + 8*buf
        off = (s_ % 12) * 2048
        A(f"ds_read_b64_tr_b16 v[{wf}:{wf+1}], v{vAW0} offset:{off}")
        A(f"ds_read_b64_tr_b16 v[{wf+2}:{wf+3}], v{vAW0} offset:{off+512}")
        A(f"ds_read_b64_tr_b16 v[{wf+4}:{wf+5}], v{vAW1} offset:{off}")
        A(f"ds_read_b64_tr_b16 v[{wf+6}:{wf+7}], v{vAW1} offset:{off+512}")
    for ch in range(NCH):
        A(f"s_barrier")
        if ch == 0: stamp(A, 2)
        wreads(12*ch, 0)
        for q in range(12):
            s_ = 12*ch + q
            if q < 11:
                wreads(s_+1, (q+1) % 2)
                A(f"s_waitcnt lgkmcnt(4)")
            else:
                A(f"s_waitcnt lgkmcnt(0)")
            if s_ < 32: rem = (31 - s_) + 16
            else: rem = (35 - s_) * 4
            A(f"s_waitcnt vmcnt({min(rem, 63)})")
            of = vOF + 4*s_; wf = vWF + 8*(q % 2)
            for t in range(2):
                acc = vACC + 16*t
                A(f"v_mfma_f32_32x32x16_bf16 v[{acc}:{acc+15}], v[{wf+4*t}:{wf+4*t+3}], v[{of}:{of+3}], v[{acc}:{acc+15}]")
        if ch < NCH-1:
            A(f"v_add_u32 v{vAW0}, {12*2048}, v{vAW0}")
            A(f"v_add_u32 v{vAW1}, {12*2048}, v{vAW1}")
    stamp(A, 3)
    A(f"s_barrier")
    A(f"s_lshl_b32 s{sT0}, s{sTT}, 13")
    A(f"v_add_u32 v{vT}, s{sT0}, v{vL16}")
    A(f"s_cmp_eq_u32 s{sBR}, 0")
    A(f"s_cbranch_scc1 {name}_a")
    A(f"s_nop 8")
    for i in range(8):
        A(f"ds_write_b128 v{vT}, v[{vACC+4*i}:{vACC+4*i+3}] offset:{i*1024}")
    A(f"s_waitcnt lgkmcnt(0)")
    A(f"s_barrier")
    A(f"s_endpgm")
    A.label(f"{name}_a")
    A(f"s_barrier")
    for i in range(8):
        A(f"ds_read_b128 v[{vOF+4*i}:{vOF+4*i+3}], v{vT} offset:{i*1024}")
    A(f"s_cmp_ge_u32 s{sTILE}, 64")
    A(f"s_cbranch_scc1 {name}_end")
    A(f"s_waitcnt lgkmcnt(0)")
    for i in range(32): A(f"v_add_f32 v{vACC+i}, v{vACC+i}, v{vOF+i}")
    for i in range(16): A(f"v_cvt_pk_bf16_f32 v{vWF+i}, v{vACC+2*i}, v{vACC+2*i+1}")
    A(f"v_and_b32 v{vT}, 31, v{vLane}")
    A(f"v_mul_u32_u24 v{vT}, 1152, v{vT}")
    A(f"v_lshrrev_b32 v{vT+1}, 5, v{vLane}")
    A(f"v_lshl_add_u32 v{vT}, v{vT+1}, 4, v{vT}")
    A(f"s_mul_i32 s{sT0}, s{sTILE}, {32*1152}")
    A(f"s_lshl_b32 s{sT1}, s{sCG}, 7")
    A(f"s_add_u32 s{sT0}, s{sT0}, s{sT1}")
    for t in range(2):
        for half in range(2):
            r = vWF + 8*t + 4*half
            A(f"buffer_store_dwordx4 v[{r}:{r+3}], v{vT}, s[{sOUT}:{sOUT+3}], s{sT0} offen offset:{t*64 + half*32}")
    if PROF:
        stamp(A, 4)
        A("s_waitcnt vmcnt(0)")
        stamp(A, 5)
        stamps_out(A, 2, 6, sWS, sWV, vOF)
    rt_end(A, 2, sWV, vOF)
    A.label(f"{name}_end")
    A(f"s_endpgm")
    return khead(name) + A.finish(True), kdesc(name, NV, 100)
```

```python
import sys, importlib
sys.path.insert(0, 'gen')
from common import *
import k1
NAME = "gated_mix__sliding_block__softmax_full_mha__prompt"
def build(kernels, path):
    hdr = open('cdna_kernels/%s.s.ref' % NAME).read().split('; Override launch')[0]
    txt = hdr
    for k in kernels:
        txt += f"; @launch kernel={k['name']} grid=({k['grid']},1,1) block=({k['block']},1,1) lds={k['lds']}\n"
    txt += '.amdgcn_target "amdgcn-amd-amdhsa--gfx950"\n.text\n'
    descs = ''
    for k in kernels:
        txt += k['code'] + '\n'
        descs += k['desc']
    txt += descs
    open(path, 'w').write(txt)
    return txt
if __name__ == '__main__':
    ks = []
    c, d = k1.gen_k1('k1_qkv_kernel')
    ks.append(dict(name='k1_qkv_kernel', grid=k1.K1_GRID, block=k1.K1_THREADS, lds=k1.K1_LDS, code=c, desc=d))
    which = sys.argv[1] if len(sys.argv) > 1 else '1'
    if '2' in which:
        import k2
        c, d = k2.gen_k2('k2_attn_kernel')
        ks.append(dict(name='k2_attn_kernel', grid=256, block=k2.K2_THREADS, lds=k2.K2_LDS, code=c, desc=d))
    if '3' in which:
        import k3
        c, d = k3.gen_k3('k3_out_kernel')
        ks.append(dict(name='k3_out_kernel', grid=k3.K3_GRID, block=k3.K3_THREADS, lds=k3.K3_LDS, code=c, desc=d))
    out = sys.argv[2] if len(sys.argv) > 2 else 'cur.s'
    build(ks, out)
    print('wrote', out)
```

```python
T = 2048; D = 576; H = 32; DH = 18
WS_QM = 0x000000
WS_KM = 0x400000
WS_V  = 0x800000
V_HEAD = 77824
V_TILE = 1216
WS_QX = 0xD00000
WS_KX = 0xD80000
WS_G  = 0xE00000
WS_OM = 0x1000000
WS_OX = 0x1400000
WS_SIZE = 0x1600000
QSCALE = 1.4426950408889634 / (18 ** 0.5)
import struct
def f2u(x): return struct.unpack('<I', struct.pack('<f', x))[0]
ARG = dict(A_x=0, A_wqkv=8, A_wo=16, B_x=24, B_wqkv=32, B_wo=40, gate_w=48, out=56, dbg=64, ws=72)

def kdesc(name, nv, ns, acc=None):
    acc = acc if acc is not None else (nv + 3) // 4 * 4
    return f""".section .rodata,"a"
.p2align 6
.amdhsa_kernel {name}
  .amdhsa_next_free_vgpr {nv}
  .amdhsa_next_free_sgpr {ns}
  .amdhsa_accum_offset {acc}
  .amdhsa_group_segment_fixed_size 0
  .amdhsa_kernarg_size 80
  .amdhsa_user_sgpr_count 2
  .amdhsa_user_sgpr_kernarg_segment_ptr 1
  .amdhsa_system_sgpr_workgroup_id_x 1
.end_amdhsa_kernel
.text
"""
def khead(name):
    return f""".globl {name}
.p2align 8
.type {name},@function
{name}:
"""
def srd(A, base, ptr_lo, ptr_hi, nbytes):
    A(f"s_mov_b32 s{base}, s{ptr_lo}")
    A(f"s_and_b32 s{base+1}, s{ptr_hi}, 0xffff")
    A(f"s_mov_b32 s{base+2}, {nbytes}")
    A(f"s_mov_b32 s{base+3}, 0x00020000")

WS_PROF = 0x1500000
import os
PROF = int(os.environ.get("PROF", "0"))
def stamp(A, i, base=64):
    if PROF:
        A(f"s_memtime s[{base+2*i}:{base+2*i+1}]")
        A(f"s_waitcnt lgkmcnt(0)")
def stamps_out(A, kidx, n, sWS, sWave, vt, base=64):
    if not PROF: return
    A(f"s_lshl_b32 s{base+30}, s2, 4")
    A(f"s_add_u32 s{base+30}, s{base+30}, s{sWave}")
    A(f"s_lshl_b32 s{base+30}, s{base+30}, 5")
    A(f"s_add_u32 s{base+30}, s{base+30}, {WS_PROF + kidx*0x40000}")
    A(f"v_mov_b32 v{vt+8}, 0")
    for i in range(8):
        if i < n:
            A(f"s_sub_u32 s{base+31}, s{base+2*i}, s{base}" if i else f"s_mov_b32 s{base+31}, s{base}")
            A(f"v_mov_b32 v{vt+i}, s{base+31}")
        else:
            A(f"v_mov_b32 v{vt+i}, 0")
    A(f"s_bfm_b64 exec, 1, 0")
    A(f"buffer_store_dwordx4 v[{vt}:{vt+3}], v{vt+8}, s[{sWS}:{sWS+3}], s{base+30} offen")
    A(f"buffer_store_dwordx4 v[{vt+4}:{vt+7}], v{vt+8}, s[{sWS}:{sWS+3}], s{base+30} offen offset:16")
    A(f"s_mov_b64 exec, -1")

RT = int(os.environ.get("RT", "0"))
def rt_begin(A):
    if RT:
        A("s_memrealtime s[96:97]")
        A("s_memtime s[92:93]")
def rt_end(A, kidx, cond_sreg_wave, vt):
    if not RT: return
    lab = f"rt_skip_{kidx}_{rt_end.n}"; rt_end.n += 1
    A("s_waitcnt vmcnt(0)")
    A("s_memrealtime s[98:99]")
    A("s_memtime s[94:95]")
    A("s_load_dwordx2 s[90:91], s[0:1], 64")
    A("s_waitcnt lgkmcnt(0)")
    A("s_cmp_lg_u32 s2, 0")
    A(f"s_cbranch_scc1 {lab}")
    A(f"s_cmp_lg_u32 s{cond_sreg_wave}, 0")
    A(f"s_cbranch_scc1 {lab}")
    A(f"s_sub_u32 s90, s90, {512*kidx}")
    A(f"s_subb_u32 s91, s91, 0")
    A(f"s_sub_u32 s94, s94, s92")
    A(f"v_mov_b32 v{vt}, s96")
    A(f"v_mov_b32 v{vt+1}, s98")
    A(f"v_mov_b32 v{vt+2}, s94")
    A(f"v_mov_b32 v{vt+3}, 0")
    A(f"v_mov_b32 v{vt+4}, {16*kidx}")
    A(f"s_mov_b64 exec, 1")
    A(f"global_store_dwordx4 v{vt+4}, v[{vt}:{vt+3}], s[90:91]")
    A(f"s_waitcnt vmcnt(0)")
    A(f"s_mov_b64 exec, -1")
    A.label(lab)
rt_end.n = 0

STORE_MOD = os.environ.get("STORE_MOD", "")
if STORE_MOD: STORE_MOD = " " + STORE_MOD
```

```python
from asmlib import *
from common import *
import os

K1_W0 = 32768
K1_STAGE = 49152
K1_LDS = 3 * K1_STAGE
K1_THREADS = 896
K1_GRID = 224
GT = int(os.environ.get("GT", "0"))
EXP = int(os.environ.get("EXP", "0"))
TOUCH = int(os.environ.get("TOUCH", "2"))

def gen_k1(name):
    A = Asm()
    sX, sWS, sG = 8, 16, 20
    sCG, sTB, sWV, sCH = 24, 25, 26, 27
    sOff, sOffI, sOffC = 28, 29, 30
    sM0, sM0I = 31, 32
    sStL = 33
    sDelta = 34
    sStR = 35
    sT0, sT1, sT2, sT3 = 36, 37, 38, 39
    sFP, sTP, sBLK, sBR, sBETA, sTY = 40, 41, 42, 43, 50, 51
    vLane = 1
    vLo = 2
    vTo, vTd = 3, 4
    vAX = 6
    vAW0, vAW1 = 10, 11
    vT = 12
    vXF = 24
    vWF = 40
    vACC = 56
    vSO = 120
    vP = 24
    NV = 128

    A(f"s_cmp_ge_u32 s2, {K1_GRID}")
    A(f"s_cbranch_scc1 {name}_end")
    stamp(A, 0)
    rt_begin(A)
    A(f"s_load_dwordx4 s[4:7], s[0:1], 0")
    A(f"s_load_dwordx2 s[44:45], s[0:1], {ARG['B_wqkv']}")
    A(f"s_load_dwordx2 s[46:47], s[0:1], {ARG['gate_w']}")
    A(f"s_load_dwordx2 s[48:49], s[0:1], {ARG['ws']}")
    A(f"v_and_b32 v{vLane}, 63, v0")
    A(f"v_lshrrev_b32 v{vT}, 6, v0")
    A(f"s_and_b32 s{sT0}, s2, 7")
    A(f"v_readfirstlane_b32 s{sWV}, v{vT}")
    A(f"s_lshr_b32 s{sT1}, s2, 3")
    A(f"s_lshr_b32 s{sT2}, s{sT0}, 2")
    A(f"s_lshl_b32 s{sT2}, s{sT2}, 2")
    A(f"s_and_b32 s{sT3}, s{sT1}, 3")
    A(f"s_add_u32 s{sTB}, s{sT2}, s{sT3}")
    A(f"s_and_b32 s{sT2}, s{sT0}, 3")
    A(f"s_mul_i32 s{sT2}, s{sT2}, 7")
    A(f"s_lshr_b32 s{sT3}, s{sT1}, 2")
    A(f"s_add_u32 s{sCG}, s{sT2}, s{sT3}")
    A(f"s_cmp_ge_u32 s{sCG}, 27")
    A(f"s_cbranch_scc1 {name}_end")
    A(f"s_cmp_ge_u32 s{sWV}, 8")
    A(f"s_cbranch_scc0 {name}_comp")
    A(f"s_cmp_ge_u32 s{sWV}, 12")
    A(f"s_cbranch_scc1 {name}_ldw")

    A(f"s_sub_u32 s{sT3}, s{sWV}, 8")
    A(f"v_lshrrev_b32 v{vT}, 3, v{vLane}")
    A(f"s_lshl_b32 s{sT0}, s{sT3}, 3")
    A(f"v_add_u32 v{vT}, s{sT0}, v{vT}")
    A(f"v_mul_u32_u24 v{vLo}, 1152, v{vT}")
    A(f"v_lshrrev_b32 v{vT+1}, 4, v{vLane}")
    A(f"s_and_b32 s{sT0}, s{sT3}, 1")
    A(f"s_lshl_b32 s{sT0}, s{sT0}, 2")
    A(f"v_add_u32 v{vT+1}, s{sT0}, v{vT+1}")
    A(f"v_and_b32 v{vT+2}, 7, v{vLane}")
    A(f"v_xor_b32 v{vT+2}, v{vT+2}, v{vT+1}")
    A(f"v_lshl_add_u32 v{vLo}, v{vT+2}, 4, v{vLo}")
    A(f"s_lshr_b32 s{sT0}, s2, 5")
    A(f"s_mul_i32 s{sT0}, s{sT0}, 37")
    A(f"s_mul_i32 s{sT1}, s{sT3}, 10")
    A(f"s_add_u32 s{sT0}, s{sT0}, s{sT1}")
    A(f"v_lshrrev_b32 v{vT+3}, 1, v{vLane}")
    A(f"v_add_u32 v{vT+3}, s{sT0}, v{vT+3}")
    A(f"v_min_u32 v{vT+3}, 255, v{vT+3}")
    A(f"v_mul_u32_u24 v{vTo}, 1152, v{vT+3}")
    A(f"v_and_b32 v{vT+3}, 1, v{vLane}")
    A(f"v_lshl_add_u32 v{vTo}, v{vT+3}, 6, v{vTo}")
    A(f"s_mov_b32 s59, {(1 << 20) - 1}")
    A(f"s_lshl_b32 s{sM0}, s{sT3}, 10")
    A(f"s_mov_b32 s{sM0I}, 4096")
    A(f"s_mul_i32 s{sOff}, s{sTB}, {256*1152}")
    if EXP == 1: A(f"s_mov_b32 s{sOff}, 0")
    A(f"s_mov_b32 s{sOffI}, {32*1152}")
    A(f"s_mov_b32 s{sOffC}, 128")
    A("s_waitcnt lgkmcnt(0)")
    srd(A, sX, 4, 5, T * D * 2)
    A(f"s_mov_b32 s54, 1")
    A(f"s_branch {name}_ld")
    A.label(f"{name}_ldw")
    A(f"s_sub_u32 s{sT3}, s{sWV}, 12")
    A(f"s_lshl_b32 s{sBLK}, s{sCG}, 1")
    A(f"s_add_u32 s{sBLK}, s{sBLK}, s{sT3}")
    A(f"s_cmp_ge_u32 s{sBLK}, 27")
    A(f"s_cselect_b32 s{sBR}, 1, 0")
    A(f"s_mul_i32 s{sT0}, s{sBR}, 27")
    A(f"s_sub_u32 s{sBETA}, s{sBLK}, s{sT0}")
    A(f"v_lshrrev_b32 v{vT}, 3, v{vLane}")
    A(f"v_mul_u32_u24 v{vLo}, 3456, v{vT}")
    A(f"v_bfe_u32 v{vT+1}, v{vLane}, 4, 1")
    A(f"v_lshlrev_b32 v{vT+1}, 2, v{vT+1}")
    A(f"v_and_b32 v{vT+2}, 7, v{vLane}")
    A(f"v_xor_b32 v{vT+2}, v{vT+2}, v{vT+1}")
    A(f"v_lshl_add_u32 v{vLo}, v{vT+2}, 4, v{vLo}")
    A(f"s_and_b32 s{sT0}, s{sTB}, 3")
    A(f"s_lshl_b32 s{sT0}, s{sT0}, 4")
    A(f"v_lshrrev_b32 v{vT+3}, 1, v{vLane}")
    A(f"v_add_u32 v{vT+3}, s{sT0}, v{vT+3}")
    A(f"v_mul_u32_u24 v{vTo}, 3456, v{vT+3}")
    A(f"v_and_b32 v{vT+3}, 1, v{vLane}")
    A(f"v_lshl_add_u32 v{vTo}, v{vT+3}, 6, v{vTo}")
    A(f"s_mov_b32 s59, -1")
    A(f"s_lshl_b32 s{sM0}, s{sT3}, 13")
    A(f"s_add_u32 s{sM0}, s{sM0}, {K1_W0}")
    A(f"s_mov_b32 s{sM0I}, 1024")
    A(f"s_lshl_b32 s{sOff}, s{sBETA}, 7")
    if EXP == 1: A(f"s_mov_b32 s{sOff}, 0")
    A(f"s_mov_b32 s{sOffI}, {8*3456}")
    A(f"s_mov_b32 s{sOffC}, {64*3456}")
    A("s_waitcnt lgkmcnt(0)")
    A(f"s_cmp_eq_u32 s{sBR}, 0")
    A(f"s_cselect_b32 s{sX}, s6, s44")
    A(f"s_cselect_b32 s{sX+1}, s7, s45")
    A(f"s_and_b32 s{sX+1}, s{sX+1}, 0xffff")
    A(f"s_mov_b32 s{sX+2}, {D*3*D*2}")
    A(f"s_mov_b32 s{sX+3}, 0x00020000")
    A(f"s_mov_b32 s54, 0")
    A.label(f"{name}_ld")
    def issue():
        A(f"s_add_u32 m0, s{sStL}, s{sM0}")
        A(f"s_mov_b32 s{sT1}, s{sOff}")
        for j in range(8):
            if EXP != 2: A(f"buffer_load_dwordx4 v{vLo}, s[{sX}:{sX+3}], s{sT1} offen lds")
            if j < 7:
                A(f"s_add_u32 m0, m0, s{sM0I}")
                A(f"s_add_u32 s{sT1}, s{sT1}, s{sOffI}")
        if TOUCH:
            A(f"s_mul_i32 s{sT1}, s{sOffC}, {TOUCH}")
            A(f"s_add_u32 s{sT1}, s{sT1}, s{sOff}")
            A(f"s_mov_b32 exec_lo, s59")
            A(f"s_mov_b32 exec_hi, 0")
            A(f"buffer_load_dword v{vTd}, v{vTo}, s[{sX}:{sX+3}], s{sT1} offen")
            A(f"s_mov_b64 exec, -1")
        A(f"s_add_u32 s{sOff}, s{sOff}, s{sOffC}")
        A(f"s_add_u32 s{sStL}, s{sStL}, {K1_STAGE}")
        A(f"s_cmp_eq_u32 s{sStL}, {3*K1_STAGE}")
        A(f"s_cselect_b32 s{sStL}, 0, s{sStL}")
    stamp(A, 1)
    A(f"s_mov_b32 s{sStL}, 0")
    A(f"s_mov_b32 s{sCH}, -2")
    A.label(f"{name}_ld_loop")
    A(f"s_cmp_lt_i32 s{sCH}, 0")
    A(f"s_cbranch_scc1 {name}_ld_issue")
    A(f"s_cmp_eq_u32 s{sCH}, 8")
    A(f"s_cbranch_scc1 {name}_ld_last")
    A(f"s_waitcnt vmcnt({9 if TOUCH else 8})")
    if PROF:
        A(f"s_cmp_eq_u32 s{sCH}, 0")
        A(f"s_cbranch_scc0 {name}_ld_ns")
        stamp(A, 2)
        A.label(f"{name}_ld_ns")
    A(f"s_barrier")
    A(f"s_cmp_eq_u32 s{sCH}, 7")
    A(f"s_cbranch_scc1 {name}_ld_skip")
    A.label(f"{name}_ld_issue")
    issue()
    A.label(f"{name}_ld_skip")
    A(f"s_add_u32 s{sCH}, s{sCH}, 1")
    A(f"s_branch {name}_ld_loop")
    A.label(f"{name}_ld_last")
    A(f"s_waitcnt vmcnt(0)")
    A(f"s_barrier")
    if PROF:
        stamp(A, 3)
        A("s_load_dwordx2 s[48:49], s[0:1], 72")
        A("s_waitcnt lgkmcnt(0)")
        srd(A, sWS, 48, 49, WS_SIZE)
        stamps_out(A, 0, 4, sWS, sWV, vP)
    A(f"s_endpgm")

    A.label(f"{name}_comp")
    A(f"s_lshr_b32 s{sFP}, s{sWV}, 2")
    A(f"s_and_b32 s{sTP}, s{sWV}, 3")
    A(f"s_lshl_b32 s{sBLK}, s{sCG}, 1")
    A(f"s_add_u32 s{sBLK}, s{sBLK}, s{sFP}")
    A(f"s_cmp_ge_u32 s{sBLK}, 27")
    A(f"s_cselect_b32 s{sBR}, 1, 0")
    A(f"s_mul_i32 s{sT0}, s{sBR}, 27")
    A(f"s_sub_u32 s{sBETA}, s{sBLK}, s{sT0}")
    A(f"s_mov_b32 s{sTY}, 0")
    A(f"s_cmp_ge_u32 s{sBETA}, 9")
    A(f"s_addc_u32 s{sTY}, s{sTY}, 0")
    A(f"s_cmp_ge_u32 s{sBETA}, 18")
    A(f"s_addc_u32 s{sTY}, s{sTY}, 0")
    vG = vACC
    for i in range(24): A(f"v_mov_b32 v{vG+i}, 0")
    A("s_waitcnt lgkmcnt(0)")
    srd(A, sX, 4, 5, T * D * 2)
    srd(A, sWS, 48, 49, WS_SIZE)
    if GT:
        A(f"s_lshl_b32 s{sT0}, s{sCG}, 3")
        A(f"s_add_u32 s{sT0}, s{sT0}, s{sTB}")
        A(f"v_mul_u32_u24 v{vT}, {GT}, v{vLane}")
        nper = 64 * GT
        nx = -(-11008 // nper); nw = -(-9216 // nper)
        lab = f"{name}_gt"
        A(f"s_cmp_lt_u32 s{sWV}, {nx}")
        A(f"s_cbranch_scc0 {lab}_w")
        A(f"s_mul_i32 s{sT1}, s{sT0}, 11008")
        A(f"s_mul_i32 s{sT2}, s{sWV}, {nper}")
        A(f"s_add_u32 s{sT1}, s{sT1}, s{sT2}")
        A(f"buffer_load_dword v{vTd}, v{vT}, s[{sX}:{sX+3}], s{sT1} offen")
        A(f"s_branch {lab}_e")
        A.label(f"{lab}_w")
        A(f"s_sub_u32 s{sT3}, s{sWV}, {nx}")
        A(f"s_cmp_lt_u32 s{sT3}, {2*nw}")
        A(f"s_cbranch_scc0 {lab}_e")
        A(f"s_cmp_lt_u32 s{sT3}, {nw}")
        A(f"s_cselect_b32 s{sG}, s6, s44")
        A(f"s_cselect_b32 s{sG+1}, s7, s45")
        A(f"s_cselect_b32 s{sT2}, 0, {nw}")
        A(f"s_sub_u32 s{sT3}, s{sT3}, s{sT2}")
        A(f"s_and_b32 s{sG+1}, s{sG+1}, 0xffff")
        A(f"s_mov_b32 s{sG+2}, {D*3*D*2}")
        A(f"s_mov_b32 s{sG+3}, 0x00020000")
        A(f"s_mul_i32 s{sT1}, s{sT0}, 9216")
        A(f"s_mul_i32 s{sT2}, s{sT3}, {nper}")
        A(f"s_add_u32 s{sT1}, s{sT1}, s{sT2}")
        A(f"buffer_load_dword v{vTd}, v{vT}, s[{sG}:{sG+3}], s{sT1} offen")
        A.label(f"{lab}_e")
    srd(A, sG, 46, 47, D * 2)
    A(f"s_cmp_ge_u32 s{sCG}, 16")
    A(f"s_cbranch_scc1 {name}_nog1")
    A(f"s_lshl_b32 s{sT0}, s{sTB}, 8")
    A(f"s_lshl_b32 s{sT1}, s{sCG}, 4")
    A(f"s_add_u32 s{sT0}, s{sT0}, s{sT1}")
    A(f"s_lshl_b32 s{sT1}, s{sWV}, 1")
    A(f"s_add_u32 s52, s{sT0}, s{sT1}")
    A(f"s_mul_i32 s{sT0}, s52, 1152")
    A(f"v_lshlrev_b32 v{vT}, 5, v{vLane}")
    A(f"s_bfm_b64 exec, 36, 0")
    A(f"buffer_load_dwordx4 v[{vG}:{vG+3}], v{vT}, s[{sX}:{sX+3}], s{sT0} offen")
    A(f"buffer_load_dwordx4 v[{vG+4}:{vG+7}], v{vT}, s[{sX}:{sX+3}], s{sT0} offen offset:16")
    A(f"buffer_load_dwordx4 v[{vG+8}:{vG+11}], v{vT}, s[{sX}:{sX+3}], s{sT0} offen offset:1152")
    A(f"buffer_load_dwordx4 v[{vG+12}:{vG+15}], v{vT}, s[{sX}:{sX+3}], s{sT0} offen offset:1168")
    A(f"buffer_load_dwordx4 v[{vG+16}:{vG+19}], v{vT}, s[{sG}:{sG+3}], 0 offen")
    A(f"buffer_load_dwordx4 v[{vG+20}:{vG+23}], v{vT}, s[{sG}:{sG+3}], 0 offen offset:16")
    A(f"s_mov_b64 exec, -1")
    A.label(f"{name}_nog1")
    A(f"v_and_b32 v{vT}, 31, v{vLane}")
    A(f"v_lshrrev_b32 v{vT+1}, 5, v{vLane}")
    A(f"v_bfe_u32 v{vT+2}, v{vLane}, 1, 3")
    A(f"v_xor_b32 v{vT+2}, v{vT+2}, v{vT+1}")
    A(f"v_lshlrev_b32 v{vT+2}, 4, v{vT+2}")
    A(f"s_lshl_b32 s{sT0}, s{sTP}, 6")
    A(f"v_add_u32 v{vT}, s{sT0}, v{vT}")
    A(f"v_lshlrev_b32 v{vT}, 7, v{vT}")
    for s_ in range(4):
        A(f"v_xor_b32 v{vT+3}, {32*s_}, v{vT+2}")
        A(f"v_add_u32 v{vAX+s_}, v{vT}, v{vT+3}")
    A(f"v_bfe_u32 v{vT+2}, v{vLane}, 2, 2")
    A(f"v_lshl_add_u32 v{vT+3}, v{vT+1}, 3, v{vT+2}")
    A(f"v_lshlrev_b32 v{vT+3}, 7, v{vT+3}")
    A(f"v_bfe_u32 v{vT+4}, v{vLane}, 4, 1")
    A(f"v_lshlrev_b32 v{vT+4}, 5, v{vT+4}")
    A(f"v_and_b32 v{vT+5}, 3, v{vLane}")
    A(f"v_lshl_add_u32 v{vT+4}, v{vT+5}, 3, v{vT+4}")
    A(f"v_lshrrev_b32 v{vT+2}, 1, v{vT+2}")
    A(f"v_lshlrev_b32 v{vT+2}, 6, v{vT+2}")
    A(f"v_xor_b32 v{vT+4}, v{vT+4}, v{vT+2}")
    A(f"s_lshl_b32 s{sT0}, s{sFP}, 13")
    A(f"s_add_u32 s{sT0}, s{sT0}, {K1_W0}")
    A(f"v_add3_u32 v{vAW0}, v{vT+3}, v{vT+4}, s{sT0}")
    A(f"v_xor_b32 v{vAW1}, 64, v{vAW0}")
    A(f"s_lshl_b32 s{sT0}, s{sTB}, 3")
    A(f"s_lshl_b32 s{sT1}, s{sTP}, 1")
    A(f"s_add_u32 s53, s{sT0}, s{sT1}")
    A(f"s_cmp_eq_u32 s{sTY}, 2")
    A(f"s_cbranch_scc1 {name}_sov")
    A(f"s_mul_i32 s{sT0}, s{sTY}, 9")
    A(f"s_sub_u32 s{sT0}, s{sBETA}, s{sT0}")
    A(f"s_lshl_b32 s{sT0}, s{sT0}, 4")
    A(f"s_mul_i32 s{sT1}, s{sTY}, {WS_KM-WS_QM}")
    A(f"s_lshl_b32 s{sT2}, s{sBR}, 21")
    A(f"s_add_u32 s{sT1}, s{sT1}, s{sT2}")
    A(f"s_lshl_b32 s{sT2}, s53, 10")
    A(f"s_add_u32 s{sT1}, s{sT1}, s{sT2}")
    A(f"s_add_u32 s54, s{sT1}, {WS_QM}")
    A(f"s_mul_i32 s{sT1}, s{sTY}, {WS_KX-WS_QX}")
    A(f"s_lshl_b32 s{sT2}, s{sBR}, 18")
    A(f"s_add_u32 s{sT1}, s{sT1}, s{sT2}")
    A(f"s_lshl_b32 s{sT2}, s53, 8")
    A(f"s_add_u32 s{sT1}, s{sT1}, s{sT2}")
    A(f"s_add_u32 s55, s{sT1}, {WS_QX}")
    A(f"v_and_b32 v{vT}, 31, v{vLane}")
    A(f"v_lshlrev_b32 v{vT+6}, 4, v{vT}")
    A(f"v_add_u32 v{vT+6}, s54, v{vT+6}")
    A(f"v_lshlrev_b32 v{vT+7}, 3, v{vT}")
    A(f"v_add_u32 v{vT+7}, s55, v{vT+7}")
    A(f"v_add_u32 v{vT+8}, s{sT0}, v{vT+1}")
    for t in range(2):
        for i in range(4):
            d = vSO + 4*t + i
            A(f"v_add_u32 v{vT}, {8*t+2*i}, v{vT+8}")
            A(f"v_mul_u32_u24 v{vT+2}, 7282, v{vT}")
            A(f"v_lshrrev_b32 v{vT+2}, 16, v{vT+2}")
            A(f"v_mul_u32_u24 v{vT+3}, 9, v{vT+2}")
            A(f"v_sub_u32 v{vT+3}, v{vT}, v{vT+3}")
            A(f"v_cmp_lt_u32 vcc, 4, v{vT+3}")
            A(f"v_cndmask_b32 v{vT+4}, 0, 1, vcc")
            A(f"v_lshl_add_u32 v{vT+5}, v{vT+2}, 1, v{vT+4}")
            A(f"v_lshlrev_b32 v{vT+5}, 16, v{vT+5}")
            A(f"v_mul_u32_u24 v{vT+4}, 5, v{vT+4}")
            A(f"v_sub_u32 v{vT+4}, v{vT+3}, v{vT+4}")
            A(f"v_and_b32 v{vT+9}, 1, v{vT+4}")
            A(f"v_lshl_add_u32 v{vT+5}, v{vT+9}, 3, v{vT+5}")
            A(f"v_lshrrev_b32 v{vT+9}, 1, v{vT+4}")
            A(f"v_lshl_add_u32 v{vT+5}, v{vT+9}, 9, v{vT+5}")
            A(f"v_add_u32 v{vT+5}, v{vT+5}, v{vT+6}")
            A(f"v_lshl_add_u32 v{vT+9}, v{vT+2}, 14, v{vT+7}")
            A(f"v_cmp_eq_u32 vcc, 4, v{vT+3}")
            A(f"v_cndmask_b32 v{d}, v{vT+5}, v{vT+9}, vcc")
            A(f"v_cndmask_b32 v{vT+9}, 0, 1, vcc")
            A(f"v_or_b32 v{d}, v{d}, v{vT+9}")
    A(f"s_branch {name}_sod")
    A.label(f"{name}_sov")
    A(f"s_sub_u32 s{sT0}, s{sBETA}, 18")
    A(f"s_lshl_b32 s{sT0}, s{sT0}, 6")
    A(f"s_mul_i32 s{sT1}, s{sBR}, {32*V_HEAD}")
    A(f"s_mul_i32 s{sT2}, s53, {V_TILE}")
    A(f"s_add_u32 s{sT1}, s{sT1}, s{sT2}")
    A(f"s_add_u32 s54, s{sT1}, {WS_V}")
    A(f"v_mul_u32_u24 v{vT+6}, 304, v{vT+1}")
    A(f"v_add_u32 v{vT+6}, s54, v{vT+6}")
    A(f"v_and_b32 v{vT+7}, 31, v{vLane}")
    A(f"v_add_u32 v{vT+7}, s{sT0}, v{vT+7}")
    A(f"s_mov_b32 s55, {V_HEAD}")
    for t in range(2):
        d = vSO + t
        A(f"v_add_u32 v{vT}, {32*t}, v{vT+7}")
        A(f"v_mul_u32_u24 v{vT+2}, 3641, v{vT}")
        A(f"v_lshrrev_b32 v{vT+2}, 16, v{vT+2}")
        A(f"v_mul_u32_u24 v{vT+3}, 18, v{vT+2}")
        A(f"v_sub_u32 v{vT+3}, v{vT}, v{vT+3}")
        A(f"v_and_b32 v{vT+4}, 1, v{vT+2}")
        A(f"v_add_u32 v{vT+5}, 16, v{vT+3}")
        A(f"v_subrev_u32 v{vT+9}, 18, v{vT+5}")
        A(f"v_min_u32 v{vT+5}, v{vT+5}, v{vT+9}")
        A(f"v_cmp_eq_u32 vcc, 1, v{vT+4}")
        A(f"v_cndmask_b32 v{vT+5}, v{vT+3}, v{vT+5}, vcc")
        A(f"v_mul_lo_u32 v{vT+2}, v{vT+2}, s55")
        A(f"v_lshl_add_u32 v{vT+5}, v{vT+5}, 4, v{vT+2}")
        A(f"v_add_u32 v{d}, v{vT+5}, v{vT+6}")
        A(f"v_cmp_eq_u32 vcc, 17, v{vT+3}")
        A(f"v_cndmask_b32 v{vSO+2+t}, 0, 1, vcc")
        A(f"v_add_u32 v{vT+9}, {18*16}, v{vT+2}")
        A(f"v_add_u32 v{vSO+4+t}, v{vT+9}, v{vT+6}")
    A.label(f"{name}_sod")
    A(f"s_cmp_ge_u32 s{sCG}, 16")
    A(f"s_cbranch_scc1 {name}_nog2")
    A(f"s_waitcnt vmcnt(0)")
    for tk in range(2):
        A(f"v_mov_b32 v{vT}, 0")
        for i in range(8): A(f"v_dot2c_f32_bf16 v{vT}, v{vG+8*tk+i}, v{vG+16+i}")
        A(f"s_nop 2")
        A(f"v_add_f32_dpp v{vT}, v{vT}, v{vT} quad_perm:[1,0,3,2] row_mask:0xf bank_mask:0xf")
        A(f"v_add_f32_dpp v{vT}, v{vT}, v{vT} quad_perm:[2,3,0,1] row_mask:0xf bank_mask:0xf")
        A(f"v_add_f32_dpp v{vT}, v{vT}, v{vT} row_half_mirror row_mask:0xf bank_mask:0xf")
        A(f"v_add_f32_dpp v{vT}, v{vT}, v{vT} row_mirror row_mask:0xf bank_mask:0xf")
        A(f"v_readlane_b32 s56, v{vT}, 0")
        A(f"v_readlane_b32 s57, v{vT}, 16")
        A(f"v_readlane_b32 s58, v{vT}, 32")
        A(f"v_mov_b32 v{vT+1}, s56")
        A(f"v_add_f32 v{vT+1}, s57, v{vT+1}")
        A(f"v_add_f32 v{vT+1}, s58, v{vT+1}")
        A(f"v_mul_f32 v{vT+1}, {f2u(-1.4426950408889634)}, v{vT+1}")
        A(f"v_exp_f32 v{vT+1}, v{vT+1}")
        A(f"v_add_f32 v{vT+1}, 1.0, v{vT+1}")
        A(f"v_rcp_f32 v{vT+1}, v{vT+1}")
        A(f"s_lshl_b32 s{sT0}, s52, 2")
        A(f"s_add_u32 s{sT0}, s{sT0}, {WS_G + 4*tk}")
        A(f"v_mov_b32 v{vT+2}, 0")
        A(f"s_mov_b64 exec, 1")
        A(f"buffer_store_dword v{vT+1}, v{vT+2}, s[{sWS}:{sWS+3}], s{sT0} offen" + STORE_MOD)
        A(f"s_mov_b64 exec, -1")
    A.label(f"{name}_nog2")
    for i in range(64): A(f"v_mov_b32 v{vACC+i}, 0")
    for i in range(8):
        A(f"v_mov_b32 v{vXF+8+i}, 0")
        A(f"v_mov_b32 v{vWF+8+i}, 0")
    A(f"s_mov_b32 s56, {(-2*K1_STAGE) & 0xffffffff}")
    A(f"s_mov_b32 s57, {K1_STAGE}")
    stamp(A, 1)
    A(f"s_mov_b32 s{sCH}, 0")
    A(f"s_mov_b32 s{sStR}, 0")
    A(f"s_cmp_eq_u32 s{sTY}, 2")
    A(f"s_cbranch_scc1 {name}_loop1")

    def reads(s_, buf):
        xf = vXF + 8*buf; wf = vWF + 8*buf
        A(f"ds_read_b128 v[{xf}:{xf+3}], v{vAX+s_}")
        A(f"ds_read_b128 v[{xf+4}:{xf+7}], v{vAX+s_} offset:4096")
        A(f"ds_read_b64_tr_b16 v[{wf}:{wf+1}], v{vAW0} offset:{s_*2048}")
        A(f"ds_read_b64_tr_b16 v[{wf+2}:{wf+3}], v{vAW0} offset:{s_*2048+512}")
        A(f"ds_read_b64_tr_b16 v[{wf+4}:{wf+5}], v{vAW1} offset:{s_*2048}")
        A(f"ds_read_b64_tr_b16 v[{wf+6}:{wf+7}], v{vAW1} offset:{s_*2048+512}")
    def mfmas(mode, buf):
        xf = vXF + 8*buf; wf = vWF + 8*buf
        for t in range(2):
            for tt in range(2):
                acc = vACC + (t*2+tt)*16
                W = f"v[{wf+4*t}:{wf+4*t+3}]"; X = f"v[{xf+4*tt}:{xf+4*tt+3}]"
                if mode == 1:
                    A(f"v_mfma_f32_32x32x16_bf16 v[{acc}:{acc+15}], {X}, {W}, v[{acc}:{acc+15}]")
                else:
                    A(f"v_mfma_f32_32x32x16_bf16 v[{acc}:{acc+15}], {W}, {X}, v[{acc}:{acc+15}]")

    for mode in range(2):
        L = f"{name}_loop{mode}"
        A.label(L)
        A(f"s_barrier")
        if PROF:
            A(f"s_cmp_eq_u32 s{sCH}, 0")
            A(f"s_cbranch_scc0 {L}_ns")
            stamp(A, 2)
            A.label(f"{L}_ns")
        def mf1(buf, t, tt):
            xf = vXF + 8*buf; wf = vWF + 8*buf
            acc = vACC + (t*2+tt)*16
            W = f"v[{wf+4*t}:{wf+4*t+3}]"; X = f"v[{xf+4*tt}:{xf+4*tt+3}]"
            if mode == 1: A(f"v_mfma_f32_32x32x16_bf16 v[{acc}:{acc+15}], {X}, {W}, v[{acc}:{acc+15}]")
            else: A(f"v_mfma_f32_32x32x16_bf16 v[{acc}:{acc+15}], {W}, {X}, v[{acc}:{acc+15}]")
        def step(buf, nxt, waits, tail=None):
            xf = vXF + 8*(1-buf); wf = vWF + 8*(1-buf)
            if waits: A(f"s_waitcnt lgkmcnt(3)")
            mf1(buf, 0, 0)
            A(f"ds_read_b128 v[{xf}:{xf+3}], v{vAX+nxt}")
            A(f"ds_read_b64_tr_b16 v[{wf}:{wf+1}], v{vAW0} offset:{nxt*2048}")
            if waits: A(f"s_waitcnt lgkmcnt(4)")
            mf1(buf, 0, 1)
            A(f"ds_read_b64_tr_b16 v[{wf+2}:{wf+3}], v{vAW0} offset:{nxt*2048+512}")
            A(f"ds_read_b128 v[{xf+4}:{xf+7}], v{vAX+nxt} offset:4096")
            if waits: A(f"s_waitcnt lgkmcnt(4)")
            mf1(buf, 1, 0)
            A(f"ds_read_b64_tr_b16 v[{wf+4}:{wf+5}], v{vAW1} offset:{nxt*2048}")
            A(f"ds_read_b64_tr_b16 v[{wf+6}:{wf+7}], v{vAW1} offset:{nxt*2048+512}")
            if tail: tail()
            mf1(buf, 1, 1)
        def tail():
            A(f"s_add_u32 s{sStR}, s{sStR}, 1")
            A(f"s_cmp_eq_u32 s{sStR}, 3")
            A(f"s_cselect_b32 s{sDelta}, s56, s57")
            A(f"s_cselect_b32 s{sStR}, 0, s{sStR}")
            for r in [vAX, vAX+1, vAX+2, vAX+3, vAW0, vAW1]:
                A(f"v_add_u32 v{r}, s{sDelta}, v{r}")
            A(f"s_add_u32 s{sCH}, s{sCH}, 1")
            A(f"s_cmp_lt_u32 s{sCH}, 9")
        step(1, 0, False)
        step(0, 1, True)
        step(1, 2, True)
        step(0, 3, True, tail)
        A(f"s_waitcnt lgkmcnt(0)")
        A(f"s_cbranch_scc1 {L}")
        mfmas(mode, 1)
        A(f"s_nop 15")
        A(f"s_branch {name}_epi{mode}")

    A.label(f"{name}_epi0")
    stamp(A, 3)
    A(f"s_mov_b32 s{sT0}, 1.0")
    A(f"s_cmp_eq_u32 s{sTY}, 0")
    A(f"s_cselect_b32 s{sT0}, {f2u(QSCALE)}, s{sT0}")
    for q in range(8):
        d = vSO + q
        A(f"v_and_b32 v{vT}, 1, v{d}")
        A(f"v_xor_b32 v{d}, v{d}, v{vT}")
        A(f"v_mul_u32_u24 v{vT}, 768, v{vT}")
        A(f"v_sub_u32 v{vT+1+q}, 1024, v{vT}")
        A(f"v_add_u32 v{vT+1+q}, v{vT+1+q}, v{d}")
    k = 0
    for t in range(2):
        for tt in range(2):
            acc = vACC + (t*2+tt)*16
            for i in range(16): A(f"v_mul_f32 v{acc+i}, s{sT0}, v{acc+i}")
            p = vP + 8*(k % 4); k += 1
            for i in range(8): A(f"v_cvt_pk_bf16_f32 v{p+i}, v{acc+2*i}, v{acc+2*i+1}")
            for i in range(4):
                ad = (vSO + 4*t + i) if tt == 0 else (vT + 1 + 4*t + i)
                A(f"buffer_store_dwordx2 v[{p+2*i}:{p+2*i+1}], v{ad}, s[{sWS}:{sWS+3}], 0 offen" + STORE_MOD)
    A(f"s_branch {name}_fin")
    A.label(f"{name}_epi1")
    stamp(A, 3)
    k = 0
    for t in range(2):
        for tt in range(2):
            acc = vACC + (t*2+tt)*16
            p = vP + 8*(k % 4); k += 1
            for i in range(8): A(f"v_cvt_pk_bf16_f32 v{p+i}, v{acc+2*i}, v{acc+2*i+1}")
            A(f"buffer_store_dwordx4 v[{p}:{p+3}], v{vSO+t}, s[{sWS}:{sWS+3}], 0 offen offset:{tt*V_TILE}" + STORE_MOD)
            A(f"buffer_store_dwordx4 v[{p+4}:{p+7}], v{vSO+t}, s[{sWS}:{sWS+3}], 0 offen offset:{tt*V_TILE+608}" + STORE_MOD)
    for i in range(4): A(f"v_mov_b32 v{vT+i}, 0x3f803f80")
    for t in range(2):
        A(f"v_cmp_eq_u32 vcc, 1, v{vSO+2+t}")
        A(f"s_and_saveexec_b64 s[58:59], vcc")
        A(f"s_cbranch_execz {name}_no1_{t}")
        for tt in range(2):
            for g in range(2):
                A(f"buffer_store_dwordx4 v[{vT}:{vT+3}], v{vSO+4+t}, s[{sWS}:{sWS+3}], 0 offen offset:{tt*V_TILE+g*608}" + STORE_MOD)
        A.label(f"{name}_no1_{t}")
        A(f"s_mov_b64 exec, s[58:59]")
    A.label(f"{name}_fin")
    if PROF:
        stamp(A, 4)
        A("s_waitcnt vmcnt(0)")
        stamp(A, 5)
        stamps_out(A, 0, 6, sWS, sWV, vP)
    rt_end(A, 0, sWV, vP)
    A.label(f"{name}_end")
    A(f"s_endpgm")
    return khead(name) + A.finish(True) , kdesc(name, NV, 100)
```

```python
from asmlib import *
from common import *
import os

L_KM = 0
L_V = 65536
L_KX = 65536 + 64*1216
L_CNT = L_KX + 64*256
K2_LDS = L_CNT + 64
K2_THREADS = 640
NEG = f2u(-1.0e30)
NEGB = 0xF149
DBG = int(os.environ.get("DBG", "0"))
PF = int(os.environ.get("PF", "1"))
PRIO = int(os.environ.get("PRIO", "1"))

def gen_k2(name):
    A = Asm()
    sWS = 8
    sH, sQB, sWV, sTQ = 12, 13, 14, 15
    sT0, sT1, sT2, sT3 = 16, 17, 18, 19
    sCnt, sI = 20, 21
    sPass = 22
    sKMs, sVs, sKXs = 24, 25, 26
    vLane = 1
    vL16 = 2
    vKa, vVa, vXa = 3, 4, 5
    vKa0, vVa0, vXa0 = 6, 7, 8
    vG = 9
    vT = 10
    vQA, vQB = 20, 28
    vKF = 36
    vVF = 52
    vS = 68
    vP = 100
    vO = 108
    vMF, vMD = 124, 140
    vCM = vS + 16
    vM = 156
    vCA = 157
    vVg, vXg = 158, 159
    NV = 160

    A(f"s_cmp_ge_u32 s2, 256")
    A(f"s_cbranch_scc1 {name}_end")
    stamp(A, 0)
    rt_begin(A)
    A(f"s_load_dwordx2 s[4:5], s[0:1], {ARG['ws']}")
    A(f"v_and_b32 v{vLane}, 63, v0")
    A(f"v_lshrrev_b32 v{vT}, 6, v0")
    A(f"s_and_b32 s{sT0}, s2, 7")
    A(f"v_readfirstlane_b32 s{sWV}, v{vT}")
    A(f"s_lshr_b32 s{sT1}, s2, 3")
    A(f"s_lshl_b32 s{sT0}, s{sT0}, 2")
    A(f"s_and_b32 s{sT2}, s{sT1}, 3")
    A(f"s_add_u32 s{sH}, s{sT0}, s{sT2}")
    A(f"s_lshr_b32 s{sQB}, s{sT1}, 2")
    A(f"v_lshlrev_b32 v{vL16}, 4, v{vLane}")
    A(f"s_lshl_b32 s{sT0}, s{sH}, 16")
    A(f"s_add_u32 s{sKMs}, s{sT0}, {WS_KM}")
    A(f"s_mul_i32 s{sT0}, s{sH}, {V_HEAD}")
    A(f"s_add_u32 s{sVs}, s{sT0}, {WS_V}")
    A(f"s_lshr_b32 s{sT0}, s{sH}, 1")
    A(f"s_lshl_b32 s{sT0}, s{sT0}, 14")
    A(f"s_add_u32 s{sKXs}, s{sT0}, {WS_KX}")
    A(f"v_mov_b32 v{vCA}, {L_CNT}")
    A(f"s_cmp_ge_u32 s{sWV}, 8")
    A(f"s_cbranch_scc1 {name}_loader")

    def dma_run(ldsbase, sreg, woff_sreg, stride, n_full, rem_limit_sreg=None, rem=None, tag=""):
        A(f"s_add_u32 s{sT3}, s{sreg}, s{woff_sreg}")
        A(f"s_add_u32 m0, s{woff_sreg}, {ldsbase}")
        for j in range(n_full):
            A(f"s_nop 0")
            A(f"buffer_load_dwordx4 v{vL16}, s[{sWS}:{sWS+3}], s{sT3} offen lds")
            if j < n_full - 1 or rem:
                A(f"s_add_u32 m0, m0, {stride}")
                A(f"s_add_u32 s{sT3}, s{sT3}, {stride}")
        if rem:
            lab = f"{name}_dg{dma_run.n}"; dma_run.n += 1
            A(f"s_cmp_lt_u32 s{rem_limit_sreg}, {rem}")
            A(f"s_cbranch_scc0 {lab}")
            A(f"buffer_load_dwordx4 v{vL16}, s[{sWS}:{sWS+3}], s{sT3} offen lds")
            A.label(lab)
    dma_run.n = 0
    def group(ldsbase, sreg, n, nw, widx_sreg, woff_sreg):
        dma_run(ldsbase, sreg, woff_sreg, nw*1024, n // nw, widx_sreg, n % nw)
    def poll(off, target, tag):
        A.label(f"{name}_poll{tag}")
        A(f"ds_read_b32 v{vT}, v{vCA} offset:{off}")
        A(f"s_waitcnt lgkmcnt(0)")
        A(f"v_readfirstlane_b32 s{sT0}, v{vT}")
        A(f"s_cmp_ge_u32 s{sT0}, {target}")
        A(f"s_cbranch_scc1 {name}_pollok{tag}")
        A(f"s_sleep 1")
        A(f"s_branch {name}_poll{tag}")
        A.label(f"{name}_pollok{tag}")
    def signal(off):
        A(f"v_mov_b32 v{vT}, 1")
        A(f"s_mov_b64 exec, 1")
        A(f"ds_add_u32 v{vCA}, v{vT} offset:{off}")
        A(f"s_mov_b64 exec, -1")

    A(f"s_lshl_b32 s{sTQ}, s{sQB}, 3")
    A(f"s_add_u32 s{sTQ}, s{sTQ}, s{sWV}")
    A(f"s_cmp_lg_u32 s{sWV}, 0")
    A(f"s_cbranch_scc1 {name}_noinit")
    A(f"v_mov_b32 v{vT+3}, 0")
    A(f"v_lshlrev_b32 v{vT+4}, 2, v{vLane}")
    A(f"v_add_u32 v{vT+4}, {L_CNT}, v{vT+4}")
    A(f"s_mov_b64 exec, 0xffff")
    A(f"ds_write_b32 v{vT+4}, v{vT+3}")
    A(f"s_mov_b64 exec, -1")
    A.label(f"{name}_noinit")
    A(f"v_and_b32 v{vT}, 31, v{vLane}")
    A(f"v_lshlrev_b32 v{vT+1}, 3, v{vT}")
    A(f"s_lshl_b32 s{sT0}, s{sH}, 16")
    A(f"s_lshl_b32 s{sT1}, s{sTQ}, 10")
    A(f"s_add_u32 s40, s{sT0}, s{sT1}")
    A(f"s_lshr_b32 s{sT2}, s{sH}, 1")
    A(f"s_lshl_b32 s{sT2}, s{sT2}, 14")
    A(f"s_and_b32 s{sT1}, s{sH}, 1")
    A(f"s_lshl_b32 s{sT1}, s{sT1}, 2")
    A(f"s_add_u32 s41, s{sT2}, s{sT1}")
    A(f"s_lshl_b32 s{sT1}, s{sTQ}, 8")
    A(f"s_add_u32 s41, s41, s{sT1}")
    A(f"s_add_u32 s41, s41, {WS_QX}")
    A("s_waitcnt lgkmcnt(0)")
    if PROF == 2: stamp(A, 1)
    srd(A, sWS, 4, 5, WS_SIZE)
    A(f"s_add_u32 s{sT0}, s40, {WS_QM + (32<<16)}")
    A(f"buffer_load_dwordx4 v[{vQB}:{vQB+3}], v{vL16}, s[{sWS}:{sWS+3}], s{sT0} offen")
    A(f"s_add_u32 s{sT0}, s41, {16*16384}")
    A(f"buffer_load_dword v{vQB+4}, v{vT+1}, s[{sWS}:{sWS+3}], s{sT0} offen")
    A(f"s_barrier")
    if PROF == 2: stamp(A, 2)
    A(f"v_lshrrev_b32 v{vT+1}, 5, v{vLane}")
    A(f"v_mov_b32 v{vT+2}, 4")
    A(f"v_subrev_u32 v{vT+3}, 20, v{vT}")
    A(f"v_cmp_gt_u32 vcc, 8, v{vT+3}")
    A(f"v_cndmask_b32 v{vT+2}, v{vT+2}, 0, vcc")
    A(f"v_cmp_gt_u32 vcc, 19, v{vT}")
    A(f"v_cndmask_b32 v{vT+2}, v{vT+2}, v{vT}, vcc")
    A(f"v_mul_u32_u24 v{vVg}, 304, v{vT+1}")
    A(f"v_lshl_add_u32 v{vVg}, v{vT+2}, 4, v{vVg}")
    A(f"v_add_u32 v{vVa0}, {L_V}, v{vVg}")
    A(f"v_mov_b32 v{vKa0}, v{vL16}")
    A(f"s_and_b32 s{sT0}, s{sH}, 1")
    A(f"s_lshl_b32 s{sT0}, s{sT0}, 2")
    A(f"v_lshlrev_b32 v{vXg}, 3, v{vT}")
    A(f"v_add_u32 v{vXg}, s{sT0}, v{vXg}")
    A(f"v_add_u32 v{vXa0}, {L_KX}, v{vXg}")
    A(f"v_mov_b32 v{vKF+5}, 0x3f80")
    A(f"v_mov_b32 v{vKF+8+5}, 0x3f80")
    A(f"v_lshlrev_b32 v{vT+4}, 2, v{vT+1}")
    A(f"v_sub_u32 v{vT+4}, v{vT}, v{vT+4}")
    A(f"s_mov_b32 s29, {NEG}")
    for r in range(16):
        c = 8*(r//4) + r % 4
        A(f"v_subrev_u32 v{vT+5}, {c}, v{vT+4}")
        A(f"v_ashrrev_i32 v{vT+5}, 31, v{vT+5}")
        A(f"v_and_b32 v{vMD+r}, s29, v{vT+5}")
        A(f"v_xor_b32 v{vMF+r}, s29, v{vMD+r}")
    ONEHI = 0x3f800000
    def qext_fix(q):
        A(f"v_cmp_gt_u32 vcc, 32, v{vLane}")
        A(f"v_mov_b32 v{vT+6}, {ONEHI}")
        A(f"v_cndmask_b32 v{q+4}, 0, v{q+4}, vcc")
        A(f"v_cndmask_b32 v{q+5}, 0, v{vT+6}, vcc")
    if PROF == 2: stamp(A, 3)
    A(f"s_waitcnt vmcnt(0)")
    if PROF == 2: stamp(A, 4)
    qext_fix(vQB)
    A(f"buffer_load_dwordx4 v[{vQA}:{vQA+3}], v{vL16}, s[{sWS}:{sWS+3}], s40 offen")
    A(f"v_and_b32 v{vT}, 31, v{vLane}")
    A(f"v_lshlrev_b32 v{vT+1}, 3, v{vT}")
    A(f"buffer_load_dword v{vQA+4}, v{vT+1}, s[{sWS}:{sWS+3}], s41 offen")
    A(f"v_lshlrev_b32 v{vT+2}, 2, v{vT}")
    A(f"s_lshl_b32 s{sT0}, s{sTQ}, 7")
    A(f"s_add_u32 s{sT0}, s{sT0}, {WS_G}")
    A(f"buffer_load_dword v{vG}, v{vT+2}, s[{sWS}:{sWS+3}], s{sT0} offen")
    def need_groups(n_imm=None, n_sreg=None, tag=""):
        tgt = f"{n_imm}" if n_imm is not None else f"s{n_sreg}"
        A(f"s_cmp_ge_u32 s42, {tgt}")
        A(f"s_cbranch_scc1 {name}_ng_ok{tag}")
        A.label(f"{name}_ng{tag}")
        A(f"ds_read_b64 v[{vT}:{vT+1}], v{vCA}")
        A(f"s_waitcnt lgkmcnt(0)")
        A(f"v_min_u32 v{vT}, v{vT}, v{vT+1}")
        A(f"v_readfirstlane_b32 s42, v{vT}")
        A(f"s_cmp_ge_u32 s42, {tgt}")
        A(f"s_cbranch_scc1 {name}_ng_ok{tag}")
        A(f"s_sleep 1")
        A(f"s_branch {name}_ng{tag}")
        A.label(f"{name}_ng_ok{tag}")
    A(f"s_mov_b32 s42, 0")

    def kreads(buf, off_slot):
        kf = vKF + 8*buf
        A(f"ds_read_b128 v[{kf}:{kf+3}], v{vKa} offset:{off_slot*1024}")
        A(f"ds_read_b32 v{kf+4}, v{vXa} offset:{off_slot*256}")
    def vreads(buf, off_slot):
        vf = vVF + 8*buf
        A(f"ds_read_b128 v[{vf}:{vf+3}], v{vVa} offset:{off_slot*V_TILE}")
        A(f"ds_read_b128 v[{vf+4}:{vf+7}], v{vVa} offset:{off_slot*V_TILE+608}")
    def qk(sbuf, kbuf, q, cop):
        sd = vS + 16*sbuf; kf = vKF + 8*kbuf
        A(f"v_mfma_f32_32x32x16_bf16 v[{sd}:{sd+15}], v[{kf}:{kf+3}], v[{q}:{q+3}], {cop}")
        A(f"v_mfma_f32_32x32x8_bf16 v[{sd}:{sd+15}], v[{kf+4}:{kf+5}], v[{q+4}:{q+5}], v[{sd}:{sd+15}]")
    def setaddr(slot, sreg=False):
        if not sreg:
            A(f"v_add_u32 v{vKa}, {L_KM + slot*1024}, v{vKa0}")
            A(f"v_add_u32 v{vVa}, {slot*V_TILE}, v{vVa0}")
            A(f"v_add_u32 v{vXa}, {slot*256}, v{vXa0}")
        else:
            A(f"s_lshl_b32 s{sT0}, s{slot}, 10")
            A(f"v_add_u32 v{vKa}, s{sT0}, v{vKa0}")
            A(f"s_mul_i32 s{sT0}, s{slot}, {V_TILE}")
            A(f"v_add_u32 v{vVa}, s{sT0}, v{vVa0}")
            A(f"s_lshl_b32 s{sT0}, s{slot}, 8")
            A(f"v_add_u32 v{vXa}, s{sT0}, v{vXa0}")
    def adv(n):
        A(f"v_add_u32 v{vKa}, {n*1024}, v{vKa}")
        A(f"v_add_u32 v{vVa}, {n*V_TILE}, v{vVa}")
        A(f"v_add_u32 v{vXa}, {n*256}, v{vXa}")
    def maxtile(sbuf):
        sd = vS + 16*sbuf
        for i in range(8):
            A(f"v_max3_f32 v{vM}, v{sd+2*i}, v{sd+2*i+1}, v{vM}")
    def finish_max(q):
        A(f"v_mov_b32 v{vT}, v{vM}")
        A(f"v_permlane32_swap_b32 v{vM}, v{vT}")
        A(f"v_max_f32 v{vM}, v{vM}, v{vT}")
        A(f"v_sub_f32 v{vT}, 0, v{vM}")
        A(f"v_cvt_pk_bf16_f32 v{vT}, v{vT}, 1.0")
        A(f"v_cmp_gt_u32 vcc, 32, v{vLane}")
        A(f"v_cndmask_b32 v{q+5}, 0, v{vT}, vcc")
    def clear_max(q):
        A(f"v_mov_b32 v{vT}, {ONEHI}")
        A(f"v_cmp_gt_u32 vcc, 32, v{vLane}")
        A(f"v_cndmask_b32 v{q+5}, 0, v{vT}, vcc")
    def pv(g, vbuf):
        vf = vVF + 8*vbuf + 4*g
        A(f"v_mfma_f32_32x32x16_bf16 v[{vO}:{vO+15}], v[{vf}:{vf+3}], v[{vP+4*g}:{vP+4*g+3}], v[{vO}:{vO+15}]")
    def check_l(ok_label):
        A(f"s_nop 12")
        A(f"v_mov_b32 v{vT}, {f2u(2.0**100)}")
        A(f"v_cmp_nlt_f32 vcc, v{vO+10}, v{vT}")
        A(f"s_bfm_b64 s[32:33], 32, 0")
        A(f"s_and_b64 vcc, vcc, s[32:33]")
        A(f"s_cbranch_scc0 {ok_label}")
    def epilogue(br):
        A(f"v_mov_b32 v{vT}, v{vO+10}")
        A(f"v_mov_b32 v{vT+1}, v{vO+10}")
        A(f"v_permlane32_swap_b32 v{vT}, v{vT+1}")
        A(f"v_rcp_f32 v{vT+2}, v{vT}")
        if br == 0:
            A(f"v_mul_f32 v{vT+2}, v{vT+2}, v{vG}")
        else:
            A(f"v_sub_f32 v{vT+3}, 1.0, v{vG}")
            A(f"v_mul_f32 v{vT+2}, v{vT+2}, v{vT+3}")
        for i in range(10): A(f"v_mul_f32 v{vO+i}, v{vO+i}, v{vT+2}")
        for i in range(5): A(f"v_cvt_pk_bf16_f32 v{vP+i}, v{vO+2*i}, v{vO+2*i+1}")
        A(f"s_lshl_b32 s{sT0}, s{sTQ}, 5")
        A(f"s_add_u32 s{sT0}, s{sT0}, s{sH}")
        A(f"s_lshl_b32 s{sT1}, s{sT0}, 10")
        A(f"s_add_u32 s{sT1}, s{sT1}, {WS_OM + br*64*32*1024}")
        A(f"buffer_store_dwordx4 v[{vP}:{vP+3}], v{vL16}, s[{sWS}:{sWS+3}], s{sT1} offen" + STORE_MOD)
        A(f"s_lshl_b32 s{sT1}, s{sT0}, 7")
        A(f"s_add_u32 s{sT1}, s{sT1}, {WS_OX + br*64*32*128}")
        A(f"v_lshlrev_b32 v{vT+4}, 2, v{vLane}")
        A(f"s_bfm_b64 exec, 32, 0")
        A(f"buffer_store_dword v{vP+4}, v{vT+4}, s[{sWS}:{sWS+3}], s{sT1} offen" + STORE_MOD)
        A(f"s_mov_b64 exec, -1")
    def tile_step(sb, nb, q, cnext, koff, voff, do_qk=True, do_k=True, do_v=True, first=False, pre_qk=None):
        sd = vS + 16*sb
        def e(lo, hi):
            for i in range(lo, hi): A(f"v_exp_f32 v{sd+i}, v{sd+i}")
        def c(lo, hi):
            for i in range(lo, hi): A(f"v_cvt_pk_bf16_f32 v{vP+i}, v{sd+2*i}, v{sd+2*i+1}")
        kf = vKF + 8*nb; sn = vS + 16*nb
        e(0, 2)
        if not first: pv(1, nb)
        if pre_qk: pre_qk(nb)
        e(2, 6)
        if do_qk:
            A(f"s_waitcnt lgkmcnt(2)")
            A(f"v_mfma_f32_32x32x16_bf16 v[{sn}:{sn+15}], v[{kf}:{kf+3}], v[{q}:{q+3}], {cnext}")
        if do_k: kreads(sb, koff)
        e(6, 8); c(0, 4)
        if do_qk:
            A(f"v_mfma_f32_32x32x8_bf16 v[{sn}:{sn+15}], v[{kf+4}:{kf+5}], v[{q+4}:{q+5}], v[{sn}:{sn+15}]")
        if do_v: vreads(nb, voff)
        e(8, 12)
        n_after = (2 if do_v else 0) + (2 if do_k else 0)
        A(f"s_waitcnt lgkmcnt({n_after})")
        pv(0, sb)
        e(12, 16); c(4, 8)

    need_groups(n_imm=1, tag="0")
    stamp(A, 1 if PROF != 2 else 5)
    A(f"s_mov_b32 s{sPass}, 0")
    setaddr(0)
    kreads(0, 0)
    A(f"v_mov_b32 v{vM}, s29")
    A(f"s_waitcnt lgkmcnt(0)")
    qk(0, 0, vQB, "0")
    kreads(0, 0)
    kreads(1, 1)
    vreads(0, 0)
    for r in range(16): A(f"v_mov_b32 v{vO+r}, 0")
    for r in range(4): A(f"v_mov_b32 v{vP+4+r}, 0")
    for r in range(8): A(f"v_mov_b32 v{vVF+8+r}, 0")
    maxtile(0)
    finish_max(vQB)
    A(f"s_waitcnt lgkmcnt(4)")
    qk(0, 0, vQB, "0")
    A(f"s_mov_b32 s{sCnt}, 0")
    A(f"s_lshr_b32 s38, s{sWV}, 2")
    A(f"s_nop 7")
    UN = 4
    def prio_toggle(tag):
        if not PRIO: return
        A(f"s_xor_b32 s38, s38, 1")
        A(f"s_cbranch_scc1 {name}_p1{tag}")
        A(f"s_setprio 0")
        A(f"s_branch {name}_p2{tag}")
        A.label(f"{name}_p1{tag}")
        A(f"s_setprio 1")
        A.label(f"{name}_p2{tag}")
    A.label(f"{name}_bloop0")
    A(f"s_lshl_b32 s{sT1}, s{sCnt}, 2")
    A(f"s_add_u32 s{sT1}, s{sT1}, 13")
    A(f"s_lshr_b32 s{sT1}, s{sT1}, 3")
    need_groups(n_sreg=sT1, tag="l")
    prio_toggle("a")
    for u in range(UN):
        tile_step(u % 2, (u+1) % 2, vQB, "0", u + 2, u + 1)
    adv(UN)
    A(f"s_add_u32 s{sCnt}, s{sCnt}, 1")
    A(f"s_cmp_lt_u32 s{sCnt}, 4")
    A(f"s_cbranch_scc1 {name}_bloop0")
    signal(8)
    need_groups(n_imm=8, tag="m")
    A.label(f"{name}_bloop")
    prio_toggle("b")
    for u in range(UN):
        tile_step(u % 2, (u+1) % 2, vQB, "0", u + 2, u + 1)
    adv(UN)
    A(f"s_add_u32 s{sCnt}, s{sCnt}, 1")
    A(f"s_cmp_lt_u32 s{sCnt}, 16")
    A(f"s_cbranch_scc1 {name}_bloop")
    A(f"s_nop 1")
    pv(1, 1)
    if PROF != 2: stamp(A, 2)
    check_l(f"{name}_bfin")
    A(f"s_add_u32 s43, s{sKMs}, {32<<16}")
    A(f"s_add_u32 s44, s{sVs}, {32*V_HEAD}")
    A(f"s_add_u32 s45, s{sKXs}, {16*16384}")
    clear_max(vQB)
    A(f"v_mov_b32 v{vM}, s29")
    def gk(tile_sreg):
        A(f"s_lshl_b32 s{sT0}, s{tile_sreg}, 10")
        A(f"s_add_u32 s{sT0}, s{sT0}, s43")
        A(f"buffer_load_dwordx4 v[{vKF}:{vKF+3}], v{vL16}, s[{sWS}:{sWS+3}], s{sT0} offen")
        A(f"s_lshl_b32 s{sT0}, s{tile_sreg}, 8")
        A(f"s_add_u32 s{sT0}, s{sT0}, s45")
        A(f"buffer_load_dword v{vKF+4}, v{vXg}, s[{sWS}:{sWS+3}], s{sT0} offen")
    A(f"s_mov_b32 s{sCnt}, 0")
    A.label(f"{name}_bx1")
    gk(sCnt)
    A(f"s_waitcnt vmcnt(0)")
    qk(0, 0, vQB, "0")
    maxtile(0)
    A(f"s_add_u32 s{sCnt}, s{sCnt}, 1")
    A(f"s_cmp_lt_u32 s{sCnt}, 64")
    A(f"s_cbranch_scc1 {name}_bx1")
    finish_max(vQB)
    for r in range(16): A(f"v_mov_b32 v{vO+r}, 0")
    A(f"s_mov_b32 s{sCnt}, 0")
    A.label(f"{name}_bx2")
    gk(sCnt)
    A(f"s_mul_i32 s{sT0}, s{sCnt}, {V_TILE}")
    A(f"s_add_u32 s{sT0}, s{sT0}, s44")
    A(f"buffer_load_dwordx4 v[{vVF}:{vVF+3}], v{vVg}, s[{sWS}:{sWS+3}], s{sT0} offen")
    A(f"buffer_load_dwordx4 v[{vVF+4}:{vVF+7}], v{vVg}, s[{sWS}:{sWS+3}], s{sT0} offen offset:608")
    A(f"s_waitcnt vmcnt(0)")
    qk(0, 0, vQB, "0")
    for i in range(16): A(f"v_exp_f32 v{vS+i}, v{vS+i}")
    for i in range(8): A(f"v_cvt_pk_bf16_f32 v{vP+i}, v{vS+2*i}, v{vS+2*i+1}")
    pv(0, 0); pv(1, 0)
    A(f"s_add_u32 s{sCnt}, s{sCnt}, 1")
    A(f"s_cmp_lt_u32 s{sCnt}, 64")
    A(f"s_cbranch_scc1 {name}_bx2")
    A(f"s_nop 12")
    A.label(f"{name}_bfin")
    A(f"s_waitcnt vmcnt(0)")
    epilogue(1)
    if PROF != 2: stamp(A, 3)
    qext_fix(vQA)
    poll(12, 2, "a")

    def bias_for(i, kbuf):
        A(f"s_cmp_ge_u32 s{sTQ}, {8 - i}")
        A(f"s_cselect_b32 s{sT0}, s36, s37")
        A(f"v_mov_b32 v{vKF + 8*kbuf + 5}, s{sT0}")
    A(f"s_mov_b32 s36, 0x3f80")
    A(f"s_mov_b32 s37, {(NEGB << 16) | 0x3f80}")
    setaddr(sWV, True)
    A(f"v_mov_b32 v{vM}, s29")
    A(f"s_cmp_eq_u32 s{sTQ}, 0")
    A(f"s_cbranch_scc1 {name}_aref0")
    kreads(0, 7)
    A(f"s_waitcnt lgkmcnt(0)")
    qk(0, 0, vQA, "0")
    A(f"s_branch {name}_aref1")
    A.label(f"{name}_aref0")
    kreads(0, 8)
    A(f"s_waitcnt lgkmcnt(0)")
    qk(0, 0, vQA, f"v[{vMD}:{vMD+15}]")
    A.label(f"{name}_aref1")
    kreads(0, 0)
    kreads(1, 1)
    vreads(0, 0)
    for r in range(16): A(f"v_mov_b32 v{vO+r}, 0")
    maxtile(0)
    finish_max(vQA)
    bias_for(0, 0)
    A(f"s_waitcnt lgkmcnt(4)")
    qk(0, 0, vQA, f"v[{vMF}:{vMF+15}]")
    A(f"s_nop 7")
    for i in range(9):
        pre = (lambda nb, i=i: bias_for(i+1, nb)) if i < 7 else ((lambda nb: A(f"v_mov_b32 v{vKF + 8*nb + 5}, s36")) if i == 7 else None)
        tile_step(i % 2, (i+1) % 2, vQA, (f"v[{vMD}:{vMD+15}]" if i == 7 else "0"), i + 2, i + 1,
                  do_qk=(i < 8), do_k=(i < 7), do_v=(i < 8), first=(i == 0), pre_qk=pre)
    A(f"s_nop 1")
    pv(1, 0)
    A(f"v_mov_b32 v{vKF+5}, s36")
    A(f"v_mov_b32 v{vKF+8+5}, s36")
    check_l(f"{name}_aepi")
    clear_max(vQA)
    A(f"s_sub_u32 s{sI}, 8, s{sTQ}")
    A(f"s_cmp_ge_u32 s{sTQ}, 8")
    A(f"s_cselect_b32 s{sI}, 0, s{sI}")
    A(f"s_mov_b32 s30, s{sI}")
    A(f"s_mov_b32 s31, s{sWV}")
    def set_cm_for(i_sreg):
        lab = f"{name}_cm{set_cm_for.n}"; set_cm_for.n += 1
        A(f"s_cmp_eq_u32 s{i_sreg}, 8")
        A(f"s_cbranch_scc1 {lab}_d")
        A(f"s_cmp_eq_u32 s{i_sreg}, 0")
        A(f"s_cbranch_scc1 {lab}_f")
        for r in range(16): A(f"v_mov_b32 v{vCM+r}, 0")
        A(f"s_branch {lab}_e")
        A.label(f"{lab}_d")
        for r in range(16): A(f"v_mov_b32 v{vCM+r}, v{vMD+r}")
        A(f"s_branch {lab}_e")
        A.label(f"{lab}_f")
        for r in range(16): A(f"v_mov_b32 v{vCM+r}, v{vMF+r}")
        A.label(f"{lab}_e")
    set_cm_for.n = 0
    A(f"v_mov_b32 v{vM}, s29")
    A.label(f"{name}_a1")
    A(f"s_add_u32 s{sT1}, s31, s{sI}")
    setaddr(sT1, True)
    kreads(0, 0)
    set_cm_for(sI)
    A(f"s_waitcnt lgkmcnt(0)")
    qk(0, 0, vQA, f"v[{vCM}:{vCM+15}]")
    maxtile(0)
    A(f"s_add_u32 s{sI}, s{sI}, 1")
    A(f"s_cmp_le_u32 s{sI}, 8")
    A(f"s_cbranch_scc1 {name}_a1")
    finish_max(vQA)
    for r in range(16): A(f"v_mov_b32 v{vO+r}, 0")
    A(f"s_mov_b32 s{sI}, s30")
    A.label(f"{name}_a2")
    A(f"s_add_u32 s{sT1}, s31, s{sI}")
    setaddr(sT1, True)
    kreads(0, 0)
    vreads(0, 0)
    set_cm_for(sI)
    A(f"s_waitcnt lgkmcnt(2)")
    qk(0, 0, vQA, f"v[{vCM}:{vCM+15}]")
    for i in range(16): A(f"v_exp_f32 v{vS+i}, v{vS+i}")
    for i in range(8): A(f"v_cvt_pk_bf16_f32 v{vP+i}, v{vS+2*i}, v{vS+2*i+1}")
    A(f"s_waitcnt lgkmcnt(0)")
    pv(0, 0); pv(1, 0)
    A(f"s_add_u32 s{sI}, s{sI}, 1")
    A(f"s_cmp_le_u32 s{sI}, 8")
    A(f"s_cbranch_scc1 {name}_a2")
    A(f"s_nop 12")
    A.label(f"{name}_aepi")
    epilogue(0)
    if PROF:
        stamp(A, 5 if PROF != 2 else 6)
        stamps_out(A, 1, 7, sWS, sWV, vS)
    rt_end(A, 1, sWV, vS)
    A(f"s_endpgm")

    A.label(f"{name}_loader")
    A(f"s_sub_u32 s35, s{sWV}, 8")
    A(f"s_lshl_b32 s34, s35, 10")
    A(f"s_add_u32 s43, s{sKMs}, {32<<16}")
    A(f"s_add_u32 s44, s{sVs}, {32*V_HEAD}")
    A(f"s_add_u32 s45, s{sKXs}, {16*16384}")
    A(f"s_lshl_b32 s46, s35, 2")
    A(f"v_add_u32 v{vT+8}, s46, v{vCA}")
    A(f"s_mov_b32 s47, -1")
    A(f"s_cmp_eq_u32 s35, 1")
    A(f"s_cselect_b32 s47, 0, s47")
    A("s_waitcnt lgkmcnt(0)")
    srd(A, sWS, 4, 5, WS_SIZE)
    def ld(lds_sreg, src_sreg, off):
        A(f"s_add_u32 m0, s{lds_sreg}, {off}")
        A(f"s_add_u32 s{sT3}, s{src_sreg}, {off}")
        A(f"buffer_load_dwordx4 v{vL16}, s[{sWS}:{sWS+3}], s{sT3} offen lds")
    A(f"s_mov_b32 s{sCnt}, 0")
    A.label(f"{name}_lgrp")
    A(f"s_add_u32 s{sT0}, s{sQB}, s{sCnt}")
    A(f"s_and_b32 s{sT0}, s{sT0}, 7")
    A(f"s_lshl_b32 s48, s{sT0}, 13")
    A(f"s_add_u32 s48, s48, s43")
    A(f"s_add_u32 s48, s48, s34")
    A(f"s_lshl_b32 s49, s{sCnt}, 13")
    A(f"s_add_u32 s49, s49, s34")
    for j in range(4): ld(49, 48, j*2048)
    A(f"s_lshl_b32 s48, s{sT0}, 11")
    A(f"s_add_u32 s48, s48, s45")
    A(f"s_add_u32 s48, s48, s34")
    A(f"s_lshl_b32 s49, s{sCnt}, 11")
    A(f"s_add_u32 s49, s49, s34")
    A(f"s_add_u32 s49, s49, {L_KX}")
    ld(49, 48, 0)
    A(f"s_mul_i32 s48, s{sT0}, {8*V_TILE}")
    A(f"s_add_u32 s48, s48, s44")
    A(f"s_add_u32 s48, s48, s34")
    A(f"s_mul_i32 s49, s{sCnt}, {8*V_TILE}")
    A(f"s_add_u32 s49, s49, s34")
    A(f"s_add_u32 s49, s49, {L_V}")
    for j in range(4): ld(49, 48, j*2048)
    A(f"s_mov_b32 exec_hi, s47")
    ld(49, 48, 4*2048)
    A(f"s_mov_b32 exec_hi, -1")
    A(f"s_cmp_eq_u32 s{sCnt}, 0")
    A(f"s_cbranch_scc0 {name}_lg1")
    A(f"s_barrier")
    A(f"s_branch {name}_lg2")
    A.label(f"{name}_lg1")
    A(f"s_waitcnt vmcnt(10)")
    A(f"v_mov_b32 v{vT}, 1")
    A(f"s_mov_b64 exec, 1")
    A(f"ds_add_u32 v{vT+8}, v{vT}")
    A(f"s_mov_b64 exec, -1")
    A.label(f"{name}_lg2")
    A(f"s_add_u32 s{sCnt}, s{sCnt}, 1")
    A(f"s_cmp_lt_u32 s{sCnt}, 8")
    A(f"s_cbranch_scc1 {name}_lgrp")
    A(f"s_waitcnt vmcnt(0)")
    A(f"v_mov_b32 v{vT}, 1")
    A(f"s_mov_b64 exec, 1")
    A(f"ds_add_u32 v{vT+8}, v{vT}")
    A(f"s_mov_b64 exec, -1")
    poll(8, 8, "ld")
    def lgroup(ldsbase, sreg, n):
        lab = f"{name}_lg_{lgroup.n}"; lgroup.n += 1
        A(f"s_add_u32 s{sT3}, s{sreg}, s34")
        A(f"s_add_u32 s{sT2}, s34, {ldsbase}")
        A(f"s_mov_b32 s{sCnt}, s35")
        A.label(lab)
        A(f"s_mov_b32 m0, s{sT2}")
        A(f"s_add_u32 s{sT2}, s{sT2}, 2048")
        A(f"buffer_load_dwordx4 v{vL16}, s[{sWS}:{sWS+3}], s{sT3} offen lds")
        A(f"s_add_u32 s{sT3}, s{sT3}, 2048")
        A(f"s_add_u32 s{sCnt}, s{sCnt}, 2")
        A(f"s_cmp_lt_u32 s{sCnt}, {n}")
        A(f"s_cbranch_scc1 {lab}")
    lgroup.n = 0
    A(f"s_lshl_b32 s{sI}, s{sQB}, 3")
    A(f"s_sub_u32 s{sI}, s{sI}, 8")
    A(f"s_lshl_b32 s{sT0}, s{sI}, 10")
    A(f"s_add_u32 s28, s{sKMs}, s{sT0}")
    lgroup(L_KM, 28, 16)
    A(f"s_lshl_b32 s{sT0}, s{sI}, 8")
    A(f"s_add_u32 s28, s{sKXs}, s{sT0}")
    lgroup(L_KX, 28, 4)
    A(f"s_mul_i32 s{sT0}, s{sI}, {V_TILE}")
    A(f"s_add_u32 s28, s{sVs}, s{sT0}")
    lgroup(L_V, 28, 19)
    A(f"s_waitcnt vmcnt(0)")
    signal(12)
    A(f"s_waitcnt lgkmcnt(0)")
    A.label(f"{name}_end")
    A(f"s_endpgm")
    return khead(name) + A.finish(True), kdesc(name, NV, 100)
```

```python
T = 2048; D = 576; H = 32; DH = 18
WS_QM = 0x000000
WS_KM = 0x400000
WS_V  = 0x800000
V_HEAD = 77824
V_TILE = 1216
WS_QX = 0xD00000
WS_KX = 0xD80000
WS_G  = 0xE00000
WS_OM = 0x1000000
WS_OX = 0x1400000
WS_SIZE = 0x1600000
QSCALE = 1.4426950408889634 / (18 ** 0.5)
import struct
def f2u(x): return struct.unpack('<I', struct.pack('<f', x))[0]
ARG = dict(A_x=0, A_wqkv=8, A_wo=16, B_x=24, B_wqkv=32, B_wo=40, gate_w=48, out=56, dbg=64, ws=72)

def kdesc(name, nv, ns, acc=None):
    acc = acc if acc is not None else (nv + 3) // 4 * 4
    return f""".section .rodata,"a"
.p2align 6
.amdhsa_kernel {name}
  .amdhsa_next_free_vgpr {nv}
  .amdhsa_next_free_sgpr {ns}
  .amdhsa_accum_offset {acc}
  .amdhsa_group_segment_fixed_size 0
  .amdhsa_kernarg_size 80
  .amdhsa_user_sgpr_count 2
  .amdhsa_user_sgpr_kernarg_segment_ptr 1
  .amdhsa_system_sgpr_workgroup_id_x 1
.end_amdhsa_kernel
.text
"""
def khead(name):
    return f""".globl {name}
.p2align 8
.type {name},@function
{name}:
"""
def srd(A, base, ptr_lo, ptr_hi, nbytes):
    A(f"s_mov_b32 s{base}, s{ptr_lo}")
    A(f"s_and_b32 s{base+1}, s{ptr_hi}, 0xffff")
    A(f"s_mov_b32 s{base+2}, {nbytes}")
    A(f"s_mov_b32 s{base+3}, 0x00020000")

WS_PROF = 0x1500000
import os
PROF = int(os.environ.get("PROF", "0"))
def stamp(A, i, base=64):
    if PROF:
        A(f"s_memtime s[{base+2*i}:{base+2*i+1}]")
        A(f"s_waitcnt lgkmcnt(0)")
def stamps_out(A, kidx, n, sWS, sWave, vt, base=64):
    if not PROF: return
    A(f"s_lshl_b32 s{base+30}, s2, 4")
    A(f"s_add_u32 s{base+30}, s{base+30}, s{sWave}")
    A(f"s_lshl_b32 s{base+30}, s{base+30}, 5")
    A(f"s_add_u32 s{base+30}, s{base+30}, {WS_PROF + kidx*0x40000}")
    A(f"v_mov_b32 v{vt+8}, 0")
    for i in range(8):
        if i < n:
            A(f"s_sub_u32 s{base+31}, s{base+2*i}, s{base}" if i else f"s_mov_b32 s{base+31}, s{base}")
            A(f"v_mov_b32 v{vt+i}, s{base+31}")
        else:
            A(f"v_mov_b32 v{vt+i}, 0")
    A(f"s_bfm_b64 exec, 1, 0")
    A(f"buffer_store_dwordx4 v[{vt}:{vt+3}], v{vt+8}, s[{sWS}:{sWS+3}], s{base+30} offen")
    A(f"buffer_store_dwordx4 v[{vt+4}:{vt+7}], v{vt+8}, s[{sWS}:{sWS+3}], s{base+30} offen offset:16")
    A(f"s_mov_b64 exec, -1")

RT = int(os.environ.get("RT", "0"))
def rt_begin(A):
    if RT:
        A("s_memrealtime s[96:97]")
        A("s_memtime s[92:93]")
def rt_end(A, kidx, cond_sreg_wave, vt):
    if not RT: return
    lab = f"rt_skip_{kidx}_{rt_end.n}"; rt_end.n += 1
    A("s_waitcnt vmcnt(0)")
    A("s_memrealtime s[98:99]")
    A("s_memtime s[94:95]")
    A("s_load_dwordx2 s[90:91], s[0:1], 64")
    A("s_load_dwordx2 s[88:89], s[0:1], 72")
    A("s_waitcnt lgkmcnt(0)")
    A("s_cmp_lg_u32 s2, 0")
    A(f"s_cbranch_scc1 {lab}")
    A(f"s_cmp_lg_u32 s{cond_sreg_wave}, 0")
    A(f"s_cbranch_scc1 {lab}")
    A(f"s_sub_u32 s94, s94, s92")
    A(f"v_mov_b32 v{vt}, s96")
    A(f"v_mov_b32 v{vt+1}, s98")
    A(f"v_mov_b32 v{vt+2}, s94")
    A(f"v_mov_b32 v{vt+3}, {0x1000 + kidx}")
    A(f"v_mov_b32 v{vt+4}, {0x15F0000 + 16*kidx}")
    A(f"s_mov_b64 exec, 1")
    A(f"global_store_dwordx4 v{vt+4}, v[{vt}:{vt+3}], s[88:89]")
    A(f"v_mov_b32 v{vt+4}, {16*kidx}")
    A(f"global_store_dwordx4 v{vt+4}, v[{vt}:{vt+3}], s[90:91]")
    if kidx == 2:
        for k in range(2):
            A(f"v_mov_b32 v{vt+4}, {0x15F0000 + 16*k}")
            A(f"global_load_dwordx4 v[{vt+8}:{vt+11}], v{vt+4}, s[88:89]")
            A(f"s_waitcnt vmcnt(0)")
            A(f"v_mov_b32 v{vt+4}, {16*k}")
            A(f"global_store_dwordx4 v{vt+4}, v[{vt+8}:{vt+11}], s[90:91]")
            A(f"s_waitcnt vmcnt(0)")
    A(f"s_waitcnt vmcnt(0)")
    A(f"s_mov_b64 exec, -1")
    A.label(lab)
rt_end.n = 0

STORE_MOD = os.environ.get("STORE_MOD", "")
if STORE_MOD: STORE_MOD = " " + STORE_MOD
```

```python
from asmlib import *
from common import *
import os

L_KM = 0
L_V = 65536
L_KX = 65536 + 64*1216
L_CNT = L_KX + 64*256
K2_LDS = L_CNT + 64
K2_THREADS = 640
NEG = f2u(-1.0e30)
NEGB = 0xF149
DBG = int(os.environ.get("DBG", "0"))
PF = int(os.environ.get("PF", "1"))
PRIO = int(os.environ.get("PRIO", "1"))
WOPF = int(os.environ.get("WOPF", "1"))

def gen_k2(name):
    A = Asm()
    sWS = 8
    sH, sQB, sWV, sTQ = 12, 13, 14, 15
    sT0, sT1, sT2, sT3 = 16, 17, 18, 19
    sCnt, sI = 20, 21
    sPass = 22
    sKMs, sVs, sKXs = 24, 25, 26
    vLane = 1
    vL16 = 2
    vKa, vVa, vXa = 3, 4, 5
    vKa0, vVa0, vXa0 = 6, 7, 8
    vG = 9
    vT = 10
    vQA, vQB = 20, 28
    vKF = 36
    vVF = 52
    vS = 68
    vP = 100
    vO = 108
    vMF, vMD = 124, 140
    vCM = vS + 16
    vM = 156
    vCA = 157
    vVg, vXg = 158, 159
    NV = 160

    A(f"s_cmp_ge_u32 s2, 256")
    A(f"s_cbranch_scc1 {name}_end")
    stamp(A, 0)
    rt_begin(A)
    A(f"s_load_dwordx2 s[4:5], s[0:1], {ARG['ws']}")
    A(f"v_and_b32 v{vLane}, 63, v0")
    A(f"v_lshrrev_b32 v{vT}, 6, v0")
    A(f"s_and_b32 s{sT0}, s2, 7")
    A(f"v_readfirstlane_b32 s{sWV}, v{vT}")
    A(f"s_lshr_b32 s{sT1}, s2, 3")
    A(f"s_lshl_b32 s{sT0}, s{sT0}, 2")
    A(f"s_and_b32 s{sT2}, s{sT1}, 3")
    A(f"s_add_u32 s{sH}, s{sT0}, s{sT2}")
    A(f"s_lshr_b32 s{sQB}, s{sT1}, 2")
    A(f"v_lshlrev_b32 v{vL16}, 4, v{vLane}")
    A(f"s_lshl_b32 s{sT0}, s{sH}, 16")
    A(f"s_add_u32 s{sKMs}, s{sT0}, {WS_KM}")
    A(f"s_mul_i32 s{sT0}, s{sH}, {V_HEAD}")
    A(f"s_add_u32 s{sVs}, s{sT0}, {WS_V}")
    A(f"s_lshr_b32 s{sT0}, s{sH}, 1")
    A(f"s_lshl_b32 s{sT0}, s{sT0}, 14")
    A(f"s_add_u32 s{sKXs}, s{sT0}, {WS_KX}")
    A(f"v_mov_b32 v{vCA}, {L_CNT}")
    A(f"s_cmp_ge_u32 s{sWV}, 8")
    A(f"s_cbranch_scc1 {name}_loader")

    def dma_run(ldsbase, sreg, woff_sreg, stride, n_full, rem_limit_sreg=None, rem=None, tag=""):
        A(f"s_add_u32 s{sT3}, s{sreg}, s{woff_sreg}")
        A(f"s_add_u32 m0, s{woff_sreg}, {ldsbase}")
        for j in range(n_full):
            A(f"s_nop 0")
            A(f"buffer_load_dwordx4 v{vL16}, s[{sWS}:{sWS+3}], s{sT3} offen lds")
            if j < n_full - 1 or rem:
                A(f"s_add_u32 m0, m0, {stride}")
                A(f"s_add_u32 s{sT3}, s{sT3}, {stride}")
        if rem:
            lab = f"{name}_dg{dma_run.n}"; dma_run.n += 1
            A(f"s_cmp_lt_u32 s{rem_limit_sreg}, {rem}")
            A(f"s_cbranch_scc0 {lab}")
            A(f"buffer_load_dwordx4 v{vL16}, s[{sWS}:{sWS+3}], s{sT3} offen lds")
            A.label(lab)
    dma_run.n = 0
    def group(ldsbase, sreg, n, nw, widx_sreg, woff_sreg):
        dma_run(ldsbase, sreg, woff_sreg, nw*1024, n // nw, widx_sreg, n % nw)
    def poll(off, target, tag):
        A.label(f"{name}_poll{tag}")
        A(f"ds_read_b32 v{vT}, v{vCA} offset:{off}")
        A(f"s_waitcnt lgkmcnt(0)")
        A(f"v_readfirstlane_b32 s{sT0}, v{vT}")
        A(f"s_cmp_ge_u32 s{sT0}, {target}")
        A(f"s_cbranch_scc1 {name}_pollok{tag}")
        A(f"s_sleep 1")
        A(f"s_branch {name}_poll{tag}")
        A.label(f"{name}_pollok{tag}")
    def signal(off):
        A(f"v_mov_b32 v{vT}, 1")
        A(f"s_mov_b64 exec, 1")
        A(f"ds_add_u32 v{vCA}, v{vT} offset:{off}")
        A(f"s_mov_b64 exec, -1")

    A(f"s_lshl_b32 s{sTQ}, s{sQB}, 3")
    A(f"s_add_u32 s{sTQ}, s{sTQ}, s{sWV}")
    A(f"s_cmp_lg_u32 s{sWV}, 0")
    A(f"s_cbranch_scc1 {name}_noinit")
    A(f"v_mov_b32 v{vT+3}, 0")
    A(f"v_lshlrev_b32 v{vT+4}, 2, v{vLane}")
    A(f"v_add_u32 v{vT+4}, {L_CNT}, v{vT+4}")
    A(f"s_mov_b64 exec, 0xffff")
    A(f"ds_write_b32 v{vT+4}, v{vT+3}")
    A(f"s_mov_b64 exec, -1")
    A.label(f"{name}_noinit")
    A(f"v_and_b32 v{vT}, 31, v{vLane}")
    A(f"v_lshlrev_b32 v{vT+1}, 3, v{vT}")
    A(f"s_lshl_b32 s{sT0}, s{sH}, 16")
    A(f"s_lshl_b32 s{sT1}, s{sTQ}, 10")
    A(f"s_add_u32 s40, s{sT0}, s{sT1}")
    A(f"s_lshr_b32 s{sT2}, s{sH}, 1")
    A(f"s_lshl_b32 s{sT2}, s{sT2}, 14")
    A(f"s_and_b32 s{sT1}, s{sH}, 1")
    A(f"s_lshl_b32 s{sT1}, s{sT1}, 2")
    A(f"s_add_u32 s41, s{sT2}, s{sT1}")
    A(f"s_lshl_b32 s{sT1}, s{sTQ}, 8")
    A(f"s_add_u32 s41, s41, s{sT1}")
    A(f"s_add_u32 s41, s41, {WS_QX}")
    A("s_waitcnt lgkmcnt(0)")
    if PROF == 2: stamp(A, 1)
    srd(A, sWS, 4, 5, WS_SIZE)
    A(f"s_add_u32 s{sT0}, s40, {WS_QM + (32<<16)}")
    A(f"buffer_load_dwordx4 v[{vQB}:{vQB+3}], v{vL16}, s[{sWS}:{sWS+3}], s{sT0} offen")
    A(f"s_add_u32 s{sT0}, s41, {16*16384}")
    A(f"buffer_load_dword v{vQB+4}, v{vT+1}, s[{sWS}:{sWS+3}], s{sT0} offen")
    A(f"s_barrier")
    if PROF == 2: stamp(A, 2)
    A(f"v_lshrrev_b32 v{vT+1}, 5, v{vLane}")
    A(f"v_mov_b32 v{vT+2}, 4")
    A(f"v_subrev_u32 v{vT+3}, 20, v{vT}")
    A(f"v_cmp_gt_u32 vcc, 8, v{vT+3}")
    A(f"v_cndmask_b32 v{vT+2}, v{vT+2}, 0, vcc")
    A(f"v_cmp_gt_u32 vcc, 19, v{vT}")
    A(f"v_cndmask_b32 v{vT+2}, v{vT+2}, v{vT}, vcc")
    A(f"v_mul_u32_u24 v{vVg}, 304, v{vT+1}")
    A(f"v_lshl_add_u32 v{vVg}, v{vT+2}, 4, v{vVg}")
    A(f"v_add_u32 v{vVa0}, {L_V}, v{vVg}")
    A(f"v_mov_b32 v{vKa0}, v{vL16}")
    A(f"s_and_b32 s{sT0}, s{sH}, 1")
    A(f"s_lshl_b32 s{sT0}, s{sT0}, 2")
    A(f"v_lshlrev_b32 v{vXg}, 3, v{vT}")
    A(f"v_add_u32 v{vXg}, s{sT0}, v{vXg}")
    A(f"v_add_u32 v{vXa0}, {L_KX}, v{vXg}")
    A(f"v_mov_b32 v{vKF+5}, 0x3f80")
    A(f"v_mov_b32 v{vKF+8+5}, 0x3f80")
    A(f"v_lshlrev_b32 v{vT+4}, 2, v{vT+1}")
    A(f"v_sub_u32 v{vT+4}, v{vT}, v{vT+4}")
    A(f"s_mov_b32 s29, {NEG}")
    for r in range(16):
        c = 8*(r//4) + r % 4
        A(f"v_subrev_u32 v{vT+5}, {c}, v{vT+4}")
        A(f"v_ashrrev_i32 v{vT+5}, 31, v{vT+5}")
        A(f"v_and_b32 v{vMD+r}, s29, v{vT+5}")
        A(f"v_xor_b32 v{vMF+r}, s29, v{vMD+r}")
    ONEHI = 0x3f800000
    def qext_fix(q):
        A(f"v_cmp_gt_u32 vcc, 32, v{vLane}")
        A(f"v_mov_b32 v{vT+6}, {ONEHI}")
        A(f"v_cndmask_b32 v{q+4}, 0, v{q+4}, vcc")
        A(f"v_cndmask_b32 v{q+5}, 0, v{vT+6}, vcc")
    if PROF == 2: stamp(A, 3)
    A(f"s_waitcnt vmcnt(0)")
    if PROF == 2: stamp(A, 4)
    qext_fix(vQB)
    A(f"buffer_load_dwordx4 v[{vQA}:{vQA+3}], v{vL16}, s[{sWS}:{sWS+3}], s40 offen")
    A(f"v_and_b32 v{vT}, 31, v{vLane}")
    A(f"v_lshlrev_b32 v{vT+1}, 3, v{vT}")
    A(f"buffer_load_dword v{vQA+4}, v{vT+1}, s[{sWS}:{sWS+3}], s41 offen")
    A(f"v_lshlrev_b32 v{vT+2}, 2, v{vT}")
    A(f"s_lshl_b32 s{sT0}, s{sTQ}, 7")
    A(f"s_add_u32 s{sT0}, s{sT0}, {WS_G}")
    A(f"buffer_load_dword v{vG}, v{vT+2}, s[{sWS}:{sWS+3}], s{sT0} offen")
    def need_groups(n_imm=None, n_sreg=None, tag=""):
        tgt = f"{n_imm}" if n_imm is not None else f"s{n_sreg}"
        A(f"s_cmp_ge_u32 s42, {tgt}")
        A(f"s_cbranch_scc1 {name}_ng_ok{tag}")
        A.label(f"{name}_ng{tag}")
        A(f"ds_read_b64 v[{vT}:{vT+1}], v{vCA}")
        A(f"s_waitcnt lgkmcnt(0)")
        A(f"v_min_u32 v{vT}, v{vT}, v{vT+1}")
        A(f"v_readfirstlane_b32 s42, v{vT}")
        A(f"s_cmp_ge_u32 s42, {tgt}")
        A(f"s_cbranch_scc1 {name}_ng_ok{tag}")
        A(f"s_sleep 1")
        A(f"s_branch {name}_ng{tag}")
        A.label(f"{name}_ng_ok{tag}")
    A(f"s_mov_b32 s42, 0")

    def kreads(buf, off_slot):
        kf = vKF + 8*buf
        A(f"ds_read_b128 v[{kf}:{kf+3}], v{vKa} offset:{off_slot*1024}")
        A(f"ds_read_b32 v{kf+4}, v{vXa} offset:{off_slot*256}")
    def vreads(buf, off_slot):
        vf = vVF + 8*buf
        A(f"ds_read_b128 v[{vf}:{vf+3}], v{vVa} offset:{off_slot*V_TILE}")
        A(f"ds_read_b128 v[{vf+4}:{vf+7}], v{vVa} offset:{off_slot*V_TILE+608}")
    def qk(sbuf, kbuf, q, cop):
        sd = vS + 16*sbuf; kf = vKF + 8*kbuf
        A(f"v_mfma_f32_32x32x16_bf16 v[{sd}:{sd+15}], v[{kf}:{kf+3}], v[{q}:{q+3}], {cop}")
        A(f"v_mfma_f32_32x32x8_bf16 v[{sd}:{sd+15}], v[{kf+4}:{kf+5}], v[{q+4}:{q+5}], v[{sd}:{sd+15}]")
    def setaddr(slot, sreg=False):
        if not sreg:
            A(f"v_add_u32 v{vKa}, {L_KM + slot*1024}, v{vKa0}")
            A(f"v_add_u32 v{vVa}, {slot*V_TILE}, v{vVa0}")
            A(f"v_add_u32 v{vXa}, {slot*256}, v{vXa0}")
        else:
            A(f"s_lshl_b32 s{sT0}, s{slot}, 10")
            A(f"v_add_u32 v{vKa}, s{sT0}, v{vKa0}")
            A(f"s_mul_i32 s{sT0}, s{slot}, {V_TILE}")
            A(f"v_add_u32 v{vVa}, s{sT0}, v{vVa0}")
            A(f"s_lshl_b32 s{sT0}, s{slot}, 8")
            A(f"v_add_u32 v{vXa}, s{sT0}, v{vXa0}")
    def adv(n):
        A(f"v_add_u32 v{vKa}, {n*1024}, v{vKa}")
        A(f"v_add_u32 v{vVa}, {n*V_TILE}, v{vVa}")
        A(f"v_add_u32 v{vXa}, {n*256}, v{vXa}")
    def maxtile(sbuf):
        sd = vS + 16*sbuf
        for i in range(8):
            A(f"v_max3_f32 v{vM}, v{sd+2*i}, v{sd+2*i+1}, v{vM}")
    def finish_max(q):
        A(f"v_mov_b32 v{vT}, v{vM}")
        A(f"v_permlane32_swap_b32 v{vM}, v{vT}")
        A(f"v_max_f32 v{vM}, v{vM}, v{vT}")
        A(f"v_sub_f32 v{vT}, 0, v{vM}")
        A(f"v_cvt_pk_bf16_f32 v{vT}, v{vT}, 1.0")
        A(f"v_cmp_gt_u32 vcc, 32, v{vLane}")
        A(f"v_cndmask_b32 v{q+5}, 0, v{vT}, vcc")
    def clear_max(q):
        A(f"v_mov_b32 v{vT}, {ONEHI}")
        A(f"v_cmp_gt_u32 vcc, 32, v{vLane}")
        A(f"v_cndmask_b32 v{q+5}, 0, v{vT}, vcc")
    def pv(g, vbuf):
        vf = vVF + 8*vbuf + 4*g
        A(f"v_mfma_f32_32x32x16_bf16 v[{vO}:{vO+15}], v[{vf}:{vf+3}], v[{vP+4*g}:{vP+4*g+3}], v[{vO}:{vO+15}]")
    def check_l(ok_label):
        A(f"s_nop 12")
        A(f"v_mov_b32 v{vT}, {f2u(2.0**100)}")
        A(f"v_cmp_nlt_f32 vcc, v{vO+10}, v{vT}")
        A(f"s_bfm_b64 s[32:33], 32, 0")
        A(f"s_and_b64 vcc, vcc, s[32:33]")
        A(f"s_cbranch_scc0 {ok_label}")
    def epilogue(br):
        A(f"v_mov_b32 v{vT}, v{vO+10}")
        A(f"v_mov_b32 v{vT+1}, v{vO+10}")
        A(f"v_permlane32_swap_b32 v{vT}, v{vT+1}")
        A(f"v_rcp_f32 v{vT+2}, v{vT}")
        if br == 0:
            A(f"v_mul_f32 v{vT+2}, v{vT+2}, v{vG}")
        else:
            A(f"v_sub_f32 v{vT+3}, 1.0, v{vG}")
            A(f"v_mul_f32 v{vT+2}, v{vT+2}, v{vT+3}")
        for i in range(10): A(f"v_mul_f32 v{vO+i}, v{vO+i}, v{vT+2}")
        for i in range(5): A(f"v_cvt_pk_bf16_f32 v{vP+i}, v{vO+2*i}, v{vO+2*i+1}")
        A(f"s_lshl_b32 s{sT0}, s{sTQ}, 5")
        A(f"s_add_u32 s{sT0}, s{sT0}, s{sH}")
        A(f"s_lshl_b32 s{sT1}, s{sT0}, 10")
        A(f"s_add_u32 s{sT1}, s{sT1}, {WS_OM + br*64*32*1024}")
        A(f"buffer_store_dwordx4 v[{vP}:{vP+3}], v{vL16}, s[{sWS}:{sWS+3}], s{sT1} offen" + STORE_MOD)
        A(f"s_lshl_b32 s{sT1}, s{sT0}, 7")
        A(f"s_add_u32 s{sT1}, s{sT1}, {WS_OX + br*64*32*128}")
        A(f"v_lshlrev_b32 v{vT+4}, 2, v{vLane}")
        A(f"s_bfm_b64 exec, 32, 0")
        A(f"buffer_store_dword v{vP+4}, v{vT+4}, s[{sWS}:{sWS+3}], s{sT1} offen" + STORE_MOD)
        A(f"s_mov_b64 exec, -1")
    def tile_step(sb, nb, q, cnext, koff, voff, do_qk=True, do_k=True, do_v=True, first=False, pre_qk=None):
        sd = vS + 16*sb
        def e(lo, hi):
            for i in range(lo, hi): A(f"v_exp_f32 v{sd+i}, v{sd+i}")
        def c(lo, hi):
            for i in range(lo, hi): A(f"v_cvt_pk_bf16_f32 v{vP+i}, v{sd+2*i}, v{sd+2*i+1}")
        kf = vKF + 8*nb; sn = vS + 16*nb
        e(0, 2)
        if not first: pv(1, nb)
        if pre_qk: pre_qk(nb)
        e(2, 6)
        if do_qk:
            A(f"s_waitcnt lgkmcnt(2)")
            A(f"v_mfma_f32_32x32x16_bf16 v[{sn}:{sn+15}], v[{kf}:{kf+3}], v[{q}:{q+3}], {cnext}")
        if do_k: kreads(sb, koff)
        e(6, 8); c(0, 4)
        if do_qk:
            A(f"v_mfma_f32_32x32x8_bf16 v[{sn}:{sn+15}], v[{kf+4}:{kf+5}], v[{q+4}:{q+5}], v[{sn}:{sn+15}]")
        if do_v: vreads(nb, voff)
        e(8, 12)
        n_after = (2 if do_v else 0) + (2 if do_k else 0)
        A(f"s_waitcnt lgkmcnt({n_after})")
        pv(0, sb)
        e(12, 16); c(4, 8)

    need_groups(n_imm=1, tag="0")
    stamp(A, 1 if PROF != 2 else 5)
    A(f"s_mov_b32 s{sPass}, 0")
    setaddr(0)
    kreads(0, 0)
    A(f"v_mov_b32 v{vM}, s29")
    A(f"s_waitcnt lgkmcnt(0)")
    qk(0, 0, vQB, "0")
    kreads(0, 0)
    kreads(1, 1)
    vreads(0, 0)
    for r in range(16): A(f"v_mov_b32 v{vO+r}, 0")
    for r in range(4): A(f"v_mov_b32 v{vP+4+r}, 0")
    for r in range(8): A(f"v_mov_b32 v{vVF+8+r}, 0")
    maxtile(0)
    finish_max(vQB)
    A(f"s_waitcnt lgkmcnt(4)")
    qk(0, 0, vQB, "0")
    A(f"s_mov_b32 s{sCnt}, 0")
    A(f"s_lshr_b32 s38, s{sWV}, 2")
    A(f"s_nop 7")
    UN = 4
    def prio_toggle(tag):
        if not PRIO: return
        A(f"s_xor_b32 s38, s38, 1")
        A(f"s_cbranch_scc1 {name}_p1{tag}")
        A(f"s_setprio 0")
        A(f"s_branch {name}_p2{tag}")
        A.label(f"{name}_p1{tag}")
        A(f"s_setprio 1")
        A.label(f"{name}_p2{tag}")
    A.label(f"{name}_bloop0")
    A(f"s_lshl_b32 s{sT1}, s{sCnt}, 2")
    A(f"s_add_u32 s{sT1}, s{sT1}, 13")
    A(f"s_lshr_b32 s{sT1}, s{sT1}, 3")
    need_groups(n_sreg=sT1, tag="l")
    prio_toggle("a")
    for u in range(UN):
        tile_step(u % 2, (u+1) % 2, vQB, "0", u + 2, u + 1)
    adv(UN)
    A(f"s_add_u32 s{sCnt}, s{sCnt}, 1")
    A(f"s_cmp_lt_u32 s{sCnt}, 4")
    A(f"s_cbranch_scc1 {name}_bloop0")
    signal(8)
    need_groups(n_imm=8, tag="m")
    A.label(f"{name}_bloop")
    prio_toggle("b")
    for u in range(UN):
        tile_step(u % 2, (u+1) % 2, vQB, "0", u + 2, u + 1)
    adv(UN)
    A(f"s_add_u32 s{sCnt}, s{sCnt}, 1")
    A(f"s_cmp_lt_u32 s{sCnt}, 16")
    A(f"s_cbranch_scc1 {name}_bloop")
    A(f"s_nop 1")
    pv(1, 1)
    if PROF != 2: stamp(A, 2)
    check_l(f"{name}_bfin")
    A(f"s_add_u32 s43, s{sKMs}, {32<<16}")
    A(f"s_add_u32 s44, s{sVs}, {32*V_HEAD}")
    A(f"s_add_u32 s45, s{sKXs}, {16*16384}")
    clear_max(vQB)
    A(f"v_mov_b32 v{vM}, s29")
    def gk(tile_sreg):
        A(f"s_lshl_b32 s{sT0}, s{tile_sreg}, 10")
        A(f"s_add_u32 s{sT0}, s{sT0}, s43")
        A(f"buffer_load_dwordx4 v[{vKF}:{vKF+3}], v{vL16}, s[{sWS}:{sWS+3}], s{sT0} offen")
        A(f"s_lshl_b32 s{sT0}, s{tile_sreg}, 8")
        A(f"s_add_u32 s{sT0}, s{sT0}, s45")
        A(f"buffer_load_dword v{vKF+4}, v{vXg}, s[{sWS}:{sWS+3}], s{sT0} offen")
    A(f"s_mov_b32 s{sCnt}, 0")
    A.label(f"{name}_bx1")
    gk(sCnt)
    A(f"s_waitcnt vmcnt(0)")
    qk(0, 0, vQB, "0")
    maxtile(0)
    A(f"s_add_u32 s{sCnt}, s{sCnt}, 1")
    A(f"s_cmp_lt_u32 s{sCnt}, 64")
    A(f"s_cbranch_scc1 {name}_bx1")
    finish_max(vQB)
    for r in range(16): A(f"v_mov_b32 v{vO+r}, 0")
    A(f"s_mov_b32 s{sCnt}, 0")
    A.label(f"{name}_bx2")
    gk(sCnt)
    A(f"s_mul_i32 s{sT0}, s{sCnt}, {V_TILE}")
    A(f"s_add_u32 s{sT0}, s{sT0}, s44")
    A(f"buffer_load_dwordx4 v[{vVF}:{vVF+3}], v{vVg}, s[{sWS}:{sWS+3}], s{sT0} offen")
    A(f"buffer_load_dwordx4 v[{vVF+4}:{vVF+7}], v{vVg}, s[{sWS}:{sWS+3}], s{sT0} offen offset:608")
    A(f"s_waitcnt vmcnt(0)")
    qk(0, 0, vQB, "0")
    for i in range(16): A(f"v_exp_f32 v{vS+i}, v{vS+i}")
    for i in range(8): A(f"v_cvt_pk_bf16_f32 v{vP+i}, v{vS+2*i}, v{vS+2*i+1}")
    pv(0, 0); pv(1, 0)
    A(f"s_add_u32 s{sCnt}, s{sCnt}, 1")
    A(f"s_cmp_lt_u32 s{sCnt}, 64")
    A(f"s_cbranch_scc1 {name}_bx2")
    A(f"s_nop 12")
    A.label(f"{name}_bfin")
    A(f"s_waitcnt vmcnt(0)")
    epilogue(1)
    if PROF != 2: stamp(A, 3)
    qext_fix(vQA)
    poll(12, 2, "a")

    def bias_for(i, kbuf):
        A(f"s_cmp_ge_u32 s{sTQ}, {8 - i}")
        A(f"s_cselect_b32 s{sT0}, s36, s37")
        A(f"v_mov_b32 v{vKF + 8*kbuf + 5}, s{sT0}")
    A(f"s_mov_b32 s36, 0x3f80")
    A(f"s_mov_b32 s37, {(NEGB << 16) | 0x3f80}")
    setaddr(sWV, True)
    A(f"v_mov_b32 v{vM}, s29")
    A(f"s_cmp_eq_u32 s{sTQ}, 0")
    A(f"s_cbranch_scc1 {name}_aref0")
    kreads(0, 7)
    A(f"s_waitcnt lgkmcnt(0)")
    qk(0, 0, vQA, "0")
    A(f"s_branch {name}_aref1")
    A.label(f"{name}_aref0")
    kreads(0, 8)
    A(f"s_waitcnt lgkmcnt(0)")
    qk(0, 0, vQA, f"v[{vMD}:{vMD+15}]")
    A.label(f"{name}_aref1")
    kreads(0, 0)
    kreads(1, 1)
    vreads(0, 0)
    for r in range(16): A(f"v_mov_b32 v{vO+r}, 0")
    maxtile(0)
    finish_max(vQA)
    bias_for(0, 0)
    A(f"s_waitcnt lgkmcnt(4)")
    qk(0, 0, vQA, f"v[{vMF}:{vMF+15}]")
    A(f"s_nop 7")
    for i in range(9):
        pre = (lambda nb, i=i: bias_for(i+1, nb)) if i < 7 else ((lambda nb: A(f"v_mov_b32 v{vKF + 8*nb + 5}, s36")) if i == 7 else None)
        tile_step(i % 2, (i+1) % 2, vQA, (f"v[{vMD}:{vMD+15}]" if i == 7 else "0"), i + 2, i + 1,
                  do_qk=(i < 8), do_k=(i < 7), do_v=(i < 8), first=(i == 0), pre_qk=pre)
    A(f"s_nop 1")
    pv(1, 0)
    A(f"v_mov_b32 v{vKF+5}, s36")
    A(f"v_mov_b32 v{vKF+8+5}, s36")
    check_l(f"{name}_aepi")
    clear_max(vQA)
    A(f"s_sub_u32 s{sI}, 8, s{sTQ}")
    A(f"s_cmp_ge_u32 s{sTQ}, 8")
    A(f"s_cselect_b32 s{sI}, 0, s{sI}")
    A(f"s_mov_b32 s30, s{sI}")
    A(f"s_mov_b32 s31, s{sWV}")
    def set_cm_for(i_sreg):
        lab = f"{name}_cm{set_cm_for.n}"; set_cm_for.n += 1
        A(f"s_cmp_eq_u32 s{i_sreg}, 8")
        A(f"s_cbranch_scc1 {lab}_d")
        A(f"s_cmp_eq_u32 s{i_sreg}, 0")
        A(f"s_cbranch_scc1 {lab}_f")
        for r in range(16): A(f"v_mov_b32 v{vCM+r}, 0")
        A(f"s_branch {lab}_e")
        A.label(f"{lab}_d")
        for r in range(16): A(f"v_mov_b32 v{vCM+r}, v{vMD+r}")
        A(f"s_branch {lab}_e")
        A.label(f"{lab}_f")
        for r in range(16): A(f"v_mov_b32 v{vCM+r}, v{vMF+r}")
        A.label(f"{lab}_e")
    set_cm_for.n = 0
    A(f"v_mov_b32 v{vM}, s29")
    A.label(f"{name}_a1")
    A(f"s_add_u32 s{sT1}, s31, s{sI}")
    setaddr(sT1, True)
    kreads(0, 0)
    set_cm_for(sI)
    A(f"s_waitcnt lgkmcnt(0)")
    qk(0, 0, vQA, f"v[{vCM}:{vCM+15}]")
    maxtile(0)
    A(f"s_add_u32 s{sI}, s{sI}, 1")
    A(f"s_cmp_le_u32 s{sI}, 8")
    A(f"s_cbranch_scc1 {name}_a1")
    finish_max(vQA)
    for r in range(16): A(f"v_mov_b32 v{vO+r}, 0")
    A(f"s_mov_b32 s{sI}, s30")
    A.label(f"{name}_a2")
    A(f"s_add_u32 s{sT1}, s31, s{sI}")
    setaddr(sT1, True)
    kreads(0, 0)
    vreads(0, 0)
    set_cm_for(sI)
    A(f"s_waitcnt lgkmcnt(2)")
    qk(0, 0, vQA, f"v[{vCM}:{vCM+15}]")
    for i in range(16): A(f"v_exp_f32 v{vS+i}, v{vS+i}")
    for i in range(8): A(f"v_cvt_pk_bf16_f32 v{vP+i}, v{vS+2*i}, v{vS+2*i+1}")
    A(f"s_waitcnt lgkmcnt(0)")
    pv(0, 0); pv(1, 0)
    A(f"s_add_u32 s{sI}, s{sI}, 1")
    A(f"s_cmp_le_u32 s{sI}, 8")
    A(f"s_cbranch_scc1 {name}_a2")
    A(f"s_nop 12")
    A.label(f"{name}_aepi")
    epilogue(0)
    if PROF:
        stamp(A, 5 if PROF != 2 else 6)
        stamps_out(A, 1, 7, sWS, sWV, vS)
    rt_end(A, 1, sWV, vS)
    A(f"s_endpgm")

    A.label(f"{name}_loader")
    A(f"s_sub_u32 s35, s{sWV}, 8")
    A(f"s_lshl_b32 s34, s35, 10")
    A(f"s_add_u32 s43, s{sKMs}, {32<<16}")
    A(f"s_add_u32 s44, s{sVs}, {32*V_HEAD}")
    A(f"s_add_u32 s45, s{sKXs}, {16*16384}")
    A(f"s_lshl_b32 s46, s35, 2")
    A(f"v_add_u32 v{vT+8}, s46, v{vCA}")
    A(f"s_mov_b32 s47, -1")
    A(f"s_cmp_eq_u32 s35, 1")
    A(f"s_cselect_b32 s47, 0, s47")
    A("s_waitcnt lgkmcnt(0)")
    srd(A, sWS, 4, 5, WS_SIZE)
    def ld(lds_sreg, src_sreg, off):
        A(f"s_add_u32 m0, s{lds_sreg}, {off}")
        A(f"s_add_u32 s{sT3}, s{src_sreg}, {off}")
        A(f"buffer_load_dwordx4 v{vL16}, s[{sWS}:{sWS+3}], s{sT3} offen lds")
    A(f"s_mov_b32 s{sCnt}, 0")
    A.label(f"{name}_lgrp")
    A(f"s_add_u32 s{sT0}, s{sQB}, s{sCnt}")
    A(f"s_and_b32 s{sT0}, s{sT0}, 7")
    A(f"s_lshl_b32 s48, s{sT0}, 13")
    A(f"s_add_u32 s48, s48, s43")
    A(f"s_add_u32 s48, s48, s34")
    A(f"s_lshl_b32 s49, s{sCnt}, 13")
    A(f"s_add_u32 s49, s49, s34")
    for j in range(4): ld(49, 48, j*2048)
    A(f"s_lshl_b32 s48, s{sT0}, 11")
    A(f"s_add_u32 s48, s48, s45")
    A(f"s_add_u32 s48, s48, s34")
    A(f"s_lshl_b32 s49, s{sCnt}, 11")
    A(f"s_add_u32 s49, s49, s34")
    A(f"s_add_u32 s49, s49, {L_KX}")
    ld(49, 48, 0)
    A(f"s_mul_i32 s48, s{sT0}, {8*V_TILE}")
    A(f"s_add_u32 s48, s48, s44")
    A(f"s_add_u32 s48, s48, s34")
    A(f"s_mul_i32 s49, s{sCnt}, {8*V_TILE}")
    A(f"s_add_u32 s49, s49, s34")
    A(f"s_add_u32 s49, s49, {L_V}")
    for j in range(4): ld(49, 48, j*2048)
    A(f"s_mov_b32 exec_hi, s47")
    ld(49, 48, 4*2048)
    A(f"s_mov_b32 exec_hi, -1")
    A(f"s_cmp_eq_u32 s{sCnt}, 0")
    A(f"s_cbranch_scc0 {name}_lg1")
    A(f"s_barrier")
    A(f"s_branch {name}_lg2")
    A.label(f"{name}_lg1")
    A(f"s_waitcnt vmcnt(10)")
    A(f"v_mov_b32 v{vT}, 1")
    A(f"s_mov_b64 exec, 1")
    A(f"ds_add_u32 v{vT+8}, v{vT}")
    A(f"s_mov_b64 exec, -1")
    A.label(f"{name}_lg2")
    A(f"s_add_u32 s{sCnt}, s{sCnt}, 1")
    A(f"s_cmp_lt_u32 s{sCnt}, 8")
    A(f"s_cbranch_scc1 {name}_lgrp")
    A(f"s_waitcnt vmcnt(0)")
    A(f"v_mov_b32 v{vT}, 1")
    A(f"s_mov_b64 exec, 1")
    A(f"ds_add_u32 v{vT+8}, v{vT}")
    A(f"s_mov_b64 exec, -1")
    poll(8, 8, "ld")
    def lgroup(ldsbase, sreg, n):
        lab = f"{name}_lg_{lgroup.n}"; lgroup.n += 1
        A(f"s_add_u32 s{sT3}, s{sreg}, s34")
        A(f"s_add_u32 s{sT2}, s34, {ldsbase}")
        A(f"s_mov_b32 s{sCnt}, s35")
        A.label(lab)
        A(f"s_mov_b32 m0, s{sT2}")
        A(f"s_add_u32 s{sT2}, s{sT2}, 2048")
        A(f"buffer_load_dwordx4 v{vL16}, s[{sWS}:{sWS+3}], s{sT3} offen lds")
        A(f"s_add_u32 s{sT3}, s{sT3}, 2048")
        A(f"s_add_u32 s{sCnt}, s{sCnt}, 2")
        A(f"s_cmp_lt_u32 s{sCnt}, {n}")
        A(f"s_cbranch_scc1 {lab}")
    lgroup.n = 0
    A(f"s_lshl_b32 s{sI}, s{sQB}, 3")
    A(f"s_sub_u32 s{sI}, s{sI}, 8")
    A(f"s_lshl_b32 s{sT0}, s{sI}, 10")
    A(f"s_add_u32 s28, s{sKMs}, s{sT0}")
    lgroup(L_KM, 28, 16)
    A(f"s_lshl_b32 s{sT0}, s{sI}, 8")
    A(f"s_add_u32 s28, s{sKXs}, s{sT0}")
    lgroup(L_KX, 28, 4)
    A(f"s_mul_i32 s{sT0}, s{sI}, {V_TILE}")
    A(f"s_add_u32 s28, s{sVs}, s{sT0}")
    lgroup(L_V, 28, 19)
    A(f"s_waitcnt vmcnt(0)")
    signal(12)
    if WOPF:
        A(f"s_lshl_b32 s{sT0}, s35, 1")
        A(f"s_mul_i32 s{sT0}, s{sT0}, 12")
        A(f"s_add_u32 s{sT0}, s{sT0}, 16")
        A(f"s_load_dwordx2 s[48:49], s[0:1], s{sT0}")
        A(f"s_lshr_b32 s{sT1}, s2, 3")
        A(f"s_mul_i32 s{sT1}, s{sT1}, {D*D*2 // 32}")
        A(f"v_lshlrev_b32 v{vT+1}, 6, v{vLane}")
        A(f"s_waitcnt lgkmcnt(0)")
        A(f"s_mov_b32 s52, s48")
        A(f"s_and_b32 s53, s49, 0xffff")
        A(f"s_mov_b32 s54, {D*D*2}")
        A(f"s_mov_b32 s55, 0x00020000")
        for j in range(6):
            A(f"buffer_load_dword v{vT+2}, v{vT+1}, s[52:55], s{sT1} offen")
            if j < 5: A(f"s_add_u32 s{sT1}, s{sT1}, 4096")
        A(f"s_waitcnt vmcnt(0)")
    A(f"s_waitcnt lgkmcnt(0)")
    A.label(f"{name}_end")
    A(f"s_endpgm")
    return khead(name) + A.finish(True), kdesc(name, NV, 100)
```

```python
from asmlib import *
from common import *

K3_LDS = 2 * 576 * 128
K3_THREADS = 512
K3_GRID = 216
NCH = 6
KPC = 36 // NCH

def gen_k3(name):
    A = Asm()
    sWS, sW, sOUT = 8, 12, 16
    sTG, sCG, sWV, sBR, sTT, sTILE = 20, 21, 22, 23, 24, 25
    sT0, sT1, sT2, sT3 = 26, 27, 28, 29
    sCH = 30
    vLane = 1
    vL16 = 2
    vLm, vLe = 3, 4
    vAW0, vAW1 = 5, 6
    vOx = 7
    vT = 8
    vWF = 16
    vACC = 32
    vOF = 64
    NV = 208

    A(f"s_cmp_ge_u32 s2, {K3_GRID}")
    A(f"s_cbranch_scc1 {name}_end")
    stamp(A, 0)
    rt_begin(A)
    A(f"s_load_dwordx2 s[4:5], s[0:1], {ARG['ws']}")
    A(f"s_load_dwordx2 s[6:7], s[0:1], {ARG['A_wo']}")
    A(f"s_load_dwordx2 s[32:33], s[0:1], {ARG['B_wo']}")
    A(f"s_load_dwordx2 s[34:35], s[0:1], {ARG['out']}")
    A(f"v_and_b32 v{vLane}, 63, v0")
    A(f"v_lshrrev_b32 v{vT}, 6, v0")
    A(f"s_and_b32 s{sT0}, s2, 7")
    A(f"v_readfirstlane_b32 s{sWV}, v{vT}")
    A(f"s_lshr_b32 s{sT1}, s2, 3")
    A(f"s_mul_i32 s{sT2}, s{sT1}, 57")
    A(f"s_lshr_b32 s{sT2}, s{sT2}, 9")
    A(f"s_mul_i32 s{sT3}, s{sT2}, 9")
    A(f"s_sub_u32 s{sCG}, s{sT1}, s{sT3}")
    A(f"s_lshl_b32 s{sT2}, s{sT2}, 3")
    A(f"s_add_u32 s{sTG}, s{sT0}, s{sT2}")
    A(f"s_cmp_ge_u32 s{sTG}, 22")
    A(f"s_cbranch_scc1 {name}_end")
    A(f"s_cmp_ge_u32 s{sWV}, 6")
    A(f"s_cbranch_scc0 {name}_comp")

    A(f"s_sub_u32 s{sBR}, s{sWV}, 6")
    A(f"v_lshrrev_b32 v{vT}, 3, v{vLane}")
    A(f"v_and_b32 v{vT+1}, 7, v{vLane}")
    A(f"v_bfe_u32 v{vT+2}, v{vLane}, 4, 1")
    A(f"v_lshlrev_b32 v{vT+3}, 2, v{vT+2}")
    A(f"v_xor_b32 v{vT+1}, v{vT+1}, v{vT+3}")
    A(f"v_lshlrev_b32 v{vT+1}, 4, v{vT+1}")
    A(f"v_lshrrev_b32 v{vT+3}, 2, v{vT}")
    A(f"v_lshlrev_b32 v{vT+3}, 3, v{vT+3}")
    A(f"v_and_b32 v{vT+4}, 3, v{vT}")
    A(f"v_add_u32 v{vT+3}, v{vT+3}, v{vT+4}")
    A(f"v_mul_u32_u24 v{vLm}, 1152, v{vT+3}")
    A(f"v_add_u32 v{vLm}, v{vLm}, v{vT+1}")
    A(f"v_lshrrev_b32 v{vT+3}, 1, v{vT}")
    A(f"v_mul_u32_u24 v{vT+3}, 18, v{vT+3}")
    A(f"v_lshlrev_b32 v{vT+4}, 4, v{vT+2}")
    A(f"v_sub_u32 v{vT+4}, 16, v{vT+4}")
    A(f"v_and_b32 v{vT+5}, 1, v{vT}")
    A(f"v_add3_u32 v{vT+3}, v{vT+3}, v{vT+4}, v{vT+5}")
    A(f"v_mul_u32_u24 v{vLe}, 1152, v{vT+3}")
    A(f"v_add_u32 v{vLe}, v{vLe}, v{vT+1}")
    A("s_waitcnt lgkmcnt(0)")
    A(f"s_cmp_eq_u32 s{sBR}, 0")
    A(f"s_cselect_b32 s{sW}, s6, s32")
    A(f"s_cselect_b32 s{sW+1}, s7, s33")
    A(f"s_and_b32 s{sW+1}, s{sW+1}, 0xffff")
    A(f"s_mov_b32 s{sW+2}, {D*D*2}")
    A(f"s_mov_b32 s{sW+3}, 0x00020000")
    A(f"s_mul_i32 s{sT0}, s{sBR}, {576*128}")
    A(f"s_mov_b32 m0, s{sT0}")
    A(f"s_lshl_b32 s{sT1}, s{sCG}, 7")
    A(f"s_lshl_b32 s36, s{sCG}, 2")
    def wchunk(ch):
        for s_ in range(KPC*ch, KPC*(ch+1)):
            if s_ < 32:
                A(f"s_add_u32 s{sT3}, s36, {s_}")
                A(f"s_and_b32 s{sT3}, s{sT3}, 31")
                A(f"s_mul_i32 s{sT3}, s{sT3}, {18*1152}")
                A(f"s_add_u32 s{sT3}, s{sT3}, s{sT1}")
            for hk in range(2):
                if s_ < 32:
                    A(f"s_add_u32 s{sT2}, s{sT3}, {(2*(s_ % 2) + 4*hk) * 1152}")
                    A(f"buffer_load_dwordx4 v{vLm}, s[{sW}:{sW+3}], s{sT2} offen lds")
                else:
                    A(f"s_add_u32 s{sT2}, s{sT1}, {18*(8*(s_-32) + 4*hk) * 1152}")
                    A(f"buffer_load_dwordx4 v{vLe}, s[{sW}:{sW+3}], s{sT2} offen lds")
                A(f"s_add_u32 m0, m0, 1024")
    AHEAD = 2
    for ch in range(AHEAD): wchunk(ch)
    for ch in range(NCH):
        inflight_after = min(NCH, ch + AHEAD) - (ch + 1)
        A(f"s_waitcnt vmcnt({2*KPC*inflight_after})")
        A(f"s_barrier")
        if ch + AHEAD < NCH: wchunk(ch + AHEAD)
    A(f"s_barrier")
    A(f"s_barrier")
    A(f"s_endpgm")

    A.label(f"{name}_comp")
    A(f"s_cmp_ge_u32 s{sWV}, 3")
    A(f"s_cselect_b32 s{sBR}, 1, 0")
    A(f"s_mul_i32 s{sT0}, s{sBR}, 3")
    A(f"s_sub_u32 s{sTT}, s{sWV}, s{sT0}")
    A(f"s_mul_i32 s{sTILE}, s{sTG}, 3")
    A(f"s_add_u32 s{sTILE}, s{sTILE}, s{sTT}")
    A(f"s_min_u32 s{sT3}, s{sTILE}, 63")
    A(f"v_lshlrev_b32 v{vL16}, 4, v{vLane}")
    A("s_waitcnt lgkmcnt(0)")
    srd(A, sWS, 4, 5, WS_SIZE)
    srd(A, sOUT, 34, 35, T*D*2)
    A(f"s_lshl_b32 s{sT0}, s{sBR}, 6")
    A(f"s_add_u32 s{sT0}, s{sT0}, s{sT3}")
    A(f"s_lshl_b32 s{sT1}, s{sT0}, 15")
    A(f"s_add_u32 s{sT1}, s{sT1}, {WS_OM}")
    A(f"s_lshl_b32 s36, s{sCG}, 2")
    A(f"s_mov_b32 s37, s{sT1}")
    A(f"v_and_b32 v{vT}, 31, v{vLane}")
    A(f"v_lshlrev_b32 v{vOx}, 2, v{vT}")
    A(f"v_lshrrev_b32 v{vT+1}, 5, v{vLane}")
    A(f"v_lshl_add_u32 v{vOx}, v{vT+1}, 9, v{vOx}")
    A(f"s_lshl_b32 s38, s{sT0}, 12")
    A(f"s_add_u32 s38, s38, {WS_OX}")
    nload = [0]
    def oload():
        k = nload[0]
        if k >= 48: return
        nload[0] += 1
        if k < 32:
            r = vOF + 4*k
            A(f"s_add_u32 s39, s36, {k}")
            A(f"s_and_b32 s39, s39, 31")
            A(f"s_lshl_b32 s39, s39, 10")
            A(f"s_add_u32 s39, s39, s37")
            A(f"buffer_load_dwordx4 v[{r}:{r+3}], v{vL16}, s[{sWS}:{sWS+3}], s39 offen")
        else:
            sp, i = (k-32) // 4, (k-32) % 4
            r = vOF + 4*(32+sp) + i
            A(f"buffer_load_dword v{r}, v{vOx}, s[{sWS}:{sWS+3}], s38 offen offset:{sp*1024 + i*128}")
    for _ in range(2*KPC): oload()
    A(f"v_bfe_u32 v{vT+2}, v{vLane}, 2, 2")
    A(f"v_lshl_add_u32 v{vT+3}, v{vT+1}, 3, v{vT+2}")
    A(f"v_lshlrev_b32 v{vT+3}, 7, v{vT+3}")
    A(f"v_bfe_u32 v{vT+4}, v{vLane}, 4, 1")
    A(f"v_lshlrev_b32 v{vT+4}, 5, v{vT+4}")
    A(f"v_and_b32 v{vT+5}, 1, v{vLane}")
    A(f"v_lshlrev_b32 v{vT+5}, 1, v{vT+5}")
    A(f"v_bfe_u32 v{vT+6}, v{vLane}, 1, 1")
    A(f"v_or_b32 v{vT+5}, v{vT+5}, v{vT+6}")
    A(f"v_lshl_add_u32 v{vT+4}, v{vT+5}, 3, v{vT+4}")
    A(f"v_lshrrev_b32 v{vT+2}, 1, v{vT+2}")
    A(f"v_lshlrev_b32 v{vT+2}, 6, v{vT+2}")
    A(f"v_xor_b32 v{vT+4}, v{vT+4}, v{vT+2}")
    A(f"s_mul_i32 s{sT0}, s{sBR}, {576*128}")
    A(f"v_add3_u32 v{vAW0}, v{vT+3}, v{vT+4}, s{sT0}")
    A(f"v_xor_b32 v{vAW1}, 64, v{vAW0}")
    for i in range(32): A(f"v_mov_b32 v{vACC+i}, 0")
    stamp(A, 1)
    def wr(s_, buf, k):
        wf = vWF + 8*buf
        off = (s_ % KPC) * 2048
        va = vAW0 if k < 2 else vAW1
        A(f"ds_read_b64_tr_b16 v[{wf+2*k}:{wf+2*k+1}], v{va} offset:{off + 512*(k % 2)}")
    def mf(s_, buf, t):
        acc = vACC + 16*t; wf = vWF + 8*buf; of = vOF + 4*s_
        A(f"v_mfma_f32_32x32x16_bf16 v[{acc}:{acc+15}], v[{wf+4*t}:{wf+4*t+3}], v[{of}:{of+3}], v[{acc}:{acc+15}]")
    def owait(s_):
        need = s_ + 1 if s_ < 32 else 32 + 4*(s_ - 31)
        A(f"s_waitcnt vmcnt({nload[0] - need})")
    for ch in range(NCH):
        A(f"s_barrier")
        if ch == 0: stamp(A, 2)
        s0 = KPC*ch
        for k in range(4): wr(s0, 0, k)
        for q in range(KPC):
            s_ = s0 + q; b = q % 2
            last = (q == KPC-1)
            owait(s_)
            A(f"s_waitcnt lgkmcnt(2)")
            mf(s_, b, 0)
            if not last:
                wr(s_+1, 1-b, 0); wr(s_+1, 1-b, 1)
                A(f"s_waitcnt lgkmcnt(2)")
            else:
                A(f"s_waitcnt lgkmcnt(0)")
            mf(s_, b, 1)
            if not last:
                wr(s_+1, 1-b, 2); wr(s_+1, 1-b, 3)
            for _ in range(3 if ch == 3 else 1):
                if ch + 2 < NCH: oload()
        if ch < NCH-1:
            A(f"v_add_u32 v{vAW0}, {KPC*2048}, v{vAW0}")
            A(f"v_add_u32 v{vAW1}, {KPC*2048}, v{vAW1}")
    stamp(A, 3)
    A(f"s_barrier")
    A(f"s_lshl_b32 s{sT0}, s{sTT}, 13")
    A(f"s_lshl_b32 s{sT1}, s{sBR}, 12")
    A(f"s_add_u32 s{sT2}, s{sT0}, s{sT1}")
    A(f"v_add_u32 v{vT}, s{sT2}, v{vL16}")
    A(f"s_xor_b32 s{sT2}, s{sT2}, 4096")
    A(f"v_add_u32 v{vT+1}, s{sT2}, v{vL16}")
    A(f"s_nop 7")
    A(f"s_cmp_eq_u32 s{sBR}, 0")
    A(f"s_cbranch_scc1 {name}_xa")
    for i in range(4): A(f"ds_write_b128 v{vT}, v[{vACC+4*i}:{vACC+4*i+3}] offset:{i*1024}")
    for i in range(16): A(f"v_mov_b32 v{vACC+i}, v{vACC+16+i}")
    A(f"s_branch {name}_xb")
    A.label(f"{name}_xa")
    for i in range(4): A(f"ds_write_b128 v{vT}, v[{vACC+16+4*i}:{vACC+16+4*i+3}] offset:{i*1024}")
    A.label(f"{name}_xb")
    A(f"s_waitcnt lgkmcnt(0)")
    A(f"s_barrier")
    for i in range(4):
        A(f"ds_read_b128 v[{vOF+4*i}:{vOF+4*i+3}], v{vT+1} offset:{i*1024}")
    A(f"s_cmp_ge_u32 s{sTILE}, 64")
    A(f"s_cbranch_scc1 {name}_end")
    A(f"v_and_b32 v{vT+2}, 31, v{vLane}")
    A(f"v_mul_u32_u24 v{vT+2}, 1152, v{vT+2}")
    A(f"v_lshrrev_b32 v{vT+3}, 5, v{vLane}")
    A(f"v_lshl_add_u32 v{vT+2}, v{vT+3}, 4, v{vT+2}")
    A(f"s_mul_i32 s{sT0}, s{sTILE}, {32*1152}")
    A(f"s_lshl_b32 s{sT1}, s{sCG}, 7")
    A(f"s_add_u32 s{sT0}, s{sT0}, s{sT1}")
    A(f"s_lshl_b32 s{sT1}, s{sBR}, 6")
    A(f"s_add_u32 s{sT0}, s{sT0}, s{sT1}")
    A(f"s_waitcnt lgkmcnt(0)")
    for i in range(16): A(f"v_add_f32 v{vACC+i}, v{vACC+i}, v{vOF+i}")
    for i in range(8): A(f"v_cvt_pk_bf16_f32 v{vWF+i}, v{vACC+2*i}, v{vACC+2*i+1}")
    for half in range(2):
        r = vWF + 4*half
        A(f"buffer_store_dwordx4 v[{r}:{r+3}], v{vT+2}, s[{sOUT}:{sOUT+3}], s{sT0} offen offset:{half*32}")
    if PROF:
        stamp(A, 4)
        A("s_waitcnt vmcnt(0)")
        stamp(A, 5)
        stamps_out(A, 2, 6, sWS, sWV, vOF)
    rt_end(A, 2, sWV, vOF)
    A.label(f"{name}_end")
    A(f"s_endpgm")
    return khead(name) + A.finish(True), kdesc(name, NV, 100)
```

```python
from asmlib import *
from common import *
import os

L_KM = 0
L_V = 65536
L_KX = 65536 + 64*1216
L_CNT = L_KX + 64*256
K2_LDS = L_CNT + 64
K2_THREADS = 640
NEG = f2u(-1.0e30)
NEGB = 0xF149
DBG = int(os.environ.get("DBG", "0"))
PF = int(os.environ.get("PF", "1"))
PRIO = int(os.environ.get("PRIO", "1"))
WOPF = int(os.environ.get("WOPF", "1"))
ZPAD = int(os.environ.get("ZPAD", "1"))

def gen_k2(name):
    A = Asm()
    sWS = 8
    sH, sQB, sWV, sTQ = 12, 13, 14, 15
    sT0, sT1, sT2, sT3 = 16, 17, 18, 19
    sCnt, sI = 20, 21
    sPass = 22
    sKMs, sVs, sKXs = 24, 25, 26
    vLane = 1
    vL16 = 2
    vKa, vVa, vXa = 3, 4, 5
    vKa0, vVa0, vXa0 = 6, 7, 8
    vG = 9
    vT = 10
    vQA, vQB = 20, 28
    vKF = 36
    vVF = 52
    vS = 68
    vP = 100
    vO = 108
    vMF, vMD = 124, 140
    vCM = vS + 16
    vM = 156
    vCA = 157
    vVg, vXg = 158, 159
    NV = 160

    A(f"s_cmp_ge_u32 s2, 256")
    A(f"s_cbranch_scc1 {name}_end")
    stamp(A, 0)
    rt_begin(A)
    A(f"s_load_dwordx2 s[4:5], s[0:1], {ARG['ws']}")
    A(f"v_and_b32 v{vLane}, 63, v0")
    A(f"v_lshrrev_b32 v{vT}, 6, v0")
    A(f"s_and_b32 s{sT0}, s2, 7")
    A(f"v_readfirstlane_b32 s{sWV}, v{vT}")
    A(f"s_lshr_b32 s{sT1}, s2, 3")
    A(f"s_lshl_b32 s{sT0}, s{sT0}, 2")
    A(f"s_and_b32 s{sT2}, s{sT1}, 3")
    A(f"s_add_u32 s{sH}, s{sT0}, s{sT2}")
    A(f"s_lshr_b32 s{sQB}, s{sT1}, 2")
    A(f"v_lshlrev_b32 v{vL16}, 4, v{vLane}")
    A(f"s_lshl_b32 s{sT0}, s{sH}, 16")
    A(f"s_add_u32 s{sKMs}, s{sT0}, {WS_KM}")
    A(f"s_mul_i32 s{sT0}, s{sH}, {V_HEAD}")
    A(f"s_add_u32 s{sVs}, s{sT0}, {WS_V}")
    A(f"s_lshr_b32 s{sT0}, s{sH}, 1")
    A(f"s_lshl_b32 s{sT0}, s{sT0}, 14")
    A(f"s_add_u32 s{sKXs}, s{sT0}, {WS_KX}")
    A(f"v_mov_b32 v{vCA}, {L_CNT}")
    A(f"s_cmp_ge_u32 s{sWV}, 8")
    A(f"s_cbranch_scc1 {name}_loader")

    def dma_run(ldsbase, sreg, woff_sreg, stride, n_full, rem_limit_sreg=None, rem=None, tag=""):
        A(f"s_add_u32 s{sT3}, s{sreg}, s{woff_sreg}")
        A(f"s_add_u32 m0, s{woff_sreg}, {ldsbase}")
        for j in range(n_full):
            A(f"s_nop 0")
            A(f"buffer_load_dwordx4 v{vL16}, s[{sWS}:{sWS+3}], s{sT3} offen lds")
            if j < n_full - 1 or rem:
                A(f"s_add_u32 m0, m0, {stride}")
                A(f"s_add_u32 s{sT3}, s{sT3}, {stride}")
        if rem:
            lab = f"{name}_dg{dma_run.n}"; dma_run.n += 1
            A(f"s_cmp_lt_u32 s{rem_limit_sreg}, {rem}")
            A(f"s_cbranch_scc0 {lab}")
            A(f"buffer_load_dwordx4 v{vL16}, s[{sWS}:{sWS+3}], s{sT3} offen lds")
            A.label(lab)
    dma_run.n = 0
    def group(ldsbase, sreg, n, nw, widx_sreg, woff_sreg):
        dma_run(ldsbase, sreg, woff_sreg, nw*1024, n // nw, widx_sreg, n % nw)
    def poll(off, target, tag):
        A.label(f"{name}_poll{tag}")
        A(f"ds_read_b32 v{vT}, v{vCA} offset:{off}")
        A(f"s_waitcnt lgkmcnt(0)")
        A(f"v_readfirstlane_b32 s{sT0}, v{vT}")
        A(f"s_cmp_ge_u32 s{sT0}, {target}")
        A(f"s_cbranch_scc1 {name}_pollok{tag}")
        A(f"s_sleep 1")
        A(f"s_branch {name}_poll{tag}")
        A.label(f"{name}_pollok{tag}")
    def signal(off):
        A(f"v_mov_b32 v{vT}, 1")
        A(f"s_mov_b64 exec, 1")
        A(f"ds_add_u32 v{vCA}, v{vT} offset:{off}")
        A(f"s_mov_b64 exec, -1")

    A(f"s_lshl_b32 s{sTQ}, s{sQB}, 3")
    A(f"s_add_u32 s{sTQ}, s{sTQ}, s{sWV}")
    A(f"s_cmp_lg_u32 s{sWV}, 0")
    A(f"s_cbranch_scc1 {name}_noinit")
    A(f"v_mov_b32 v{vT+3}, 0")
    A(f"v_lshlrev_b32 v{vT+4}, 2, v{vLane}")
    A(f"v_add_u32 v{vT+4}, {L_CNT}, v{vT+4}")
    A(f"s_mov_b64 exec, 0xffff")
    A(f"ds_write_b32 v{vT+4}, v{vT+3}")
    A(f"s_mov_b64 exec, -1")
    A.label(f"{name}_noinit")
    A(f"v_and_b32 v{vT}, 31, v{vLane}")
    A(f"v_lshlrev_b32 v{vT+1}, 3, v{vT}")
    A(f"s_lshl_b32 s{sT0}, s{sH}, 16")
    A(f"s_lshl_b32 s{sT1}, s{sTQ}, 10")
    A(f"s_add_u32 s40, s{sT0}, s{sT1}")
    A(f"s_lshr_b32 s{sT2}, s{sH}, 1")
    A(f"s_lshl_b32 s{sT2}, s{sT2}, 14")
    A(f"s_and_b32 s{sT1}, s{sH}, 1")
    A(f"s_lshl_b32 s{sT1}, s{sT1}, 2")
    A(f"s_add_u32 s41, s{sT2}, s{sT1}")
    A(f"s_lshl_b32 s{sT1}, s{sTQ}, 8")
    A(f"s_add_u32 s41, s41, s{sT1}")
    A(f"s_add_u32 s41, s41, {WS_QX}")
    A("s_waitcnt lgkmcnt(0)")
    if PROF == 2: stamp(A, 1)
    srd(A, sWS, 4, 5, WS_SIZE)
    A(f"s_add_u32 s{sT0}, s40, {WS_QM + (32<<16)}")
    A(f"buffer_load_dwordx4 v[{vQB}:{vQB+3}], v{vL16}, s[{sWS}:{sWS+3}], s{sT0} offen")
    A(f"s_add_u32 s{sT0}, s41, {16*16384}")
    A(f"buffer_load_dword v{vQB+4}, v{vT+1}, s[{sWS}:{sWS+3}], s{sT0} offen")
    A(f"s_barrier")
    if PROF == 2: stamp(A, 2)
    A(f"v_lshrrev_b32 v{vT+1}, 5, v{vLane}")
    A(f"v_mov_b32 v{vT+2}, 4")
    A(f"v_subrev_u32 v{vT+3}, 20, v{vT}")
    A(f"v_cmp_gt_u32 vcc, 8, v{vT+3}")
    A(f"v_cndmask_b32 v{vT+2}, v{vT+2}, 0, vcc")
    A(f"v_cmp_gt_u32 vcc, 19, v{vT}")
    A(f"v_cndmask_b32 v{vT+2}, v{vT+2}, v{vT}, vcc")
    A(f"v_mul_u32_u24 v{vVg}, 304, v{vT+1}")
    A(f"v_lshl_add_u32 v{vVg}, v{vT+2}, 4, v{vVg}")
    A(f"v_add_u32 v{vVa0}, {L_V}, v{vVg}")
    if ZPAD:
        A(f"v_cmp_gt_u32 vcc, 19, v{vT}")
        A(f"v_mov_b32 v{vT+3}, 0x40000")
        A(f"v_cndmask_b32 v{vVa0}, v{vT+3}, v{vVa0}, vcc")
    A(f"v_mov_b32 v{vKa0}, v{vL16}")
    A(f"s_and_b32 s{sT0}, s{sH}, 1")
    A(f"s_lshl_b32 s{sT0}, s{sT0}, 2")
    A(f"v_lshlrev_b32 v{vXg}, 3, v{vT}")
    A(f"v_add_u32 v{vXg}, s{sT0}, v{vXg}")
    A(f"v_add_u32 v{vXa0}, {L_KX}, v{vXg}")
    if ZPAD:
        A(f"v_cmp_gt_u32 vcc, 32, v{vLane}")
        A(f"v_cndmask_b32 v{vXa0}, v{vT+3}, v{vXa0}, vcc")
    A(f"v_mov_b32 v{vKF+5}, 0x3f80")
    A(f"v_mov_b32 v{vKF+8+5}, 0x3f80")
    A(f"v_lshlrev_b32 v{vT+4}, 2, v{vT+1}")
    A(f"v_sub_u32 v{vT+4}, v{vT}, v{vT+4}")
    A(f"s_mov_b32 s29, {NEG}")
    for r in range(16):
        c = 8*(r//4) + r % 4
        A(f"v_subrev_u32 v{vT+5}, {c}, v{vT+4}")
        A(f"v_ashrrev_i32 v{vT+5}, 31, v{vT+5}")
        A(f"v_and_b32 v{vMD+r}, s29, v{vT+5}")
        A(f"v_xor_b32 v{vMF+r}, s29, v{vMD+r}")
    ONEHI = 0x3f800000
    def qext_fix(q):
        A(f"v_cmp_gt_u32 vcc, 32, v{vLane}")
        A(f"v_mov_b32 v{vT+6}, {ONEHI}")
        A(f"v_cndmask_b32 v{q+4}, 0, v{q+4}, vcc")
        A(f"v_cndmask_b32 v{q+5}, 0, v{vT+6}, vcc")
    if PROF == 2: stamp(A, 3)
    A(f"s_waitcnt vmcnt(0)")
    if PROF == 2: stamp(A, 4)
    qext_fix(vQB)
    A(f"buffer_load_dwordx4 v[{vQA}:{vQA+3}], v{vL16}, s[{sWS}:{sWS+3}], s40 offen")
    A(f"v_and_b32 v{vT}, 31, v{vLane}")
    A(f"v_lshlrev_b32 v{vT+1}, 3, v{vT}")
    A(f"buffer_load_dword v{vQA+4}, v{vT+1}, s[{sWS}:{sWS+3}], s41 offen")
    A(f"v_lshlrev_b32 v{vT+2}, 2, v{vT}")
    A(f"s_lshl_b32 s{sT0}, s{sTQ}, 7")
    A(f"s_add_u32 s{sT0}, s{sT0}, {WS_G}")
    A(f"buffer_load_dword v{vG}, v{vT+2}, s[{sWS}:{sWS+3}], s{sT0} offen")
    def need_groups(n_imm=None, n_sreg=None, tag=""):
        tgt = f"{n_imm}" if n_imm is not None else f"s{n_sreg}"
        A(f"s_cmp_ge_u32 s42, {tgt}")
        A(f"s_cbranch_scc1 {name}_ng_ok{tag}")
        A.label(f"{name}_ng{tag}")
        A(f"ds_read_b64 v[{vT}:{vT+1}], v{vCA}")
        A(f"s_waitcnt lgkmcnt(0)")
        A(f"v_min_u32 v{vT}, v{vT}, v{vT+1}")
        A(f"v_readfirstlane_b32 s42, v{vT}")
        A(f"s_cmp_ge_u32 s42, {tgt}")
        A(f"s_cbranch_scc1 {name}_ng_ok{tag}")
        A(f"s_sleep 1")
        A(f"s_branch {name}_ng{tag}")
        A.label(f"{name}_ng_ok{tag}")
    A(f"s_mov_b32 s42, 0")

    def kreads(buf, off_slot):
        kf = vKF + 8*buf
        A(f"ds_read_b128 v[{kf}:{kf+3}], v{vKa} offset:{off_slot*1024}")
        A(f"ds_read_b32 v{kf+4}, v{vXa} offset:{off_slot*256}")
    def vreads(buf, off_slot):
        vf = vVF + 8*buf
        A(f"ds_read_b128 v[{vf}:{vf+3}], v{vVa} offset:{off_slot*V_TILE}")
        A(f"ds_read_b128 v[{vf+4}:{vf+7}], v{vVa} offset:{off_slot*V_TILE+608}")
    def qk(sbuf, kbuf, q, cop):
        sd = vS + 16*sbuf; kf = vKF + 8*kbuf
        A(f"v_mfma_f32_32x32x16_bf16 v[{sd}:{sd+15}], v[{kf}:{kf+3}], v[{q}:{q+3}], {cop}")
        A(f"v_mfma_f32_32x32x8_bf16 v[{sd}:{sd+15}], v[{kf+4}:{kf+5}], v[{q+4}:{q+5}], v[{sd}:{sd+15}]")
    def setaddr(slot, sreg=False):
        if not sreg:
            A(f"v_add_u32 v{vKa}, {L_KM + slot*1024}, v{vKa0}")
            A(f"v_add_u32 v{vVa}, {slot*V_TILE}, v{vVa0}")
            A(f"v_add_u32 v{vXa}, {slot*256}, v{vXa0}")
        else:
            A(f"s_lshl_b32 s{sT0}, s{slot}, 10")
            A(f"v_add_u32 v{vKa}, s{sT0}, v{vKa0}")
            A(f"s_mul_i32 s{sT0}, s{slot}, {V_TILE}")
            A(f"v_add_u32 v{vVa}, s{sT0}, v{vVa0}")
            A(f"s_lshl_b32 s{sT0}, s{slot}, 8")
            A(f"v_add_u32 v{vXa}, s{sT0}, v{vXa0}")
    def adv(n):
        A(f"v_add_u32 v{vKa}, {n*1024}, v{vKa}")
        A(f"v_add_u32 v{vVa}, {n*V_TILE}, v{vVa}")
        A(f"v_add_u32 v{vXa}, {n*256}, v{vXa}")
    def maxtile(sbuf):
        sd = vS + 16*sbuf
        for i in range(8):
            A(f"v_max3_f32 v{vM}, v{sd+2*i}, v{sd+2*i+1}, v{vM}")
    def finish_max(q):
        A(f"v_mov_b32 v{vT}, v{vM}")
        A(f"v_permlane32_swap_b32 v{vM}, v{vT}")
        A(f"v_max_f32 v{vM}, v{vM}, v{vT}")
        A(f"v_sub_f32 v{vT}, 0, v{vM}")
        A(f"v_cvt_pk_bf16_f32 v{vT}, v{vT}, 1.0")
        A(f"v_cmp_gt_u32 vcc, 32, v{vLane}")
        A(f"v_cndmask_b32 v{q+5}, 0, v{vT}, vcc")
    def clear_max(q):
        A(f"v_mov_b32 v{vT}, {ONEHI}")
        A(f"v_cmp_gt_u32 vcc, 32, v{vLane}")
        A(f"v_cndmask_b32 v{q+5}, 0, v{vT}, vcc")
    def pv(g, vbuf):
        vf = vVF + 8*vbuf + 4*g
        A(f"v_mfma_f32_32x32x16_bf16 v[{vO}:{vO+15}], v[{vf}:{vf+3}], v[{vP+4*g}:{vP+4*g+3}], v[{vO}:{vO+15}]")
    def check_l(ok_label):
        A(f"s_nop 12")
        A(f"v_mov_b32 v{vT}, {f2u(2.0**100)}")
        A(f"v_cmp_nlt_f32 vcc, v{vO+10}, v{vT}")
        A(f"s_bfm_b64 s[32:33], 32, 0")
        A(f"s_and_b64 vcc, vcc, s[32:33]")
        A(f"s_cbranch_scc0 {ok_label}")
    def epilogue(br):
        A(f"v_mov_b32 v{vT}, v{vO+10}")
        A(f"v_mov_b32 v{vT+1}, v{vO+10}")
        A(f"v_permlane32_swap_b32 v{vT}, v{vT+1}")
        A(f"v_rcp_f32 v{vT+2}, v{vT}")
        if br == 0:
            A(f"v_mul_f32 v{vT+2}, v{vT+2}, v{vG}")
        else:
            A(f"v_sub_f32 v{vT+3}, 1.0, v{vG}")
            A(f"v_mul_f32 v{vT+2}, v{vT+2}, v{vT+3}")
        for i in range(10): A(f"v_mul_f32 v{vO+i}, v{vO+i}, v{vT+2}")
        for i in range(5): A(f"v_cvt_pk_bf16_f32 v{vP+i}, v{vO+2*i}, v{vO+2*i+1}")
        A(f"s_lshl_b32 s{sT0}, s{sTQ}, 5")
        A(f"s_add_u32 s{sT0}, s{sT0}, s{sH}")
        A(f"s_lshl_b32 s{sT1}, s{sT0}, 10")
        A(f"s_add_u32 s{sT1}, s{sT1}, {WS_OM + br*64*32*1024}")
        A(f"buffer_store_dwordx4 v[{vP}:{vP+3}], v{vL16}, s[{sWS}:{sWS+3}], s{sT1} offen" + STORE_MOD)
        A(f"s_lshl_b32 s{sT1}, s{sT0}, 7")
        A(f"s_add_u32 s{sT1}, s{sT1}, {WS_OX + br*64*32*128}")
        A(f"v_lshlrev_b32 v{vT+4}, 2, v{vLane}")
        A(f"s_bfm_b64 exec, 32, 0")
        A(f"buffer_store_dword v{vP+4}, v{vT+4}, s[{sWS}:{sWS+3}], s{sT1} offen" + STORE_MOD)
        A(f"s_mov_b64 exec, -1")
    def tile_step(sb, nb, q, cnext, koff, voff, do_qk=True, do_k=True, do_v=True, first=False, pre_qk=None):
        sd = vS + 16*sb
        def e(lo, hi):
            for i in range(lo, hi): A(f"v_exp_f32 v{sd+i}, v{sd+i}")
        def c(lo, hi):
            for i in range(lo, hi): A(f"v_cvt_pk_bf16_f32 v{vP+i}, v{sd+2*i}, v{sd+2*i+1}")
        kf = vKF + 8*nb; sn = vS + 16*nb
        e(0, 2)
        if not first: pv(1, nb)
        if pre_qk: pre_qk(nb)
        e(2, 6)
        if do_qk:
            A(f"s_waitcnt lgkmcnt(2)")
            A(f"v_mfma_f32_32x32x16_bf16 v[{sn}:{sn+15}], v[{kf}:{kf+3}], v[{q}:{q+3}], {cnext}")
        if do_k: kreads(sb, koff)
        e(6, 8); c(0, 4)
        if do_qk:
            A(f"v_mfma_f32_32x32x8_bf16 v[{sn}:{sn+15}], v[{kf+4}:{kf+5}], v[{q+4}:{q+5}], v[{sn}:{sn+15}]")
        if do_v: vreads(nb, voff)
        e(8, 12)
        n_after = (2 if do_v else 0) + (2 if do_k else 0)
        A(f"s_waitcnt lgkmcnt({n_after})")
        pv(0, sb)
        e(12, 16); c(4, 8)

    need_groups(n_imm=1, tag="0")
    stamp(A, 1 if PROF != 2 else 5)
    A(f"s_mov_b32 s{sPass}, 0")
    setaddr(0)
    kreads(0, 0)
    A(f"v_mov_b32 v{vM}, s29")
    A(f"s_waitcnt lgkmcnt(0)")
    qk(0, 0, vQB, "0")
    kreads(0, 0)
    kreads(1, 1)
    vreads(0, 0)
    for r in range(16): A(f"v_mov_b32 v{vO+r}, 0")
    for r in range(4): A(f"v_mov_b32 v{vP+4+r}, 0")
    for r in range(8): A(f"v_mov_b32 v{vVF+8+r}, 0")
    maxtile(0)
    finish_max(vQB)
    A(f"s_waitcnt lgkmcnt(4)")
    qk(0, 0, vQB, "0")
    A(f"s_mov_b32 s{sCnt}, 0")
    A(f"s_lshr_b32 s38, s{sWV}, 2")
    A(f"s_nop 7")
    UN = 4
    def prio_toggle(tag):
        if not PRIO: return
        A(f"s_xor_b32 s38, s38, 1")
        A(f"s_cbranch_scc1 {name}_p1{tag}")
        A(f"s_setprio 0")
        A(f"s_branch {name}_p2{tag}")
        A.label(f"{name}_p1{tag}")
        A(f"s_setprio 1")
        A.label(f"{name}_p2{tag}")
    A.label(f"{name}_bloop0")
    A(f"s_lshl_b32 s{sT1}, s{sCnt}, 2")
    A(f"s_add_u32 s{sT1}, s{sT1}, 13")
    A(f"s_lshr_b32 s{sT1}, s{sT1}, 3")
    need_groups(n_sreg=sT1, tag="l")
    prio_toggle("a")
    for u in range(UN):
        tile_step(u % 2, (u+1) % 2, vQB, "0", u + 2, u + 1)
    adv(UN)
    A(f"s_add_u32 s{sCnt}, s{sCnt}, 1")
    A(f"s_cmp_lt_u32 s{sCnt}, 4")
    A(f"s_cbranch_scc1 {name}_bloop0")
    signal(8)
    need_groups(n_imm=8, tag="m")
    A.label(f"{name}_bloop")
    prio_toggle("b")
    for u in range(UN):
        tile_step(u % 2, (u+1) % 2, vQB, "0", u + 2, u + 1)
    adv(UN)
    A(f"s_add_u32 s{sCnt}, s{sCnt}, 1")
    A(f"s_cmp_lt_u32 s{sCnt}, 16")
    A(f"s_cbranch_scc1 {name}_bloop")
    A(f"s_nop 1")
    pv(1, 1)
    if PROF != 2: stamp(A, 2)
    check_l(f"{name}_bfin")
    A(f"s_add_u32 s43, s{sKMs}, {32<<16}")
    A(f"s_add_u32 s44, s{sVs}, {32*V_HEAD}")
    A(f"s_add_u32 s45, s{sKXs}, {16*16384}")
    clear_max(vQB)
    A(f"v_mov_b32 v{vM}, s29")
    def gk(tile_sreg):
        A(f"s_lshl_b32 s{sT0}, s{tile_sreg}, 10")
        A(f"s_add_u32 s{sT0}, s{sT0}, s43")
        A(f"buffer_load_dwordx4 v[{vKF}:{vKF+3}], v{vL16}, s[{sWS}:{sWS+3}], s{sT0} offen")
        A(f"s_lshl_b32 s{sT0}, s{tile_sreg}, 8")
        A(f"s_add_u32 s{sT0}, s{sT0}, s45")
        A(f"buffer_load_dword v{vKF+4}, v{vXg}, s[{sWS}:{sWS+3}], s{sT0} offen")
    A(f"s_mov_b32 s{sCnt}, 0")
    A.label(f"{name}_bx1")
    gk(sCnt)
    A(f"s_waitcnt vmcnt(0)")
    qk(0, 0, vQB, "0")
    maxtile(0)
    A(f"s_add_u32 s{sCnt}, s{sCnt}, 1")
    A(f"s_cmp_lt_u32 s{sCnt}, 64")
    A(f"s_cbranch_scc1 {name}_bx1")
    finish_max(vQB)
    for r in range(16): A(f"v_mov_b32 v{vO+r}, 0")
    A(f"s_mov_b32 s{sCnt}, 0")
    A.label(f"{name}_bx2")
    gk(sCnt)
    A(f"s_mul_i32 s{sT0}, s{sCnt}, {V_TILE}")
    A(f"s_add_u32 s{sT0}, s{sT0}, s44")
    A(f"buffer_load_dwordx4 v[{vVF}:{vVF+3}], v{vVg}, s[{sWS}:{sWS+3}], s{sT0} offen")
    A(f"buffer_load_dwordx4 v[{vVF+4}:{vVF+7}], v{vVg}, s[{sWS}:{sWS+3}], s{sT0} offen offset:608")
    A(f"s_waitcnt vmcnt(0)")
    qk(0, 0, vQB, "0")
    for i in range(16): A(f"v_exp_f32 v{vS+i}, v{vS+i}")
    for i in range(8): A(f"v_cvt_pk_bf16_f32 v{vP+i}, v{vS+2*i}, v{vS+2*i+1}")
    pv(0, 0); pv(1, 0)
    A(f"s_add_u32 s{sCnt}, s{sCnt}, 1")
    A(f"s_cmp_lt_u32 s{sCnt}, 64")
    A(f"s_cbranch_scc1 {name}_bx2")
    A(f"s_nop 12")
    A.label(f"{name}_bfin")
    A(f"s_waitcnt vmcnt(0)")
    epilogue(1)
    if PROF != 2: stamp(A, 3)
    qext_fix(vQA)
    poll(12, 2, "a")

    def bias_for(i, kbuf):
        A(f"s_cmp_ge_u32 s{sTQ}, {8 - i}")
        A(f"s_cselect_b32 s{sT0}, s36, s37")
        A(f"v_mov_b32 v{vKF + 8*kbuf + 5}, s{sT0}")
    A(f"s_mov_b32 s36, 0x3f80")
    A(f"s_mov_b32 s37, {(NEGB << 16) | 0x3f80}")
    setaddr(sWV, True)
    A(f"v_mov_b32 v{vM}, s29")
    A(f"s_cmp_eq_u32 s{sTQ}, 0")
    A(f"s_cbranch_scc1 {name}_aref0")
    kreads(0, 7)
    A(f"s_waitcnt lgkmcnt(0)")
    qk(0, 0, vQA, "0")
    A(f"s_branch {name}_aref1")
    A.label(f"{name}_aref0")
    kreads(0, 8)
    A(f"s_waitcnt lgkmcnt(0)")
    qk(0, 0, vQA, f"v[{vMD}:{vMD+15}]")
    A.label(f"{name}_aref1")
    kreads(0, 0)
    kreads(1, 1)
    vreads(0, 0)
    for r in range(16): A(f"v_mov_b32 v{vO+r}, 0")
    maxtile(0)
    finish_max(vQA)
    bias_for(0, 0)
    A(f"s_waitcnt lgkmcnt(4)")
    qk(0, 0, vQA, f"v[{vMF}:{vMF+15}]")
    A(f"s_nop 7")
    for i in range(9):
        pre = (lambda nb, i=i: bias_for(i+1, nb)) if i < 7 else ((lambda nb: A(f"v_mov_b32 v{vKF + 8*nb + 5}, s36")) if i == 7 else None)
        tile_step(i % 2, (i+1) % 2, vQA, (f"v[{vMD}:{vMD+15}]" if i == 7 else "0"), i + 2, i + 1,
                  do_qk=(i < 8), do_k=(i < 7), do_v=(i < 8), first=(i == 0), pre_qk=pre)
    A(f"s_nop 1")
    pv(1, 0)
    A(f"v_mov_b32 v{vKF+5}, s36")
    A(f"v_mov_b32 v{vKF+8+5}, s36")
    check_l(f"{name}_aepi")
    clear_max(vQA)
    A(f"s_sub_u32 s{sI}, 8, s{sTQ}")
    A(f"s_cmp_ge_u32 s{sTQ}, 8")
    A(f"s_cselect_b32 s{sI}, 0, s{sI}")
    A(f"s_mov_b32 s30, s{sI}")
    A(f"s_mov_b32 s31, s{sWV}")
    def set_cm_for(i_sreg):
        lab = f"{name}_cm{set_cm_for.n}"; set_cm_for.n += 1
        A(f"s_cmp_eq_u32 s{i_sreg}, 8")
        A(f"s_cbranch_scc1 {lab}_d")
        A(f"s_cmp_eq_u32 s{i_sreg}, 0")
        A(f"s_cbranch_scc1 {lab}_f")
        for r in range(16): A(f"v_mov_b32 v{vCM+r}, 0")
        A(f"s_branch {lab}_e")
        A.label(f"{lab}_d")
        for r in range(16): A(f"v_mov_b32 v{vCM+r}, v{vMD+r}")
        A(f"s_branch {lab}_e")
        A.label(f"{lab}_f")
        for r in range(16): A(f"v_mov_b32 v{vCM+r}, v{vMF+r}")
        A.label(f"{lab}_e")
    set_cm_for.n = 0
    A(f"v_mov_b32 v{vM}, s29")
    A.label(f"{name}_a1")
    A(f"s_add_u32 s{sT1}, s31, s{sI}")
    setaddr(sT1, True)
    kreads(0, 0)
    set_cm_for(sI)
    A(f"s_waitcnt lgkmcnt(0)")
    qk(0, 0, vQA, f"v[{vCM}:{vCM+15}]")
    maxtile(0)
    A(f"s_add_u32 s{sI}, s{sI}, 1")
    A(f"s_cmp_le_u32 s{sI}, 8")
    A(f"s_cbranch_scc1 {name}_a1")
    finish_max(vQA)
    for r in range(16): A(f"v_mov_b32 v{vO+r}, 0")
    A(f"s_mov_b32 s{sI}, s30")
    A.label(f"{name}_a2")
    A(f"s_add_u32 s{sT1}, s31, s{sI}")
    setaddr(sT1, True)
    kreads(0, 0)
    vreads(0, 0)
    set_cm_for(sI)
    A(f"s_waitcnt lgkmcnt(2)")
    qk(0, 0, vQA, f"v[{vCM}:{vCM+15}]")
    for i in range(16): A(f"v_exp_f32 v{vS+i}, v{vS+i}")
    for i in range(8): A(f"v_cvt_pk_bf16_f32 v{vP+i}, v{vS+2*i}, v{vS+2*i+1}")
    A(f"s_waitcnt lgkmcnt(0)")
    pv(0, 0); pv(1, 0)
    A(f"s_add_u32 s{sI}, s{sI}, 1")
    A(f"s_cmp_le_u32 s{sI}, 8")
    A(f"s_cbranch_scc1 {name}_a2")
    A(f"s_nop 12")
    A.label(f"{name}_aepi")
    epilogue(0)
    if PROF:
        stamp(A, 5 if PROF != 2 else 6)
        stamps_out(A, 1, 7, sWS, sWV, vS)
    rt_end(A, 1, sWV, vS)
    A(f"s_endpgm")

    A.label(f"{name}_loader")
    A(f"s_sub_u32 s35, s{sWV}, 8")
    A(f"s_lshl_b32 s34, s35, 10")
    A(f"s_add_u32 s43, s{sKMs}, {32<<16}")
    A(f"s_add_u32 s44, s{sVs}, {32*V_HEAD}")
    A(f"s_add_u32 s45, s{sKXs}, {16*16384}")
    A(f"s_lshl_b32 s46, s35, 2")
    A(f"v_add_u32 v{vT+8}, s46, v{vCA}")
    A(f"s_mov_b32 s47, -1")
    A(f"s_cmp_eq_u32 s35, 1")
    A(f"s_cselect_b32 s47, 0, s47")
    A("s_waitcnt lgkmcnt(0)")
    srd(A, sWS, 4, 5, WS_SIZE)
    def ld(lds_sreg, src_sreg, off):
        A(f"s_add_u32 m0, s{lds_sreg}, {off}")
        A(f"s_add_u32 s{sT3}, s{src_sreg}, {off}")
        A(f"buffer_load_dwordx4 v{vL16}, s[{sWS}:{sWS+3}], s{sT3} offen lds")
    A(f"s_mov_b32 s{sCnt}, 0")
    A.label(f"{name}_lgrp")
    A(f"s_add_u32 s{sT0}, s{sQB}, s{sCnt}")
    A(f"s_and_b32 s{sT0}, s{sT0}, 7")
    A(f"s_lshl_b32 s48, s{sT0}, 13")
    A(f"s_add_u32 s48, s48, s43")
    A(f"s_add_u32 s48, s48, s34")
    A(f"s_lshl_b32 s49, s{sCnt}, 13")
    A(f"s_add_u32 s49, s49, s34")
    for j in range(4): ld(49, 48, j*2048)
    A(f"s_lshl_b32 s48, s{sT0}, 11")
    A(f"s_add_u32 s48, s48, s45")
    A(f"s_add_u32 s48, s48, s34")
    A(f"s_lshl_b32 s49, s{sCnt}, 11")
    A(f"s_add_u32 s49, s49, s34")
    A(f"s_add_u32 s49, s49, {L_KX}")
    ld(49, 48, 0)
    A(f"s_mul_i32 s48, s{sT0}, {8*V_TILE}")
    A(f"s_add_u32 s48, s48, s44")
    A(f"s_add_u32 s48, s48, s34")
    A(f"s_mul_i32 s49, s{sCnt}, {8*V_TILE}")
    A(f"s_add_u32 s49, s49, s34")
    A(f"s_add_u32 s49, s49, {L_V}")
    for j in range(4): ld(49, 48, j*2048)
    A(f"s_mov_b32 exec_hi, s47")
    ld(49, 48, 4*2048)
    A(f"s_mov_b32 exec_hi, -1")
    A(f"s_cmp_eq_u32 s{sCnt}, 0")
    A(f"s_cbranch_scc0 {name}_lg1")
    A(f"s_barrier")
    A(f"s_branch {name}_lg2")
    A.label(f"{name}_lg1")
    A(f"s_waitcnt vmcnt(10)")
    A(f"v_mov_b32 v{vT}, 1")
    A(f"s_mov_b64 exec, 1")
    A(f"ds_add_u32 v{vT+8}, v{vT}")
    A(f"s_mov_b64 exec, -1")
    A.label(f"{name}_lg2")
    A(f"s_add_u32 s{sCnt}, s{sCnt}, 1")
    A(f"s_cmp_lt_u32 s{sCnt}, 8")
    A(f"s_cbranch_scc1 {name}_lgrp")
    A(f"s_waitcnt vmcnt(0)")
    A(f"v_mov_b32 v{vT}, 1")
    A(f"s_mov_b64 exec, 1")
    A(f"ds_add_u32 v{vT+8}, v{vT}")
    A(f"s_mov_b64 exec, -1")
    poll(8, 8, "ld")
    def lgroup(ldsbase, sreg, n):
        lab = f"{name}_lg_{lgroup.n}"; lgroup.n += 1
        A(f"s_add_u32 s{sT3}, s{sreg}, s34")
        A(f"s_add_u32 s{sT2}, s34, {ldsbase}")
        A(f"s_mov_b32 s{sCnt}, s35")
        A.label(lab)
        A(f"s_mov_b32 m0, s{sT2}")
        A(f"s_add_u32 s{sT2}, s{sT2}, 2048")
        A(f"buffer_load_dwordx4 v{vL16}, s[{sWS}:{sWS+3}], s{sT3} offen lds")
        A(f"s_add_u32 s{sT3}, s{sT3}, 2048")
        A(f"s_add_u32 s{sCnt}, s{sCnt}, 2")
        A(f"s_cmp_lt_u32 s{sCnt}, {n}")
        A(f"s_cbranch_scc1 {lab}")
    lgroup.n = 0
    A(f"s_lshl_b32 s{sI}, s{sQB}, 3")
    A(f"s_sub_u32 s{sI}, s{sI}, 8")
    A(f"s_lshl_b32 s{sT0}, s{sI}, 10")
    A(f"s_add_u32 s28, s{sKMs}, s{sT0}")
    lgroup(L_KM, 28, 16)
    A(f"s_lshl_b32 s{sT0}, s{sI}, 8")
    A(f"s_add_u32 s28, s{sKXs}, s{sT0}")
    lgroup(L_KX, 28, 4)
    A(f"s_mul_i32 s{sT0}, s{sI}, {V_TILE}")
    A(f"s_add_u32 s28, s{sVs}, s{sT0}")
    lgroup(L_V, 28, 19)
    A(f"s_waitcnt vmcnt(0)")
    signal(12)
    if WOPF:
        A(f"s_lshl_b32 s{sT0}, s35, 1")
        A(f"s_mul_i32 s{sT0}, s{sT0}, 12")
        A(f"s_add_u32 s{sT0}, s{sT0}, 16")
        A(f"s_load_dwordx2 s[48:49], s[0:1], s{sT0}")
        A(f"s_lshr_b32 s{sT1}, s2, 3")
        A(f"s_mul_i32 s{sT1}, s{sT1}, {D*D*2 // 32}")
        A(f"v_lshlrev_b32 v{vT+1}, 6, v{vLane}")
        A(f"s_waitcnt lgkmcnt(0)")
        A(f"s_mov_b32 s52, s48")
        A(f"s_and_b32 s53, s49, 0xffff")
        A(f"s_mov_b32 s54, {D*D*2}")
        A(f"s_mov_b32 s55, 0x00020000")
        for j in range(6):
            A(f"buffer_load_dword v{vT+2}, v{vT+1}, s[52:55], s{sT1} offen")
            if j < 5: A(f"s_add_u32 s{sT1}, s{sT1}, 4096")
        A(f"s_waitcnt vmcnt(0)")
    A(f"s_waitcnt lgkmcnt(0)")
    A.label(f"{name}_end")
    A(f"s_endpgm")
    return khead(name) + A.finish(True), kdesc(name, NV, 100)
```

```python
T = 2048; D = 576; H = 32; DH = 18
WS_QM = 0x000000
WS_KM = 0x400000
WS_V  = 0x800000
V_HEAD = 81920
V_TILE = 1280
WS_QX = 0xD00000
WS_KX = 0xD80000
WS_G  = 0xE00000
WS_OM = 0x1000000
WS_OX = 0x1400000
WS_SIZE = 0x1600000
QSCALE = 1.4426950408889634 / (18 ** 0.5)
import struct, os
def f2u(x): return struct.unpack('<I', struct.pack('<f', x))[0]
ARG = dict(A_x=0, A_wqkv=8, A_wo=16, B_x=24, B_wqkv=32, B_wo=40, gate_w=48, out=56, dbg=64, ws=72)

def kdesc(name, nv, ns, acc=None):
    acc = acc if acc is not None else (nv + 3) // 4 * 4
    return f""".section .rodata,"a"
.p2align 6
.amdhsa_kernel {name}
  .amdhsa_next_free_vgpr {nv}
  .amdhsa_next_free_sgpr {ns}
  .amdhsa_accum_offset {acc}
  .amdhsa_group_segment_fixed_size 0
  .amdhsa_kernarg_size 80
  .amdhsa_user_sgpr_count 2
  .amdhsa_user_sgpr_kernarg_segment_ptr 1
  .amdhsa_system_sgpr_workgroup_id_x 1
.end_amdhsa_kernel
.text
"""
def khead(name):
    return f""".globl {name}
.p2align 8
.type {name},@function
{name}:
"""
WSOFF = int(os.environ.get("WSOFF", "0"), 0)
def srd(A, base, ptr_lo, ptr_hi, nbytes):
    if nbytes == WS_SIZE and WSOFF:
        A(f"s_add_u32 s{base}, s{ptr_lo}, {WSOFF}")
        A(f"s_addc_u32 s{base+1}, s{ptr_hi}, 0")
        A(f"s_and_b32 s{base+1}, s{base+1}, 0xffff")
    else:
        A(f"s_mov_b32 s{base}, s{ptr_lo}")
        A(f"s_and_b32 s{base+1}, s{ptr_hi}, 0xffff")
    A(f"s_mov_b32 s{base+2}, {nbytes}")
    A(f"s_mov_b32 s{base+3}, 0x00020000")

WS_PROF = 0x1500000
import os
PROF = int(os.environ.get("PROF", "0"))
def stamp(A, i, base=64):
    if PROF:
        A(f"s_memtime s[{base+2*i}:{base+2*i+1}]")
        A(f"s_waitcnt lgkmcnt(0)")
def stamps_out(A, kidx, n, sWS, sWave, vt, base=64):
    if not PROF: return
    A(f"s_lshl_b32 s{base+30}, s2, 4")
    A(f"s_add_u32 s{base+30}, s{base+30}, s{sWave}")
    A(f"s_lshl_b32 s{base+30}, s{base+30}, 5")
    A(f"s_add_u32 s{base+30}, s{base+30}, {WS_PROF + kidx*0x40000}")
    A(f"v_mov_b32 v{vt+8}, 0")
    for i in range(8):
        if i < n:
            A(f"s_sub_u32 s{base+31}, s{base+2*i}, s{base}" if i else f"s_mov_b32 s{base+31}, s{base}")
            A(f"v_mov_b32 v{vt+i}, s{base+31}")
        else:
            A(f"v_mov_b32 v{vt+i}, 0")
    A(f"s_bfm_b64 exec, 1, 0")
    A(f"buffer_store_dwordx4 v[{vt}:{vt+3}], v{vt+8}, s[{sWS}:{sWS+3}], s{base+30} offen")
    A(f"buffer_store_dwordx4 v[{vt+4}:{vt+7}], v{vt+8}, s[{sWS}:{sWS+3}], s{base+30} offen offset:16")
    A(f"s_mov_b64 exec, -1")

RT = int(os.environ.get("RT", "0"))
def rt_begin(A):
    if RT:
        A("s_memrealtime s[96:97]")
        A("s_memtime s[92:93]")
def rt_all(A, kidx, wave_sreg, vt):
    if RT != 2: return
    A("s_waitcnt vmcnt(0)")
    A("s_memrealtime s[98:99]")
    A("s_load_dwordx2 s[88:89], s[0:1], 72")
    A("s_waitcnt lgkmcnt(0)")
    A(f"s_add_u32 s90, s2, {kidx*256}")
    A("s_lshl_b32 s90, s90, 4")
    A(f"s_add_u32 s90, s90, s{wave_sreg}")
    A("s_lshl_b32 s90, s90, 3")
    A("s_add_u32 s90, s90, 0x1580000")
    A(f"v_mov_b32 v{vt}, s96")
    A(f"v_mov_b32 v{vt+1}, s98")
    A(f"v_mov_b32 v{vt+2}, s90")
    A(f"s_mov_b64 exec, 1")
    A(f"global_store_dwordx2 v{vt+2}, v[{vt}:{vt+1}], s[88:89]")
    A(f"s_waitcnt vmcnt(0)")
    A(f"s_mov_b64 exec, -1")
def rt_end(A, kidx, cond_sreg_wave, vt):
    if RT == 2: return rt_all(A, kidx, cond_sreg_wave, vt)
    if not RT: return
    lab = f"rt_skip_{kidx}_{rt_end.n}"; rt_end.n += 1
    A("s_waitcnt vmcnt(0)")
    A("s_memrealtime s[98:99]")
    A("s_memtime s[94:95]")
    A("s_load_dwordx2 s[90:91], s[0:1], 64")
    A("s_load_dwordx2 s[88:89], s[0:1], 72")
    A("s_waitcnt lgkmcnt(0)")
    A("s_cmp_lg_u32 s2, 0")
    A(f"s_cbranch_scc1 {lab}")
    A(f"s_cmp_lg_u32 s{cond_sreg_wave}, 0")
    A(f"s_cbranch_scc1 {lab}")
    A(f"s_sub_u32 s94, s94, s92")
    A(f"v_mov_b32 v{vt}, s96")
    A(f"v_mov_b32 v{vt+1}, s98")
    A(f"v_mov_b32 v{vt+2}, s94")
    A(f"v_mov_b32 v{vt+3}, {0x1000 + kidx}")
    A(f"v_mov_b32 v{vt+4}, {0x15F0000 + 16*kidx}")
    A(f"s_mov_b64 exec, 1")
    A(f"global_store_dwordx4 v{vt+4}, v[{vt}:{vt+3}], s[88:89]")
    A(f"v_mov_b32 v{vt+4}, {16*kidx}")
    A(f"global_store_dwordx4 v{vt+4}, v[{vt}:{vt+3}], s[90:91]")
    if kidx == 2:
        for k in range(2):
            A(f"v_mov_b32 v{vt+4}, {0x15F0000 + 16*k}")
            A(f"global_load_dwordx4 v[{vt+8}:{vt+11}], v{vt+4}, s[88:89]")
            A(f"s_waitcnt vmcnt(0)")
            A(f"v_mov_b32 v{vt+4}, {16*k}")
            A(f"global_store_dwordx4 v{vt+4}, v[{vt+8}:{vt+11}], s[90:91]")
            A(f"s_waitcnt vmcnt(0)")
    A(f"s_waitcnt vmcnt(0)")
    A(f"s_mov_b64 exec, -1")
    A.label(lab)
rt_end.n = 0

STORE_MOD = os.environ.get("STORE_MOD", "")
if STORE_MOD: STORE_MOD = " " + STORE_MOD

FZ_BR = 0x200000
```

```python
from asmlib import *
from common import *
import os

L_KM = 0
L_V = 65536
L_KX = 65536 + 64*1216
L_CNT = L_KX + 64*256
K2_LDS = L_CNT + 64
K2_THREADS = 640
NEG = f2u(-1.0e30)
NEGB = 0xF149
DBG = int(os.environ.get("DBG", "0"))
PF = int(os.environ.get("PF", "1"))
PRIO = int(os.environ.get("PRIO", "1"))
WOPF = int(os.environ.get("WOPF", "1"))
ZPAD = int(os.environ.get("ZPAD", "1"))

def gen_k2(name):
    A = Asm()
    sWS = 8
    sH, sQB, sWV, sTQ = 12, 13, 14, 15
    sT0, sT1, sT2, sT3 = 16, 17, 18, 19
    sCnt, sI = 20, 21
    sPass = 22
    sKMs, sVs, sKXs = 24, 25, 26
    vLane = 1
    vL16 = 2
    vKa, vVa, vXa = 3, 4, 5
    vKa0, vVa0, vXa0 = 6, 7, 8
    vG = 9
    vT = 10
    vQA, vQB = 20, 28
    vKF = 36
    vVF = 52
    vS = 68
    vP = 100
    vO = 108
    vMF, vMD = 124, 140
    vCM = vS + 16
    vM = 156
    vCA = 157
    vGA, vGC = 26, 27
    vVg, vXg = 158, 159
    NV = 160

    A(f"s_cmp_ge_u32 s2, 256")
    A(f"s_cbranch_scc1 {name}_end")
    stamp(A, 0)
    rt_begin(A)
    A(f"s_load_dwordx2 s[4:5], s[0:1], {ARG['ws']}")
    A(f"v_and_b32 v{vLane}, 63, v0")
    A(f"v_lshrrev_b32 v{vT}, 6, v0")
    A(f"s_and_b32 s{sT0}, s2, 7")
    A(f"v_readfirstlane_b32 s{sWV}, v{vT}")
    A(f"s_lshr_b32 s{sT1}, s2, 3")
    A(f"s_lshl_b32 s{sT0}, s{sT0}, 2")
    A(f"s_and_b32 s{sT2}, s{sT1}, 3")
    A(f"s_add_u32 s{sH}, s{sT0}, s{sT2}")
    A(f"s_lshr_b32 s{sQB}, s{sT1}, 2")
    A(f"v_lshlrev_b32 v{vL16}, 4, v{vLane}")
    A(f"s_lshl_b32 s{sT0}, s{sH}, 16")
    A(f"s_add_u32 s{sKMs}, s{sT0}, {WS_KM}")
    A(f"s_mul_i32 s{sT0}, s{sH}, {V_HEAD}")
    A(f"s_add_u32 s{sVs}, s{sT0}, {WS_V}")
    A(f"s_lshr_b32 s{sT0}, s{sH}, 1")
    A(f"s_lshl_b32 s{sT0}, s{sT0}, 14")
    A(f"s_add_u32 s{sKXs}, s{sT0}, {WS_KX}")
    A(f"v_mov_b32 v{vCA}, {L_CNT}")
    A(f"s_cmp_ge_u32 s{sWV}, 8")
    A(f"s_cbranch_scc1 {name}_loader")

    def dma_run(ldsbase, sreg, woff_sreg, stride, n_full, rem_limit_sreg=None, rem=None, tag=""):
        A(f"s_add_u32 s{sT3}, s{sreg}, s{woff_sreg}")
        A(f"s_add_u32 m0, s{woff_sreg}, {ldsbase}")
        for j in range(n_full):
            A(f"s_nop 0")
            A(f"buffer_load_dwordx4 v{vL16}, s[{sWS}:{sWS+3}], s{sT3} offen lds")
            if j < n_full - 1 or rem:
                A(f"s_add_u32 m0, m0, {stride}")
                A(f"s_add_u32 s{sT3}, s{sT3}, {stride}")
        if rem:
            lab = f"{name}_dg{dma_run.n}"; dma_run.n += 1
            A(f"s_cmp_lt_u32 s{rem_limit_sreg}, {rem}")
            A(f"s_cbranch_scc0 {lab}")
            A(f"buffer_load_dwordx4 v{vL16}, s[{sWS}:{sWS+3}], s{sT3} offen lds")
            A.label(lab)
    dma_run.n = 0
    def group(ldsbase, sreg, n, nw, widx_sreg, woff_sreg):
        dma_run(ldsbase, sreg, woff_sreg, nw*1024, n // nw, widx_sreg, n % nw)
    def poll(off, target, tag):
        A.label(f"{name}_poll{tag}")
        A(f"ds_read_b32 v{vT}, v{vCA} offset:{off}")
        A(f"s_waitcnt lgkmcnt(0)")
        A(f"v_readfirstlane_b32 s{sT0}, v{vT}")
        A(f"s_cmp_ge_u32 s{sT0}, {target}")
        A(f"s_cbranch_scc1 {name}_pollok{tag}")
        A(f"s_sleep 1")
        A(f"s_branch {name}_poll{tag}")
        A.label(f"{name}_pollok{tag}")
    def signal(off):
        A(f"v_mov_b32 v{vT}, 1")
        A(f"s_mov_b64 exec, 1")
        A(f"ds_add_u32 v{vCA}, v{vT} offset:{off}")
        A(f"s_mov_b64 exec, -1")

    A(f"s_lshl_b32 s{sTQ}, s{sQB}, 3")
    A(f"s_add_u32 s{sTQ}, s{sTQ}, s{sWV}")
    A(f"s_cmp_lg_u32 s{sWV}, 0")
    A(f"s_cbranch_scc1 {name}_noinit")
    A(f"v_mov_b32 v{vT+3}, 0")
    A(f"v_lshlrev_b32 v{vT+4}, 2, v{vLane}")
    A(f"v_add_u32 v{vT+4}, {L_CNT}, v{vT+4}")
    A(f"s_mov_b64 exec, 0xffff")
    A(f"ds_write_b32 v{vT+4}, v{vT+3}")
    A(f"s_mov_b64 exec, -1")
    A.label(f"{name}_noinit")
    A(f"v_and_b32 v{vT}, 31, v{vLane}")
    A(f"v_lshlrev_b32 v{vT+1}, 3, v{vT}")
    A(f"s_lshl_b32 s{sT0}, s{sH}, 16")
    A(f"s_lshl_b32 s{sT1}, s{sTQ}, 10")
    A(f"s_add_u32 s40, s{sT0}, s{sT1}")
    A(f"s_lshr_b32 s{sT2}, s{sH}, 1")
    A(f"s_lshl_b32 s{sT2}, s{sT2}, 14")
    A(f"s_and_b32 s{sT1}, s{sH}, 1")
    A(f"s_lshl_b32 s{sT1}, s{sT1}, 2")
    A(f"s_add_u32 s41, s{sT2}, s{sT1}")
    A(f"s_lshl_b32 s{sT1}, s{sTQ}, 8")
    A(f"s_add_u32 s41, s41, s{sT1}")
    A(f"s_add_u32 s41, s41, {WS_QX}")
    A("s_waitcnt lgkmcnt(0)")
    if PROF == 2: stamp(A, 1)
    srd(A, sWS, 4, 5, WS_SIZE)
    A(f"s_add_u32 s{sT0}, s40, {WS_QM + (32<<16)}")
    A(f"buffer_load_dwordx4 v[{vQB}:{vQB+3}], v{vL16}, s[{sWS}:{sWS+3}], s{sT0} offen")
    A(f"s_add_u32 s{sT0}, s41, {16*16384}")
    A(f"buffer_load_dword v{vQB+4}, v{vT+1}, s[{sWS}:{sWS+3}], s{sT0} offen")
    A(f"s_barrier")
    if PROF == 2: stamp(A, 2)
    A(f"v_lshrrev_b32 v{vT+1}, 5, v{vLane}")
    A(f"v_mov_b32 v{vT+2}, 4")
    A(f"v_subrev_u32 v{vT+3}, 20, v{vT}")
    A(f"v_cmp_gt_u32 vcc, 8, v{vT+3}")
    A(f"v_cndmask_b32 v{vT+2}, v{vT+2}, 0, vcc")
    A(f"v_cmp_gt_u32 vcc, 19, v{vT}")
    A(f"v_cndmask_b32 v{vT+2}, v{vT+2}, v{vT}, vcc")
    A(f"v_mul_u32_u24 v{vVg}, 304, v{vT+1}")
    A(f"v_lshl_add_u32 v{vVg}, v{vT+2}, 4, v{vVg}")
    A(f"v_add_u32 v{vVa0}, {L_V}, v{vVg}")
    if ZPAD:
        A(f"v_cmp_gt_u32 vcc, 19, v{vT}")
        A(f"v_mov_b32 v{vT+3}, 0x40000")
        A(f"v_cndmask_b32 v{vVa0}, v{vT+3}, v{vVa0}, vcc")
    A(f"v_mov_b32 v{vKa0}, v{vL16}")
    A(f"s_and_b32 s{sT0}, s{sH}, 1")
    A(f"s_lshl_b32 s{sT0}, s{sT0}, 2")
    A(f"v_lshlrev_b32 v{vXg}, 3, v{vT}")
    A(f"v_add_u32 v{vXg}, s{sT0}, v{vXg}")
    A(f"v_add_u32 v{vXa0}, {L_KX}, v{vXg}")
    if ZPAD:
        A(f"v_cmp_gt_u32 vcc, 32, v{vLane}")
        A(f"v_cndmask_b32 v{vXa0}, v{vT+3}, v{vXa0}, vcc")
    A(f"v_mov_b32 v{vKF+5}, 0x3f80")
    A(f"v_mov_b32 v{vKF+8+5}, 0x3f80")
    A(f"v_lshlrev_b32 v{vT+4}, 2, v{vT+1}")
    A(f"v_sub_u32 v{vT+4}, v{vT}, v{vT+4}")
    A(f"s_mov_b32 s29, {NEG}")
    for r in range(16):
        c = 8*(r//4) + r % 4
        A(f"v_subrev_u32 v{vT+5}, {c}, v{vT+4}")
        A(f"v_ashrrev_i32 v{vT+5}, 31, v{vT+5}")
        A(f"v_and_b32 v{vMD+r}, s29, v{vT+5}")
        A(f"v_xor_b32 v{vMF+r}, s29, v{vMD+r}")
    ONEHI = 0x3f800000
    def qext_fix(q):
        A(f"v_cmp_gt_u32 vcc, 32, v{vLane}")
        A(f"v_mov_b32 v{vT+6}, {ONEHI}")
        A(f"v_cndmask_b32 v{q+4}, 0, v{q+4}, vcc")
        A(f"v_cndmask_b32 v{q+5}, 0, v{vT+6}, vcc")
    if PROF == 2: stamp(A, 3)
    A(f"s_waitcnt vmcnt(0)")
    if PROF == 2: stamp(A, 4)
    qext_fix(vQB)
    A(f"v_and_b32 v{vT}, 31, v{vLane}")
    A(f"v_lshlrev_b32 v{vT+2}, 2, v{vT}")
    A(f"s_lshl_b32 s{sT0}, s{sTQ}, 7")
    A(f"s_add_u32 s{sT0}, s{sT0}, {WS_G}")
    A(f"buffer_load_dword v{vG}, v{vT+2}, s[{sWS}:{sWS+3}], s{sT0} offen")
    def claim_item():
        lab = f"{name}_claim{claim_item.n}"; claim_item.n += 1
        A(f"v_mov_b32 v{vT}, 1")
        A(f"s_mov_b64 exec, 1")
        A(f"ds_add_rtn_u32 v{vT+1}, v{vCA}, v{vT} offset:16")
        A(f"s_mov_b64 exec, -1")
        A(f"s_waitcnt lgkmcnt(0)")
        A(f"v_readfirstlane_b32 s50, v{vT+1}")
        A(f"s_cmp_ge_u32 s50, 8")
        A(f"s_cbranch_scc1 {lab}")
        A(f"s_lshl_b32 s51, s{sQB}, 3")
        A(f"s_add_u32 s51, s51, s50")
        A(f"s_lshl_b32 s{sT0}, s{sH}, 16")
        A(f"s_lshl_b32 s{sT1}, s51, 10")
        A(f"s_add_u32 s{sT0}, s{sT0}, s{sT1}")
        A(f"buffer_load_dwordx4 v[{vQA}:{vQA+3}], v{vL16}, s[{sWS}:{sWS+3}], s{sT0} offen")
        A(f"s_lshl_b32 s{sT1}, s51, 8")
        A(f"s_add_u32 s{sT1}, s{sT1}, s52")
        A(f"v_and_b32 v{vT}, 31, v{vLane}")
        A(f"v_lshlrev_b32 v{vT+1}, 3, v{vT}")
        A(f"buffer_load_dword v{vQA+4}, v{vT+1}, s[{sWS}:{sWS+3}], s{sT1} offen")
        A(f"v_lshlrev_b32 v{vT+2}, 2, v{vT}")
        A(f"s_lshl_b32 s{sT0}, s51, 7")
        A(f"s_add_u32 s{sT0}, s{sT0}, {WS_G}")
        A(f"buffer_load_dword v{vGA}, v{vT+2}, s[{sWS}:{sWS+3}], s{sT0} offen")
        A.label(lab)
    claim_item.n = 0
    A(f"s_lshr_b32 s52, s{sH}, 1")
    A(f"s_lshl_b32 s52, s52, 14")
    A(f"s_and_b32 s{sT1}, s{sH}, 1")
    A(f"s_lshl_b32 s{sT1}, s{sT1}, 2")
    A(f"s_add_u32 s52, s52, s{sT1}")
    A(f"s_add_u32 s52, s52, {WS_QX}")
    def need_groups(n_imm=None, n_sreg=None, tag=""):
        tgt = f"{n_imm}" if n_imm is not None else f"s{n_sreg}"
        A(f"s_cmp_ge_u32 s42, {tgt}")
        A(f"s_cbranch_scc1 {name}_ng_ok{tag}")
        A.label(f"{name}_ng{tag}")
        A(f"ds_read_b64 v[{vT}:{vT+1}], v{vCA}")
        A(f"s_waitcnt lgkmcnt(0)")
        A(f"v_min_u32 v{vT}, v{vT}, v{vT+1}")
        A(f"v_readfirstlane_b32 s42, v{vT}")
        A(f"s_cmp_ge_u32 s42, {tgt}")
        A(f"s_cbranch_scc1 {name}_ng_ok{tag}")
        A(f"s_sleep 1")
        A(f"s_branch {name}_ng{tag}")
        A.label(f"{name}_ng_ok{tag}")
    A(f"s_mov_b32 s42, 0")

    def kreads(buf, off_slot):
        kf = vKF + 8*buf
        A(f"ds_read_b128 v[{kf}:{kf+3}], v{vKa} offset:{off_slot*1024}")
        A(f"ds_read_b32 v{kf+4}, v{vXa} offset:{off_slot*256}")
    def vreads(buf, off_slot):
        vf = vVF + 8*buf
        A(f"ds_read_b128 v[{vf}:{vf+3}], v{vVa} offset:{off_slot*V_TILE}")
        A(f"ds_read_b128 v[{vf+4}:{vf+7}], v{vVa} offset:{off_slot*V_TILE+608}")
    def qk(sbuf, kbuf, q, cop):
        sd = vS + 16*sbuf; kf = vKF + 8*kbuf
        A(f"v_mfma_f32_32x32x16_bf16 v[{sd}:{sd+15}], v[{kf}:{kf+3}], v[{q}:{q+3}], {cop}")
        A(f"v_mfma_f32_32x32x8_bf16 v[{sd}:{sd+15}], v[{kf+4}:{kf+5}], v[{q+4}:{q+5}], v[{sd}:{sd+15}]")
    def setaddr(slot, sreg=False):
        if not sreg:
            A(f"v_add_u32 v{vKa}, {L_KM + slot*1024}, v{vKa0}")
            A(f"v_add_u32 v{vVa}, {slot*V_TILE}, v{vVa0}")
            A(f"v_add_u32 v{vXa}, {slot*256}, v{vXa0}")
        else:
            A(f"s_lshl_b32 s{sT0}, s{slot}, 10")
            A(f"v_add_u32 v{vKa}, s{sT0}, v{vKa0}")
            A(f"s_mul_i32 s{sT0}, s{slot}, {V_TILE}")
            A(f"v_add_u32 v{vVa}, s{sT0}, v{vVa0}")
            A(f"s_lshl_b32 s{sT0}, s{slot}, 8")
            A(f"v_add_u32 v{vXa}, s{sT0}, v{vXa0}")
    def adv(n):
        A(f"v_add_u32 v{vKa}, {n*1024}, v{vKa}")
        A(f"v_add_u32 v{vVa}, {n*V_TILE}, v{vVa}")
        A(f"v_add_u32 v{vXa}, {n*256}, v{vXa}")
    def maxtile(sbuf):
        sd = vS + 16*sbuf
        for i in range(8):
            A(f"v_max3_f32 v{vM}, v{sd+2*i}, v{sd+2*i+1}, v{vM}")
    def finish_max(q):
        A(f"v_mov_b32 v{vT}, v{vM}")
        A(f"v_permlane32_swap_b32 v{vM}, v{vT}")
        A(f"v_max_f32 v{vM}, v{vM}, v{vT}")
        A(f"v_sub_f32 v{vT}, 0, v{vM}")
        A(f"v_cvt_pk_bf16_f32 v{vT}, v{vT}, 1.0")
        A(f"v_cmp_gt_u32 vcc, 32, v{vLane}")
        A(f"v_cndmask_b32 v{q+5}, 0, v{vT}, vcc")
    def clear_max(q):
        A(f"v_mov_b32 v{vT}, {ONEHI}")
        A(f"v_cmp_gt_u32 vcc, 32, v{vLane}")
        A(f"v_cndmask_b32 v{q+5}, 0, v{vT}, vcc")
    def pv(g, vbuf):
        vf = vVF + 8*vbuf + 4*g
        A(f"v_mfma_f32_32x32x16_bf16 v[{vO}:{vO+15}], v[{vf}:{vf+3}], v[{vP+4*g}:{vP+4*g+3}], v[{vO}:{vO+15}]")
    def check_l(ok_label):
        A(f"s_nop 12")
        A(f"v_mov_b32 v{vT}, {f2u(2.0**100)}")
        A(f"v_cmp_nlt_f32 vcc, v{vO+10}, v{vT}")
        A(f"s_bfm_b64 s[32:33], 32, 0")
        A(f"s_and_b64 vcc, vcc, s[32:33]")
        A(f"s_cbranch_scc0 {ok_label}")
    def epilogue(br, tq, g):
        A(f"v_mov_b32 v{vT}, v{vO+10}")
        A(f"v_mov_b32 v{vT+1}, v{vO+10}")
        A(f"v_permlane32_swap_b32 v{vT}, v{vT+1}")
        A(f"v_rcp_f32 v{vT+2}, v{vT}")
        if br == 0:
            A(f"v_mul_f32 v{vT+2}, v{vT+2}, v{g}")
        else:
            A(f"v_sub_f32 v{vT+3}, 1.0, v{g}")
            A(f"v_mul_f32 v{vT+2}, v{vT+2}, v{vT+3}")
        for i in range(10): A(f"v_mul_f32 v{vO+i}, v{vO+i}, v{vT+2}")
        for i in range(5): A(f"v_cvt_pk_bf16_f32 v{vP+i}, v{vO+2*i}, v{vO+2*i+1}")
        A(f"s_lshl_b32 s{sT0}, s{tq}, 5")
        A(f"s_add_u32 s{sT0}, s{sT0}, s{sH}")
        A(f"s_lshl_b32 s{sT1}, s{sT0}, 10")
        A(f"s_add_u32 s{sT1}, s{sT1}, {WS_OM + br*64*32*1024}")
        A(f"buffer_store_dwordx4 v[{vP}:{vP+3}], v{vL16}, s[{sWS}:{sWS+3}], s{sT1} offen" + STORE_MOD)
        A(f"s_lshl_b32 s{sT1}, s{sT0}, 7")
        A(f"s_add_u32 s{sT1}, s{sT1}, {WS_OX + br*64*32*128}")
        A(f"v_lshlrev_b32 v{vT+4}, 2, v{vLane}")
        A(f"s_bfm_b64 exec, 32, 0")
        A(f"buffer_store_dword v{vP+4}, v{vT+4}, s[{sWS}:{sWS+3}], s{sT1} offen" + STORE_MOD)
        A(f"s_mov_b64 exec, -1")
    def tile_step(sb, nb, q, cnext, koff, voff, do_qk=True, do_k=True, do_v=True, first=False, pre_qk=None):
        sd = vS + 16*sb
        def e(lo, hi):
            for i in range(lo, hi): A(f"v_exp_f32 v{sd+i}, v{sd+i}")
        def c(lo, hi):
            for i in range(lo, hi): A(f"v_cvt_pk_bf16_f32 v{vP+i}, v{sd+2*i}, v{sd+2*i+1}")
        kf = vKF + 8*nb; sn = vS + 16*nb
        e(0, 2)
        if not first: pv(1, nb)
        if pre_qk: pre_qk(nb)
        e(2, 6)
        if do_qk:
            A(f"s_waitcnt lgkmcnt(2)")
            A(f"v_mfma_f32_32x32x16_bf16 v[{sn}:{sn+15}], v[{kf}:{kf+3}], v[{q}:{q+3}], {cnext}")
        if do_k: kreads(sb, koff)
        e(6, 8); c(0, 4)
        if do_qk:
            A(f"v_mfma_f32_32x32x8_bf16 v[{sn}:{sn+15}], v[{kf+4}:{kf+5}], v[{q+4}:{q+5}], v[{sn}:{sn+15}]")
        if do_v: vreads(nb, voff)
        e(8, 12)
        n_after = (2 if do_v else 0) + (2 if do_k else 0)
        A(f"s_waitcnt lgkmcnt({n_after})")
        pv(0, sb)
        e(12, 16); c(4, 8)

    need_groups(n_imm=1, tag="0")
    stamp(A, 1 if PROF != 2 else 5)
    A(f"s_mov_b32 s{sPass}, 0")
    setaddr(0)
    kreads(0, 0)
    A(f"v_mov_b32 v{vM}, s29")
    A(f"s_waitcnt lgkmcnt(0)")
    qk(0, 0, vQB, "0")
    kreads(0, 0)
    kreads(1, 1)
    vreads(0, 0)
    for r in range(16): A(f"v_mov_b32 v{vO+r}, 0")
    for r in range(4): A(f"v_mov_b32 v{vP+4+r}, 0")
    for r in range(8): A(f"v_mov_b32 v{vVF+8+r}, 0")
    maxtile(0)
    finish_max(vQB)
    A(f"s_waitcnt lgkmcnt(4)")
    qk(0, 0, vQB, "0")
    A(f"s_mov_b32 s{sCnt}, 0")
    A(f"s_lshr_b32 s38, s{sWV}, 2")
    A(f"s_nop 7")
    UN = 4
    def prio_toggle(tag):
        if not PRIO: return
        A(f"s_xor_b32 s38, s38, 1")
        A(f"s_cbranch_scc1 {name}_p1{tag}")
        A(f"s_setprio 0")
        A(f"s_branch {name}_p2{tag}")
        A.label(f"{name}_p1{tag}")
        A(f"s_setprio 1")
        A.label(f"{name}_p2{tag}")
    A.label(f"{name}_bloop0")
    A(f"s_lshl_b32 s{sT1}, s{sCnt}, 2")
    A(f"s_add_u32 s{sT1}, s{sT1}, 13")
    A(f"s_lshr_b32 s{sT1}, s{sT1}, 3")
    need_groups(n_sreg=sT1, tag="l")
    prio_toggle("a")
    for u in range(UN):
        tile_step(u % 2, (u+1) % 2, vQB, "0", u + 2, u + 1)
    adv(UN)
    A(f"s_add_u32 s{sCnt}, s{sCnt}, 1")
    A(f"s_cmp_lt_u32 s{sCnt}, 4")
    A(f"s_cbranch_scc1 {name}_bloop0")
    signal(8)
    need_groups(n_imm=8, tag="m")
    A.label(f"{name}_bloop")
    prio_toggle("b")
    for u in range(UN):
        tile_step(u % 2, (u+1) % 2, vQB, "0", u + 2, u + 1)
    adv(UN)
    A(f"s_add_u32 s{sCnt}, s{sCnt}, 1")
    A(f"s_cmp_lt_u32 s{sCnt}, 16")
    A(f"s_cbranch_scc1 {name}_bloop")
    A(f"s_nop 1")
    pv(1, 1)
    if PROF != 2: stamp(A, 2)
    A(f"s_waitcnt vmcnt(0)")
    claim_item()
    check_l(f"{name}_bfin")
    A(f"s_add_u32 s43, s{sKMs}, {32<<16}")
    A(f"s_add_u32 s44, s{sVs}, {32*V_HEAD}")
    A(f"s_add_u32 s45, s{sKXs}, {16*16384}")
    clear_max(vQB)
    A(f"v_mov_b32 v{vM}, s29")
    def gk(tile_sreg):
        A(f"s_lshl_b32 s{sT0}, s{tile_sreg}, 10")
        A(f"s_add_u32 s{sT0}, s{sT0}, s43")
        A(f"buffer_load_dwordx4 v[{vKF}:{vKF+3}], v{vL16}, s[{sWS}:{sWS+3}], s{sT0} offen")
        A(f"s_lshl_b32 s{sT0}, s{tile_sreg}, 8")
        A(f"s_add_u32 s{sT0}, s{sT0}, s45")
        A(f"buffer_load_dword v{vKF+4}, v{vXg}, s[{sWS}:{sWS+3}], s{sT0} offen")
    A(f"s_mov_b32 s{sCnt}, 0")
    A.label(f"{name}_bx1")
    gk(sCnt)
    A(f"s_waitcnt vmcnt(0)")
    qk(0, 0, vQB, "0")
    maxtile(0)
    A(f"s_add_u32 s{sCnt}, s{sCnt}, 1")
    A(f"s_cmp_lt_u32 s{sCnt}, 64")
    A(f"s_cbranch_scc1 {name}_bx1")
    finish_max(vQB)
    for r in range(16): A(f"v_mov_b32 v{vO+r}, 0")
    A(f"s_mov_b32 s{sCnt}, 0")
    A.label(f"{name}_bx2")
    gk(sCnt)
    A(f"s_mul_i32 s{sT0}, s{sCnt}, {V_TILE}")
    A(f"s_add_u32 s{sT0}, s{sT0}, s44")
    A(f"buffer_load_dwordx4 v[{vVF}:{vVF+3}], v{vVg}, s[{sWS}:{sWS+3}], s{sT0} offen")
    A(f"buffer_load_dwordx4 v[{vVF+4}:{vVF+7}], v{vVg}, s[{sWS}:{sWS+3}], s{sT0} offen offset:608")
    A(f"s_waitcnt vmcnt(0)")
    qk(0, 0, vQB, "0")
    for i in range(16): A(f"v_exp_f32 v{vS+i}, v{vS+i}")
    for i in range(8): A(f"v_cvt_pk_bf16_f32 v{vP+i}, v{vS+2*i}, v{vS+2*i+1}")
    pv(0, 0); pv(1, 0)
    A(f"s_add_u32 s{sCnt}, s{sCnt}, 1")
    A(f"s_cmp_lt_u32 s{sCnt}, 64")
    A(f"s_cbranch_scc1 {name}_bx2")
    A(f"s_nop 12")
    A.label(f"{name}_bfin")
    epilogue(1, sTQ, vG)
    if PROF != 2: stamp(A, 3)
    A(f"s_cmp_ge_u32 s50, 8")
    A(f"s_cbranch_scc1 {name}_done")
    poll(12, 2, "a")

    A.label(f"{name}_aitem")
    A(f"s_mov_b32 s{sTQ}, s51")
    A(f"s_mov_b32 s53, s50")
    A(f"s_waitcnt vmcnt(2)")
    A(f"v_mov_b32 v{vGC}, v{vGA}")
    qext_fix(vQA)
    def bias_for(i, kbuf):
        A(f"s_cmp_ge_u32 s{sTQ}, {8 - i}")
        A(f"s_cselect_b32 s{sT0}, s36, s37")
        A(f"v_mov_b32 v{vKF + 8*kbuf + 5}, s{sT0}")
    A(f"s_mov_b32 s36, 0x3f80")
    A(f"s_mov_b32 s37, {(NEGB << 16) | 0x3f80}")
    setaddr(53, True)
    A(f"v_mov_b32 v{vM}, s29")
    A(f"s_cmp_eq_u32 s{sTQ}, 0")
    A(f"s_cbranch_scc1 {name}_aref0")
    kreads(0, 7)
    A(f"s_waitcnt lgkmcnt(0)")
    qk(0, 0, vQA, "0")
    A(f"s_branch {name}_aref1")
    A.label(f"{name}_aref0")
    kreads(0, 8)
    A(f"s_waitcnt lgkmcnt(0)")
    qk(0, 0, vQA, f"v[{vMD}:{vMD+15}]")
    A.label(f"{name}_aref1")
    kreads(0, 0)
    kreads(1, 1)
    vreads(0, 0)
    for r in range(16): A(f"v_mov_b32 v{vO+r}, 0")
    maxtile(0)
    finish_max(vQA)
    bias_for(0, 0)
    A(f"s_waitcnt lgkmcnt(4)")
    qk(0, 0, vQA, f"v[{vMF}:{vMF+15}]")
    A(f"s_nop 7")
    for i in range(9):
        pre = (lambda nb, i=i: bias_for(i+1, nb)) if i < 7 else ((lambda nb: A(f"v_mov_b32 v{vKF + 8*nb + 5}, s36")) if i == 7 else None)
        tile_step(i % 2, (i+1) % 2, vQA, (f"v[{vMD}:{vMD+15}]" if i == 7 else "0"), i + 2, i + 1,
                  do_qk=(i < 8), do_k=(i < 7), do_v=(i < 8), first=(i == 0), pre_qk=pre)
    A(f"s_nop 1")
    pv(1, 0)
    A(f"v_mov_b32 v{vKF+5}, s36")
    A(f"v_mov_b32 v{vKF+8+5}, s36")
    check_l(f"{name}_aepi")
    clear_max(vQA)
    A(f"s_sub_u32 s{sI}, 8, s{sTQ}")
    A(f"s_cmp_ge_u32 s{sTQ}, 8")
    A(f"s_cselect_b32 s{sI}, 0, s{sI}")
    A(f"s_mov_b32 s30, s{sI}")
    A(f"s_mov_b32 s31, s53")
    def set_cm_for(i_sreg):
        lab = f"{name}_cm{set_cm_for.n}"; set_cm_for.n += 1
        A(f"s_cmp_eq_u32 s{i_sreg}, 8")
        A(f"s_cbranch_scc1 {lab}_d")
        A(f"s_cmp_eq_u32 s{i_sreg}, 0")
        A(f"s_cbranch_scc1 {lab}_f")
        for r in range(16): A(f"v_mov_b32 v{vCM+r}, 0")
        A(f"s_branch {lab}_e")
        A.label(f"{lab}_d")
        for r in range(16): A(f"v_mov_b32 v{vCM+r}, v{vMD+r}")
        A(f"s_branch {lab}_e")
        A.label(f"{lab}_f")
        for r in range(16): A(f"v_mov_b32 v{vCM+r}, v{vMF+r}")
        A.label(f"{lab}_e")
    set_cm_for.n = 0
    A(f"v_mov_b32 v{vM}, s29")
    A.label(f"{name}_a1")
    A(f"s_add_u32 s{sT1}, s31, s{sI}")
    setaddr(sT1, True)
    kreads(0, 0)
    set_cm_for(sI)
    A(f"s_waitcnt lgkmcnt(0)")
    qk(0, 0, vQA, f"v[{vCM}:{vCM+15}]")
    maxtile(0)
    A(f"s_add_u32 s{sI}, s{sI}, 1")
    A(f"s_cmp_le_u32 s{sI}, 8")
    A(f"s_cbranch_scc1 {name}_a1")
    finish_max(vQA)
    for r in range(16): A(f"v_mov_b32 v{vO+r}, 0")
    A(f"s_mov_b32 s{sI}, s30")
    A.label(f"{name}_a2")
    A(f"s_add_u32 s{sT1}, s31, s{sI}")
    setaddr(sT1, True)
    kreads(0, 0)
    vreads(0, 0)
    set_cm_for(sI)
    A(f"s_waitcnt lgkmcnt(2)")
    qk(0, 0, vQA, f"v[{vCM}:{vCM+15}]")
    for i in range(16): A(f"v_exp_f32 v{vS+i}, v{vS+i}")
    for i in range(8): A(f"v_cvt_pk_bf16_f32 v{vP+i}, v{vS+2*i}, v{vS+2*i+1}")
    A(f"s_waitcnt lgkmcnt(0)")
    pv(0, 0); pv(1, 0)
    A(f"s_add_u32 s{sI}, s{sI}, 1")
    A(f"s_cmp_le_u32 s{sI}, 8")
    A(f"s_cbranch_scc1 {name}_a2")
    A(f"s_nop 12")
    A.label(f"{name}_aepi")
    claim_item()
    epilogue(0, sTQ, vGC)
    A(f"s_cmp_lt_u32 s50, 8")
    A(f"s_cbranch_scc1 {name}_aitem")
    A.label(f"{name}_done")
    if PROF:
        stamp(A, 5 if PROF != 2 else 6)
        stamps_out(A, 1, 7, sWS, sWV, vS)
    rt_end(A, 1, sWV, vS)
    A(f"s_endpgm")

    A.label(f"{name}_loader")
    A(f"s_sub_u32 s35, s{sWV}, 8")
    A(f"s_lshl_b32 s34, s35, 10")
    A(f"s_add_u32 s43, s{sKMs}, {32<<16}")
    A(f"s_add_u32 s44, s{sVs}, {32*V_HEAD}")
    A(f"s_add_u32 s45, s{sKXs}, {16*16384}")
    A(f"s_lshl_b32 s46, s35, 2")
    A(f"v_add_u32 v{vT+8}, s46, v{vCA}")
    A(f"s_mov_b32 s47, -1")
    A(f"s_cmp_eq_u32 s35, 1")
    A(f"s_cselect_b32 s47, 0, s47")
    A("s_waitcnt lgkmcnt(0)")
    srd(A, sWS, 4, 5, WS_SIZE)
    def ld(lds_sreg, src_sreg, off):
        A(f"s_add_u32 m0, s{lds_sreg}, {off}")
        A(f"s_add_u32 s{sT3}, s{src_sreg}, {off}")
        A(f"buffer_load_dwordx4 v{vL16}, s[{sWS}:{sWS+3}], s{sT3} offen lds")
    A(f"s_mov_b32 s{sCnt}, 0")
    A.label(f"{name}_lgrp")
    A(f"s_add_u32 s{sT0}, s{sQB}, s{sCnt}")
    A(f"s_and_b32 s{sT0}, s{sT0}, 7")
    A(f"s_lshl_b32 s48, s{sT0}, 13")
    A(f"s_add_u32 s48, s48, s43")
    A(f"s_add_u32 s48, s48, s34")
    A(f"s_lshl_b32 s49, s{sCnt}, 13")
    A(f"s_add_u32 s49, s49, s34")
    for j in range(4): ld(49, 48, j*2048)
    A(f"s_lshl_b32 s48, s{sT0}, 11")
    A(f"s_add_u32 s48, s48, s45")
    A(f"s_add_u32 s48, s48, s34")
    A(f"s_lshl_b32 s49, s{sCnt}, 11")
    A(f"s_add_u32 s49, s49, s34")
    A(f"s_add_u32 s49, s49, {L_KX}")
    ld(49, 48, 0)
    A(f"s_mul_i32 s48, s{sT0}, {8*V_TILE}")
    A(f"s_add_u32 s48, s48, s44")
    A(f"s_add_u32 s48, s48, s34")
    A(f"s_mul_i32 s49, s{sCnt}, {8*V_TILE}")
    A(f"s_add_u32 s49, s49, s34")
    A(f"s_add_u32 s49, s49, {L_V}")
    for j in range(4): ld(49, 48, j*2048)
    A(f"s_mov_b32 exec_hi, s47")
    ld(49, 48, 4*2048)
    A(f"s_mov_b32 exec_hi, -1")
    A(f"s_cmp_eq_u32 s{sCnt}, 0")
    A(f"s_cbranch_scc0 {name}_lg1")
    A(f"s_barrier")
    A(f"s_branch {name}_lg2")
    A.label(f"{name}_lg1")
    A(f"s_waitcnt vmcnt(10)")
    A(f"v_mov_b32 v{vT}, 1")
    A(f"s_mov_b64 exec, 1")
    A(f"ds_add_u32 v{vT+8}, v{vT}")
    A(f"s_mov_b64 exec, -1")
    A.label(f"{name}_lg2")
    A(f"s_add_u32 s{sCnt}, s{sCnt}, 1")
    A(f"s_cmp_lt_u32 s{sCnt}, 8")
    A(f"s_cbranch_scc1 {name}_lgrp")
    A(f"s_waitcnt vmcnt(0)")
    A(f"v_mov_b32 v{vT}, 1")
    A(f"s_mov_b64 exec, 1")
    A(f"ds_add_u32 v{vT+8}, v{vT}")
    A(f"s_mov_b64 exec, -1")
    poll(8, 8, "ld")
    def lgroup(ldsbase, sreg, n):
        lab = f"{name}_lg_{lgroup.n}"; lgroup.n += 1
        A(f"s_add_u32 s{sT3}, s{sreg}, s34")
        A(f"s_add_u32 s{sT2}, s34, {ldsbase}")
        A(f"s_mov_b32 s{sCnt}, s35")
        A.label(lab)
        A(f"s_mov_b32 m0, s{sT2}")
        A(f"s_add_u32 s{sT2}, s{sT2}, 2048")
        A(f"buffer_load_dwordx4 v{vL16}, s[{sWS}:{sWS+3}], s{sT3} offen lds")
        A(f"s_add_u32 s{sT3}, s{sT3}, 2048")
        A(f"s_add_u32 s{sCnt}, s{sCnt}, 2")
        A(f"s_cmp_lt_u32 s{sCnt}, {n}")
        A(f"s_cbranch_scc1 {lab}")
    lgroup.n = 0
    A(f"s_lshl_b32 s{sI}, s{sQB}, 3")
    A(f"s_sub_u32 s{sI}, s{sI}, 8")
    A(f"s_lshl_b32 s{sT0}, s{sI}, 10")
    A(f"s_add_u32 s28, s{sKMs}, s{sT0}")
    lgroup(L_KM, 28, 16)
    A(f"s_lshl_b32 s{sT0}, s{sI}, 8")
    A(f"s_add_u32 s28, s{sKXs}, s{sT0}")
    lgroup(L_KX, 28, 4)
    A(f"s_mul_i32 s{sT0}, s{sI}, {V_TILE}")
    A(f"s_add_u32 s28, s{sVs}, s{sT0}")
    lgroup(L_V, 28, 19)
    A(f"s_waitcnt vmcnt(0)")
    signal(12)
    if WOPF:
        A(f"s_lshl_b32 s{sT0}, s35, 1")
        A(f"s_mul_i32 s{sT0}, s{sT0}, 12")
        A(f"s_add_u32 s{sT0}, s{sT0}, 16")
        A(f"s_load_dwordx2 s[48:49], s[0:1], s{sT0}")
        A(f"s_lshr_b32 s{sT1}, s2, 3")
        A(f"s_mul_i32 s{sT1}, s{sT1}, {D*D*2 // 32}")
        A(f"v_lshlrev_b32 v{vT+1}, 6, v{vLane}")
        A(f"s_waitcnt lgkmcnt(0)")
        A(f"s_mov_b32 s52, s48")
        A(f"s_and_b32 s53, s49, 0xffff")
        A(f"s_mov_b32 s54, {D*D*2}")
        A(f"s_mov_b32 s55, 0x00020000")
        for j in range(6):
            A(f"buffer_load_dword v{vT+2}, v{vT+1}, s[52:55], s{sT1} offen")
            if j < 5: A(f"s_add_u32 s{sT1}, s{sT1}, 4096")
        A(f"s_waitcnt vmcnt(0)")
    A(f"s_waitcnt lgkmcnt(0)")
    A.label(f"{name}_end")
    A(f"s_endpgm")
    return khead(name) + A.finish(True), kdesc(name, NV, 100)
```

```python
from asmlib import *
from common import *
import os

K1_W0 = 32768
K1_STAGE = 49152
K1_LDS = 3 * K1_STAGE
K1_THREADS = 896
K1_GRID = 224
LDMOD = (" " + os.environ["LDMOD"]) if os.environ.get("LDMOD") else ""
GT = int(os.environ.get("GT", "0"))
EXP = int(os.environ.get("EXP", "0"))
TOUCH = int(os.environ.get("TOUCH", "0"))

def gen_k1(name):
    A = Asm()
    sX, sWS, sG = 8, 16, 20
    sCG, sTB, sWV, sCH = 24, 25, 26, 27
    sOff, sOffI, sOffC = 28, 29, 30
    sM0, sM0I = 31, 32
    sStL = 33
    sDelta = 34
    sStR = 35
    sT0, sT1, sT2, sT3 = 36, 37, 38, 39
    sFP, sTP, sBLK, sBR, sBETA, sTY = 40, 41, 42, 43, 50, 51
    vLane = 1
    vLo = 2
    vTo, vTd = 3, 4
    vAX = 6
    vAW0, vAW1 = 10, 11
    vT = 12
    vXF = 24
    vWF = 40
    vACC = 56
    vSO = 120
    vP = 24
    NV = 128

    A(f"s_cmp_ge_u32 s2, {K1_GRID}")
    A(f"s_cbranch_scc1 {name}_end")
    stamp(A, 0)
    rt_begin(A)
    A(f"s_load_dwordx4 s[4:7], s[0:1], 0")
    A(f"s_load_dwordx2 s[44:45], s[0:1], {ARG['B_wqkv']}")
    A(f"s_load_dwordx2 s[46:47], s[0:1], {ARG['gate_w']}")
    A(f"s_load_dwordx2 s[48:49], s[0:1], {ARG['ws']}")
    A(f"v_and_b32 v{vLane}, 63, v0")
    A(f"v_lshrrev_b32 v{vT}, 6, v0")
    A(f"s_and_b32 s{sT0}, s2, 7")
    A(f"v_readfirstlane_b32 s{sWV}, v{vT}")
    A(f"s_lshr_b32 s{sT1}, s2, 3")
    A(f"s_lshr_b32 s{sT2}, s{sT0}, 2")
    A(f"s_lshl_b32 s{sT2}, s{sT2}, 2")
    A(f"s_and_b32 s{sT3}, s{sT1}, 3")
    A(f"s_add_u32 s{sTB}, s{sT2}, s{sT3}")
    A(f"s_and_b32 s{sT2}, s{sT0}, 3")
    A(f"s_mul_i32 s{sT2}, s{sT2}, 7")
    A(f"s_lshr_b32 s{sT3}, s{sT1}, 2")
    A(f"s_add_u32 s{sCG}, s{sT2}, s{sT3}")
    A(f"s_cmp_ge_u32 s{sCG}, 27")
    A(f"s_cbranch_scc1 {name}_end")
    A(f"s_cmp_ge_u32 s{sWV}, 8")
    A(f"s_cbranch_scc0 {name}_comp")
    A(f"s_cmp_ge_u32 s{sWV}, 12")
    A(f"s_cbranch_scc1 {name}_ldw")

    A(f"s_sub_u32 s{sT3}, s{sWV}, 8")
    A(f"v_lshrrev_b32 v{vT}, 3, v{vLane}")
    A(f"s_lshl_b32 s{sT0}, s{sT3}, 3")
    A(f"v_add_u32 v{vT}, s{sT0}, v{vT}")
    A(f"v_mul_u32_u24 v{vLo}, 1152, v{vT}")
    A(f"v_lshrrev_b32 v{vT+1}, 4, v{vLane}")
    A(f"s_and_b32 s{sT0}, s{sT3}, 1")
    A(f"s_lshl_b32 s{sT0}, s{sT0}, 2")
    A(f"v_add_u32 v{vT+1}, s{sT0}, v{vT+1}")
    A(f"v_and_b32 v{vT+2}, 7, v{vLane}")
    A(f"v_xor_b32 v{vT+2}, v{vT+2}, v{vT+1}")
    A(f"v_lshl_add_u32 v{vLo}, v{vT+2}, 4, v{vLo}")
    A(f"s_lshr_b32 s{sT0}, s2, 5")
    A(f"s_mul_i32 s{sT0}, s{sT0}, 37")
    A(f"s_mul_i32 s{sT1}, s{sT3}, 10")
    A(f"s_add_u32 s{sT0}, s{sT0}, s{sT1}")
    A(f"v_lshrrev_b32 v{vT+3}, 1, v{vLane}")
    A(f"v_add_u32 v{vT+3}, s{sT0}, v{vT+3}")
    A(f"v_min_u32 v{vT+3}, 255, v{vT+3}")
    A(f"v_mul_u32_u24 v{vTo}, 1152, v{vT+3}")
    A(f"v_and_b32 v{vT+3}, 1, v{vLane}")
    A(f"v_lshl_add_u32 v{vTo}, v{vT+3}, 6, v{vTo}")
    A(f"s_mov_b32 s59, {(1 << 20) - 1}")
    A(f"s_lshl_b32 s{sM0}, s{sT3}, 10")
    A(f"s_mov_b32 s{sM0I}, 4096")
    A(f"s_mul_i32 s{sOff}, s{sTB}, {256*1152}")
    if EXP == 1: A(f"s_mov_b32 s{sOff}, 0")
    A(f"s_mov_b32 s{sOffI}, {32*1152}")
    A(f"s_mov_b32 s{sOffC}, 128")
    A("s_waitcnt lgkmcnt(0)")
    srd(A, sX, 4, 5, T * D * 2)
    A(f"s_mov_b32 s54, 1")
    A(f"s_branch {name}_ld")
    A.label(f"{name}_ldw")
    A(f"s_sub_u32 s{sT3}, s{sWV}, 12")
    A(f"s_lshl_b32 s{sBLK}, s{sCG}, 1")
    A(f"s_add_u32 s{sBLK}, s{sBLK}, s{sT3}")
    A(f"s_cmp_ge_u32 s{sBLK}, 27")
    A(f"s_cselect_b32 s{sBR}, 1, 0")
    A(f"s_mul_i32 s{sT0}, s{sBR}, 27")
    A(f"s_sub_u32 s{sBETA}, s{sBLK}, s{sT0}")
    A(f"v_lshrrev_b32 v{vT}, 3, v{vLane}")
    A(f"v_mul_u32_u24 v{vLo}, 3456, v{vT}")
    A(f"v_bfe_u32 v{vT+1}, v{vLane}, 4, 1")
    A(f"v_lshlrev_b32 v{vT+1}, 2, v{vT+1}")
    A(f"v_and_b32 v{vT+2}, 7, v{vLane}")
    A(f"v_xor_b32 v{vT+2}, v{vT+2}, v{vT+1}")
    A(f"v_lshl_add_u32 v{vLo}, v{vT+2}, 4, v{vLo}")
    A(f"s_and_b32 s{sT0}, s{sTB}, 3")
    A(f"s_lshl_b32 s{sT0}, s{sT0}, 4")
    A(f"v_lshrrev_b32 v{vT+3}, 1, v{vLane}")
    A(f"v_add_u32 v{vT+3}, s{sT0}, v{vT+3}")
    A(f"v_mul_u32_u24 v{vTo}, 3456, v{vT+3}")
    A(f"v_and_b32 v{vT+3}, 1, v{vLane}")
    A(f"v_lshl_add_u32 v{vTo}, v{vT+3}, 6, v{vTo}")
    A(f"s_mov_b32 s59, -1")
    A(f"s_lshl_b32 s{sM0}, s{sT3}, 13")
    A(f"s_add_u32 s{sM0}, s{sM0}, {K1_W0}")
    A(f"s_mov_b32 s{sM0I}, 1024")
    A(f"s_lshl_b32 s{sOff}, s{sBETA}, 7")
    if EXP == 1: A(f"s_mov_b32 s{sOff}, 0")
    A(f"s_mov_b32 s{sOffI}, {8*3456}")
    A(f"s_mov_b32 s{sOffC}, {64*3456}")
    A("s_waitcnt lgkmcnt(0)")
    A(f"s_cmp_eq_u32 s{sBR}, 0")
    A(f"s_cselect_b32 s{sX}, s6, s44")
    A(f"s_cselect_b32 s{sX+1}, s7, s45")
    A(f"s_and_b32 s{sX+1}, s{sX+1}, 0xffff")
    A(f"s_mov_b32 s{sX+2}, {D*3*D*2}")
    A(f"s_mov_b32 s{sX+3}, 0x00020000")
    A(f"s_mov_b32 s54, 0")
    A.label(f"{name}_ld")
    def issue():
        A(f"s_add_u32 m0, s{sStL}, s{sM0}")
        A(f"s_mov_b32 s{sT1}, s{sOff}")
        for j in range(8):
            if EXP != 2: A(f"buffer_load_dwordx4 v{vLo}, s[{sX}:{sX+3}], s{sT1} offen{LDMOD} lds")
            if j < 7:
                A(f"s_add_u32 m0, m0, s{sM0I}")
                A(f"s_add_u32 s{sT1}, s{sT1}, s{sOffI}")
        if TOUCH:
            A(f"s_mul_i32 s{sT1}, s{sOffC}, {TOUCH}")
            A(f"s_add_u32 s{sT1}, s{sT1}, s{sOff}")
            A(f"s_mov_b32 exec_lo, s59")
            A(f"s_mov_b32 exec_hi, 0")
            A(f"buffer_load_dword v{vTd}, v{vTo}, s[{sX}:{sX+3}], s{sT1} offen")
            A(f"s_mov_b64 exec, -1")
        A(f"s_add_u32 s{sOff}, s{sOff}, s{sOffC}")
        A(f"s_add_u32 s{sStL}, s{sStL}, {K1_STAGE}")
        A(f"s_cmp_eq_u32 s{sStL}, {3*K1_STAGE}")
        A(f"s_cselect_b32 s{sStL}, 0, s{sStL}")
    stamp(A, 1)
    A(f"s_mov_b32 s{sStL}, 0")
    A(f"s_mov_b32 s{sCH}, -2")
    A.label(f"{name}_ld_loop")
    A(f"s_cmp_lt_i32 s{sCH}, 0")
    A(f"s_cbranch_scc1 {name}_ld_issue")
    A(f"s_cmp_eq_u32 s{sCH}, 8")
    A(f"s_cbranch_scc1 {name}_ld_last")
    A(f"s_waitcnt vmcnt({9 if TOUCH else 8})")
    if PROF:
        A(f"s_cmp_eq_u32 s{sCH}, 0")
        A(f"s_cbranch_scc0 {name}_ld_ns")
        stamp(A, 2)
        A.label(f"{name}_ld_ns")
    A(f"s_barrier")
    A(f"s_cmp_eq_u32 s{sCH}, 7")
    A(f"s_cbranch_scc1 {name}_ld_skip")
    A.label(f"{name}_ld_issue")
    issue()
    A.label(f"{name}_ld_skip")
    A(f"s_add_u32 s{sCH}, s{sCH}, 1")
    A(f"s_branch {name}_ld_loop")
    A.label(f"{name}_ld_last")
    A(f"s_waitcnt vmcnt(0)")
    A(f"s_barrier")
    if PROF:
        stamp(A, 3)
        A("s_load_dwordx2 s[48:49], s[0:1], 72")
        A("s_waitcnt lgkmcnt(0)")
        srd(A, sWS, 48, 49, WS_SIZE)
        stamps_out(A, 0, 4, sWS, sWV, vP)
    A(f"s_endpgm")

    A.label(f"{name}_comp")
    A(f"s_lshr_b32 s{sFP}, s{sWV}, 2")
    A(f"s_and_b32 s{sTP}, s{sWV}, 3")
    A(f"s_lshl_b32 s{sBLK}, s{sCG}, 1")
    A(f"s_add_u32 s{sBLK}, s{sBLK}, s{sFP}")
    A(f"s_cmp_ge_u32 s{sBLK}, 27")
    A(f"s_cselect_b32 s{sBR}, 1, 0")
    A(f"s_mul_i32 s{sT0}, s{sBR}, 27")
    A(f"s_sub_u32 s{sBETA}, s{sBLK}, s{sT0}")
    A(f"s_mov_b32 s{sTY}, 0")
    A(f"s_cmp_ge_u32 s{sBETA}, 9")
    A(f"s_addc_u32 s{sTY}, s{sTY}, 0")
    A(f"s_cmp_ge_u32 s{sBETA}, 18")
    A(f"s_addc_u32 s{sTY}, s{sTY}, 0")
    vG = vACC
    for i in range(24): A(f"v_mov_b32 v{vG+i}, 0")
    A("s_waitcnt lgkmcnt(0)")
    srd(A, sX, 4, 5, T * D * 2)
    srd(A, sWS, 48, 49, WS_SIZE)
    if GT:
        A(f"s_lshl_b32 s{sT0}, s{sCG}, 3")
        A(f"s_add_u32 s{sT0}, s{sT0}, s{sTB}")
        A(f"v_mul_u32_u24 v{vT}, {GT}, v{vLane}")
        nper = 64 * GT
        nx = -(-11008 // nper); nw = -(-9216 // nper)
        lab = f"{name}_gt"
        A(f"s_cmp_lt_u32 s{sWV}, {nx}")
        A(f"s_cbranch_scc0 {lab}_w")
        A(f"s_mul_i32 s{sT1}, s{sT0}, 11008")
        A(f"s_mul_i32 s{sT2}, s{sWV}, {nper}")
        A(f"s_add_u32 s{sT1}, s{sT1}, s{sT2}")
        A(f"buffer_load_dword v{vTd}, v{vT}, s[{sX}:{sX+3}], s{sT1} offen")
        A(f"s_branch {lab}_e")
        A.label(f"{lab}_w")
        A(f"s_sub_u32 s{sT3}, s{sWV}, {nx}")
        A(f"s_cmp_lt_u32 s{sT3}, {2*nw}")
        A(f"s_cbranch_scc0 {lab}_e")
        A(f"s_cmp_lt_u32 s{sT3}, {nw}")
        A(f"s_cselect_b32 s{sG}, s6, s44")
        A(f"s_cselect_b32 s{sG+1}, s7, s45")
        A(f"s_cselect_b32 s{sT2}, 0, {nw}")
        A(f"s_sub_u32 s{sT3}, s{sT3}, s{sT2}")
        A(f"s_and_b32 s{sG+1}, s{sG+1}, 0xffff")
        A(f"s_mov_b32 s{sG+2}, {D*3*D*2}")
        A(f"s_mov_b32 s{sG+3}, 0x00020000")
        A(f"s_mul_i32 s{sT1}, s{sT0}, 9216")
        A(f"s_mul_i32 s{sT2}, s{sT3}, {nper}")
        A(f"s_add_u32 s{sT1}, s{sT1}, s{sT2}")
        A(f"buffer_load_dword v{vTd}, v{vT}, s[{sG}:{sG+3}], s{sT1} offen")
        A.label(f"{lab}_e")
    srd(A, sG, 46, 47, D * 2)
    A(f"s_cmp_ge_u32 s{sCG}, 16")
    A(f"s_cbranch_scc1 {name}_nog1")
    A(f"s_lshl_b32 s{sT0}, s{sTB}, 8")
    A(f"s_lshl_b32 s{sT1}, s{sCG}, 4")
    A(f"s_add_u32 s{sT0}, s{sT0}, s{sT1}")
    A(f"s_lshl_b32 s{sT1}, s{sWV}, 1")
    A(f"s_add_u32 s52, s{sT0}, s{sT1}")
    A(f"s_mul_i32 s{sT0}, s52, 1152")
    A(f"v_lshlrev_b32 v{vT}, 5, v{vLane}")
    A(f"s_bfm_b64 exec, 36, 0")
    A(f"buffer_load_dwordx4 v[{vG}:{vG+3}], v{vT}, s[{sX}:{sX+3}], s{sT0} offen")
    A(f"buffer_load_dwordx4 v[{vG+4}:{vG+7}], v{vT}, s[{sX}:{sX+3}], s{sT0} offen offset:16")
    A(f"buffer_load_dwordx4 v[{vG+8}:{vG+11}], v{vT}, s[{sX}:{sX+3}], s{sT0} offen offset:1152")
    A(f"buffer_load_dwordx4 v[{vG+12}:{vG+15}], v{vT}, s[{sX}:{sX+3}], s{sT0} offen offset:1168")
    A(f"buffer_load_dwordx4 v[{vG+16}:{vG+19}], v{vT}, s[{sG}:{sG+3}], 0 offen")
    A(f"buffer_load_dwordx4 v[{vG+20}:{vG+23}], v{vT}, s[{sG}:{sG+3}], 0 offen offset:16")
    A(f"s_mov_b64 exec, -1")
    A.label(f"{name}_nog1")
    A(f"v_and_b32 v{vT}, 31, v{vLane}")
    A(f"v_lshrrev_b32 v{vT+1}, 5, v{vLane}")
    A(f"v_bfe_u32 v{vT+2}, v{vLane}, 1, 3")
    A(f"v_xor_b32 v{vT+2}, v{vT+2}, v{vT+1}")
    A(f"v_lshlrev_b32 v{vT+2}, 4, v{vT+2}")
    A(f"s_lshl_b32 s{sT0}, s{sTP}, 6")
    A(f"v_add_u32 v{vT}, s{sT0}, v{vT}")
    A(f"v_lshlrev_b32 v{vT}, 7, v{vT}")
    for s_ in range(4):
        A(f"v_xor_b32 v{vT+3}, {32*s_}, v{vT+2}")
        A(f"v_add_u32 v{vAX+s_}, v{vT}, v{vT+3}")
    A(f"v_bfe_u32 v{vT+2}, v{vLane}, 2, 2")
    A(f"v_lshl_add_u32 v{vT+3}, v{vT+1}, 3, v{vT+2}")
    A(f"v_lshlrev_b32 v{vT+3}, 7, v{vT+3}")
    A(f"v_bfe_u32 v{vT+4}, v{vLane}, 4, 1")
    A(f"v_lshlrev_b32 v{vT+4}, 5, v{vT+4}")
    A(f"v_and_b32 v{vT+5}, 3, v{vLane}")
    A(f"v_lshl_add_u32 v{vT+4}, v{vT+5}, 3, v{vT+4}")
    A(f"v_lshrrev_b32 v{vT+2}, 1, v{vT+2}")
    A(f"v_lshlrev_b32 v{vT+2}, 6, v{vT+2}")
    A(f"v_xor_b32 v{vT+4}, v{vT+4}, v{vT+2}")
    A(f"s_lshl_b32 s{sT0}, s{sFP}, 13")
    A(f"s_add_u32 s{sT0}, s{sT0}, {K1_W0}")
    A(f"v_add3_u32 v{vAW0}, v{vT+3}, v{vT+4}, s{sT0}")
    A(f"v_xor_b32 v{vAW1}, 64, v{vAW0}")
    A(f"s_lshl_b32 s{sT0}, s{sTB}, 3")
    A(f"s_lshl_b32 s{sT1}, s{sTP}, 1")
    A(f"s_add_u32 s53, s{sT0}, s{sT1}")
    A(f"s_cmp_eq_u32 s{sTY}, 2")
    A(f"s_cbranch_scc1 {name}_sov")
    A(f"s_mul_i32 s{sT0}, s{sTY}, 9")
    A(f"s_sub_u32 s{sT0}, s{sBETA}, s{sT0}")
    A(f"s_lshl_b32 s{sT0}, s{sT0}, 4")
    A(f"s_mul_i32 s{sT1}, s{sTY}, {WS_KM-WS_QM}")
    A(f"s_lshl_b32 s{sT2}, s{sBR}, 21")
    A(f"s_add_u32 s{sT1}, s{sT1}, s{sT2}")
    A(f"s_lshl_b32 s{sT2}, s53, 10")
    A(f"s_add_u32 s{sT1}, s{sT1}, s{sT2}")
    A(f"s_add_u32 s54, s{sT1}, {WS_QM}")
    A(f"s_mul_i32 s{sT1}, s{sTY}, {WS_KX-WS_QX}")
    A(f"s_lshl_b32 s{sT2}, s{sBR}, 18")
    A(f"s_add_u32 s{sT1}, s{sT1}, s{sT2}")
    A(f"s_lshl_b32 s{sT2}, s53, 8")
    A(f"s_add_u32 s{sT1}, s{sT1}, s{sT2}")
    A(f"s_add_u32 s55, s{sT1}, {WS_QX}")
    A(f"v_and_b32 v{vT}, 31, v{vLane}")
    A(f"v_lshlrev_b32 v{vT+6}, 3, v{vT}")
    A(f"v_add_u32 v{vT+6}, s54, v{vT+6}")
    A(f"v_lshlrev_b32 v{vT+7}, 3, v{vT}")
    A(f"v_add_u32 v{vT+7}, s55, v{vT+7}")
    A(f"v_add_u32 v{vT+8}, s{sT0}, v{vT+1}")
    for t in range(2):
        for i in range(4):
            d = vSO + 4*t + i
            A(f"v_add_u32 v{vT}, {8*t+2*i}, v{vT+8}")
            A(f"v_mul_u32_u24 v{vT+2}, 7282, v{vT}")
            A(f"v_lshrrev_b32 v{vT+2}, 16, v{vT+2}")
            A(f"v_mul_u32_u24 v{vT+3}, 9, v{vT+2}")
            A(f"v_sub_u32 v{vT+3}, v{vT}, v{vT+3}")
            A(f"v_cmp_lt_u32 vcc, 4, v{vT+3}")
            A(f"v_cndmask_b32 v{vT+4}, 0, 1, vcc")
            A(f"v_lshl_add_u32 v{vT+5}, v{vT+2}, 1, v{vT+4}")
            A(f"v_lshlrev_b32 v{vT+5}, 16, v{vT+5}")
            A(f"v_mul_u32_u24 v{vT+4}, 5, v{vT+4}")
            A(f"v_sub_u32 v{vT+4}, v{vT+3}, v{vT+4}")
            A(f"v_and_b32 v{vT+9}, 1, v{vT+4}")
            A(f"v_lshl_add_u32 v{vT+5}, v{vT+9}, 9, v{vT+5}")
            A(f"v_lshrrev_b32 v{vT+9}, 1, v{vT+4}")
            A(f"v_lshl_add_u32 v{vT+5}, v{vT+9}, 8, v{vT+5}")
            A(f"v_add_u32 v{vT+5}, v{vT+5}, v{vT+6}")
            A(f"v_lshl_add_u32 v{vT+9}, v{vT+2}, 14, v{vT+7}")
            A(f"v_cmp_eq_u32 vcc, 4, v{vT+3}")
            A(f"v_cndmask_b32 v{d}, v{vT+5}, v{vT+9}, vcc")
            A(f"v_cndmask_b32 v{vT+9}, 0, 1, vcc")
            A(f"v_or_b32 v{d}, v{d}, v{vT+9}")
    A(f"s_branch {name}_sod")
    A.label(f"{name}_sov")
    A(f"s_sub_u32 s{sT0}, s{sBETA}, 18")
    A(f"s_lshl_b32 s{sT0}, s{sT0}, 6")
    A(f"s_mul_i32 s{sT1}, s{sBR}, {32*V_HEAD}")
    A(f"s_mul_i32 s{sT2}, s53, {V_TILE}")
    A(f"s_add_u32 s{sT1}, s{sT1}, s{sT2}")
    A(f"s_add_u32 s54, s{sT1}, {WS_V}")
    A(f"v_mul_u32_u24 v{vT+6}, 304, v{vT+1}")
    A(f"v_add_u32 v{vT+6}, s54, v{vT+6}")
    A(f"v_and_b32 v{vT+7}, 31, v{vLane}")
    A(f"v_add_u32 v{vT+7}, s{sT0}, v{vT+7}")
    A(f"s_mov_b32 s55, {V_HEAD}")
    for t in range(2):
        d = vSO + t
        A(f"v_add_u32 v{vT}, {32*t}, v{vT+7}")
        A(f"v_mul_u32_u24 v{vT+2}, 3641, v{vT}")
        A(f"v_lshrrev_b32 v{vT+2}, 16, v{vT+2}")
        A(f"v_mul_u32_u24 v{vT+3}, 18, v{vT+2}")
        A(f"v_sub_u32 v{vT+3}, v{vT}, v{vT+3}")
        A(f"v_and_b32 v{vT+4}, 1, v{vT+2}")
        A(f"v_add_u32 v{vT+5}, 16, v{vT+3}")
        A(f"v_subrev_u32 v{vT+9}, 18, v{vT+5}")
        A(f"v_min_u32 v{vT+5}, v{vT+5}, v{vT+9}")
        A(f"v_cmp_eq_u32 vcc, 1, v{vT+4}")
        A(f"v_cndmask_b32 v{vT+5}, v{vT+3}, v{vT+5}, vcc")
        A(f"v_mul_lo_u32 v{vT+2}, v{vT+2}, s55")
        A(f"v_lshl_add_u32 v{vT+5}, v{vT+5}, 4, v{vT+2}")
        A(f"v_add_u32 v{d}, v{vT+5}, v{vT+6}")
        A(f"v_cmp_eq_u32 vcc, 17, v{vT+3}")
        A(f"v_cndmask_b32 v{vSO+2+t}, 0, 1, vcc")
        A(f"v_add_u32 v{vT+9}, {18*16}, v{vT+2}")
        A(f"v_add_u32 v{vSO+4+t}, v{vT+9}, v{vT+6}")
    A.label(f"{name}_sod")
    A(f"s_cmp_ge_u32 s{sCG}, 16")
    A(f"s_cbranch_scc1 {name}_nog2")
    A(f"s_waitcnt vmcnt(0)")
    for tk in range(2):
        A(f"v_mov_b32 v{vT}, 0")
        for i in range(8): A(f"v_dot2c_f32_bf16 v{vT}, v{vG+8*tk+i}, v{vG+16+i}")
        A(f"s_nop 2")
        A(f"v_add_f32_dpp v{vT}, v{vT}, v{vT} quad_perm:[1,0,3,2] row_mask:0xf bank_mask:0xf")
        A(f"v_add_f32_dpp v{vT}, v{vT}, v{vT} quad_perm:[2,3,0,1] row_mask:0xf bank_mask:0xf")
        A(f"v_add_f32_dpp v{vT}, v{vT}, v{vT} row_half_mirror row_mask:0xf bank_mask:0xf")
        A(f"v_add_f32_dpp v{vT}, v{vT}, v{vT} row_mirror row_mask:0xf bank_mask:0xf")
        A(f"v_readlane_b32 s56, v{vT}, 0")
        A(f"v_readlane_b32 s57, v{vT}, 16")
        A(f"v_readlane_b32 s58, v{vT}, 32")
        A(f"v_mov_b32 v{vT+1}, s56")
        A(f"v_add_f32 v{vT+1}, s57, v{vT+1}")
        A(f"v_add_f32 v{vT+1}, s58, v{vT+1}")
        A(f"v_mul_f32 v{vT+1}, {f2u(-1.4426950408889634)}, v{vT+1}")
        A(f"v_exp_f32 v{vT+1}, v{vT+1}")
        A(f"v_add_f32 v{vT+1}, 1.0, v{vT+1}")
        A(f"v_rcp_f32 v{vT+1}, v{vT+1}")
        A(f"s_lshl_b32 s{sT0}, s52, 2")
        A(f"s_add_u32 s{sT0}, s{sT0}, {WS_G + 4*tk}")
        A(f"v_mov_b32 v{vT+2}, 0")
        A(f"s_mov_b64 exec, 1")
        A(f"buffer_store_dword v{vT+1}, v{vT+2}, s[{sWS}:{sWS+3}], s{sT0} offen" + STORE_MOD)
        A(f"s_mov_b64 exec, -1")
    A.label(f"{name}_nog2")
    for i in range(64): A(f"v_mov_b32 v{vACC+i}, 0")
    for i in range(8):
        A(f"v_mov_b32 v{vXF+8+i}, 0")
        A(f"v_mov_b32 v{vWF+8+i}, 0")
    A(f"s_mov_b32 s56, {(-2*K1_STAGE) & 0xffffffff}")
    A(f"s_mov_b32 s57, {K1_STAGE}")
    stamp(A, 1)
    A(f"s_mov_b32 s{sCH}, 0")
    A(f"s_mov_b32 s{sStR}, 0")
    A(f"s_cmp_eq_u32 s{sTY}, 2")
    A(f"s_cbranch_scc1 {name}_loop1")

    def reads(s_, buf):
        xf = vXF + 8*buf; wf = vWF + 8*buf
        A(f"ds_read_b128 v[{xf}:{xf+3}], v{vAX+s_}")
        A(f"ds_read_b128 v[{xf+4}:{xf+7}], v{vAX+s_} offset:4096")
        A(f"ds_read_b64_tr_b16 v[{wf}:{wf+1}], v{vAW0} offset:{s_*2048}")
        A(f"ds_read_b64_tr_b16 v[{wf+2}:{wf+3}], v{vAW0} offset:{s_*2048+512}")
        A(f"ds_read_b64_tr_b16 v[{wf+4}:{wf+5}], v{vAW1} offset:{s_*2048}")
        A(f"ds_read_b64_tr_b16 v[{wf+6}:{wf+7}], v{vAW1} offset:{s_*2048+512}")
    def mfmas(mode, buf):
        xf = vXF + 8*buf; wf = vWF + 8*buf
        for t in range(2):
            for tt in range(2):
                acc = vACC + (t*2+tt)*16
                W = f"v[{wf+4*t}:{wf+4*t+3}]"; X = f"v[{xf+4*tt}:{xf+4*tt+3}]"
                if mode == 1:
                    A(f"v_mfma_f32_32x32x16_bf16 v[{acc}:{acc+15}], {X}, {W}, v[{acc}:{acc+15}]")
                else:
                    A(f"v_mfma_f32_32x32x16_bf16 v[{acc}:{acc+15}], {W}, {X}, v[{acc}:{acc+15}]")

    for mode in range(2):
        L = f"{name}_loop{mode}"
        A.label(L)
        A(f"s_barrier")
        if PROF:
            A(f"s_cmp_eq_u32 s{sCH}, 0")
            A(f"s_cbranch_scc0 {L}_ns")
            stamp(A, 2)
            A.label(f"{L}_ns")
        def mf1(buf, t, tt):
            xf = vXF + 8*buf; wf = vWF + 8*buf
            acc = vACC + (t*2+tt)*16
            W = f"v[{wf+4*t}:{wf+4*t+3}]"; X = f"v[{xf+4*tt}:{xf+4*tt+3}]"
            if mode == 1: A(f"v_mfma_f32_32x32x16_bf16 v[{acc}:{acc+15}], {X}, {W}, v[{acc}:{acc+15}]")
            else: A(f"v_mfma_f32_32x32x16_bf16 v[{acc}:{acc+15}], {W}, {X}, v[{acc}:{acc+15}]")
        def step(buf, nxt, waits, tail=None):
            xf = vXF + 8*(1-buf); wf = vWF + 8*(1-buf)
            if waits: A(f"s_waitcnt lgkmcnt(3)")
            mf1(buf, 0, 0)
            A(f"ds_read_b128 v[{xf}:{xf+3}], v{vAX+nxt}")
            A(f"ds_read_b64_tr_b16 v[{wf}:{wf+1}], v{vAW0} offset:{nxt*2048}")
            if waits: A(f"s_waitcnt lgkmcnt(4)")
            mf1(buf, 0, 1)
            A(f"ds_read_b64_tr_b16 v[{wf+2}:{wf+3}], v{vAW0} offset:{nxt*2048+512}")
            A(f"ds_read_b128 v[{xf+4}:{xf+7}], v{vAX+nxt} offset:4096")
            if waits: A(f"s_waitcnt lgkmcnt(4)")
            mf1(buf, 1, 0)
            A(f"ds_read_b64_tr_b16 v[{wf+4}:{wf+5}], v{vAW1} offset:{nxt*2048}")
            A(f"ds_read_b64_tr_b16 v[{wf+6}:{wf+7}], v{vAW1} offset:{nxt*2048+512}")
            if tail: tail()
            mf1(buf, 1, 1)
        def tail():
            A(f"s_add_u32 s{sStR}, s{sStR}, 1")
            A(f"s_cmp_eq_u32 s{sStR}, 3")
            A(f"s_cselect_b32 s{sDelta}, s56, s57")
            A(f"s_cselect_b32 s{sStR}, 0, s{sStR}")
            for r in [vAX, vAX+1, vAX+2, vAX+3, vAW0, vAW1]:
                A(f"v_add_u32 v{r}, s{sDelta}, v{r}")
            A(f"s_add_u32 s{sCH}, s{sCH}, 1")
            A(f"s_cmp_lt_u32 s{sCH}, 9")
        step(1, 0, False)
        step(0, 1, True)
        step(1, 2, True)
        step(0, 3, True, tail)
        A(f"s_waitcnt lgkmcnt(0)")
        A(f"s_cbranch_scc1 {L}")
        mfmas(mode, 1)
        A(f"s_nop 15")
        A(f"s_branch {name}_epi{mode}")

    A.label(f"{name}_epi0")
    stamp(A, 3)
    A(f"s_mov_b32 s{sT0}, 1.0")
    A(f"s_cmp_eq_u32 s{sTY}, 0")
    A(f"s_cselect_b32 s{sT0}, {f2u(QSCALE)}, s{sT0}")
    for q in range(8):
        d = vSO + q
        A(f"v_and_b32 v{vT}, 1, v{d}")
        A(f"v_xor_b32 v{d}, v{d}, v{vT}")
        A(f"v_mul_u32_u24 v{vT}, 768, v{vT}")
        A(f"v_sub_u32 v{vT+1+q}, 1024, v{vT}")
        A(f"v_add_u32 v{vT+1+q}, v{vT+1+q}, v{d}")
    k = 0
    for t in range(2):
        for tt in range(2):
            acc = vACC + (t*2+tt)*16
            for i in range(16): A(f"v_mul_f32 v{acc+i}, s{sT0}, v{acc+i}")
            p = vP + 8*(k % 4); k += 1
            for i in range(8): A(f"v_cvt_pk_bf16_f32 v{p+i}, v{acc+2*i}, v{acc+2*i+1}")
            for i in range(4):
                ad = (vSO + 4*t + i) if tt == 0 else (vT + 1 + 4*t + i)
                A(f"buffer_store_dwordx2 v[{p+2*i}:{p+2*i+1}], v{ad}, s[{sWS}:{sWS+3}], 0 offen" + STORE_MOD)
    A(f"s_branch {name}_fin")
    A.label(f"{name}_epi1")
    stamp(A, 3)
    k = 0
    for t in range(2):
        for tt in range(2):
            acc = vACC + (t*2+tt)*16
            p = vP + 8*(k % 4); k += 1
            for i in range(8): A(f"v_cvt_pk_bf16_f32 v{p+i}, v{acc+2*i}, v{acc+2*i+1}")
            A(f"buffer_store_dwordx4 v[{p}:{p+3}], v{vSO+t}, s[{sWS}:{sWS+3}], 0 offen offset:{tt*V_TILE}" + STORE_MOD)
            A(f"buffer_store_dwordx4 v[{p+4}:{p+7}], v{vSO+t}, s[{sWS}:{sWS+3}], 0 offen offset:{tt*V_TILE+608}" + STORE_MOD)
    for i in range(4): A(f"v_mov_b32 v{vT+i}, 0x3f803f80")
    for t in range(2):
        A(f"v_cmp_eq_u32 vcc, 1, v{vSO+2+t}")
        A(f"s_and_saveexec_b64 s[58:59], vcc")
        A(f"s_cbranch_execz {name}_no1_{t}")
        for tt in range(2):
            for g in range(2):
                A(f"buffer_store_dwordx4 v[{vT}:{vT+3}], v{vSO+4+t}, s[{sWS}:{sWS+3}], 0 offen offset:{tt*V_TILE+g*608}" + STORE_MOD)
        A.label(f"{name}_no1_{t}")
        A(f"s_mov_b64 exec, s[58:59]")
    A.label(f"{name}_fin")
    if PROF:
        stamp(A, 4)
        A("s_waitcnt vmcnt(0)")
        stamp(A, 5)
        stamps_out(A, 0, 6, sWS, sWV, vP)
    rt_end(A, 0, sWV, vP)
    A.label(f"{name}_end")
    A(f"s_endpgm")
    return khead(name) + A.finish(True) , kdesc(name, NV, 100)
```

```python
from asmlib import *
from common import *
import os

L_KM = 0
L_V = 65536
L_KX = 65536 + 64*1216
L_CNT = L_KX + 64*256
K2_LDS = L_CNT + 64
K2_THREADS = 640
NEG = f2u(-1.0e30)
NEGB = 0xF149
DBG = int(os.environ.get("DBG", "0"))
PF = int(os.environ.get("PF", "1"))
PRIO = int(os.environ.get("PRIO", "1"))
WOPF = int(os.environ.get("WOPF", "1"))
ZPAD = int(os.environ.get("ZPAD", "1"))

def gen_k2(name):
    A = Asm()
    sWS = 8
    sH, sQB, sWV, sTQ = 12, 13, 14, 15
    sT0, sT1, sT2, sT3 = 16, 17, 18, 19
    sCnt, sI = 20, 21
    sPass = 22
    sKMs, sVs, sKXs = 24, 25, 26
    vLane = 1
    vL16 = 2
    vKa, vVa, vXa = 3, 4, 5
    vKa0, vVa0, vXa0 = 6, 7, 8
    vG = 9
    vT = 10
    vQA, vQB = 20, 28
    vKF = 36
    vVF = 52
    vS = 68
    vP = 100
    vO = 108
    vMF, vMD = 124, 140
    vCM = vS + 16
    vM = 156
    vCA = 157
    vQo = 34
    vGA, vGC = 26, 27
    vVg, vXg = 158, 159
    NV = 160

    A(f"s_cmp_ge_u32 s2, 256")
    A(f"s_cbranch_scc1 {name}_end")
    stamp(A, 0)
    rt_begin(A)
    A(f"s_load_dwordx2 s[4:5], s[0:1], {ARG['ws']}")
    A(f"v_and_b32 v{vLane}, 63, v0")
    A(f"v_lshrrev_b32 v{vT}, 6, v0")
    A(f"s_and_b32 s{sT0}, s2, 7")
    A(f"v_readfirstlane_b32 s{sWV}, v{vT}")
    A(f"s_lshr_b32 s{sT1}, s2, 3")
    A(f"s_lshl_b32 s{sT0}, s{sT0}, 2")
    A(f"s_and_b32 s{sT2}, s{sT1}, 3")
    A(f"s_add_u32 s{sH}, s{sT0}, s{sT2}")
    A(f"s_lshr_b32 s{sQB}, s{sT1}, 2")
    A(f"v_lshlrev_b32 v{vL16}, 4, v{vLane}")
    A(f"s_lshl_b32 s{sT0}, s{sH}, 16")
    A(f"s_add_u32 s{sKMs}, s{sT0}, {WS_KM}")
    A(f"s_mul_i32 s{sT0}, s{sH}, {V_HEAD}")
    A(f"s_add_u32 s{sVs}, s{sT0}, {WS_V}")
    A(f"s_lshr_b32 s{sT0}, s{sH}, 1")
    A(f"s_lshl_b32 s{sT0}, s{sT0}, 14")
    A(f"s_add_u32 s{sKXs}, s{sT0}, {WS_KX}")
    A(f"v_mov_b32 v{vCA}, {L_CNT}")
    A(f"s_cmp_ge_u32 s{sWV}, 8")
    A(f"s_cbranch_scc1 {name}_loader")

    def dma_run(ldsbase, sreg, woff_sreg, stride, n_full, rem_limit_sreg=None, rem=None, tag=""):
        A(f"s_add_u32 s{sT3}, s{sreg}, s{woff_sreg}")
        A(f"s_add_u32 m0, s{woff_sreg}, {ldsbase}")
        for j in range(n_full):
            A(f"s_nop 0")
            A(f"buffer_load_dwordx4 v{vL16}, s[{sWS}:{sWS+3}], s{sT3} offen lds")
            if j < n_full - 1 or rem:
                A(f"s_add_u32 m0, m0, {stride}")
                A(f"s_add_u32 s{sT3}, s{sT3}, {stride}")
        if rem:
            lab = f"{name}_dg{dma_run.n}"; dma_run.n += 1
            A(f"s_cmp_lt_u32 s{rem_limit_sreg}, {rem}")
            A(f"s_cbranch_scc0 {lab}")
            A(f"buffer_load_dwordx4 v{vL16}, s[{sWS}:{sWS+3}], s{sT3} offen lds")
            A.label(lab)
    dma_run.n = 0
    def group(ldsbase, sreg, n, nw, widx_sreg, woff_sreg):
        dma_run(ldsbase, sreg, woff_sreg, nw*1024, n // nw, widx_sreg, n % nw)
    def poll(off, target, tag):
        A.label(f"{name}_poll{tag}")
        A(f"ds_read_b32 v{vT}, v{vCA} offset:{off}")
        A(f"s_waitcnt lgkmcnt(0)")
        A(f"v_readfirstlane_b32 s{sT0}, v{vT}")
        A(f"s_cmp_ge_u32 s{sT0}, {target}")
        A(f"s_cbranch_scc1 {name}_pollok{tag}")
        A(f"s_sleep 1")
        A(f"s_branch {name}_poll{tag}")
        A.label(f"{name}_pollok{tag}")
    def signal(off):
        A(f"v_mov_b32 v{vT}, 1")
        A(f"s_mov_b64 exec, 1")
        A(f"ds_add_u32 v{vCA}, v{vT} offset:{off}")
        A(f"s_mov_b64 exec, -1")

    A(f"s_lshl_b32 s{sTQ}, s{sQB}, 3")
    A(f"s_add_u32 s{sTQ}, s{sTQ}, s{sWV}")
    A(f"s_cmp_lg_u32 s{sWV}, 0")
    A(f"s_cbranch_scc1 {name}_noinit")
    A(f"v_mov_b32 v{vT+3}, 0")
    A(f"v_lshlrev_b32 v{vT+4}, 2, v{vLane}")
    A(f"v_add_u32 v{vT+4}, {L_CNT}, v{vT+4}")
    A(f"s_mov_b64 exec, 0xffff")
    A(f"ds_write_b32 v{vT+4}, v{vT+3}")
    A(f"s_mov_b64 exec, -1")
    A.label(f"{name}_noinit")
    A(f"v_and_b32 v{vT}, 31, v{vLane}")
    A(f"v_lshlrev_b32 v{vT+1}, 3, v{vT}")
    A(f"s_lshl_b32 s{sT0}, s{sH}, 16")
    A(f"s_lshl_b32 s{sT1}, s{sTQ}, 10")
    A(f"s_add_u32 s40, s{sT0}, s{sT1}")
    A(f"s_lshr_b32 s{sT2}, s{sH}, 1")
    A(f"s_lshl_b32 s{sT2}, s{sT2}, 14")
    A(f"s_and_b32 s{sT1}, s{sH}, 1")
    A(f"s_lshl_b32 s{sT1}, s{sT1}, 2")
    A(f"s_add_u32 s41, s{sT2}, s{sT1}")
    A(f"s_lshl_b32 s{sT1}, s{sTQ}, 8")
    A(f"s_add_u32 s41, s41, s{sT1}")
    A(f"s_add_u32 s41, s41, {WS_QX}")
    A("s_waitcnt lgkmcnt(0)")
    if PROF == 2: stamp(A, 1)
    srd(A, sWS, 4, 5, WS_SIZE)
    A(f"s_add_u32 s{sT0}, s40, {WS_QM + (32<<16)}")
    A(f"v_lshrrev_b32 v{vT+2}, 5, v{vLane}")
    A(f"v_lshl_add_u32 v{vQo}, v{vT+2}, 8, v{vT+1}")
    A(f"buffer_load_dwordx2 v[{vQB}:{vQB+1}], v{vQo}, s[{sWS}:{sWS+3}], s{sT0} offen")
    A(f"buffer_load_dwordx2 v[{vQB+2}:{vQB+3}], v{vQo}, s[{sWS}:{sWS+3}], s{sT0} offen offset:512")
    A(f"s_add_u32 s{sT0}, s41, {16*16384}")
    A(f"buffer_load_dword v{vQB+4}, v{vT+1}, s[{sWS}:{sWS+3}], s{sT0} offen")
    A(f"s_barrier")
    if PROF == 2: stamp(A, 2)
    A(f"v_lshrrev_b32 v{vT+1}, 5, v{vLane}")
    A(f"v_mov_b32 v{vT+2}, 4")
    A(f"v_subrev_u32 v{vT+3}, 20, v{vT}")
    A(f"v_cmp_gt_u32 vcc, 8, v{vT+3}")
    A(f"v_cndmask_b32 v{vT+2}, v{vT+2}, 0, vcc")
    A(f"v_cmp_gt_u32 vcc, 19, v{vT}")
    A(f"v_cndmask_b32 v{vT+2}, v{vT+2}, v{vT}, vcc")
    A(f"v_mul_u32_u24 v{vVg}, 304, v{vT+1}")
    A(f"v_lshl_add_u32 v{vVg}, v{vT+2}, 4, v{vVg}")
    A(f"v_add_u32 v{vVa0}, {L_V}, v{vVg}")
    if ZPAD:
        A(f"v_cmp_gt_u32 vcc, 19, v{vT}")
        A(f"v_mov_b32 v{vT+3}, 0x40000")
        A(f"v_cndmask_b32 v{vVa0}, v{vT+3}, v{vVa0}, vcc")
    A(f"v_lshlrev_b32 v{vKa0}, 3, v{vT}")
    A(f"v_lshl_add_u32 v{vKa0}, v{vT+1}, 8, v{vKa0}")
    A(f"s_and_b32 s{sT0}, s{sH}, 1")
    A(f"s_lshl_b32 s{sT0}, s{sT0}, 2")
    A(f"v_lshlrev_b32 v{vXg}, 3, v{vT}")
    A(f"v_add_u32 v{vXg}, s{sT0}, v{vXg}")
    A(f"v_add_u32 v{vXa0}, {L_KX}, v{vXg}")
    if ZPAD:
        A(f"v_cmp_gt_u32 vcc, 32, v{vLane}")
        A(f"v_cndmask_b32 v{vXa0}, v{vT+3}, v{vXa0}, vcc")
    A(f"v_mov_b32 v{vKF+5}, 0x3f80")
    A(f"v_mov_b32 v{vKF+8+5}, 0x3f80")
    A(f"v_lshlrev_b32 v{vT+4}, 2, v{vT+1}")
    A(f"v_sub_u32 v{vT+4}, v{vT}, v{vT+4}")
    A(f"s_mov_b32 s29, {NEG}")
    for r in range(16):
        c = 8*(r//4) + r % 4
        A(f"v_subrev_u32 v{vT+5}, {c}, v{vT+4}")
        A(f"v_ashrrev_i32 v{vT+5}, 31, v{vT+5}")
        A(f"v_and_b32 v{vMD+r}, s29, v{vT+5}")
        A(f"v_xor_b32 v{vMF+r}, s29, v{vMD+r}")
    ONEHI = 0x3f800000
    def qext_fix(q):
        A(f"v_cmp_gt_u32 vcc, 32, v{vLane}")
        A(f"v_mov_b32 v{vT+6}, {ONEHI}")
        A(f"v_cndmask_b32 v{q+4}, 0, v{q+4}, vcc")
        A(f"v_cndmask_b32 v{q+5}, 0, v{vT+6}, vcc")
    if PROF == 2: stamp(A, 3)
    A(f"s_waitcnt vmcnt(0)")
    if PROF == 2: stamp(A, 4)
    qext_fix(vQB)
    A(f"v_and_b32 v{vT}, 31, v{vLane}")
    A(f"v_lshlrev_b32 v{vT+2}, 2, v{vT}")
    A(f"s_lshl_b32 s{sT0}, s{sTQ}, 7")
    A(f"s_add_u32 s{sT0}, s{sT0}, {WS_G}")
    A(f"buffer_load_dword v{vG}, v{vT+2}, s[{sWS}:{sWS+3}], s{sT0} offen")
    def claim_item():
        lab = f"{name}_claim{claim_item.n}"; claim_item.n += 1
        A(f"v_mov_b32 v{vT}, 1")
        A(f"s_mov_b64 exec, 1")
        A(f"ds_add_rtn_u32 v{vT+1}, v{vCA}, v{vT} offset:16")
        A(f"s_mov_b64 exec, -1")
        A(f"s_waitcnt lgkmcnt(0)")
        A(f"v_readfirstlane_b32 s50, v{vT+1}")
        A(f"s_cmp_ge_u32 s50, 8")
        A(f"s_cbranch_scc1 {lab}")
        A(f"s_lshl_b32 s51, s{sQB}, 3")
        A(f"s_add_u32 s51, s51, s50")
        A(f"s_lshl_b32 s{sT0}, s{sH}, 16")
        A(f"s_lshl_b32 s{sT1}, s51, 10")
        A(f"s_add_u32 s{sT0}, s{sT0}, s{sT1}")
        A(f"buffer_load_dwordx2 v[{vQA}:{vQA+1}], v{vQo}, s[{sWS}:{sWS+3}], s{sT0} offen")
        A(f"buffer_load_dwordx2 v[{vQA+2}:{vQA+3}], v{vQo}, s[{sWS}:{sWS+3}], s{sT0} offen offset:512")
        A(f"s_lshl_b32 s{sT1}, s51, 8")
        A(f"s_add_u32 s{sT1}, s{sT1}, s52")
        A(f"v_and_b32 v{vT}, 31, v{vLane}")
        A(f"v_lshlrev_b32 v{vT+1}, 3, v{vT}")
        A(f"buffer_load_dword v{vQA+4}, v{vT+1}, s[{sWS}:{sWS+3}], s{sT1} offen")
        A(f"v_lshlrev_b32 v{vT+2}, 2, v{vT}")
        A(f"s_lshl_b32 s{sT0}, s51, 7")
        A(f"s_add_u32 s{sT0}, s{sT0}, {WS_G}")
        A(f"buffer_load_dword v{vGA}, v{vT+2}, s[{sWS}:{sWS+3}], s{sT0} offen")
        A.label(lab)
    claim_item.n = 0
    A(f"s_lshr_b32 s52, s{sH}, 1")
    A(f"s_lshl_b32 s52, s52, 14")
    A(f"s_and_b32 s{sT1}, s{sH}, 1")
    A(f"s_lshl_b32 s{sT1}, s{sT1}, 2")
    A(f"s_add_u32 s52, s52, s{sT1}")
    A(f"s_add_u32 s52, s52, {WS_QX}")
    def need_groups(n_imm=None, n_sreg=None, tag=""):
        tgt = f"{n_imm}" if n_imm is not None else f"s{n_sreg}"
        A(f"s_cmp_ge_u32 s42, {tgt}")
        A(f"s_cbranch_scc1 {name}_ng_ok{tag}")
        A.label(f"{name}_ng{tag}")
        A(f"ds_read_b64 v[{vT}:{vT+1}], v{vCA}")
        A(f"s_waitcnt lgkmcnt(0)")
        A(f"v_min_u32 v{vT}, v{vT}, v{vT+1}")
        A(f"v_readfirstlane_b32 s42, v{vT}")
        A(f"s_cmp_ge_u32 s42, {tgt}")
        A(f"s_cbranch_scc1 {name}_ng_ok{tag}")
        A(f"s_sleep 1")
        A(f"s_branch {name}_ng{tag}")
        A.label(f"{name}_ng_ok{tag}")
    A(f"s_mov_b32 s42, 0")

    def kreads(buf, off_slot):
        kf = vKF + 8*buf
        A(f"ds_read2st64_b64 v[{kf}:{kf+3}], v{vKa} offset0:{2*off_slot} offset1:{2*off_slot+1}")
        A(f"ds_read_b32 v{kf+4}, v{vXa} offset:{off_slot*256}")
    def vreads(buf, off_slot):
        vf = vVF + 8*buf
        A(f"ds_read_b128 v[{vf}:{vf+3}], v{vVa} offset:{off_slot*V_TILE}")
        A(f"ds_read_b128 v[{vf+4}:{vf+7}], v{vVa} offset:{off_slot*V_TILE+608}")
    def qk(sbuf, kbuf, q, cop):
        sd = vS + 16*sbuf; kf = vKF + 8*kbuf
        A(f"v_mfma_f32_32x32x16_bf16 v[{sd}:{sd+15}], v[{kf}:{kf+3}], v[{q}:{q+3}], {cop}")
        A(f"v_mfma_f32_32x32x8_bf16 v[{sd}:{sd+15}], v[{kf+4}:{kf+5}], v[{q+4}:{q+5}], v[{sd}:{sd+15}]")
    def setaddr(slot, sreg=False):
        if not sreg:
            A(f"v_add_u32 v{vKa}, {L_KM + slot*1024}, v{vKa0}")
            A(f"v_add_u32 v{vVa}, {slot*V_TILE}, v{vVa0}")
            A(f"v_add_u32 v{vXa}, {slot*256}, v{vXa0}")
        else:
            A(f"s_lshl_b32 s{sT0}, s{slot}, 10")
            A(f"v_add_u32 v{vKa}, s{sT0}, v{vKa0}")
            A(f"s_mul_i32 s{sT0}, s{slot}, {V_TILE}")
            A(f"v_add_u32 v{vVa}, s{sT0}, v{vVa0}")
            A(f"s_lshl_b32 s{sT0}, s{slot}, 8")
            A(f"v_add_u32 v{vXa}, s{sT0}, v{vXa0}")
    def adv(n):
        A(f"v_add_u32 v{vKa}, {n*1024}, v{vKa}")
        A(f"v_add_u32 v{vVa}, {n*V_TILE}, v{vVa}")
        A(f"v_add_u32 v{vXa}, {n*256}, v{vXa}")
    def maxtile(sbuf):
        sd = vS + 16*sbuf
        for i in range(8):
            A(f"v_max3_f32 v{vM}, v{sd+2*i}, v{sd+2*i+1}, v{vM}")
    def finish_max(q):
        A(f"v_mov_b32 v{vT}, v{vM}")
        A(f"v_permlane32_swap_b32 v{vM}, v{vT}")
        A(f"v_max_f32 v{vM}, v{vM}, v{vT}")
        A(f"v_sub_f32 v{vT}, 0, v{vM}")
        A(f"v_cvt_pk_bf16_f32 v{vT}, v{vT}, 1.0")
        A(f"v_cmp_gt_u32 vcc, 32, v{vLane}")
        A(f"v_cndmask_b32 v{q+5}, 0, v{vT}, vcc")
    def clear_max(q):
        A(f"v_mov_b32 v{vT}, {ONEHI}")
        A(f"v_cmp_gt_u32 vcc, 32, v{vLane}")
        A(f"v_cndmask_b32 v{q+5}, 0, v{vT}, vcc")
    def pv(g, vbuf):
        vf = vVF + 8*vbuf + 4*g
        A(f"v_mfma_f32_32x32x16_bf16 v[{vO}:{vO+15}], v[{vf}:{vf+3}], v[{vP+4*g}:{vP+4*g+3}], v[{vO}:{vO+15}]")
    def check_l(ok_label):
        A(f"s_nop 12")
        A(f"v_mov_b32 v{vT}, {f2u(2.0**100)}")
        A(f"v_cmp_nlt_f32 vcc, v{vO+10}, v{vT}")
        A(f"s_bfm_b64 s[32:33], 32, 0")
        A(f"s_and_b64 vcc, vcc, s[32:33]")
        A(f"s_cbranch_scc0 {ok_label}")
    def epilogue(br, tq, g):
        A(f"v_mov_b32 v{vT}, v{vO+10}")
        A(f"v_mov_b32 v{vT+1}, v{vO+10}")
        A(f"v_permlane32_swap_b32 v{vT}, v{vT+1}")
        A(f"v_rcp_f32 v{vT+2}, v{vT}")
        if br == 0:
            A(f"v_mul_f32 v{vT+2}, v{vT+2}, v{g}")
        else:
            A(f"v_sub_f32 v{vT+3}, 1.0, v{g}")
            A(f"v_mul_f32 v{vT+2}, v{vT+2}, v{vT+3}")
        for i in range(10): A(f"v_mul_f32 v{vO+i}, v{vO+i}, v{vT+2}")
        for i in range(5): A(f"v_cvt_pk_bf16_f32 v{vP+i}, v{vO+2*i}, v{vO+2*i+1}")
        A(f"s_lshl_b32 s{sT0}, s{tq}, 5")
        A(f"s_add_u32 s{sT0}, s{sT0}, s{sH}")
        A(f"s_lshl_b32 s{sT1}, s{sT0}, 10")
        A(f"s_add_u32 s{sT1}, s{sT1}, {WS_OM + br*64*32*1024}")
        A(f"buffer_store_dwordx4 v[{vP}:{vP+3}], v{vL16}, s[{sWS}:{sWS+3}], s{sT1} offen" + STORE_MOD)
        A(f"s_lshl_b32 s{sT1}, s{sT0}, 7")
        A(f"s_add_u32 s{sT1}, s{sT1}, {WS_OX + br*64*32*128}")
        A(f"v_lshlrev_b32 v{vT+4}, 2, v{vLane}")
        A(f"s_bfm_b64 exec, 32, 0")
        A(f"buffer_store_dword v{vP+4}, v{vT+4}, s[{sWS}:{sWS+3}], s{sT1} offen" + STORE_MOD)
        A(f"s_mov_b64 exec, -1")
    def tile_step(sb, nb, q, cnext, koff, voff, do_qk=True, do_k=True, do_v=True, first=False, pre_qk=None):
        sd = vS + 16*sb
        def e(lo, hi):
            for i in range(lo, hi): A(f"v_exp_f32 v{sd+i}, v{sd+i}")
        def c(lo, hi):
            for i in range(lo, hi): A(f"v_cvt_pk_bf16_f32 v{vP+i}, v{sd+2*i}, v{sd+2*i+1}")
        kf = vKF + 8*nb; sn = vS + 16*nb
        e(0, 2)
        if not first: pv(1, nb)
        if pre_qk: pre_qk(nb)
        e(2, 6)
        if do_qk:
            A(f"s_waitcnt lgkmcnt(2)")
            A(f"v_mfma_f32_32x32x16_bf16 v[{sn}:{sn+15}], v[{kf}:{kf+3}], v[{q}:{q+3}], {cnext}")
        if do_k: kreads(sb, koff)
        e(6, 8); c(0, 4)
        if do_qk:
            A(f"v_mfma_f32_32x32x8_bf16 v[{sn}:{sn+15}], v[{kf+4}:{kf+5}], v[{q+4}:{q+5}], v[{sn}:{sn+15}]")
        if do_v: vreads(nb, voff)
        e(8, 12)
        n_after = (2 if do_v else 0) + (2 if do_k else 0)
        A(f"s_waitcnt lgkmcnt({n_after})")
        pv(0, sb)
        e(12, 16); c(4, 8)

    need_groups(n_imm=1, tag="0")
    stamp(A, 1 if PROF != 2 else 5)
    A(f"s_mov_b32 s{sPass}, 0")
    setaddr(0)
    kreads(0, 0)
    A(f"v_mov_b32 v{vM}, s29")
    A(f"s_waitcnt lgkmcnt(0)")
    qk(0, 0, vQB, "0")
    kreads(0, 0)
    kreads(1, 1)
    vreads(0, 0)
    for r in range(16): A(f"v_mov_b32 v{vO+r}, 0")
    for r in range(4): A(f"v_mov_b32 v{vP+4+r}, 0")
    for r in range(8): A(f"v_mov_b32 v{vVF+8+r}, 0")
    maxtile(0)
    finish_max(vQB)
    A(f"s_waitcnt lgkmcnt(4)")
    qk(0, 0, vQB, "0")
    A(f"s_mov_b32 s{sCnt}, 0")
    A(f"s_lshr_b32 s38, s{sWV}, 2")
    A(f"s_nop 7")
    UN = 4
    def prio_toggle(tag):
        if not PRIO: return
        A(f"s_xor_b32 s38, s38, 1")
        A(f"s_cbranch_scc1 {name}_p1{tag}")
        A(f"s_setprio 0")
        A(f"s_branch {name}_p2{tag}")
        A.label(f"{name}_p1{tag}")
        A(f"s_setprio 1")
        A.label(f"{name}_p2{tag}")
    A.label(f"{name}_bloop0")
    A(f"s_lshl_b32 s{sT1}, s{sCnt}, 2")
    A(f"s_add_u32 s{sT1}, s{sT1}, 13")
    A(f"s_lshr_b32 s{sT1}, s{sT1}, 3")
    need_groups(n_sreg=sT1, tag="l")
    prio_toggle("a")
    for u in range(UN):
        tile_step(u % 2, (u+1) % 2, vQB, "0", u + 2, u + 1)
    adv(UN)
    A(f"s_add_u32 s{sCnt}, s{sCnt}, 1")
    A(f"s_cmp_lt_u32 s{sCnt}, 4")
    A(f"s_cbranch_scc1 {name}_bloop0")
    signal(8)
    need_groups(n_imm=8, tag="m")
    A.label(f"{name}_bloop")
    prio_toggle("b")
    for u in range(UN):
        tile_step(u % 2, (u+1) % 2, vQB, "0", u + 2, u + 1)
    adv(UN)
    A(f"s_add_u32 s{sCnt}, s{sCnt}, 1")
    A(f"s_cmp_lt_u32 s{sCnt}, 16")
    A(f"s_cbranch_scc1 {name}_bloop")
    A(f"s_nop 1")
    pv(1, 1)
    if PROF != 2: stamp(A, 2)
    A(f"s_waitcnt vmcnt(0)")
    claim_item()
    check_l(f"{name}_bfin")
    A(f"s_add_u32 s43, s{sKMs}, {32<<16}")
    A(f"s_add_u32 s44, s{sVs}, {32*V_HEAD}")
    A(f"s_add_u32 s45, s{sKXs}, {16*16384}")
    clear_max(vQB)
    A(f"v_mov_b32 v{vM}, s29")
    def gk(tile_sreg):
        A(f"s_lshl_b32 s{sT0}, s{tile_sreg}, 10")
        A(f"s_add_u32 s{sT0}, s{sT0}, s43")
        A(f"buffer_load_dwordx2 v[{vKF}:{vKF+1}], v{vQo}, s[{sWS}:{sWS+3}], s{sT0} offen")
        A(f"buffer_load_dwordx2 v[{vKF+2}:{vKF+3}], v{vQo}, s[{sWS}:{sWS+3}], s{sT0} offen offset:512")
        A(f"s_lshl_b32 s{sT0}, s{tile_sreg}, 8")
        A(f"s_add_u32 s{sT0}, s{sT0}, s45")
        A(f"buffer_load_dword v{vKF+4}, v{vXg}, s[{sWS}:{sWS+3}], s{sT0} offen")
    A(f"s_mov_b32 s{sCnt}, 0")
    A.label(f"{name}_bx1")
    gk(sCnt)
    A(f"s_waitcnt vmcnt(0)")
    qk(0, 0, vQB, "0")
    maxtile(0)
    A(f"s_add_u32 s{sCnt}, s{sCnt}, 1")
    A(f"s_cmp_lt_u32 s{sCnt}, 64")
    A(f"s_cbranch_scc1 {name}_bx1")
    finish_max(vQB)
    for r in range(16): A(f"v_mov_b32 v{vO+r}, 0")
    A(f"s_mov_b32 s{sCnt}, 0")
    A.label(f"{name}_bx2")
    gk(sCnt)
    A(f"s_mul_i32 s{sT0}, s{sCnt}, {V_TILE}")
    A(f"s_add_u32 s{sT0}, s{sT0}, s44")
    A(f"buffer_load_dwordx4 v[{vVF}:{vVF+3}], v{vVg}, s[{sWS}:{sWS+3}], s{sT0} offen")
    A(f"buffer_load_dwordx4 v[{vVF+4}:{vVF+7}], v{vVg}, s[{sWS}:{sWS+3}], s{sT0} offen offset:608")
    A(f"s_waitcnt vmcnt(0)")
    qk(0, 0, vQB, "0")
    for i in range(16): A(f"v_exp_f32 v{vS+i}, v{vS+i}")
    for i in range(8): A(f"v_cvt_pk_bf16_f32 v{vP+i}, v{vS+2*i}, v{vS+2*i+1}")
    pv(0, 0); pv(1, 0)
    A(f"s_add_u32 s{sCnt}, s{sCnt}, 1")
    A(f"s_cmp_lt_u32 s{sCnt}, 64")
    A(f"s_cbranch_scc1 {name}_bx2")
    A(f"s_nop 12")
    A.label(f"{name}_bfin")
    epilogue(1, sTQ, vG)
    if PROF != 2: stamp(A, 3)
    A(f"s_cmp_ge_u32 s50, 8")
    A(f"s_cbranch_scc1 {name}_done")
    poll(12, 2, "a")

    A.label(f"{name}_aitem")
    A(f"s_mov_b32 s{sTQ}, s51")
    A(f"s_mov_b32 s53, s50")
    A(f"s_waitcnt vmcnt(2)")
    A(f"v_mov_b32 v{vGC}, v{vGA}")
    qext_fix(vQA)
    def bias_for(i, kbuf):
        A(f"s_cmp_ge_u32 s{sTQ}, {8 - i}")
        A(f"s_cselect_b32 s{sT0}, s36, s37")
        A(f"v_mov_b32 v{vKF + 8*kbuf + 5}, s{sT0}")
    A(f"s_mov_b32 s36, 0x3f80")
    A(f"s_mov_b32 s37, {(NEGB << 16) | 0x3f80}")
    setaddr(53, True)
    A(f"v_mov_b32 v{vM}, s29")
    A(f"s_cmp_eq_u32 s{sTQ}, 0")
    A(f"s_cbranch_scc1 {name}_aref0")
    kreads(0, 7)
    A(f"s_waitcnt lgkmcnt(0)")
    qk(0, 0, vQA, "0")
    A(f"s_branch {name}_aref1")
    A.label(f"{name}_aref0")
    kreads(0, 8)
    A(f"s_waitcnt lgkmcnt(0)")
    qk(0, 0, vQA, f"v[{vMD}:{vMD+15}]")
    A.label(f"{name}_aref1")
    kreads(0, 0)
    kreads(1, 1)
    vreads(0, 0)
    for r in range(16): A(f"v_mov_b32 v{vO+r}, 0")
    maxtile(0)
    finish_max(vQA)
    bias_for(0, 0)
    A(f"s_waitcnt lgkmcnt(4)")
    qk(0, 0, vQA, f"v[{vMF}:{vMF+15}]")
    A(f"s_nop 7")
    for i in range(9):
        pre = (lambda nb, i=i: bias_for(i+1, nb)) if i < 7 else ((lambda nb: A(f"v_mov_b32 v{vKF + 8*nb + 5}, s36")) if i == 7 else None)
        tile_step(i % 2, (i+1) % 2, vQA, (f"v[{vMD}:{vMD+15}]" if i == 7 else "0"), i + 2, i + 1,
                  do_qk=(i < 8), do_k=(i < 7), do_v=(i < 8), first=(i == 0), pre_qk=pre)
    A(f"s_nop 1")
    pv(1, 0)
    A(f"v_mov_b32 v{vKF+5}, s36")
    A(f"v_mov_b32 v{vKF+8+5}, s36")
    check_l(f"{name}_aepi")
    clear_max(vQA)
    A(f"s_sub_u32 s{sI}, 8, s{sTQ}")
    A(f"s_cmp_ge_u32 s{sTQ}, 8")
    A(f"s_cselect_b32 s{sI}, 0, s{sI}")
    A(f"s_mov_b32 s30, s{sI}")
    A(f"s_mov_b32 s31, s53")
    def set_cm_for(i_sreg):
        lab = f"{name}_cm{set_cm_for.n}"; set_cm_for.n += 1
        A(f"s_cmp_eq_u32 s{i_sreg}, 8")
        A(f"s_cbranch_scc1 {lab}_d")
        A(f"s_cmp_eq_u32 s{i_sreg}, 0")
        A(f"s_cbranch_scc1 {lab}_f")
        for r in range(16): A(f"v_mov_b32 v{vCM+r}, 0")
        A(f"s_branch {lab}_e")
        A.label(f"{lab}_d")
        for r in range(16): A(f"v_mov_b32 v{vCM+r}, v{vMD+r}")
        A(f"s_branch {lab}_e")
        A.label(f"{lab}_f")
        for r in range(16): A(f"v_mov_b32 v{vCM+r}, v{vMF+r}")
        A.label(f"{lab}_e")
    set_cm_for.n = 0
    A(f"v_mov_b32 v{vM}, s29")
    A.label(f"{name}_a1")
    A(f"s_add_u32 s{sT1}, s31, s{sI}")
    setaddr(sT1, True)
    kreads(0, 0)
    set_cm_for(sI)
    A(f"s_waitcnt lgkmcnt(0)")
    qk(0, 0, vQA, f"v[{vCM}:{vCM+15}]")
    maxtile(0)
    A(f"s_add_u32 s{sI}, s{sI}, 1")
    A(f"s_cmp_le_u32 s{sI}, 8")
    A(f"s_cbranch_scc1 {name}_a1")
    finish_max(vQA)
    for r in range(16): A(f"v_mov_b32 v{vO+r}, 0")
    A(f"s_mov_b32 s{sI}, s30")
    A.label(f"{name}_a2")
    A(f"s_add_u32 s{sT1}, s31, s{sI}")
    setaddr(sT1, True)
    kreads(0, 0)
    vreads(0, 0)
    set_cm_for(sI)
    A(f"s_waitcnt lgkmcnt(2)")
    qk(0, 0, vQA, f"v[{vCM}:{vCM+15}]")
    for i in range(16): A(f"v_exp_f32 v{vS+i}, v{vS+i}")
    for i in range(8): A(f"v_cvt_pk_bf16_f32 v{vP+i}, v{vS+2*i}, v{vS+2*i+1}")
    A(f"s_waitcnt lgkmcnt(0)")
    pv(0, 0); pv(1, 0)
    A(f"s_add_u32 s{sI}, s{sI}, 1")
    A(f"s_cmp_le_u32 s{sI}, 8")
    A(f"s_cbranch_scc1 {name}_a2")
    A(f"s_nop 12")
    A.label(f"{name}_aepi")
    claim_item()
    epilogue(0, sTQ, vGC)
    A(f"s_cmp_lt_u32 s50, 8")
    A(f"s_cbranch_scc1 {name}_aitem")
    A.label(f"{name}_done")
    if PROF:
        stamp(A, 5 if PROF != 2 else 6)
        stamps_out(A, 1, 7, sWS, sWV, vS)
    rt_end(A, 1, sWV, vS)
    A(f"s_endpgm")

    A.label(f"{name}_loader")
    A(f"s_sub_u32 s35, s{sWV}, 8")
    A(f"s_lshl_b32 s34, s35, 10")
    A(f"s_add_u32 s43, s{sKMs}, {32<<16}")
    A(f"s_add_u32 s44, s{sVs}, {32*V_HEAD}")
    A(f"s_add_u32 s45, s{sKXs}, {16*16384}")
    A(f"s_lshl_b32 s46, s35, 2")
    A(f"v_add_u32 v{vT+8}, s46, v{vCA}")
    A(f"s_mov_b32 s47, -1")
    A(f"s_cmp_eq_u32 s35, 1")
    A(f"s_cselect_b32 s47, 0, s47")
    A("s_waitcnt lgkmcnt(0)")
    srd(A, sWS, 4, 5, WS_SIZE)
    def ld(lds_sreg, src_sreg, off):
        A(f"s_add_u32 m0, s{lds_sreg}, {off}")
        A(f"s_add_u32 s{sT3}, s{src_sreg}, {off}")
        A(f"buffer_load_dwordx4 v{vL16}, s[{sWS}:{sWS+3}], s{sT3} offen lds")
    A(f"s_mov_b32 s{sCnt}, 0")
    A.label(f"{name}_lgrp")
    A(f"s_add_u32 s{sT0}, s{sQB}, s{sCnt}")
    A(f"s_and_b32 s{sT0}, s{sT0}, 7")
    A(f"s_lshl_b32 s48, s{sT0}, 13")
    A(f"s_add_u32 s48, s48, s43")
    A(f"s_add_u32 s48, s48, s34")
    A(f"s_lshl_b32 s49, s{sCnt}, 13")
    A(f"s_add_u32 s49, s49, s34")
    for j in range(4): ld(49, 48, j*2048)
    A(f"s_lshl_b32 s48, s{sT0}, 11")
    A(f"s_add_u32 s48, s48, s45")
    A(f"s_add_u32 s48, s48, s34")
    A(f"s_lshl_b32 s49, s{sCnt}, 11")
    A(f"s_add_u32 s49, s49, s34")
    A(f"s_add_u32 s49, s49, {L_KX}")
    ld(49, 48, 0)
    A(f"s_mul_i32 s48, s{sT0}, {8*V_TILE}")
    A(f"s_add_u32 s48, s48, s44")
    A(f"s_add_u32 s48, s48, s34")
    A(f"s_mul_i32 s49, s{sCnt}, {8*V_TILE}")
    A(f"s_add_u32 s49, s49, s34")
    A(f"s_add_u32 s49, s49, {L_V}")
    for j in range(4): ld(49, 48, j*2048)
    A(f"s_mov_b32 exec_hi, s47")
    ld(49, 48, 4*2048)
    A(f"s_mov_b32 exec_hi, -1")
    A(f"s_cmp_eq_u32 s{sCnt}, 0")
    A(f"s_cbranch_scc0 {name}_lg1")
    A(f"s_barrier")
    A(f"s_branch {name}_lg2")
    A.label(f"{name}_lg1")
    A(f"s_waitcnt vmcnt(10)")
    A(f"v_mov_b32 v{vT}, 1")
    A(f"s_mov_b64 exec, 1")
    A(f"ds_add_u32 v{vT+8}, v{vT}")
    A(f"s_mov_b64 exec, -1")
    A.label(f"{name}_lg2")
    A(f"s_add_u32 s{sCnt}, s{sCnt}, 1")
    A(f"s_cmp_lt_u32 s{sCnt}, 8")
    A(f"s_cbranch_scc1 {name}_lgrp")
    A(f"s_waitcnt vmcnt(0)")
    A(f"v_mov_b32 v{vT}, 1")
    A(f"s_mov_b64 exec, 1")
    A(f"ds_add_u32 v{vT+8}, v{vT}")
    A(f"s_mov_b64 exec, -1")
    poll(8, 8, "ld")
    def lgroup(ldsbase, sreg, n):
        lab = f"{name}_lg_{lgroup.n}"; lgroup.n += 1
        A(f"s_add_u32 s{sT3}, s{sreg}, s34")
        A(f"s_add_u32 s{sT2}, s34, {ldsbase}")
        A(f"s_mov_b32 s{sCnt}, s35")
        A.label(lab)
        A(f"s_mov_b32 m0, s{sT2}")
        A(f"s_add_u32 s{sT2}, s{sT2}, 2048")
        A(f"buffer_load_dwordx4 v{vL16}, s[{sWS}:{sWS+3}], s{sT3} offen lds")
        A(f"s_add_u32 s{sT3}, s{sT3}, 2048")
        A(f"s_add_u32 s{sCnt}, s{sCnt}, 2")
        A(f"s_cmp_lt_u32 s{sCnt}, {n}")
        A(f"s_cbranch_scc1 {lab}")
    lgroup.n = 0
    A(f"s_lshl_b32 s{sI}, s{sQB}, 3")
    A(f"s_sub_u32 s{sI}, s{sI}, 8")
    A(f"s_lshl_b32 s{sT0}, s{sI}, 10")
    A(f"s_add_u32 s28, s{sKMs}, s{sT0}")
    lgroup(L_KM, 28, 16)
    A(f"s_lshl_b32 s{sT0}, s{sI}, 8")
    A(f"s_add_u32 s28, s{sKXs}, s{sT0}")
    lgroup(L_KX, 28, 4)
    A(f"s_mul_i32 s{sT0}, s{sI}, {V_TILE}")
    A(f"s_add_u32 s28, s{sVs}, s{sT0}")
    lgroup(L_V, 28, 19)
    A(f"s_waitcnt vmcnt(0)")
    signal(12)
    if WOPF:
        A(f"s_lshl_b32 s{sT0}, s35, 1")
        A(f"s_mul_i32 s{sT0}, s{sT0}, 12")
        A(f"s_add_u32 s{sT0}, s{sT0}, 16")
        A(f"s_load_dwordx2 s[48:49], s[0:1], s{sT0}")
        A(f"s_lshr_b32 s{sT1}, s2, 3")
        A(f"s_mul_i32 s{sT1}, s{sT1}, {D*D*2 // 32}")
        A(f"v_lshlrev_b32 v{vT+1}, 6, v{vLane}")
        A(f"s_waitcnt lgkmcnt(0)")
        A(f"s_mov_b32 s52, s48")
        A(f"s_and_b32 s53, s49, 0xffff")
        A(f"s_mov_b32 s54, {D*D*2}")
        A(f"s_mov_b32 s55, 0x00020000")
        for j in range(6):
            A(f"buffer_load_dword v{vT+2}, v{vT+1}, s[52:55], s{sT1} offen")
            if j < 5: A(f"s_add_u32 s{sT1}, s{sT1}, 4096")
        A(f"s_waitcnt vmcnt(0)")
    A(f"s_waitcnt lgkmcnt(0)")
    A.label(f"{name}_end")
    A(f"s_endpgm")
    return khead(name) + A.finish(True), kdesc(name, NV, 100)
```

```python
from asmlib import *
from common import *
import os

L_KM = 0
L_V = 65536
L_KX = 65536 + 64*1216
L_CNT = L_KX + 64*256
K2_LDS = L_CNT + 64
K2_THREADS = 640
NEG = f2u(-1.0e30)
NEGB = 0xF149
DBG = int(os.environ.get("DBG", "0"))
PF = int(os.environ.get("PF", "1"))
PRIO = int(os.environ.get("PRIO", "1"))
PDUTY = int(os.environ.get("PDUTY", "4"))
WOPF = int(os.environ.get("WOPF", "1"))
ZPAD = int(os.environ.get("ZPAD", "1"))

def gen_k2(name):
    A = Asm()
    sWS = 8
    sH, sQB, sWV, sTQ = 12, 13, 14, 15
    sT0, sT1, sT2, sT3 = 16, 17, 18, 19
    sCnt, sI = 20, 21
    sPass = 22
    sKMs, sVs, sKXs = 24, 25, 26
    vLane = 1
    vL16 = 2
    vKa, vVa, vXa = 3, 4, 5
    vKa0, vVa0, vXa0 = 6, 7, 8
    vG = 9
    vT = 10
    vQA, vQB = 20, 28
    vKF = 36
    vVF = 52
    vS = 68
    vP = 100
    vO = 108
    vMF, vMD = 124, 140
    vCM = vS + 16
    vM = 156
    vCA = 157
    vQo = 34
    vGA, vGC = 26, 27
    vVg, vXg = 158, 159
    NV = 160

    A(f"s_cmp_ge_u32 s2, 256")
    A(f"s_cbranch_scc1 {name}_end")
    stamp(A, 0)
    rt_begin(A)
    A(f"s_load_dwordx2 s[4:5], s[0:1], {ARG['ws']}")
    A(f"v_and_b32 v{vLane}, 63, v0")
    A(f"v_lshrrev_b32 v{vT}, 6, v0")
    A(f"s_and_b32 s{sT0}, s2, 7")
    A(f"v_readfirstlane_b32 s{sWV}, v{vT}")
    A(f"s_lshr_b32 s{sT1}, s2, 3")
    A(f"s_lshl_b32 s{sT0}, s{sT0}, 2")
    A(f"s_and_b32 s{sT2}, s{sT1}, 3")
    A(f"s_add_u32 s{sH}, s{sT0}, s{sT2}")
    A(f"s_lshr_b32 s{sQB}, s{sT1}, 2")
    A(f"v_lshlrev_b32 v{vL16}, 4, v{vLane}")
    A(f"s_lshl_b32 s{sT0}, s{sH}, 16")
    A(f"s_add_u32 s{sKMs}, s{sT0}, {WS_KM}")
    A(f"s_mul_i32 s{sT0}, s{sH}, {V_HEAD}")
    A(f"s_add_u32 s{sVs}, s{sT0}, {WS_V}")
    A(f"s_lshr_b32 s{sT0}, s{sH}, 1")
    A(f"s_lshl_b32 s{sT0}, s{sT0}, 14")
    A(f"s_add_u32 s{sKXs}, s{sT0}, {WS_KX}")
    A(f"v_mov_b32 v{vCA}, {L_CNT}")
    A(f"s_cmp_ge_u32 s{sWV}, 8")
    A(f"s_cbranch_scc1 {name}_loader")

    def dma_run(ldsbase, sreg, woff_sreg, stride, n_full, rem_limit_sreg=None, rem=None, tag=""):
        A(f"s_add_u32 s{sT3}, s{sreg}, s{woff_sreg}")
        A(f"s_add_u32 m0, s{woff_sreg}, {ldsbase}")
        for j in range(n_full):
            A(f"s_nop 0")
            A(f"buffer_load_dwordx4 v{vL16}, s[{sWS}:{sWS+3}], s{sT3} offen lds")
            if j < n_full - 1 or rem:
                A(f"s_add_u32 m0, m0, {stride}")
                A(f"s_add_u32 s{sT3}, s{sT3}, {stride}")
        if rem:
            lab = f"{name}_dg{dma_run.n}"; dma_run.n += 1
            A(f"s_cmp_lt_u32 s{rem_limit_sreg}, {rem}")
            A(f"s_cbranch_scc0 {lab}")
            A(f"buffer_load_dwordx4 v{vL16}, s[{sWS}:{sWS+3}], s{sT3} offen lds")
            A.label(lab)
    dma_run.n = 0
    def group(ldsbase, sreg, n, nw, widx_sreg, woff_sreg):
        dma_run(ldsbase, sreg, woff_sreg, nw*1024, n // nw, widx_sreg, n % nw)
    def poll(off, target, tag):
        A.label(f"{name}_poll{tag}")
        A(f"ds_read_b32 v{vT}, v{vCA} offset:{off}")
        A(f"s_waitcnt lgkmcnt(0)")
        A(f"v_readfirstlane_b32 s{sT0}, v{vT}")
        A(f"s_cmp_ge_u32 s{sT0}, {target}")
        A(f"s_cbranch_scc1 {name}_pollok{tag}")
        A(f"s_sleep 1")
        A(f"s_branch {name}_poll{tag}")
        A.label(f"{name}_pollok{tag}")
    def signal(off):
        A(f"v_mov_b32 v{vT}, 1")
        A(f"s_mov_b64 exec, 1")
        A(f"ds_add_u32 v{vCA}, v{vT} offset:{off}")
        A(f"s_mov_b64 exec, -1")

    A(f"s_lshl_b32 s{sTQ}, s{sQB}, 3")
    A(f"s_add_u32 s{sTQ}, s{sTQ}, s{sWV}")
    A(f"s_cmp_lg_u32 s{sWV}, 0")
    A(f"s_cbranch_scc1 {name}_noinit")
    A(f"v_mov_b32 v{vT+3}, 0")
    A(f"v_lshlrev_b32 v{vT+4}, 2, v{vLane}")
    A(f"v_add_u32 v{vT+4}, {L_CNT}, v{vT+4}")
    A(f"s_mov_b64 exec, 0xffff")
    A(f"ds_write_b32 v{vT+4}, v{vT+3}")
    A(f"s_mov_b64 exec, -1")
    A.label(f"{name}_noinit")
    A(f"v_and_b32 v{vT}, 31, v{vLane}")
    A(f"v_lshlrev_b32 v{vT+1}, 3, v{vT}")
    A(f"s_lshl_b32 s{sT0}, s{sH}, 16")
    A(f"s_lshl_b32 s{sT1}, s{sTQ}, 10")
    A(f"s_add_u32 s40, s{sT0}, s{sT1}")
    A(f"s_lshr_b32 s{sT2}, s{sH}, 1")
    A(f"s_lshl_b32 s{sT2}, s{sT2}, 14")
    A(f"s_and_b32 s{sT1}, s{sH}, 1")
    A(f"s_lshl_b32 s{sT1}, s{sT1}, 2")
    A(f"s_add_u32 s41, s{sT2}, s{sT1}")
    A(f"s_lshl_b32 s{sT1}, s{sTQ}, 8")
    A(f"s_add_u32 s41, s41, s{sT1}")
    A(f"s_add_u32 s41, s41, {WS_QX}")
    A("s_waitcnt lgkmcnt(0)")
    if PROF == 2: stamp(A, 1)
    srd(A, sWS, 4, 5, WS_SIZE)
    A(f"s_add_u32 s{sT0}, s40, {WS_QM + (32<<16)}")
    A(f"v_lshrrev_b32 v{vT+2}, 5, v{vLane}")
    A(f"v_lshl_add_u32 v{vQo}, v{vT+2}, 8, v{vT+1}")
    A(f"buffer_load_dwordx2 v[{vQB}:{vQB+1}], v{vQo}, s[{sWS}:{sWS+3}], s{sT0} offen")
    A(f"buffer_load_dwordx2 v[{vQB+2}:{vQB+3}], v{vQo}, s[{sWS}:{sWS+3}], s{sT0} offen offset:512")
    A(f"s_add_u32 s{sT0}, s41, {16*16384}")
    A(f"buffer_load_dword v{vQB+4}, v{vT+1}, s[{sWS}:{sWS+3}], s{sT0} offen")
    A(f"s_barrier")
    if PROF == 2: stamp(A, 2)
    A(f"v_lshrrev_b32 v{vT+1}, 5, v{vLane}")
    A(f"v_mov_b32 v{vT+2}, 4")
    A(f"v_subrev_u32 v{vT+3}, 20, v{vT}")
    A(f"v_cmp_gt_u32 vcc, 8, v{vT+3}")
    A(f"v_cndmask_b32 v{vT+2}, v{vT+2}, 0, vcc")
    A(f"v_cmp_gt_u32 vcc, 19, v{vT}")
    A(f"v_cndmask_b32 v{vT+2}, v{vT+2}, v{vT}, vcc")
    A(f"v_mul_u32_u24 v{vVg}, 304, v{vT+1}")
    A(f"v_lshl_add_u32 v{vVg}, v{vT+2}, 4, v{vVg}")
    A(f"v_add_u32 v{vVa0}, {L_V}, v{vVg}")
    if ZPAD:
        A(f"v_cmp_gt_u32 vcc, 19, v{vT}")
        A(f"v_mov_b32 v{vT+3}, 0x40000")
        A(f"v_cndmask_b32 v{vVa0}, v{vT+3}, v{vVa0}, vcc")
    A(f"v_lshlrev_b32 v{vKa0}, 3, v{vT}")
    A(f"v_lshl_add_u32 v{vKa0}, v{vT+1}, 8, v{vKa0}")
    A(f"s_and_b32 s{sT0}, s{sH}, 1")
    A(f"s_lshl_b32 s{sT0}, s{sT0}, 2")
    A(f"v_lshlrev_b32 v{vXg}, 3, v{vT}")
    A(f"v_add_u32 v{vXg}, s{sT0}, v{vXg}")
    A(f"v_add_u32 v{vXa0}, {L_KX}, v{vXg}")
    if ZPAD:
        A(f"v_cmp_gt_u32 vcc, 32, v{vLane}")
        A(f"v_cndmask_b32 v{vXa0}, v{vT+3}, v{vXa0}, vcc")
    A(f"v_mov_b32 v{vKF+5}, 0x3f80")
    A(f"v_mov_b32 v{vKF+8+5}, 0x3f80")
    A(f"v_lshlrev_b32 v{vT+4}, 2, v{vT+1}")
    A(f"v_sub_u32 v{vT+4}, v{vT}, v{vT+4}")
    A(f"s_mov_b32 s29, {NEG}")
    for r in range(16):
        c = 8*(r//4) + r % 4
        A(f"v_subrev_u32 v{vT+5}, {c}, v{vT+4}")
        A(f"v_ashrrev_i32 v{vT+5}, 31, v{vT+5}")
        A(f"v_and_b32 v{vMD+r}, s29, v{vT+5}")
        A(f"v_xor_b32 v{vMF+r}, s29, v{vMD+r}")
    ONEHI = 0x3f800000
    def qext_fix(q):
        A(f"v_cmp_gt_u32 vcc, 32, v{vLane}")
        A(f"v_mov_b32 v{vT+6}, {ONEHI}")
        A(f"v_cndmask_b32 v{q+4}, 0, v{q+4}, vcc")
        A(f"v_cndmask_b32 v{q+5}, 0, v{vT+6}, vcc")
    if PROF == 2: stamp(A, 3)
    A(f"s_waitcnt vmcnt(0)")
    if PROF == 2: stamp(A, 4)
    qext_fix(vQB)
    A(f"v_and_b32 v{vT}, 31, v{vLane}")
    A(f"v_lshlrev_b32 v{vT+2}, 2, v{vT}")
    A(f"s_lshl_b32 s{sT0}, s{sTQ}, 7")
    A(f"s_add_u32 s{sT0}, s{sT0}, {WS_G}")
    A(f"buffer_load_dword v{vG}, v{vT+2}, s[{sWS}:{sWS+3}], s{sT0} offen")
    def claim_item():
        lab = f"{name}_claim{claim_item.n}"; claim_item.n += 1
        A(f"v_mov_b32 v{vT}, 1")
        A(f"s_mov_b64 exec, 1")
        A(f"ds_add_rtn_u32 v{vT+1}, v{vCA}, v{vT} offset:16")
        A(f"s_mov_b64 exec, -1")
        A(f"s_waitcnt lgkmcnt(0)")
        A(f"v_readfirstlane_b32 s50, v{vT+1}")
        A(f"s_cmp_ge_u32 s50, 8")
        A(f"s_cbranch_scc1 {lab}")
        A(f"s_lshl_b32 s51, s{sQB}, 3")
        A(f"s_add_u32 s51, s51, s50")
        A(f"s_lshl_b32 s{sT0}, s{sH}, 16")
        A(f"s_lshl_b32 s{sT1}, s51, 10")
        A(f"s_add_u32 s{sT0}, s{sT0}, s{sT1}")
        A(f"buffer_load_dwordx2 v[{vQA}:{vQA+1}], v{vQo}, s[{sWS}:{sWS+3}], s{sT0} offen")
        A(f"buffer_load_dwordx2 v[{vQA+2}:{vQA+3}], v{vQo}, s[{sWS}:{sWS+3}], s{sT0} offen offset:512")
        A(f"s_lshl_b32 s{sT1}, s51, 8")
        A(f"s_add_u32 s{sT1}, s{sT1}, s52")
        A(f"v_and_b32 v{vT}, 31, v{vLane}")
        A(f"v_lshlrev_b32 v{vT+1}, 3, v{vT}")
        A(f"buffer_load_dword v{vQA+4}, v{vT+1}, s[{sWS}:{sWS+3}], s{sT1} offen")
        A(f"v_lshlrev_b32 v{vT+2}, 2, v{vT}")
        A(f"s_lshl_b32 s{sT0}, s51, 7")
        A(f"s_add_u32 s{sT0}, s{sT0}, {WS_G}")
        A(f"buffer_load_dword v{vGA}, v{vT+2}, s[{sWS}:{sWS+3}], s{sT0} offen")
        A.label(lab)
    claim_item.n = 0
    A(f"s_lshr_b32 s52, s{sH}, 1")
    A(f"s_lshl_b32 s52, s52, 14")
    A(f"s_and_b32 s{sT1}, s{sH}, 1")
    A(f"s_lshl_b32 s{sT1}, s{sT1}, 2")
    A(f"s_add_u32 s52, s52, s{sT1}")
    A(f"s_add_u32 s52, s52, {WS_QX}")
    def need_groups(n_imm=None, n_sreg=None, tag=""):
        tgt = f"{n_imm}" if n_imm is not None else f"s{n_sreg}"
        A(f"s_cmp_ge_u32 s42, {tgt}")
        A(f"s_cbranch_scc1 {name}_ng_ok{tag}")
        A.label(f"{name}_ng{tag}")
        A(f"ds_read_b64 v[{vT}:{vT+1}], v{vCA}")
        A(f"s_waitcnt lgkmcnt(0)")
        A(f"v_min_u32 v{vT}, v{vT}, v{vT+1}")
        A(f"v_readfirstlane_b32 s42, v{vT}")
        A(f"s_cmp_ge_u32 s42, {tgt}")
        A(f"s_cbranch_scc1 {name}_ng_ok{tag}")
        A(f"s_sleep 1")
        A(f"s_branch {name}_ng{tag}")
        A.label(f"{name}_ng_ok{tag}")
    A(f"s_mov_b32 s42, 0")

    def kreads(buf, off_slot):
        kf = vKF + 8*buf
        A(f"ds_read2st64_b64 v[{kf}:{kf+3}], v{vKa} offset0:{2*off_slot} offset1:{2*off_slot+1}")
        A(f"ds_read_b32 v{kf+4}, v{vXa} offset:{off_slot*256}")
    def vreads(buf, off_slot):
        vf = vVF + 8*buf
        A(f"ds_read_b128 v[{vf}:{vf+3}], v{vVa} offset:{off_slot*V_TILE}")
        A(f"ds_read_b128 v[{vf+4}:{vf+7}], v{vVa} offset:{off_slot*V_TILE+608}")
    def qk(sbuf, kbuf, q, cop):
        sd = vS + 16*sbuf; kf = vKF + 8*kbuf
        A(f"v_mfma_f32_32x32x16_bf16 v[{sd}:{sd+15}], v[{kf}:{kf+3}], v[{q}:{q+3}], {cop}")
        A(f"v_mfma_f32_32x32x8_bf16 v[{sd}:{sd+15}], v[{kf+4}:{kf+5}], v[{q+4}:{q+5}], v[{sd}:{sd+15}]")
    def setaddr(slot, sreg=False):
        if not sreg:
            A(f"v_add_u32 v{vKa}, {L_KM + slot*1024}, v{vKa0}")
            A(f"v_add_u32 v{vVa}, {slot*V_TILE}, v{vVa0}")
            A(f"v_add_u32 v{vXa}, {slot*256}, v{vXa0}")
        else:
            A(f"s_lshl_b32 s{sT0}, s{slot}, 10")
            A(f"v_add_u32 v{vKa}, s{sT0}, v{vKa0}")
            A(f"s_mul_i32 s{sT0}, s{slot}, {V_TILE}")
            A(f"v_add_u32 v{vVa}, s{sT0}, v{vVa0}")
            A(f"s_lshl_b32 s{sT0}, s{slot}, 8")
            A(f"v_add_u32 v{vXa}, s{sT0}, v{vXa0}")
    def adv(n):
        A(f"v_add_u32 v{vKa}, {n*1024}, v{vKa}")
        A(f"v_add_u32 v{vVa}, {n*V_TILE}, v{vVa}")
        A(f"v_add_u32 v{vXa}, {n*256}, v{vXa}")
    def maxtile(sbuf):
        sd = vS + 16*sbuf
        for i in range(8):
            A(f"v_max3_f32 v{vM}, v{sd+2*i}, v{sd+2*i+1}, v{vM}")
    def finish_max(q):
        A(f"v_mov_b32 v{vT}, v{vM}")
        A(f"v_permlane32_swap_b32 v{vM}, v{vT}")
        A(f"v_max_f32 v{vM}, v{vM}, v{vT}")
        A(f"v_sub_f32 v{vT}, 0, v{vM}")
        A(f"v_cvt_pk_bf16_f32 v{vT}, v{vT}, 1.0")
        A(f"v_cmp_gt_u32 vcc, 32, v{vLane}")
        A(f"v_cndmask_b32 v{q+5}, 0, v{vT}, vcc")
    def clear_max(q):
        A(f"v_mov_b32 v{vT}, {ONEHI}")
        A(f"v_cmp_gt_u32 vcc, 32, v{vLane}")
        A(f"v_cndmask_b32 v{q+5}, 0, v{vT}, vcc")
    def pv(g, vbuf):
        vf = vVF + 8*vbuf + 4*g
        A(f"v_mfma_f32_32x32x16_bf16 v[{vO}:{vO+15}], v[{vf}:{vf+3}], v[{vP+4*g}:{vP+4*g+3}], v[{vO}:{vO+15}]")
    def check_l(ok_label):
        A(f"s_nop 12")
        A(f"v_mov_b32 v{vT}, {f2u(2.0**100)}")
        A(f"v_cmp_nlt_f32 vcc, v{vO+10}, v{vT}")
        A(f"s_bfm_b64 s[32:33], 32, 0")
        A(f"s_and_b64 vcc, vcc, s[32:33]")
        A(f"s_cbranch_scc0 {ok_label}")
    def epilogue(br, tq, g):
        A(f"v_mov_b32 v{vT}, v{vO+10}")
        A(f"v_mov_b32 v{vT+1}, v{vO+10}")
        A(f"v_permlane32_swap_b32 v{vT}, v{vT+1}")
        A(f"v_rcp_f32 v{vT+2}, v{vT}")
        if br == 0:
            A(f"v_mul_f32 v{vT+2}, v{vT+2}, v{g}")
        else:
            A(f"v_sub_f32 v{vT+3}, 1.0, v{g}")
            A(f"v_mul_f32 v{vT+2}, v{vT+2}, v{vT+3}")
        for i in range(10): A(f"v_mul_f32 v{vO+i}, v{vO+i}, v{vT+2}")
        for i in range(5): A(f"v_cvt_pk_bf16_f32 v{vP+i}, v{vO+2*i}, v{vO+2*i+1}")
        A(f"s_lshl_b32 s{sT0}, s{tq}, 5")
        A(f"s_add_u32 s{sT0}, s{sT0}, s{sH}")
        A(f"s_lshl_b32 s{sT1}, s{sT0}, 10")
        A(f"s_add_u32 s{sT1}, s{sT1}, {WS_OM + br*64*32*1024}")
        A(f"buffer_store_dwordx4 v[{vP}:{vP+3}], v{vL16}, s[{sWS}:{sWS+3}], s{sT1} offen" + STORE_MOD)
        A(f"s_lshl_b32 s{sT1}, s{sT0}, 7")
        A(f"s_add_u32 s{sT1}, s{sT1}, {WS_OX + br*64*32*128}")
        A(f"v_lshlrev_b32 v{vT+4}, 2, v{vLane}")
        A(f"s_bfm_b64 exec, 32, 0")
        A(f"buffer_store_dword v{vP+4}, v{vT+4}, s[{sWS}:{sWS+3}], s{sT1} offen" + STORE_MOD)
        A(f"s_mov_b64 exec, -1")
    def tile_step(sb, nb, q, cnext, koff, voff, do_qk=True, do_k=True, do_v=True, first=False, pre_qk=None):
        sd = vS + 16*sb
        def e(lo, hi):
            for i in range(lo, hi): A(f"v_exp_f32 v{sd+i}, v{sd+i}")
        def c(lo, hi):
            for i in range(lo, hi): A(f"v_cvt_pk_bf16_f32 v{vP+i}, v{sd+2*i}, v{sd+2*i+1}")
        kf = vKF + 8*nb; sn = vS + 16*nb
        e(0, 2)
        if not first: pv(1, nb)
        if pre_qk: pre_qk(nb)
        e(2, 6)
        if do_qk:
            A(f"s_waitcnt lgkmcnt(2)")
            A(f"v_mfma_f32_32x32x16_bf16 v[{sn}:{sn+15}], v[{kf}:{kf+3}], v[{q}:{q+3}], {cnext}")
        if do_k: kreads(sb, koff)
        e(6, 8); c(0, 4)
        if do_qk:
            A(f"v_mfma_f32_32x32x8_bf16 v[{sn}:{sn+15}], v[{kf+4}:{kf+5}], v[{q+4}:{q+5}], v[{sn}:{sn+15}]")
        if do_v: vreads(nb, voff)
        e(8, 12)
        n_after = (2 if do_v else 0) + (2 if do_k else 0)
        A(f"s_waitcnt lgkmcnt({n_after})")
        pv(0, sb)
        e(12, 16); c(4, 8)

    need_groups(n_imm=1, tag="0")
    stamp(A, 1 if PROF != 2 else 5)
    A(f"s_mov_b32 s{sPass}, 0")
    setaddr(0)
    kreads(0, 0)
    A(f"v_mov_b32 v{vM}, s29")
    A(f"s_waitcnt lgkmcnt(0)")
    qk(0, 0, vQB, "0")
    kreads(0, 0)
    kreads(1, 1)
    vreads(0, 0)
    for r in range(16): A(f"v_mov_b32 v{vO+r}, 0")
    for r in range(4): A(f"v_mov_b32 v{vP+4+r}, 0")
    for r in range(8): A(f"v_mov_b32 v{vVF+8+r}, 0")
    maxtile(0)
    finish_max(vQB)
    A(f"s_waitcnt lgkmcnt(4)")
    qk(0, 0, vQB, "0")
    A(f"s_mov_b32 s{sCnt}, 0")
    A(f"s_mov_b32 s38, 0")
    A(f"s_lshr_b32 s46, s{sWV}, 2")
    A(f"s_nop 7")
    UN = 4
    def prio_toggle(tag):
        if not PRIO: return
        A(f"s_add_u32 s39, s{sCnt}, s38")
        A(f"s_and_b32 s39, s39, {PDUTY-1}")
        A(f"s_cmp_eq_u32 s39, {PDUTY-1}")
        A(f"s_cselect_b32 s39, 0, s46")
        A(f"s_cmp_eq_u32 s39, 1")
        A(f"s_cbranch_scc1 {name}_p1{tag}")
        A(f"s_setprio 0")
        A(f"s_branch {name}_p2{tag}")
        A.label(f"{name}_p1{tag}")
        A(f"s_setprio 1")
        A.label(f"{name}_p2{tag}")
    A.label(f"{name}_bloop0")
    A(f"s_lshl_b32 s{sT1}, s{sCnt}, 2")
    A(f"s_add_u32 s{sT1}, s{sT1}, 13")
    A(f"s_lshr_b32 s{sT1}, s{sT1}, 3")
    need_groups(n_sreg=sT1, tag="l")
    prio_toggle("a")
    for u in range(UN):
        tile_step(u % 2, (u+1) % 2, vQB, "0", u + 2, u + 1)
    adv(UN)
    A(f"s_add_u32 s{sCnt}, s{sCnt}, 1")
    A(f"s_cmp_lt_u32 s{sCnt}, 4")
    A(f"s_cbranch_scc1 {name}_bloop0")
    signal(8)
    need_groups(n_imm=8, tag="m")
    A.label(f"{name}_bloop")
    prio_toggle("b")
    for u in range(UN):
        tile_step(u % 2, (u+1) % 2, vQB, "0", u + 2, u + 1)
    adv(UN)
    A(f"s_add_u32 s{sCnt}, s{sCnt}, 1")
    A(f"s_cmp_lt_u32 s{sCnt}, 16")
    A(f"s_cbranch_scc1 {name}_bloop")
    A(f"s_setprio 0")
    A(f"s_nop 1")
    pv(1, 1)
    if PROF != 2: stamp(A, 2)
    A(f"s_waitcnt vmcnt(0)")
    claim_item()
    check_l(f"{name}_bfin")
    A(f"s_add_u32 s43, s{sKMs}, {32<<16}")
    A(f"s_add_u32 s44, s{sVs}, {32*V_HEAD}")
    A(f"s_add_u32 s45, s{sKXs}, {16*16384}")
    clear_max(vQB)
    A(f"v_mov_b32 v{vM}, s29")
    def gk(tile_sreg):
        A(f"s_lshl_b32 s{sT0}, s{tile_sreg}, 10")
        A(f"s_add_u32 s{sT0}, s{sT0}, s43")
        A(f"buffer_load_dwordx2 v[{vKF}:{vKF+1}], v{vQo}, s[{sWS}:{sWS+3}], s{sT0} offen")
        A(f"buffer_load_dwordx2 v[{vKF+2}:{vKF+3}], v{vQo}, s[{sWS}:{sWS+3}], s{sT0} offen offset:512")
        A(f"s_lshl_b32 s{sT0}, s{tile_sreg}, 8")
        A(f"s_add_u32 s{sT0}, s{sT0}, s45")
        A(f"buffer_load_dword v{vKF+4}, v{vXg}, s[{sWS}:{sWS+3}], s{sT0} offen")
    A(f"s_mov_b32 s{sCnt}, 0")
    A.label(f"{name}_bx1")
    gk(sCnt)
    A(f"s_waitcnt vmcnt(0)")
    qk(0, 0, vQB, "0")
    maxtile(0)
    A(f"s_add_u32 s{sCnt}, s{sCnt}, 1")
    A(f"s_cmp_lt_u32 s{sCnt}, 64")
    A(f"s_cbranch_scc1 {name}_bx1")
    finish_max(vQB)
    for r in range(16): A(f"v_mov_b32 v{vO+r}, 0")
    A(f"s_mov_b32 s{sCnt}, 0")
    A.label(f"{name}_bx2")
    gk(sCnt)
    A(f"s_mul_i32 s{sT0}, s{sCnt}, {V_TILE}")
    A(f"s_add_u32 s{sT0}, s{sT0}, s44")
    A(f"buffer_load_dwordx4 v[{vVF}:{vVF+3}], v{vVg}, s[{sWS}:{sWS+3}], s{sT0} offen")
    A(f"buffer_load_dwordx4 v[{vVF+4}:{vVF+7}], v{vVg}, s[{sWS}:{sWS+3}], s{sT0} offen offset:608")
    A(f"s_waitcnt vmcnt(0)")
    qk(0, 0, vQB, "0")
    for i in range(16): A(f"v_exp_f32 v{vS+i}, v{vS+i}")
    for i in range(8): A(f"v_cvt_pk_bf16_f32 v{vP+i}, v{vS+2*i}, v{vS+2*i+1}")
    pv(0, 0); pv(1, 0)
    A(f"s_add_u32 s{sCnt}, s{sCnt}, 1")
    A(f"s_cmp_lt_u32 s{sCnt}, 64")
    A(f"s_cbranch_scc1 {name}_bx2")
    A(f"s_nop 12")
    A.label(f"{name}_bfin")
    epilogue(1, sTQ, vG)
    if PROF != 2: stamp(A, 3)
    A(f"s_cmp_ge_u32 s50, 8")
    A(f"s_cbranch_scc1 {name}_done")
    poll(12, 2, "a")

    A.label(f"{name}_aitem")
    A(f"s_mov_b32 s{sTQ}, s51")
    A(f"s_mov_b32 s53, s50")
    A(f"s_waitcnt vmcnt(2)")
    A(f"v_mov_b32 v{vGC}, v{vGA}")
    qext_fix(vQA)
    def bias_for(i, kbuf):
        A(f"s_cmp_ge_u32 s{sTQ}, {8 - i}")
        A(f"s_cselect_b32 s{sT0}, s36, s37")
        A(f"v_mov_b32 v{vKF + 8*kbuf + 5}, s{sT0}")
    A(f"s_mov_b32 s36, 0x3f80")
    A(f"s_mov_b32 s37, {(NEGB << 16) | 0x3f80}")
    setaddr(53, True)
    A(f"v_mov_b32 v{vM}, s29")
    A(f"s_cmp_eq_u32 s{sTQ}, 0")
    A(f"s_cbranch_scc1 {name}_aref0")
    kreads(0, 7)
    A(f"s_waitcnt lgkmcnt(0)")
    qk(0, 0, vQA, "0")
    A(f"s_branch {name}_aref1")
    A.label(f"{name}_aref0")
    kreads(0, 8)
    A(f"s_waitcnt lgkmcnt(0)")
    qk(0, 0, vQA, f"v[{vMD}:{vMD+15}]")
    A.label(f"{name}_aref1")
    kreads(0, 0)
    kreads(1, 1)
    vreads(0, 0)
    for r in range(16): A(f"v_mov_b32 v{vO+r}, 0")
    maxtile(0)
    finish_max(vQA)
    bias_for(0, 0)
    A(f"s_waitcnt lgkmcnt(4)")
    qk(0, 0, vQA, f"v[{vMF}:{vMF+15}]")
    A(f"s_nop 7")
    for i in range(9):
        pre = (lambda nb, i=i: bias_for(i+1, nb)) if i < 7 else ((lambda nb: A(f"v_mov_b32 v{vKF + 8*nb + 5}, s36")) if i == 7 else None)
        tile_step(i % 2, (i+1) % 2, vQA, (f"v[{vMD}:{vMD+15}]" if i == 7 else "0"), i + 2, i + 1,
                  do_qk=(i < 8), do_k=(i < 7), do_v=(i < 8), first=(i == 0), pre_qk=pre)
    A(f"s_nop 1")
    pv(1, 0)
    A(f"v_mov_b32 v{vKF+5}, s36")
    A(f"v_mov_b32 v{vKF+8+5}, s36")
    check_l(f"{name}_aepi")
    clear_max(vQA)
    A(f"s_sub_u32 s{sI}, 8, s{sTQ}")
    A(f"s_cmp_ge_u32 s{sTQ}, 8")
    A(f"s_cselect_b32 s{sI}, 0, s{sI}")
    A(f"s_mov_b32 s30, s{sI}")
    A(f"s_mov_b32 s31, s53")
    def set_cm_for(i_sreg):
        lab = f"{name}_cm{set_cm_for.n}"; set_cm_for.n += 1
        A(f"s_cmp_eq_u32 s{i_sreg}, 8")
        A(f"s_cbranch_scc1 {lab}_d")
        A(f"s_cmp_eq_u32 s{i_sreg}, 0")
        A(f"s_cbranch_scc1 {lab}_f")
        for r in range(16): A(f"v_mov_b32 v{vCM+r}, 0")
        A(f"s_branch {lab}_e")
        A.label(f"{lab}_d")
        for r in range(16): A(f"v_mov_b32 v{vCM+r}, v{vMD+r}")
        A(f"s_branch {lab}_e")
        A.label(f"{lab}_f")
        for r in range(16): A(f"v_mov_b32 v{vCM+r}, v{vMF+r}")
        A.label(f"{lab}_e")
    set_cm_for.n = 0
    A(f"v_mov_b32 v{vM}, s29")
    A.label(f"{name}_a1")
    A(f"s_add_u32 s{sT1}, s31, s{sI}")
    setaddr(sT1, True)
    kreads(0, 0)
    set_cm_for(sI)
    A(f"s_waitcnt lgkmcnt(0)")
    qk(0, 0, vQA, f"v[{vCM}:{vCM+15}]")
    maxtile(0)
    A(f"s_add_u32 s{sI}, s{sI}, 1")
    A(f"s_cmp_le_u32 s{sI}, 8")
    A(f"s_cbranch_scc1 {name}_a1")
    finish_max(vQA)
    for r in range(16): A(f"v_mov_b32 v{vO+r}, 0")
    A(f"s_mov_b32 s{sI}, s30")
    A.label(f"{name}_a2")
    A(f"s_add_u32 s{sT1}, s31, s{sI}")
    setaddr(sT1, True)
    kreads(0, 0)
    vreads(0, 0)
    set_cm_for(sI)
    A(f"s_waitcnt lgkmcnt(2)")
    qk(0, 0, vQA, f"v[{vCM}:{vCM+15}]")
    for i in range(16): A(f"v_exp_f32 v{vS+i}, v{vS+i}")
    for i in range(8): A(f"v_cvt_pk_bf16_f32 v{vP+i}, v{vS+2*i}, v{vS+2*i+1}")
    A(f"s_waitcnt lgkmcnt(0)")
    pv(0, 0); pv(1, 0)
    A(f"s_add_u32 s{sI}, s{sI}, 1")
    A(f"s_cmp_le_u32 s{sI}, 8")
    A(f"s_cbranch_scc1 {name}_a2")
    A(f"s_nop 12")
    A.label(f"{name}_aepi")
    claim_item()
    epilogue(0, sTQ, vGC)
    A(f"s_cmp_lt_u32 s50, 8")
    A(f"s_cbranch_scc1 {name}_aitem")
    A.label(f"{name}_done")
    if PROF:
        stamp(A, 5 if PROF != 2 else 6)
        stamps_out(A, 1, 7, sWS, sWV, vS)
    rt_end(A, 1, sWV, vS)
    A(f"s_endpgm")

    A.label(f"{name}_loader")
    A(f"s_sub_u32 s35, s{sWV}, 8")
    A(f"s_lshl_b32 s34, s35, 10")
    A(f"s_add_u32 s43, s{sKMs}, {32<<16}")
    A(f"s_add_u32 s44, s{sVs}, {32*V_HEAD}")
    A(f"s_add_u32 s45, s{sKXs}, {16*16384}")
    A(f"s_lshl_b32 s46, s35, 2")
    A(f"v_add_u32 v{vT+8}, s46, v{vCA}")
    A(f"s_mov_b32 s47, -1")
    A(f"s_cmp_eq_u32 s35, 1")
    A(f"s_cselect_b32 s47, 0, s47")
    A("s_waitcnt lgkmcnt(0)")
    srd(A, sWS, 4, 5, WS_SIZE)
    def ld(lds_sreg, src_sreg, off):
        A(f"s_add_u32 m0, s{lds_sreg}, {off}")
        A(f"s_add_u32 s{sT3}, s{src_sreg}, {off}")
        A(f"buffer_load_dwordx4 v{vL16}, s[{sWS}:{sWS+3}], s{sT3} offen lds")
    A(f"s_mov_b32 s{sCnt}, 0")
    A.label(f"{name}_lgrp")
    A(f"s_add_u32 s{sT0}, s{sQB}, s{sCnt}")
    A(f"s_and_b32 s{sT0}, s{sT0}, 7")
    A(f"s_lshl_b32 s48, s{sT0}, 13")
    A(f"s_add_u32 s48, s48, s43")
    A(f"s_add_u32 s48, s48, s34")
    A(f"s_lshl_b32 s49, s{sCnt}, 13")
    A(f"s_add_u32 s49, s49, s34")
    for j in range(4): ld(49, 48, j*2048)
    A(f"s_lshl_b32 s48, s{sT0}, 11")
    A(f"s_add_u32 s48, s48, s45")
    A(f"s_add_u32 s48, s48, s34")
    A(f"s_lshl_b32 s49, s{sCnt}, 11")
    A(f"s_add_u32 s49, s49, s34")
    A(f"s_add_u32 s49, s49, {L_KX}")
    ld(49, 48, 0)
    A(f"s_mul_i32 s48, s{sT0}, {8*V_TILE}")
    A(f"s_add_u32 s48, s48, s44")
    A(f"s_add_u32 s48, s48, s34")
    A(f"s_mul_i32 s49, s{sCnt}, {8*V_TILE}")
    A(f"s_add_u32 s49, s49, s34")
    A(f"s_add_u32 s49, s49, {L_V}")
    for j in range(4): ld(49, 48, j*2048)
    A(f"s_mov_b32 exec_hi, s47")
    ld(49, 48, 4*2048)
    A(f"s_mov_b32 exec_hi, -1")
    A(f"s_cmp_eq_u32 s{sCnt}, 0")
    A(f"s_cbranch_scc0 {name}_lg1")
    A(f"s_barrier")
    A(f"s_branch {name}_lg2")
    A.label(f"{name}_lg1")
    A(f"s_waitcnt vmcnt(10)")
    A(f"v_mov_b32 v{vT}, 1")
    A(f"s_mov_b64 exec, 1")
    A(f"ds_add_u32 v{vT+8}, v{vT}")
    A(f"s_mov_b64 exec, -1")
    A.label(f"{name}_lg2")
    A(f"s_add_u32 s{sCnt}, s{sCnt}, 1")
    A(f"s_cmp_lt_u32 s{sCnt}, 8")
    A(f"s_cbranch_scc1 {name}_lgrp")
    A(f"s_waitcnt vmcnt(0)")
    A(f"v_mov_b32 v{vT}, 1")
    A(f"s_mov_b64 exec, 1")
    A(f"ds_add_u32 v{vT+8}, v{vT}")
    A(f"s_mov_b64 exec, -1")
    poll(8, 8, "ld")
    def lgroup(ldsbase, sreg, n):
        lab = f"{name}_lg_{lgroup.n}"; lgroup.n += 1
        A(f"s_add_u32 s{sT3}, s{sreg}, s34")
        A(f"s_add_u32 s{sT2}, s34, {ldsbase}")
        A(f"s_mov_b32 s{sCnt}, s35")
        A.label(lab)
        A(f"s_mov_b32 m0, s{sT2}")
        A(f"s_add_u32 s{sT2}, s{sT2}, 2048")
        A(f"buffer_load_dwordx4 v{vL16}, s[{sWS}:{sWS+3}], s{sT3} offen lds")
        A(f"s_add_u32 s{sT3}, s{sT3}, 2048")
        A(f"s_add_u32 s{sCnt}, s{sCnt}, 2")
        A(f"s_cmp_lt_u32 s{sCnt}, {n}")
        A(f"s_cbranch_scc1 {lab}")
    lgroup.n = 0
    A(f"s_lshl_b32 s{sI}, s{sQB}, 3")
    A(f"s_sub_u32 s{sI}, s{sI}, 8")
    A(f"s_lshl_b32 s{sT0}, s{sI}, 10")
    A(f"s_add_u32 s28, s{sKMs}, s{sT0}")
    lgroup(L_KM, 28, 16)
    A(f"s_lshl_b32 s{sT0}, s{sI}, 8")
    A(f"s_add_u32 s28, s{sKXs}, s{sT0}")
    lgroup(L_KX, 28, 4)
    A(f"s_mul_i32 s{sT0}, s{sI}, {V_TILE}")
    A(f"s_add_u32 s28, s{sVs}, s{sT0}")
    lgroup(L_V, 28, 19)
    A(f"s_waitcnt vmcnt(0)")
    signal(12)
    if WOPF:
        A(f"s_lshl_b32 s{sT0}, s35, 1")
        A(f"s_mul_i32 s{sT0}, s{sT0}, 12")
        A(f"s_add_u32 s{sT0}, s{sT0}, 16")
        A(f"s_load_dwordx2 s[48:49], s[0:1], s{sT0}")
        A(f"s_lshr_b32 s{sT1}, s2, 3")
        A(f"s_mul_i32 s{sT1}, s{sT1}, {D*D*2 // 32}")
        A(f"v_lshlrev_b32 v{vT+1}, 6, v{vLane}")
        A(f"s_waitcnt lgkmcnt(0)")
        A(f"s_mov_b32 s52, s48")
        A(f"s_and_b32 s53, s49, 0xffff")
        A(f"s_mov_b32 s54, {D*D*2}")
        A(f"s_mov_b32 s55, 0x00020000")
        for j in range(6):
            A(f"buffer_load_dword v{vT+2}, v{vT+1}, s[52:55], s{sT1} offen")
            if j < 5: A(f"s_add_u32 s{sT1}, s{sT1}, 4096")
        A(f"s_waitcnt vmcnt(0)")
    A(f"s_waitcnt lgkmcnt(0)")
    A.label(f"{name}_end")
    A(f"s_endpgm")
    return khead(name) + A.finish(True), kdesc(name, NV, 100)
```

```python
from asmlib import *
from common import *
import os

L_KM = 0
L_V = 65536
L_KX = 65536 + 64*1216
L_CNT = L_KX + 64*256
K2_LDS = L_CNT + 64
K2_THREADS = 640
NEG = f2u(-1.0e30)
NEGB = 0xF149
DBG = int(os.environ.get("DBG", "0"))
PF = int(os.environ.get("PF", "1"))
PRIO = int(os.environ.get("PRIO", "0"))
PDUTY = int(os.environ.get("PDUTY", "4"))
ORDER = int(os.environ.get("ORDER", "0"))
UNROLL = int(os.environ.get("UNROLL", "4"))
WOPF = int(os.environ.get("WOPF", "1"))
ZPAD = int(os.environ.get("ZPAD", "1"))

def gen_k2(name):
    A = Asm()
    sWS = 8
    sH, sQB, sWV, sTQ = 12, 13, 14, 15
    sT0, sT1, sT2, sT3 = 16, 17, 18, 19
    sCnt, sI = 20, 21
    sPass = 22
    sKMs, sVs, sKXs = 24, 25, 26
    vLane = 1
    vL16 = 2
    vKa, vVa, vXa = 3, 4, 5
    vKa0, vVa0, vXa0 = 6, 7, 8
    vG = 9
    vT = 10
    vQA, vQB = 20, 28
    vKF = 36
    vVF = 52
    vS = 68
    vP = 100
    vO = 108
    vMF, vMD = 124, 140
    vCM = vS + 16
    vM = 156
    vCA = 157
    vQo = 34
    vGA, vGC = 26, 27
    vVg, vXg = 158, 159
    NV = 160

    A(f"s_cmp_ge_u32 s2, 256")
    A(f"s_cbranch_scc1 {name}_end")
    stamp(A, 0)
    rt_begin(A)
    A(f"s_load_dwordx2 s[4:5], s[0:1], {ARG['ws']}")
    A(f"v_and_b32 v{vLane}, 63, v0")
    A(f"v_lshrrev_b32 v{vT}, 6, v0")
    A(f"s_and_b32 s{sT0}, s2, 7")
    A(f"v_readfirstlane_b32 s{sWV}, v{vT}")
    A(f"s_lshr_b32 s{sT1}, s2, 3")
    A(f"s_lshl_b32 s{sT0}, s{sT0}, 2")
    A(f"s_and_b32 s{sT2}, s{sT1}, 3")
    A(f"s_add_u32 s{sH}, s{sT0}, s{sT2}")
    A(f"s_lshr_b32 s{sQB}, s{sT1}, 2")
    A(f"v_lshlrev_b32 v{vL16}, 4, v{vLane}")
    A(f"s_lshl_b32 s{sT0}, s{sH}, 16")
    A(f"s_add_u32 s{sKMs}, s{sT0}, {WS_KM}")
    A(f"s_mul_i32 s{sT0}, s{sH}, {V_HEAD}")
    A(f"s_add_u32 s{sVs}, s{sT0}, {WS_V}")
    A(f"s_lshr_b32 s{sT0}, s{sH}, 1")
    A(f"s_lshl_b32 s{sT0}, s{sT0}, 14")
    A(f"s_add_u32 s{sKXs}, s{sT0}, {WS_KX}")
    A(f"v_mov_b32 v{vCA}, {L_CNT}")
    A(f"s_cmp_ge_u32 s{sWV}, 8")
    A(f"s_cbranch_scc1 {name}_loader")

    def dma_run(ldsbase, sreg, woff_sreg, stride, n_full, rem_limit_sreg=None, rem=None, tag=""):
        A(f"s_add_u32 s{sT3}, s{sreg}, s{woff_sreg}")
        A(f"s_add_u32 m0, s{woff_sreg}, {ldsbase}")
        for j in range(n_full):
            A(f"s_nop 0")
            A(f"buffer_load_dwordx4 v{vL16}, s[{sWS}:{sWS+3}], s{sT3} offen lds")
            if j < n_full - 1 or rem:
                A(f"s_add_u32 m0, m0, {stride}")
                A(f"s_add_u32 s{sT3}, s{sT3}, {stride}")
        if rem:
            lab = f"{name}_dg{dma_run.n}"; dma_run.n += 1
            A(f"s_cmp_lt_u32 s{rem_limit_sreg}, {rem}")
            A(f"s_cbranch_scc0 {lab}")
            A(f"buffer_load_dwordx4 v{vL16}, s[{sWS}:{sWS+3}], s{sT3} offen lds")
            A.label(lab)
    dma_run.n = 0
    def group(ldsbase, sreg, n, nw, widx_sreg, woff_sreg):
        dma_run(ldsbase, sreg, woff_sreg, nw*1024, n // nw, widx_sreg, n % nw)
    def poll(off, target, tag):
        A.label(f"{name}_poll{tag}")
        A(f"ds_read_b32 v{vT}, v{vCA} offset:{off}")
        A(f"s_waitcnt lgkmcnt(0)")
        A(f"v_readfirstlane_b32 s{sT0}, v{vT}")
        A(f"s_cmp_ge_u32 s{sT0}, {target}")
        A(f"s_cbranch_scc1 {name}_pollok{tag}")
        A(f"s_sleep 1")
        A(f"s_branch {name}_poll{tag}")
        A.label(f"{name}_pollok{tag}")
    def signal(off):
        A(f"v_mov_b32 v{vT}, 1")
        A(f"s_mov_b64 exec, 1")
        A(f"ds_add_u32 v{vCA}, v{vT} offset:{off}")
        A(f"s_mov_b64 exec, -1")

    A(f"s_lshl_b32 s{sTQ}, s{sQB}, 3")
    A(f"s_add_u32 s{sTQ}, s{sTQ}, s{sWV}")
    A(f"s_cmp_lg_u32 s{sWV}, 0")
    A(f"s_cbranch_scc1 {name}_noinit")
    A(f"v_mov_b32 v{vT+3}, 0")
    A(f"v_lshlrev_b32 v{vT+4}, 2, v{vLane}")
    A(f"v_add_u32 v{vT+4}, {L_CNT}, v{vT+4}")
    A(f"s_mov_b64 exec, 0xffff")
    A(f"ds_write_b32 v{vT+4}, v{vT+3}")
    A(f"s_mov_b64 exec, -1")
    A.label(f"{name}_noinit")
    A(f"v_and_b32 v{vT}, 31, v{vLane}")
    A(f"v_lshlrev_b32 v{vT+1}, 3, v{vT}")
    A(f"s_lshl_b32 s{sT0}, s{sH}, 16")
    A(f"s_lshl_b32 s{sT1}, s{sTQ}, 10")
    A(f"s_add_u32 s40, s{sT0}, s{sT1}")
    A(f"s_lshr_b32 s{sT2}, s{sH}, 1")
    A(f"s_lshl_b32 s{sT2}, s{sT2}, 14")
    A(f"s_and_b32 s{sT1}, s{sH}, 1")
    A(f"s_lshl_b32 s{sT1}, s{sT1}, 2")
    A(f"s_add_u32 s41, s{sT2}, s{sT1}")
    A(f"s_lshl_b32 s{sT1}, s{sTQ}, 8")
    A(f"s_add_u32 s41, s41, s{sT1}")
    A(f"s_add_u32 s41, s41, {WS_QX}")
    A("s_waitcnt lgkmcnt(0)")
    if PROF == 2: stamp(A, 1)
    srd(A, sWS, 4, 5, WS_SIZE)
    A(f"s_add_u32 s{sT0}, s40, {WS_QM + (32<<16)}")
    A(f"v_lshrrev_b32 v{vT+2}, 5, v{vLane}")
    A(f"v_lshl_add_u32 v{vQo}, v{vT+2}, 8, v{vT+1}")
    A(f"buffer_load_dwordx2 v[{vQB}:{vQB+1}], v{vQo}, s[{sWS}:{sWS+3}], s{sT0} offen")
    A(f"buffer_load_dwordx2 v[{vQB+2}:{vQB+3}], v{vQo}, s[{sWS}:{sWS+3}], s{sT0} offen offset:512")
    A(f"s_add_u32 s{sT0}, s41, {16*16384}")
    A(f"buffer_load_dword v{vQB+4}, v{vT+1}, s[{sWS}:{sWS+3}], s{sT0} offen")
    A(f"s_barrier")
    if PROF == 2: stamp(A, 2)
    A(f"v_lshrrev_b32 v{vT+1}, 5, v{vLane}")
    A(f"v_mov_b32 v{vT+2}, 4")
    A(f"v_subrev_u32 v{vT+3}, 20, v{vT}")
    A(f"v_cmp_gt_u32 vcc, 8, v{vT+3}")
    A(f"v_cndmask_b32 v{vT+2}, v{vT+2}, 0, vcc")
    A(f"v_cmp_gt_u32 vcc, 19, v{vT}")
    A(f"v_cndmask_b32 v{vT+2}, v{vT+2}, v{vT}, vcc")
    A(f"v_mul_u32_u24 v{vVg}, 304, v{vT+1}")
    A(f"v_lshl_add_u32 v{vVg}, v{vT+2}, 4, v{vVg}")
    A(f"v_add_u32 v{vVa0}, {L_V}, v{vVg}")
    if ZPAD:
        A(f"v_cmp_gt_u32 vcc, 19, v{vT}")
        A(f"v_mov_b32 v{vT+3}, 0x40000")
        A(f"v_cndmask_b32 v{vVa0}, v{vT+3}, v{vVa0}, vcc")
    A(f"v_lshlrev_b32 v{vKa0}, 3, v{vT}")
    A(f"v_lshl_add_u32 v{vKa0}, v{vT+1}, 8, v{vKa0}")
    A(f"s_and_b32 s{sT0}, s{sH}, 1")
    A(f"s_lshl_b32 s{sT0}, s{sT0}, 2")
    A(f"v_lshlrev_b32 v{vXg}, 3, v{vT}")
    A(f"v_add_u32 v{vXg}, s{sT0}, v{vXg}")
    A(f"v_add_u32 v{vXa0}, {L_KX}, v{vXg}")
    if ZPAD:
        A(f"v_cmp_gt_u32 vcc, 32, v{vLane}")
        A(f"v_cndmask_b32 v{vXa0}, v{vT+3}, v{vXa0}, vcc")
    A(f"v_mov_b32 v{vKF+5}, 0x3f80")
    A(f"v_mov_b32 v{vKF+8+5}, 0x3f80")
    A(f"v_lshlrev_b32 v{vT+4}, 2, v{vT+1}")
    A(f"v_sub_u32 v{vT+4}, v{vT}, v{vT+4}")
    A(f"s_mov_b32 s29, {NEG}")
    for r in range(16):
        c = 8*(r//4) + r % 4
        A(f"v_subrev_u32 v{vT+5}, {c}, v{vT+4}")
        A(f"v_ashrrev_i32 v{vT+5}, 31, v{vT+5}")
        A(f"v_and_b32 v{vMD+r}, s29, v{vT+5}")
        A(f"v_xor_b32 v{vMF+r}, s29, v{vMD+r}")
    ONEHI = 0x3f800000
    def qext_fix(q):
        A(f"v_cmp_gt_u32 vcc, 32, v{vLane}")
        A(f"v_mov_b32 v{vT+6}, {ONEHI}")
        A(f"v_cndmask_b32 v{q+4}, 0, v{q+4}, vcc")
        A(f"v_cndmask_b32 v{q+5}, 0, v{vT+6}, vcc")
    if PROF == 2: stamp(A, 3)
    A(f"s_waitcnt vmcnt(0)")
    if PROF == 2: stamp(A, 4)
    qext_fix(vQB)
    A(f"v_and_b32 v{vT}, 31, v{vLane}")
    A(f"v_lshlrev_b32 v{vT+2}, 2, v{vT}")
    A(f"s_lshl_b32 s{sT0}, s{sTQ}, 7")
    A(f"s_add_u32 s{sT0}, s{sT0}, {WS_G}")
    A(f"buffer_load_dword v{vG}, v{vT+2}, s[{sWS}:{sWS+3}], s{sT0} offen")
    def claim_item():
        lab = f"{name}_claim{claim_item.n}"; claim_item.n += 1
        A(f"v_mov_b32 v{vT}, 1")
        A(f"s_mov_b64 exec, 1")
        A(f"ds_add_rtn_u32 v{vT+1}, v{vCA}, v{vT} offset:16")
        A(f"s_mov_b64 exec, -1")
        A(f"s_waitcnt lgkmcnt(0)")
        A(f"v_readfirstlane_b32 s50, v{vT+1}")
        A(f"s_cmp_ge_u32 s50, 8")
        A(f"s_cbranch_scc1 {lab}")
        A(f"s_lshl_b32 s51, s{sQB}, 3")
        A(f"s_add_u32 s51, s51, s50")
        A(f"s_lshl_b32 s{sT0}, s{sH}, 16")
        A(f"s_lshl_b32 s{sT1}, s51, 10")
        A(f"s_add_u32 s{sT0}, s{sT0}, s{sT1}")
        A(f"buffer_load_dwordx2 v[{vQA}:{vQA+1}], v{vQo}, s[{sWS}:{sWS+3}], s{sT0} offen")
        A(f"buffer_load_dwordx2 v[{vQA+2}:{vQA+3}], v{vQo}, s[{sWS}:{sWS+3}], s{sT0} offen offset:512")
        A(f"s_lshl_b32 s{sT1}, s51, 8")
        A(f"s_add_u32 s{sT1}, s{sT1}, s52")
        A(f"v_and_b32 v{vT}, 31, v{vLane}")
        A(f"v_lshlrev_b32 v{vT+1}, 3, v{vT}")
        A(f"buffer_load_dword v{vQA+4}, v{vT+1}, s[{sWS}:{sWS+3}], s{sT1} offen")
        A(f"v_lshlrev_b32 v{vT+2}, 2, v{vT}")
        A(f"s_lshl_b32 s{sT0}, s51, 7")
        A(f"s_add_u32 s{sT0}, s{sT0}, {WS_G}")
        A(f"buffer_load_dword v{vGA}, v{vT+2}, s[{sWS}:{sWS+3}], s{sT0} offen")
        A.label(lab)
    claim_item.n = 0
    A(f"s_lshr_b32 s52, s{sH}, 1")
    A(f"s_lshl_b32 s52, s52, 14")
    A(f"s_and_b32 s{sT1}, s{sH}, 1")
    A(f"s_lshl_b32 s{sT1}, s{sT1}, 2")
    A(f"s_add_u32 s52, s52, s{sT1}")
    A(f"s_add_u32 s52, s52, {WS_QX}")
    def need_groups(n_imm=None, n_sreg=None, tag=""):
        tgt = f"{n_imm}" if n_imm is not None else f"s{n_sreg}"
        A(f"s_cmp_ge_u32 s42, {tgt}")
        A(f"s_cbranch_scc1 {name}_ng_ok{tag}")
        A.label(f"{name}_ng{tag}")
        A(f"ds_read_b64 v[{vT}:{vT+1}], v{vCA}")
        A(f"s_waitcnt lgkmcnt(0)")
        A(f"v_min_u32 v{vT}, v{vT}, v{vT+1}")
        A(f"v_readfirstlane_b32 s42, v{vT}")
        A(f"s_cmp_ge_u32 s42, {tgt}")
        A(f"s_cbranch_scc1 {name}_ng_ok{tag}")
        A(f"s_sleep 1")
        A(f"s_branch {name}_ng{tag}")
        A.label(f"{name}_ng_ok{tag}")
    A(f"s_mov_b32 s42, 0")

    def kreads(buf, off_slot):
        kf = vKF + 8*buf
        A(f"ds_read2st64_b64 v[{kf}:{kf+3}], v{vKa} offset0:{2*off_slot} offset1:{2*off_slot+1}")
        A(f"ds_read_b32 v{kf+4}, v{vXa} offset:{off_slot*256}")
    def vreads(buf, off_slot):
        vf = vVF + 8*buf
        A(f"ds_read_b128 v[{vf}:{vf+3}], v{vVa} offset:{off_slot*V_TILE}")
        A(f"ds_read_b128 v[{vf+4}:{vf+7}], v{vVa} offset:{off_slot*V_TILE+608}")
    def qk(sbuf, kbuf, q, cop):
        sd = vS + 16*sbuf; kf = vKF + 8*kbuf
        A(f"v_mfma_f32_32x32x16_bf16 v[{sd}:{sd+15}], v[{kf}:{kf+3}], v[{q}:{q+3}], {cop}")
        A(f"v_mfma_f32_32x32x8_bf16 v[{sd}:{sd+15}], v[{kf+4}:{kf+5}], v[{q+4}:{q+5}], v[{sd}:{sd+15}]")
    def setaddr(slot, sreg=False):
        if not sreg:
            A(f"v_add_u32 v{vKa}, {L_KM + slot*1024}, v{vKa0}")
            A(f"v_add_u32 v{vVa}, {slot*V_TILE}, v{vVa0}")
            A(f"v_add_u32 v{vXa}, {slot*256}, v{vXa0}")
        else:
            A(f"s_lshl_b32 s{sT0}, s{slot}, 10")
            A(f"v_add_u32 v{vKa}, s{sT0}, v{vKa0}")
            A(f"s_mul_i32 s{sT0}, s{slot}, {V_TILE}")
            A(f"v_add_u32 v{vVa}, s{sT0}, v{vVa0}")
            A(f"s_lshl_b32 s{sT0}, s{slot}, 8")
            A(f"v_add_u32 v{vXa}, s{sT0}, v{vXa0}")
    def adv(n):
        A(f"v_add_u32 v{vKa}, {n*1024}, v{vKa}")
        A(f"v_add_u32 v{vVa}, {n*V_TILE}, v{vVa}")
        A(f"v_add_u32 v{vXa}, {n*256}, v{vXa}")
    def maxtile(sbuf):
        sd = vS + 16*sbuf
        for i in range(8):
            A(f"v_max3_f32 v{vM}, v{sd+2*i}, v{sd+2*i+1}, v{vM}")
    def finish_max(q):
        A(f"v_mov_b32 v{vT}, v{vM}")
        A(f"v_permlane32_swap_b32 v{vM}, v{vT}")
        A(f"v_max_f32 v{vM}, v{vM}, v{vT}")
        A(f"v_sub_f32 v{vT}, 0, v{vM}")
        A(f"v_cvt_pk_bf16_f32 v{vT}, v{vT}, 1.0")
        A(f"v_cmp_gt_u32 vcc, 32, v{vLane}")
        A(f"v_cndmask_b32 v{q+5}, 0, v{vT}, vcc")
    def clear_max(q):
        A(f"v_mov_b32 v{vT}, {ONEHI}")
        A(f"v_cmp_gt_u32 vcc, 32, v{vLane}")
        A(f"v_cndmask_b32 v{q+5}, 0, v{vT}, vcc")
    def pv(g, vbuf):
        vf = vVF + 8*vbuf + 4*g
        A(f"v_mfma_f32_32x32x16_bf16 v[{vO}:{vO+15}], v[{vf}:{vf+3}], v[{vP+4*g}:{vP+4*g+3}], v[{vO}:{vO+15}]")
    def check_l(ok_label):
        A(f"s_nop 12")
        A(f"v_mov_b32 v{vT}, {f2u(2.0**100)}")
        A(f"v_cmp_nlt_f32 vcc, v{vO+10}, v{vT}")
        A(f"s_bfm_b64 s[32:33], 32, 0")
        A(f"s_and_b64 vcc, vcc, s[32:33]")
        A(f"s_cbranch_scc0 {ok_label}")
    def epilogue(br, tq, g):
        A(f"v_mov_b32 v{vT}, v{vO+10}")
        A(f"v_mov_b32 v{vT+1}, v{vO+10}")
        A(f"v_permlane32_swap_b32 v{vT}, v{vT+1}")
        A(f"v_rcp_f32 v{vT+2}, v{vT}")
        if br == 0:
            A(f"v_mul_f32 v{vT+2}, v{vT+2}, v{g}")
        else:
            A(f"v_sub_f32 v{vT+3}, 1.0, v{g}")
            A(f"v_mul_f32 v{vT+2}, v{vT+2}, v{vT+3}")
        for i in range(10): A(f"v_mul_f32 v{vO+i}, v{vO+i}, v{vT+2}")
        for i in range(5): A(f"v_cvt_pk_bf16_f32 v{vP+i}, v{vO+2*i}, v{vO+2*i+1}")
        A(f"s_lshl_b32 s{sT0}, s{tq}, 5")
        A(f"s_add_u32 s{sT0}, s{sT0}, s{sH}")
        A(f"s_lshl_b32 s{sT1}, s{sT0}, 10")
        A(f"s_add_u32 s{sT1}, s{sT1}, {WS_OM + br*64*32*1024}")
        A(f"buffer_store_dwordx4 v[{vP}:{vP+3}], v{vL16}, s[{sWS}:{sWS+3}], s{sT1} offen" + STORE_MOD)
        A(f"s_lshl_b32 s{sT1}, s{sT0}, 7")
        A(f"s_add_u32 s{sT1}, s{sT1}, {WS_OX + br*64*32*128}")
        A(f"v_lshlrev_b32 v{vT+4}, 2, v{vLane}")
        A(f"s_bfm_b64 exec, 32, 0")
        A(f"buffer_store_dword v{vP+4}, v{vT+4}, s[{sWS}:{sWS+3}], s{sT1} offen" + STORE_MOD)
        A(f"s_mov_b64 exec, -1")
    def tile_step(sb, nb, q, cnext, koff, voff, do_qk=True, do_k=True, do_v=True, first=False, pre_qk=None):
        sd = vS + 16*sb
        def e(lo, hi):
            for i in range(lo, hi): A(f"v_exp_f32 v{sd+i}, v{sd+i}")
        def c(lo, hi):
            for i in range(lo, hi): A(f"v_cvt_pk_bf16_f32 v{vP+i}, v{sd+2*i}, v{sd+2*i+1}")
        kf = vKF + 8*nb; sn = vS + 16*nb
        n_after = (2 if do_v else 0) + (2 if do_k else 0)
        m1 = lambda: A(f"v_mfma_f32_32x32x16_bf16 v[{sn}:{sn+15}], v[{kf}:{kf+3}], v[{q}:{q+3}], {cnext}")
        m2 = lambda: A(f"v_mfma_f32_32x32x8_bf16 v[{sn}:{sn+15}], v[{kf+4}:{kf+5}], v[{q+4}:{q+5}], v[{sn}:{sn+15}]")
        if ORDER == 0:
            e(0, 2)
            if not first: pv(1, nb)
            if pre_qk: pre_qk(nb)
            e(2, 6)
            if do_qk:
                A(f"s_waitcnt lgkmcnt(2)")
                m1()
            if do_k: kreads(sb, koff)
            e(6, 8); c(0, 4)
            if do_qk: m2()
            if do_v: vreads(nb, voff)
            e(8, 12)
            A(f"s_waitcnt lgkmcnt({n_after})")
            pv(0, sb)
            e(12, 16); c(4, 8)
        elif ORDER == 1:
            e(0, 2)
            if not first: pv(1, nb)
            if pre_qk: pre_qk(nb)
            e(2, 5)
            if do_qk:
                A(f"s_waitcnt lgkmcnt(2)")
                m1()
            if do_k: kreads(sb, koff)
            e(5, 8)
            c(0, 2)
            if do_qk: m2()
            if do_v: vreads(nb, voff)
            c(2, 4); e(8, 11)
            A(f"s_waitcnt lgkmcnt({n_after})")
            pv(0, sb)
            e(11, 16); c(4, 8)
        elif ORDER == 2:
            if pre_qk: pre_qk(nb)
            e(0, 2)
            if not first: pv(1, nb)
            if do_qk:
                A(f"s_waitcnt lgkmcnt(2)")
                m1()
            if do_k: kreads(sb, koff)
            e(2, 8); c(0, 4)
            if do_qk: m2()
            if do_v: vreads(nb, voff)
            A(f"s_waitcnt lgkmcnt({n_after})")
            pv(0, sb)
            e(8, 16); c(4, 8)

    need_groups(n_imm=1, tag="0")
    stamp(A, 1 if PROF != 2 else 5)
    A(f"s_mov_b32 s{sPass}, 0")
    setaddr(0)
    kreads(0, 0)
    A(f"v_mov_b32 v{vM}, s29")
    A(f"s_waitcnt lgkmcnt(0)")
    qk(0, 0, vQB, "0")
    kreads(0, 0)
    kreads(1, 1)
    vreads(0, 0)
    for r in range(16): A(f"v_mov_b32 v{vO+r}, 0")
    for r in range(4): A(f"v_mov_b32 v{vP+4+r}, 0")
    for r in range(8): A(f"v_mov_b32 v{vVF+8+r}, 0")
    maxtile(0)
    finish_max(vQB)
    A(f"s_waitcnt lgkmcnt(4)")
    qk(0, 0, vQB, "0")
    A(f"s_mov_b32 s{sCnt}, 0")
    A(f"s_mov_b32 s38, 0")
    A(f"s_lshr_b32 s46, s{sWV}, 2")
    A(f"s_nop 7")
    UN = 4
    def prio_toggle(tag):
        if not PRIO: return
        A(f"s_add_u32 s39, s{sCnt}, s38")
        A(f"s_and_b32 s39, s39, {PDUTY-1}")
        A(f"s_cmp_eq_u32 s39, {PDUTY-1}")
        A(f"s_cselect_b32 s39, 0, s46")
        A(f"s_cmp_eq_u32 s39, 1")
        A(f"s_cbranch_scc1 {name}_p1{tag}")
        A(f"s_setprio 0")
        A(f"s_branch {name}_p2{tag}")
        A.label(f"{name}_p1{tag}")
        A(f"s_setprio 1")
        A.label(f"{name}_p2{tag}")
    A.label(f"{name}_bloop0")
    A(f"s_lshl_b32 s{sT1}, s{sCnt}, 2")
    A(f"s_add_u32 s{sT1}, s{sT1}, 13")
    A(f"s_lshr_b32 s{sT1}, s{sT1}, 3")
    need_groups(n_sreg=sT1, tag="l")
    prio_toggle("a")
    for u in range(UN):
        tile_step(u % 2, (u+1) % 2, vQB, "0", u + 2, u + 1)
    adv(UN)
    A(f"s_add_u32 s{sCnt}, s{sCnt}, 1")
    A(f"s_cmp_lt_u32 s{sCnt}, 4")
    A(f"s_cbranch_scc1 {name}_bloop0")
    signal(8)
    need_groups(n_imm=8, tag="m")
    A.label(f"{name}_bloop")
    prio_toggle("b")
    for u in range(UNROLL):
        tile_step(u % 2, (u+1) % 2, vQB, "0", u + 2, u + 1)
    adv(UNROLL)
    A(f"s_add_u32 s{sCnt}, s{sCnt}, {UNROLL // 4}")
    A(f"s_cmp_lt_u32 s{sCnt}, 16")
    A(f"s_cbranch_scc1 {name}_bloop")
    A(f"s_setprio 0")
    A(f"s_nop 1")
    pv(1, 1)
    if PROF != 2: stamp(A, 2)
    A(f"s_waitcnt vmcnt(0)")
    claim_item()
    check_l(f"{name}_bfin")
    A(f"s_add_u32 s43, s{sKMs}, {32<<16}")
    A(f"s_add_u32 s44, s{sVs}, {32*V_HEAD}")
    A(f"s_add_u32 s45, s{sKXs}, {16*16384}")
    clear_max(vQB)
    A(f"v_mov_b32 v{vM}, s29")
    def gk(tile_sreg):
        A(f"s_lshl_b32 s{sT0}, s{tile_sreg}, 10")
        A(f"s_add_u32 s{sT0}, s{sT0}, s43")
        A(f"buffer_load_dwordx2 v[{vKF}:{vKF+1}], v{vQo}, s[{sWS}:{sWS+3}], s{sT0} offen")
        A(f"buffer_load_dwordx2 v[{vKF+2}:{vKF+3}], v{vQo}, s[{sWS}:{sWS+3}], s{sT0} offen offset:512")
        A(f"s_lshl_b32 s{sT0}, s{tile_sreg}, 8")
        A(f"s_add_u32 s{sT0}, s{sT0}, s45")
        A(f"buffer_load_dword v{vKF+4}, v{vXg}, s[{sWS}:{sWS+3}], s{sT0} offen")
    A(f"s_mov_b32 s{sCnt}, 0")
    A.label(f"{name}_bx1")
    gk(sCnt)
    A(f"s_waitcnt vmcnt(0)")
    qk(0, 0, vQB, "0")
    maxtile(0)
    A(f"s_add_u32 s{sCnt}, s{sCnt}, 1")
    A(f"s_cmp_lt_u32 s{sCnt}, 64")
    A(f"s_cbranch_scc1 {name}_bx1")
    finish_max(vQB)
    for r in range(16): A(f"v_mov_b32 v{vO+r}, 0")
    A(f"s_mov_b32 s{sCnt}, 0")
    A.label(f"{name}_bx2")
    gk(sCnt)
    A(f"s_mul_i32 s{sT0}, s{sCnt}, {V_TILE}")
    A(f"s_add_u32 s{sT0}, s{sT0}, s44")
    A(f"buffer_load_dwordx4 v[{vVF}:{vVF+3}], v{vVg}, s[{sWS}:{sWS+3}], s{sT0} offen")
    A(f"buffer_load_dwordx4 v[{vVF+4}:{vVF+7}], v{vVg}, s[{sWS}:{sWS+3}], s{sT0} offen offset:608")
    A(f"s_waitcnt vmcnt(0)")
    qk(0, 0, vQB, "0")
    for i in range(16): A(f"v_exp_f32 v{vS+i}, v{vS+i}")
    for i in range(8): A(f"v_cvt_pk_bf16_f32 v{vP+i}, v{vS+2*i}, v{vS+2*i+1}")
    pv(0, 0); pv(1, 0)
    A(f"s_add_u32 s{sCnt}, s{sCnt}, 1")
    A(f"s_cmp_lt_u32 s{sCnt}, 64")
    A(f"s_cbranch_scc1 {name}_bx2")
    A(f"s_nop 12")
    A.label(f"{name}_bfin")
    epilogue(1, sTQ, vG)
    if PROF != 2: stamp(A, 3)
    A(f"s_cmp_ge_u32 s50, 8")
    A(f"s_cbranch_scc1 {name}_done")
    poll(12, 2, "a")

    A.label(f"{name}_aitem")
    A(f"s_mov_b32 s{sTQ}, s51")
    A(f"s_mov_b32 s53, s50")
    A(f"s_waitcnt vmcnt(2)")
    A(f"v_mov_b32 v{vGC}, v{vGA}")
    qext_fix(vQA)
    def bias_for(i, kbuf):
        A(f"s_cmp_ge_u32 s{sTQ}, {8 - i}")
        A(f"s_cselect_b32 s{sT0}, s36, s37")
        A(f"v_mov_b32 v{vKF + 8*kbuf + 5}, s{sT0}")
    A(f"s_mov_b32 s36, 0x3f80")
    A(f"s_mov_b32 s37, {(NEGB << 16) | 0x3f80}")
    setaddr(53, True)
    A(f"v_mov_b32 v{vM}, s29")
    A(f"s_cmp_eq_u32 s{sTQ}, 0")
    A(f"s_cbranch_scc1 {name}_aref0")
    kreads(0, 7)
    A(f"s_waitcnt lgkmcnt(0)")
    qk(0, 0, vQA, "0")
    A(f"s_branch {name}_aref1")
    A.label(f"{name}_aref0")
    kreads(0, 8)
    A(f"s_waitcnt lgkmcnt(0)")
    qk(0, 0, vQA, f"v[{vMD}:{vMD+15}]")
    A.label(f"{name}_aref1")
    kreads(0, 0)
    kreads(1, 1)
    vreads(0, 0)
    for r in range(16): A(f"v_mov_b32 v{vO+r}, 0")
    maxtile(0)
    finish_max(vQA)
    bias_for(0, 0)
    A(f"s_waitcnt lgkmcnt(4)")
    qk(0, 0, vQA, f"v[{vMF}:{vMF+15}]")
    A(f"s_nop 7")
    for i in range(9):
        pre = (lambda nb, i=i: bias_for(i+1, nb)) if i < 7 else ((lambda nb: A(f"v_mov_b32 v{vKF + 8*nb + 5}, s36")) if i == 7 else None)
        tile_step(i % 2, (i+1) % 2, vQA, (f"v[{vMD}:{vMD+15}]" if i == 7 else "0"), i + 2, i + 1,
                  do_qk=(i < 8), do_k=(i < 7), do_v=(i < 8), first=(i == 0), pre_qk=pre)
    A(f"s_nop 1")
    pv(1, 0)
    A(f"v_mov_b32 v{vKF+5}, s36")
    A(f"v_mov_b32 v{vKF+8+5}, s36")
    check_l(f"{name}_aepi")
    clear_max(vQA)
    A(f"s_sub_u32 s{sI}, 8, s{sTQ}")
    A(f"s_cmp_ge_u32 s{sTQ}, 8")
    A(f"s_cselect_b32 s{sI}, 0, s{sI}")
    A(f"s_mov_b32 s30, s{sI}")
    A(f"s_mov_b32 s31, s53")
    def set_cm_for(i_sreg):
        lab = f"{name}_cm{set_cm_for.n}"; set_cm_for.n += 1
        A(f"s_cmp_eq_u32 s{i_sreg}, 8")
        A(f"s_cbranch_scc1 {lab}_d")
        A(f"s_cmp_eq_u32 s{i_sreg}, 0")
        A(f"s_cbranch_scc1 {lab}_f")
        for r in range(16): A(f"v_mov_b32 v{vCM+r}, 0")
        A(f"s_branch {lab}_e")
        A.label(f"{lab}_d")
        for r in range(16): A(f"v_mov_b32 v{vCM+r}, v{vMD+r}")
        A(f"s_branch {lab}_e")
        A.label(f"{lab}_f")
        for r in range(16): A(f"v_mov_b32 v{vCM+r}, v{vMF+r}")
        A.label(f"{lab}_e")
    set_cm_for.n = 0
    A(f"v_mov_b32 v{vM}, s29")
    A.label(f"{name}_a1")
    A(f"s_add_u32 s{sT1}, s31, s{sI}")
    setaddr(sT1, True)
    kreads(0, 0)
    set_cm_for(sI)
    A(f"s_waitcnt lgkmcnt(0)")
    qk(0, 0, vQA, f"v[{vCM}:{vCM+15}]")
    maxtile(0)
    A(f"s_add_u32 s{sI}, s{sI}, 1")
    A(f"s_cmp_le_u32 s{sI}, 8")
    A(f"s_cbranch_scc1 {name}_a1")
    finish_max(vQA)
    for r in range(16): A(f"v_mov_b32 v{vO+r}, 0")
    A(f"s_mov_b32 s{sI}, s30")
    A.label(f"{name}_a2")
    A(f"s_add_u32 s{sT1}, s31, s{sI}")
    setaddr(sT1, True)
    kreads(0, 0)
    vreads(0, 0)
    set_cm_for(sI)
    A(f"s_waitcnt lgkmcnt(2)")
    qk(0, 0, vQA, f"v[{vCM}:{vCM+15}]")
    for i in range(16): A(f"v_exp_f32 v{vS+i}, v{vS+i}")
    for i in range(8): A(f"v_cvt_pk_bf16_f32 v{vP+i}, v{vS+2*i}, v{vS+2*i+1}")
    A(f"s_waitcnt lgkmcnt(0)")
    pv(0, 0); pv(1, 0)
    A(f"s_add_u32 s{sI}, s{sI}, 1")
    A(f"s_cmp_le_u32 s{sI}, 8")
    A(f"s_cbranch_scc1 {name}_a2")
    A(f"s_nop 12")
    A.label(f"{name}_aepi")
    claim_item()
    epilogue(0, sTQ, vGC)
    A(f"s_cmp_lt_u32 s50, 8")
    A(f"s_cbranch_scc1 {name}_aitem")
    A.label(f"{name}_done")
    if PROF:
        stamp(A, 5 if PROF != 2 else 6)
        stamps_out(A, 1, 7, sWS, sWV, vS)
    rt_end(A, 1, sWV, vS)
    A(f"s_endpgm")

    A.label(f"{name}_loader")
    A(f"s_sub_u32 s35, s{sWV}, 8")
    A(f"s_lshl_b32 s34, s35, 10")
    A(f"s_add_u32 s43, s{sKMs}, {32<<16}")
    A(f"s_add_u32 s44, s{sVs}, {32*V_HEAD}")
    A(f"s_add_u32 s45, s{sKXs}, {16*16384}")
    A(f"s_lshl_b32 s46, s35, 2")
    A(f"v_add_u32 v{vT+8}, s46, v{vCA}")
    A(f"s_mov_b32 s47, -1")
    A(f"s_cmp_eq_u32 s35, 1")
    A(f"s_cselect_b32 s47, 0, s47")
    A("s_waitcnt lgkmcnt(0)")
    srd(A, sWS, 4, 5, WS_SIZE)
    def ld(lds_sreg, src_sreg, off):
        A(f"s_add_u32 m0, s{lds_sreg}, {off}")
        A(f"s_add_u32 s{sT3}, s{src_sreg}, {off}")
        A(f"buffer_load_dwordx4 v{vL16}, s[{sWS}:{sWS+3}], s{sT3} offen lds")
    A(f"s_mov_b32 s{sCnt}, 0")
    A.label(f"{name}_lgrp")
    A(f"s_add_u32 s{sT0}, s{sQB}, s{sCnt}")
    A(f"s_and_b32 s{sT0}, s{sT0}, 7")
    A(f"s_lshl_b32 s48, s{sT0}, 13")
    A(f"s_add_u32 s48, s48, s43")
    A(f"s_add_u32 s48, s48, s34")
    A(f"s_lshl_b32 s49, s{sCnt}, 13")
    A(f"s_add_u32 s49, s49, s34")
    for j in range(4): ld(49, 48, j*2048)
    A(f"s_lshl_b32 s48, s{sT0}, 11")
    A(f"s_add_u32 s48, s48, s45")
    A(f"s_add_u32 s48, s48, s34")
    A(f"s_lshl_b32 s49, s{sCnt}, 11")
    A(f"s_add_u32 s49, s49, s34")
    A(f"s_add_u32 s49, s49, {L_KX}")
    ld(49, 48, 0)
    A(f"s_mul_i32 s48, s{sT0}, {8*V_TILE}")
    A(f"s_add_u32 s48, s48, s44")
    A(f"s_add_u32 s48, s48, s34")
    A(f"s_mul_i32 s49, s{sCnt}, {8*V_TILE}")
    A(f"s_add_u32 s49, s49, s34")
    A(f"s_add_u32 s49, s49, {L_V}")
    for j in range(4): ld(49, 48, j*2048)
    A(f"s_mov_b32 exec_hi, s47")
    ld(49, 48, 4*2048)
    A(f"s_mov_b32 exec_hi, -1")
    A(f"s_cmp_eq_u32 s{sCnt}, 0")
    A(f"s_cbranch_scc0 {name}_lg1")
    A(f"s_barrier")
    A(f"s_branch {name}_lg2")
    A.label(f"{name}_lg1")
    A(f"s_waitcnt vmcnt(10)")
    A(f"v_mov_b32 v{vT}, 1")
    A(f"s_mov_b64 exec, 1")
    A(f"ds_add_u32 v{vT+8}, v{vT}")
    A(f"s_mov_b64 exec, -1")
    A.label(f"{name}_lg2")
    A(f"s_add_u32 s{sCnt}, s{sCnt}, 1")
    A(f"s_cmp_lt_u32 s{sCnt}, 8")
    A(f"s_cbranch_scc1 {name}_lgrp")
    A(f"s_waitcnt vmcnt(0)")
    A(f"v_mov_b32 v{vT}, 1")
    A(f"s_mov_b64 exec, 1")
    A(f"ds_add_u32 v{vT+8}, v{vT}")
    A(f"s_mov_b64 exec, -1")
    poll(8, 8, "ld")
    def lgroup(ldsbase, sreg, n):
        lab = f"{name}_lg_{lgroup.n}"; lgroup.n += 1
        A(f"s_add_u32 s{sT3}, s{sreg}, s34")
        A(f"s_add_u32 s{sT2}, s34, {ldsbase}")
        A(f"s_mov_b32 s{sCnt}, s35")
        A.label(lab)
        A(f"s_mov_b32 m0, s{sT2}")
        A(f"s_add_u32 s{sT2}, s{sT2}, 2048")
        A(f"buffer_load_dwordx4 v{vL16}, s[{sWS}:{sWS+3}], s{sT3} offen lds")
        A(f"s_add_u32 s{sT3}, s{sT3}, 2048")
        A(f"s_add_u32 s{sCnt}, s{sCnt}, 2")
        A(f"s_cmp_lt_u32 s{sCnt}, {n}")
        A(f"s_cbranch_scc1 {lab}")
    lgroup.n = 0
    A(f"s_lshl_b32 s{sI}, s{sQB}, 3")
    A(f"s_sub_u32 s{sI}, s{sI}, 8")
    A(f"s_lshl_b32 s{sT0}, s{sI}, 10")
    A(f"s_add_u32 s28, s{sKMs}, s{sT0}")
    lgroup(L_KM, 28, 16)
    A(f"s_lshl_b32 s{sT0}, s{sI}, 8")
    A(f"s_add_u32 s28, s{sKXs}, s{sT0}")
    lgroup(L_KX, 28, 4)
    A(f"s_mul_i32 s{sT0}, s{sI}, {V_TILE}")
    A(f"s_add_u32 s28, s{sVs}, s{sT0}")
    lgroup(L_V, 28, 19)
    A(f"s_waitcnt vmcnt(0)")
    signal(12)
    if WOPF:
        A(f"s_lshl_b32 s{sT0}, s35, 1")
        A(f"s_mul_i32 s{sT0}, s{sT0}, 12")
        A(f"s_add_u32 s{sT0}, s{sT0}, 16")
        A(f"s_load_dwordx2 s[48:49], s[0:1], s{sT0}")
        A(f"s_lshr_b32 s{sT1}, s2, 3")
        A(f"s_mul_i32 s{sT1}, s{sT1}, {D*D*2 // 32}")
        A(f"v_lshlrev_b32 v{vT+1}, 6, v{vLane}")
        A(f"s_waitcnt lgkmcnt(0)")
        A(f"s_mov_b32 s52, s48")
        A(f"s_and_b32 s53, s49, 0xffff")
        A(f"s_mov_b32 s54, {D*D*2}")
        A(f"s_mov_b32 s55, 0x00020000")
        for j in range(6):
            A(f"buffer_load_dword v{vT+2}, v{vT+1}, s[52:55], s{sT1} offen")
            if j < 5: A(f"s_add_u32 s{sT1}, s{sT1}, 4096")
        A(f"s_waitcnt vmcnt(0)")
    A(f"s_waitcnt lgkmcnt(0)")
    A.label(f"{name}_end")
    A(f"s_endpgm")
    return khead(name) + A.finish(True), kdesc(name, NV, 100)
```

```python
from asmlib import *
from common import *
import os

L_KM = 0
L_V = 65536
L_KX = 65536 + 64*1216
L_CNT = L_KX + 64*256
K2_LDS = L_CNT + 64
K2_THREADS = 640
NEG = f2u(-1.0e30)
NEGB = 0xF149
DBG = int(os.environ.get("DBG", "0"))
PF = int(os.environ.get("PF", "1"))
PRIO = int(os.environ.get("PRIO", "0"))
PDUTY = int(os.environ.get("PDUTY", "4"))
ORDER = int(os.environ.get("ORDER", "0"))
G0 = int(os.environ.get("G0", "0"))
UNROLL = int(os.environ.get("UNROLL", "8"))
WOPF = int(os.environ.get("WOPF", "1"))
ZPAD = int(os.environ.get("ZPAD", "1"))

def gen_k2(name):
    A = Asm()
    sWS = 8
    sH, sQB, sWV, sTQ = 12, 13, 14, 15
    sT0, sT1, sT2, sT3 = 16, 17, 18, 19
    sCnt, sI = 20, 21
    sPass = 22
    sKMs, sVs, sKXs = 24, 25, 26
    vLane = 1
    vL16 = 2
    vKa, vVa, vXa = 3, 4, 5
    vKa0, vVa0, vXa0 = 6, 7, 8
    vG = 9
    vT = 10
    vQA, vQB = 20, 28
    vKF = 36
    vVF = 52
    vS = 68
    vP = 100
    vO = 108
    vMF, vMD = 124, 140
    vCM = vS + 16
    vM = 156
    vCA = 157
    vQo = 34
    vGA, vGC = 26, 27
    vVg, vXg = 158, 159
    NV = 160

    A(f"s_cmp_ge_u32 s2, 256")
    A(f"s_cbranch_scc1 {name}_end")
    stamp(A, 0)
    rt_begin(A)
    A(f"s_load_dwordx2 s[4:5], s[0:1], {ARG['ws']}")
    A(f"v_and_b32 v{vLane}, 63, v0")
    A(f"v_lshrrev_b32 v{vT}, 6, v0")
    A(f"s_and_b32 s{sT0}, s2, 7")
    A(f"v_readfirstlane_b32 s{sWV}, v{vT}")
    A(f"s_lshr_b32 s{sT1}, s2, 3")
    A(f"s_lshl_b32 s{sT0}, s{sT0}, 2")
    A(f"s_and_b32 s{sT2}, s{sT1}, 3")
    A(f"s_add_u32 s{sH}, s{sT0}, s{sT2}")
    A(f"s_lshr_b32 s{sQB}, s{sT1}, 2")
    A(f"v_lshlrev_b32 v{vL16}, 4, v{vLane}")
    A(f"s_lshl_b32 s{sT0}, s{sH}, 16")
    A(f"s_add_u32 s{sKMs}, s{sT0}, {WS_KM}")
    A(f"s_mul_i32 s{sT0}, s{sH}, {V_HEAD}")
    A(f"s_add_u32 s{sVs}, s{sT0}, {WS_V}")
    A(f"s_lshr_b32 s{sT0}, s{sH}, 1")
    A(f"s_lshl_b32 s{sT0}, s{sT0}, 14")
    A(f"s_add_u32 s{sKXs}, s{sT0}, {WS_KX}")
    A(f"v_mov_b32 v{vCA}, {L_CNT}")
    A(f"s_cmp_ge_u32 s{sWV}, 8")
    A(f"s_cbranch_scc1 {name}_loader")

    def dma_run(ldsbase, sreg, woff_sreg, stride, n_full, rem_limit_sreg=None, rem=None, tag=""):
        A(f"s_add_u32 s{sT3}, s{sreg}, s{woff_sreg}")
        A(f"s_add_u32 m0, s{woff_sreg}, {ldsbase}")
        for j in range(n_full):
            A(f"s_nop 0")
            A(f"buffer_load_dwordx4 v{vL16}, s[{sWS}:{sWS+3}], s{sT3} offen lds")
            if j < n_full - 1 or rem:
                A(f"s_add_u32 m0, m0, {stride}")
                A(f"s_add_u32 s{sT3}, s{sT3}, {stride}")
        if rem:
            lab = f"{name}_dg{dma_run.n}"; dma_run.n += 1
            A(f"s_cmp_lt_u32 s{rem_limit_sreg}, {rem}")
            A(f"s_cbranch_scc0 {lab}")
            A(f"buffer_load_dwordx4 v{vL16}, s[{sWS}:{sWS+3}], s{sT3} offen lds")
            A.label(lab)
    dma_run.n = 0
    def group(ldsbase, sreg, n, nw, widx_sreg, woff_sreg):
        dma_run(ldsbase, sreg, woff_sreg, nw*1024, n // nw, widx_sreg, n % nw)
    def poll(off, target, tag):
        A.label(f"{name}_poll{tag}")
        A(f"ds_read_b32 v{vT}, v{vCA} offset:{off}")
        A(f"s_waitcnt lgkmcnt(0)")
        A(f"v_readfirstlane_b32 s{sT0}, v{vT}")
        A(f"s_cmp_ge_u32 s{sT0}, {target}")
        A(f"s_cbranch_scc1 {name}_pollok{tag}")
        A(f"s_sleep 1")
        A(f"s_branch {name}_poll{tag}")
        A.label(f"{name}_pollok{tag}")
    def signal(off):
        A(f"v_mov_b32 v{vT}, 1")
        A(f"s_mov_b64 exec, 1")
        A(f"ds_add_u32 v{vCA}, v{vT} offset:{off}")
        A(f"s_mov_b64 exec, -1")

    A(f"s_lshl_b32 s{sTQ}, s{sQB}, 3")
    A(f"s_add_u32 s{sTQ}, s{sTQ}, s{sWV}")
    A(f"s_cmp_lg_u32 s{sWV}, 0")
    A(f"s_cbranch_scc1 {name}_noinit")
    A(f"v_mov_b32 v{vT+3}, 0")
    A(f"v_lshlrev_b32 v{vT+4}, 2, v{vLane}")
    A(f"v_add_u32 v{vT+4}, {L_CNT}, v{vT+4}")
    A(f"s_mov_b64 exec, 0xffff")
    A(f"ds_write_b32 v{vT+4}, v{vT+3}")
    A(f"s_mov_b64 exec, -1")
    A.label(f"{name}_noinit")
    A(f"v_and_b32 v{vT}, 31, v{vLane}")
    A(f"v_lshlrev_b32 v{vT+1}, 3, v{vT}")
    A(f"s_lshl_b32 s{sT0}, s{sH}, 16")
    A(f"s_lshl_b32 s{sT1}, s{sTQ}, 10")
    A(f"s_add_u32 s40, s{sT0}, s{sT1}")
    A(f"s_lshr_b32 s{sT2}, s{sH}, 1")
    A(f"s_lshl_b32 s{sT2}, s{sT2}, 14")
    A(f"s_and_b32 s{sT1}, s{sH}, 1")
    A(f"s_lshl_b32 s{sT1}, s{sT1}, 2")
    A(f"s_add_u32 s41, s{sT2}, s{sT1}")
    A(f"s_lshl_b32 s{sT1}, s{sTQ}, 8")
    A(f"s_add_u32 s41, s41, s{sT1}")
    A(f"s_add_u32 s41, s41, {WS_QX}")
    A("s_waitcnt lgkmcnt(0)")
    if PROF == 2: stamp(A, 1)
    srd(A, sWS, 4, 5, WS_SIZE)
    A(f"s_add_u32 s{sT0}, s40, {WS_QM + (32<<16)}")
    A(f"v_lshrrev_b32 v{vT+2}, 5, v{vLane}")
    A(f"v_lshl_add_u32 v{vQo}, v{vT+2}, 8, v{vT+1}")
    A(f"buffer_load_dwordx2 v[{vQB}:{vQB+1}], v{vQo}, s[{sWS}:{sWS+3}], s{sT0} offen")
    A(f"buffer_load_dwordx2 v[{vQB+2}:{vQB+3}], v{vQo}, s[{sWS}:{sWS+3}], s{sT0} offen offset:512")
    A(f"s_add_u32 s{sT0}, s41, {16*16384}")
    A(f"buffer_load_dword v{vQB+4}, v{vT+1}, s[{sWS}:{sWS+3}], s{sT0} offen")
    if G0:
        A(f"s_lshl_b32 s34, s{sWV}, 10")
        A(f"s_lshl_b32 s{sT0}, s{sQB}, 13")
        A(f"s_add_u32 s{sT0}, s{sT0}, s{sKMs}")
        A(f"s_add_u32 s{sT0}, s{sT0}, {32<<16}")
        A(f"s_add_u32 s{sT0}, s{sT0}, s34")
        A(f"s_mov_b32 m0, s34")
        A(f"s_mul_i32 s{sT1}, s{sQB}, {8*V_TILE}")
        A(f"buffer_load_dwordx4 v{vL16}, s[{sWS}:{sWS+3}], s{sT0} offen lds")
        A(f"s_add_u32 s{sT1}, s{sT1}, s{sVs}")
        A(f"s_add_u32 s{sT1}, s{sT1}, {32*V_HEAD}")
        A(f"s_add_u32 s{sT0}, s{sT1}, s34")
        A(f"s_add_u32 m0, s34, {L_V}")
        A(f"s_nop 0")
        A(f"buffer_load_dwordx4 v{vL16}, s[{sWS}:{sWS+3}], s{sT0} offen lds")
        A(f"s_cmp_lt_u32 s{sWV}, 2")
        A(f"s_cbranch_scc0 {name}_g0x")
        A(f"s_add_u32 s{sT0}, s{sT0}, 8192")
        A(f"s_add_u32 m0, s34, {L_V + 8192}")
        A(f"s_cmp_eq_u32 s{sWV}, 1")
        A(f"s_cselect_b32 s{sT2}, 0, -1")
        A(f"s_mov_b32 exec_hi, s{sT2}")
        A(f"buffer_load_dwordx4 v{vL16}, s[{sWS}:{sWS+3}], s{sT0} offen lds")
        A(f"s_mov_b32 exec_hi, -1")
        A(f"s_branch {name}_g0e")
        A.label(f"{name}_g0x")
        A(f"s_cmp_lt_u32 s{sWV}, 4")
        A(f"s_cbranch_scc0 {name}_g0e")
        A(f"s_lshl_b32 s{sT0}, s{sQB}, 11")
        A(f"s_add_u32 s{sT0}, s{sT0}, s{sKXs}")
        A(f"s_add_u32 s{sT0}, s{sT0}, {16*16384}")
        A(f"s_sub_u32 s{sT2}, s34, 2048")
        A(f"s_add_u32 s{sT0}, s{sT0}, s{sT2}")
        A(f"s_add_u32 m0, s{sT2}, {L_KX}")
        A(f"s_nop 0")
        A(f"buffer_load_dwordx4 v{vL16}, s[{sWS}:{sWS+3}], s{sT0} offen lds")
        A.label(f"{name}_g0e")
    A(f"s_barrier")
    if PROF == 2: stamp(A, 2)
    A(f"v_lshrrev_b32 v{vT+1}, 5, v{vLane}")
    A(f"v_mov_b32 v{vT+2}, 4")
    A(f"v_subrev_u32 v{vT+3}, 20, v{vT}")
    A(f"v_cmp_gt_u32 vcc, 8, v{vT+3}")
    A(f"v_cndmask_b32 v{vT+2}, v{vT+2}, 0, vcc")
    A(f"v_cmp_gt_u32 vcc, 19, v{vT}")
    A(f"v_cndmask_b32 v{vT+2}, v{vT+2}, v{vT}, vcc")
    A(f"v_mul_u32_u24 v{vVg}, 304, v{vT+1}")
    A(f"v_lshl_add_u32 v{vVg}, v{vT+2}, 4, v{vVg}")
    A(f"v_add_u32 v{vVa0}, {L_V}, v{vVg}")
    if ZPAD:
        A(f"v_cmp_gt_u32 vcc, 19, v{vT}")
        A(f"v_mov_b32 v{vT+3}, 0x40000")
        A(f"v_cndmask_b32 v{vVa0}, v{vT+3}, v{vVa0}, vcc")
    A(f"v_lshlrev_b32 v{vKa0}, 3, v{vT}")
    A(f"v_lshl_add_u32 v{vKa0}, v{vT+1}, 8, v{vKa0}")
    A(f"s_and_b32 s{sT0}, s{sH}, 1")
    A(f"s_lshl_b32 s{sT0}, s{sT0}, 2")
    A(f"v_lshlrev_b32 v{vXg}, 3, v{vT}")
    A(f"v_add_u32 v{vXg}, s{sT0}, v{vXg}")
    A(f"v_add_u32 v{vXa0}, {L_KX}, v{vXg}")
    if ZPAD:
        A(f"v_cmp_gt_u32 vcc, 32, v{vLane}")
        A(f"v_cndmask_b32 v{vXa0}, v{vT+3}, v{vXa0}, vcc")
    A(f"v_mov_b32 v{vKF+5}, 0x3f80")
    A(f"v_mov_b32 v{vKF+8+5}, 0x3f80")
    A(f"v_lshlrev_b32 v{vT+4}, 2, v{vT+1}")
    A(f"v_sub_u32 v{vT+4}, v{vT}, v{vT+4}")
    A(f"s_mov_b32 s29, {NEG}")
    for r in range(16):
        c = 8*(r//4) + r % 4
        A(f"v_subrev_u32 v{vT+5}, {c}, v{vT+4}")
        A(f"v_ashrrev_i32 v{vT+5}, 31, v{vT+5}")
        A(f"v_and_b32 v{vMD+r}, s29, v{vT+5}")
        A(f"v_xor_b32 v{vMF+r}, s29, v{vMD+r}")
    ONEHI = 0x3f800000
    def qext_fix(q):
        A(f"v_cmp_gt_u32 vcc, 32, v{vLane}")
        A(f"v_mov_b32 v{vT+6}, {ONEHI}")
        A(f"v_cndmask_b32 v{q+4}, 0, v{q+4}, vcc")
        A(f"v_cndmask_b32 v{q+5}, 0, v{vT+6}, vcc")
    if PROF == 2: stamp(A, 3)
    A(f"s_waitcnt vmcnt(0)")
    if PROF == 2: stamp(A, 4)
    if G0: A(f"s_barrier")
    qext_fix(vQB)
    A(f"v_and_b32 v{vT}, 31, v{vLane}")
    A(f"v_lshlrev_b32 v{vT+2}, 2, v{vT}")
    A(f"s_lshl_b32 s{sT0}, s{sTQ}, 7")
    A(f"s_add_u32 s{sT0}, s{sT0}, {WS_G}")
    A(f"buffer_load_dword v{vG}, v{vT+2}, s[{sWS}:{sWS+3}], s{sT0} offen")
    def claim_item():
        lab = f"{name}_claim{claim_item.n}"; claim_item.n += 1
        A(f"v_mov_b32 v{vT}, 1")
        A(f"s_mov_b64 exec, 1")
        A(f"ds_add_rtn_u32 v{vT+1}, v{vCA}, v{vT} offset:16")
        A(f"s_mov_b64 exec, -1")
        A(f"s_waitcnt lgkmcnt(0)")
        A(f"v_readfirstlane_b32 s50, v{vT+1}")
        A(f"s_cmp_ge_u32 s50, 8")
        A(f"s_cbranch_scc1 {lab}")
        A(f"s_lshl_b32 s51, s{sQB}, 3")
        A(f"s_add_u32 s51, s51, s50")
        A(f"s_lshl_b32 s{sT0}, s{sH}, 16")
        A(f"s_lshl_b32 s{sT1}, s51, 10")
        A(f"s_add_u32 s{sT0}, s{sT0}, s{sT1}")
        A(f"buffer_load_dwordx2 v[{vQA}:{vQA+1}], v{vQo}, s[{sWS}:{sWS+3}], s{sT0} offen")
        A(f"buffer_load_dwordx2 v[{vQA+2}:{vQA+3}], v{vQo}, s[{sWS}:{sWS+3}], s{sT0} offen offset:512")
        A(f"s_lshl_b32 s{sT1}, s51, 8")
        A(f"s_add_u32 s{sT1}, s{sT1}, s52")
        A(f"v_and_b32 v{vT}, 31, v{vLane}")
        A(f"v_lshlrev_b32 v{vT+1}, 3, v{vT}")
        A(f"buffer_load_dword v{vQA+4}, v{vT+1}, s[{sWS}:{sWS+3}], s{sT1} offen")
        A(f"v_lshlrev_b32 v{vT+2}, 2, v{vT}")
        A(f"s_lshl_b32 s{sT0}, s51, 7")
        A(f"s_add_u32 s{sT0}, s{sT0}, {WS_G}")
        A(f"buffer_load_dword v{vGA}, v{vT+2}, s[{sWS}:{sWS+3}], s{sT0} offen")
        A.label(lab)
    claim_item.n = 0
    A(f"s_lshr_b32 s52, s{sH}, 1")
    A(f"s_lshl_b32 s52, s52, 14")
    A(f"s_and_b32 s{sT1}, s{sH}, 1")
    A(f"s_lshl_b32 s{sT1}, s{sT1}, 2")
    A(f"s_add_u32 s52, s52, s{sT1}")
    A(f"s_add_u32 s52, s52, {WS_QX}")
    def need_groups(n_imm=None, n_sreg=None, tag=""):
        tgt = f"{n_imm}" if n_imm is not None else f"s{n_sreg}"
        A(f"s_cmp_ge_u32 s42, {tgt}")
        A(f"s_cbranch_scc1 {name}_ng_ok{tag}")
        A.label(f"{name}_ng{tag}")
        A(f"ds_read_b64 v[{vT}:{vT+1}], v{vCA}")
        A(f"s_waitcnt lgkmcnt(0)")
        A(f"v_min_u32 v{vT}, v{vT}, v{vT+1}")
        A(f"v_readfirstlane_b32 s42, v{vT}")
        A(f"s_cmp_ge_u32 s42, {tgt}")
        A(f"s_cbranch_scc1 {name}_ng_ok{tag}")
        A(f"s_sleep 1")
        A(f"s_branch {name}_ng{tag}")
        A.label(f"{name}_ng_ok{tag}")
    A(f"s_mov_b32 s42, 0")

    def kreads(buf, off_slot):
        kf = vKF + 8*buf
        A(f"ds_read2st64_b64 v[{kf}:{kf+3}], v{vKa} offset0:{2*off_slot} offset1:{2*off_slot+1}")
        A(f"ds_read_b32 v{kf+4}, v{vXa} offset:{off_slot*256}")
    def vreads(buf, off_slot):
        vf = vVF + 8*buf
        A(f"ds_read_b128 v[{vf}:{vf+3}], v{vVa} offset:{off_slot*V_TILE}")
        A(f"ds_read_b128 v[{vf+4}:{vf+7}], v{vVa} offset:{off_slot*V_TILE+608}")
    def qk(sbuf, kbuf, q, cop):
        sd = vS + 16*sbuf; kf = vKF + 8*kbuf
        A(f"v_mfma_f32_32x32x16_bf16 v[{sd}:{sd+15}], v[{kf}:{kf+3}], v[{q}:{q+3}], {cop}")
        A(f"v_mfma_f32_32x32x8_bf16 v[{sd}:{sd+15}], v[{kf+4}:{kf+5}], v[{q+4}:{q+5}], v[{sd}:{sd+15}]")
    def setaddr(slot, sreg=False):
        if not sreg:
            A(f"v_add_u32 v{vKa}, {L_KM + slot*1024}, v{vKa0}")
            A(f"v_add_u32 v{vVa}, {slot*V_TILE}, v{vVa0}")
            A(f"v_add_u32 v{vXa}, {slot*256}, v{vXa0}")
        else:
            A(f"s_lshl_b32 s{sT0}, s{slot}, 10")
            A(f"v_add_u32 v{vKa}, s{sT0}, v{vKa0}")
            A(f"s_mul_i32 s{sT0}, s{slot}, {V_TILE}")
            A(f"v_add_u32 v{vVa}, s{sT0}, v{vVa0}")
            A(f"s_lshl_b32 s{sT0}, s{slot}, 8")
            A(f"v_add_u32 v{vXa}, s{sT0}, v{vXa0}")
    def adv(n):
        A(f"v_add_u32 v{vKa}, {n*1024}, v{vKa}")
        A(f"v_add_u32 v{vVa}, {n*V_TILE}, v{vVa}")
        A(f"v_add_u32 v{vXa}, {n*256}, v{vXa}")
    def maxtile(sbuf):
        sd = vS + 16*sbuf
        for i in range(8):
            A(f"v_max3_f32 v{vM}, v{sd+2*i}, v{sd+2*i+1}, v{vM}")
    def finish_max(q):
        A(f"v_mov_b32 v{vT}, v{vM}")
        A(f"v_permlane32_swap_b32 v{vM}, v{vT}")
        A(f"v_max_f32 v{vM}, v{vM}, v{vT}")
        A(f"v_sub_f32 v{vT}, 0, v{vM}")
        A(f"v_cvt_pk_bf16_f32 v{vT}, v{vT}, 1.0")
        A(f"v_cmp_gt_u32 vcc, 32, v{vLane}")
        A(f"v_cndmask_b32 v{q+5}, 0, v{vT}, vcc")
    def clear_max(q):
        A(f"v_mov_b32 v{vT}, {ONEHI}")
        A(f"v_cmp_gt_u32 vcc, 32, v{vLane}")
        A(f"v_cndmask_b32 v{q+5}, 0, v{vT}, vcc")
    def pv(g, vbuf):
        vf = vVF + 8*vbuf + 4*g
        A(f"v_mfma_f32_32x32x16_bf16 v[{vO}:{vO+15}], v[{vf}:{vf+3}], v[{vP+4*g}:{vP+4*g+3}], v[{vO}:{vO+15}]")
    def check_l(ok_label):
        A(f"s_nop 12")
        A(f"v_mov_b32 v{vT}, {f2u(2.0**100)}")
        A(f"v_cmp_nlt_f32 vcc, v{vO+10}, v{vT}")
        A(f"s_bfm_b64 s[32:33], 32, 0")
        A(f"s_and_b64 vcc, vcc, s[32:33]")
        A(f"s_cbranch_scc0 {ok_label}")
    def epilogue(br, tq, g):
        A(f"v_mov_b32 v{vT}, v{vO+10}")
        A(f"v_mov_b32 v{vT+1}, v{vO+10}")
        A(f"v_permlane32_swap_b32 v{vT}, v{vT+1}")
        A(f"v_rcp_f32 v{vT+2}, v{vT}")
        if br == 0:
            A(f"v_mul_f32 v{vT+2}, v{vT+2}, v{g}")
        else:
            A(f"v_sub_f32 v{vT+3}, 1.0, v{g}")
            A(f"v_mul_f32 v{vT+2}, v{vT+2}, v{vT+3}")
        for i in range(10): A(f"v_mul_f32 v{vO+i}, v{vO+i}, v{vT+2}")
        for i in range(5): A(f"v_cvt_pk_bf16_f32 v{vP+i}, v{vO+2*i}, v{vO+2*i+1}")
        A(f"s_lshl_b32 s{sT0}, s{tq}, 5")
        A(f"s_add_u32 s{sT0}, s{sT0}, s{sH}")
        A(f"s_lshl_b32 s{sT1}, s{sT0}, 10")
        A(f"s_add_u32 s{sT1}, s{sT1}, {WS_OM + br*64*32*1024}")
        A(f"buffer_store_dwordx4 v[{vP}:{vP+3}], v{vL16}, s[{sWS}:{sWS+3}], s{sT1} offen" + STORE_MOD)
        A(f"s_lshl_b32 s{sT1}, s{sT0}, 7")
        A(f"s_add_u32 s{sT1}, s{sT1}, {WS_OX + br*64*32*128}")
        A(f"v_lshlrev_b32 v{vT+4}, 2, v{vLane}")
        A(f"s_bfm_b64 exec, 32, 0")
        A(f"buffer_store_dword v{vP+4}, v{vT+4}, s[{sWS}:{sWS+3}], s{sT1} offen" + STORE_MOD)
        A(f"s_mov_b64 exec, -1")
    def tile_step(sb, nb, q, cnext, koff, voff, do_qk=True, do_k=True, do_v=True, first=False, pre_qk=None):
        sd = vS + 16*sb
        def e(lo, hi):
            for i in range(lo, hi): A(f"v_exp_f32 v{sd+i}, v{sd+i}")
        def c(lo, hi):
            for i in range(lo, hi): A(f"v_cvt_pk_bf16_f32 v{vP+i}, v{sd+2*i}, v{sd+2*i+1}")
        kf = vKF + 8*nb; sn = vS + 16*nb
        n_after = (2 if do_v else 0) + (2 if do_k else 0)
        m1 = lambda: A(f"v_mfma_f32_32x32x16_bf16 v[{sn}:{sn+15}], v[{kf}:{kf+3}], v[{q}:{q+3}], {cnext}")
        m2 = lambda: A(f"v_mfma_f32_32x32x8_bf16 v[{sn}:{sn+15}], v[{kf+4}:{kf+5}], v[{q+4}:{q+5}], v[{sn}:{sn+15}]")
        if ORDER == 0:
            e(0, 2)
            if not first: pv(1, nb)
            if pre_qk: pre_qk(nb)
            e(2, 6)
            if do_qk:
                A(f"s_waitcnt lgkmcnt(2)")
                m1()
            if do_k: kreads(sb, koff)
            e(6, 8); c(0, 4)
            if do_qk: m2()
            if do_v: vreads(nb, voff)
            e(8, 12)
            A(f"s_waitcnt lgkmcnt({n_after})")
            pv(0, sb)
            e(12, 16); c(4, 8)
        elif ORDER == 1:
            e(0, 2)
            if not first: pv(1, nb)
            if pre_qk: pre_qk(nb)
            e(2, 5)
            if do_qk:
                A(f"s_waitcnt lgkmcnt(2)")
                m1()
            if do_k: kreads(sb, koff)
            e(5, 8)
            c(0, 2)
            if do_qk: m2()
            if do_v: vreads(nb, voff)
            c(2, 4); e(8, 11)
            A(f"s_waitcnt lgkmcnt({n_after})")
            pv(0, sb)
            e(11, 16); c(4, 8)
        elif ORDER == 2:
            if pre_qk: pre_qk(nb)
            e(0, 2)
            if not first: pv(1, nb)
            if do_qk:
                A(f"s_waitcnt lgkmcnt(2)")
                m1()
            if do_k: kreads(sb, koff)
            e(2, 8); c(0, 4)
            if do_qk: m2()
            if do_v: vreads(nb, voff)
            A(f"s_waitcnt lgkmcnt({n_after})")
            pv(0, sb)
            e(8, 16); c(4, 8)

    if not G0: need_groups(n_imm=1, tag="0")
    stamp(A, 1 if PROF != 2 else 5)
    A(f"s_mov_b32 s{sPass}, 0")
    setaddr(0)
    kreads(0, 0)
    A(f"v_mov_b32 v{vM}, s29")
    A(f"s_waitcnt lgkmcnt(0)")
    qk(0, 0, vQB, "0")
    kreads(0, 0)
    kreads(1, 1)
    vreads(0, 0)
    for r in range(16): A(f"v_mov_b32 v{vO+r}, 0")
    for r in range(4): A(f"v_mov_b32 v{vP+4+r}, 0")
    for r in range(8): A(f"v_mov_b32 v{vVF+8+r}, 0")
    maxtile(0)
    finish_max(vQB)
    A(f"s_waitcnt lgkmcnt(4)")
    qk(0, 0, vQB, "0")
    A(f"s_mov_b32 s{sCnt}, 0")
    A(f"s_mov_b32 s38, 0")
    A(f"s_lshr_b32 s46, s{sWV}, 2")
    A(f"s_nop 7")
    UN = 4
    def prio_toggle(tag):
        if not PRIO: return
        A(f"s_add_u32 s39, s{sCnt}, s38")
        A(f"s_and_b32 s39, s39, {PDUTY-1}")
        A(f"s_cmp_eq_u32 s39, {PDUTY-1}")
        A(f"s_cselect_b32 s39, 0, s46")
        A(f"s_cmp_eq_u32 s39, 1")
        A(f"s_cbranch_scc1 {name}_p1{tag}")
        A(f"s_setprio 0")
        A(f"s_branch {name}_p2{tag}")
        A.label(f"{name}_p1{tag}")
        A(f"s_setprio 1")
        A.label(f"{name}_p2{tag}")
    A.label(f"{name}_bloop0")
    A(f"s_lshl_b32 s{sT1}, s{sCnt}, 2")
    A(f"s_add_u32 s{sT1}, s{sT1}, 13")
    A(f"s_lshr_b32 s{sT1}, s{sT1}, 3")
    need_groups(n_sreg=sT1, tag="l")
    prio_toggle("a")
    for u in range(UN):
        tile_step(u % 2, (u+1) % 2, vQB, "0", u + 2, u + 1)
    adv(UN)
    A(f"s_add_u32 s{sCnt}, s{sCnt}, 1")
    A(f"s_cmp_lt_u32 s{sCnt}, 4")
    A(f"s_cbranch_scc1 {name}_bloop0")
    signal(8)
    need_groups(n_imm=8, tag="m")
    A.label(f"{name}_bloop")
    prio_toggle("b")
    for u in range(UNROLL):
        tile_step(u % 2, (u+1) % 2, vQB, "0", u + 2, u + 1)
    adv(UNROLL)
    A(f"s_add_u32 s{sCnt}, s{sCnt}, {UNROLL // 4}")
    A(f"s_cmp_lt_u32 s{sCnt}, 16")
    A(f"s_cbranch_scc1 {name}_bloop")
    A(f"s_setprio 0")
    A(f"s_nop 1")
    pv(1, 1)
    if PROF != 2: stamp(A, 2)
    A(f"s_waitcnt vmcnt(0)")
    claim_item()
    check_l(f"{name}_bfin")
    A(f"s_add_u32 s43, s{sKMs}, {32<<16}")
    A(f"s_add_u32 s44, s{sVs}, {32*V_HEAD}")
    A(f"s_add_u32 s45, s{sKXs}, {16*16384}")
    clear_max(vQB)
    A(f"v_mov_b32 v{vM}, s29")
    def gk(tile_sreg):
        A(f"s_lshl_b32 s{sT0}, s{tile_sreg}, 10")
        A(f"s_add_u32 s{sT0}, s{sT0}, s43")
        A(f"buffer_load_dwordx2 v[{vKF}:{vKF+1}], v{vQo}, s[{sWS}:{sWS+3}], s{sT0} offen")
        A(f"buffer_load_dwordx2 v[{vKF+2}:{vKF+3}], v{vQo}, s[{sWS}:{sWS+3}], s{sT0} offen offset:512")
        A(f"s_lshl_b32 s{sT0}, s{tile_sreg}, 8")
        A(f"s_add_u32 s{sT0}, s{sT0}, s45")
        A(f"buffer_load_dword v{vKF+4}, v{vXg}, s[{sWS}:{sWS+3}], s{sT0} offen")
    A(f"s_mov_b32 s{sCnt}, 0")
    A.label(f"{name}_bx1")
    gk(sCnt)
    A(f"s_waitcnt vmcnt(0)")
    qk(0, 0, vQB, "0")
    maxtile(0)
    A(f"s_add_u32 s{sCnt}, s{sCnt}, 1")
    A(f"s_cmp_lt_u32 s{sCnt}, 64")
    A(f"s_cbranch_scc1 {name}_bx1")
    finish_max(vQB)
    for r in range(16): A(f"v_mov_b32 v{vO+r}, 0")
    A(f"s_mov_b32 s{sCnt}, 0")
    A.label(f"{name}_bx2")
    gk(sCnt)
    A(f"s_mul_i32 s{sT0}, s{sCnt}, {V_TILE}")
    A(f"s_add_u32 s{sT0}, s{sT0}, s44")
    A(f"buffer_load_dwordx4 v[{vVF}:{vVF+3}], v{vVg}, s[{sWS}:{sWS+3}], s{sT0} offen")
    A(f"buffer_load_dwordx4 v[{vVF+4}:{vVF+7}], v{vVg}, s[{sWS}:{sWS+3}], s{sT0} offen offset:608")
    A(f"s_waitcnt vmcnt(0)")
    qk(0, 0, vQB, "0")
    for i in range(16): A(f"v_exp_f32 v{vS+i}, v{vS+i}")
    for i in range(8): A(f"v_cvt_pk_bf16_f32 v{vP+i}, v{vS+2*i}, v{vS+2*i+1}")
    pv(0, 0); pv(1, 0)
    A(f"s_add_u32 s{sCnt}, s{sCnt}, 1")
    A(f"s_cmp_lt_u32 s{sCnt}, 64")
    A(f"s_cbranch_scc1 {name}_bx2")
    A(f"s_nop 12")
    A.label(f"{name}_bfin")
    epilogue(1, sTQ, vG)
    if PROF != 2: stamp(A, 3)
    A(f"s_cmp_ge_u32 s50, 8")
    A(f"s_cbranch_scc1 {name}_done")
    poll(12, 2, "a")

    A.label(f"{name}_aitem")
    A(f"s_mov_b32 s{sTQ}, s51")
    A(f"s_mov_b32 s53, s50")
    A(f"s_waitcnt vmcnt(2)")
    A(f"v_mov_b32 v{vGC}, v{vGA}")
    qext_fix(vQA)
    def bias_for(i, kbuf):
        A(f"s_cmp_ge_u32 s{sTQ}, {8 - i}")
        A(f"s_cselect_b32 s{sT0}, s36, s37")
        A(f"v_mov_b32 v{vKF + 8*kbuf + 5}, s{sT0}")
    A(f"s_mov_b32 s36, 0x3f80")
    A(f"s_mov_b32 s37, {(NEGB << 16) | 0x3f80}")
    setaddr(53, True)
    A(f"v_mov_b32 v{vM}, s29")
    A(f"s_cmp_eq_u32 s{sTQ}, 0")
    A(f"s_cbranch_scc1 {name}_aref0")
    kreads(0, 7)
    A(f"s_waitcnt lgkmcnt(0)")
    qk(0, 0, vQA, "0")
    A(f"s_branch {name}_aref1")
    A.label(f"{name}_aref0")
    kreads(0, 8)
    A(f"s_waitcnt lgkmcnt(0)")
    qk(0, 0, vQA, f"v[{vMD}:{vMD+15}]")
    A.label(f"{name}_aref1")
    kreads(0, 0)
    kreads(1, 1)
    vreads(0, 0)
    for r in range(16): A(f"v_mov_b32 v{vO+r}, 0")
    maxtile(0)
    finish_max(vQA)
    bias_for(0, 0)
    A(f"s_waitcnt lgkmcnt(4)")
    qk(0, 0, vQA, f"v[{vMF}:{vMF+15}]")
    A(f"s_nop 7")
    for i in range(9):
        pre = (lambda nb, i=i: bias_for(i+1, nb)) if i < 7 else ((lambda nb: A(f"v_mov_b32 v{vKF + 8*nb + 5}, s36")) if i == 7 else None)
        tile_step(i % 2, (i+1) % 2, vQA, (f"v[{vMD}:{vMD+15}]" if i == 7 else "0"), i + 2, i + 1,
                  do_qk=(i < 8), do_k=(i < 7), do_v=(i < 8), first=(i == 0), pre_qk=pre)
    A(f"s_nop 1")
    pv(1, 0)
    A(f"v_mov_b32 v{vKF+5}, s36")
    A(f"v_mov_b32 v{vKF+8+5}, s36")
    check_l(f"{name}_aepi")
    clear_max(vQA)
    A(f"s_sub_u32 s{sI}, 8, s{sTQ}")
    A(f"s_cmp_ge_u32 s{sTQ}, 8")
    A(f"s_cselect_b32 s{sI}, 0, s{sI}")
    A(f"s_mov_b32 s30, s{sI}")
    A(f"s_mov_b32 s31, s53")
    def set_cm_for(i_sreg):
        lab = f"{name}_cm{set_cm_for.n}"; set_cm_for.n += 1
        A(f"s_cmp_eq_u32 s{i_sreg}, 8")
        A(f"s_cbranch_scc1 {lab}_d")
        A(f"s_cmp_eq_u32 s{i_sreg}, 0")
        A(f"s_cbranch_scc1 {lab}_f")
        for r in range(16): A(f"v_mov_b32 v{vCM+r}, 0")
        A(f"s_branch {lab}_e")
        A.label(f"{lab}_d")
        for r in range(16): A(f"v_mov_b32 v{vCM+r}, v{vMD+r}")
        A(f"s_branch {lab}_e")
        A.label(f"{lab}_f")
        for r in range(16): A(f"v_mov_b32 v{vCM+r}, v{vMF+r}")
        A.label(f"{lab}_e")
    set_cm_for.n = 0
    A(f"v_mov_b32 v{vM}, s29")
    A.label(f"{name}_a1")
    A(f"s_add_u32 s{sT1}, s31, s{sI}")
    setaddr(sT1, True)
    kreads(0, 0)
    set_cm_for(sI)
    A(f"s_waitcnt lgkmcnt(0)")
    qk(0, 0, vQA, f"v[{vCM}:{vCM+15}]")
    maxtile(0)
    A(f"s_add_u32 s{sI}, s{sI}, 1")
    A(f"s_cmp_le_u32 s{sI}, 8")
    A(f"s_cbranch_scc1 {name}_a1")
    finish_max(vQA)
    for r in range(16): A(f"v_mov_b32 v{vO+r}, 0")
    A(f"s_mov_b32 s{sI}, s30")
    A.label(f"{name}_a2")
    A(f"s_add_u32 s{sT1}, s31, s{sI}")
    setaddr(sT1, True)
    kreads(0, 0)
    vreads(0, 0)
    set_cm_for(sI)
    A(f"s_waitcnt lgkmcnt(2)")
    qk(0, 0, vQA, f"v[{vCM}:{vCM+15}]")
    for i in range(16): A(f"v_exp_f32 v{vS+i}, v{vS+i}")
    for i in range(8): A(f"v_cvt_pk_bf16_f32 v{vP+i}, v{vS+2*i}, v{vS+2*i+1}")
    A(f"s_waitcnt lgkmcnt(0)")
    pv(0, 0); pv(1, 0)
    A(f"s_add_u32 s{sI}, s{sI}, 1")
    A(f"s_cmp_le_u32 s{sI}, 8")
    A(f"s_cbranch_scc1 {name}_a2")
    A(f"s_nop 12")
    A.label(f"{name}_aepi")
    claim_item()
    epilogue(0, sTQ, vGC)
    A(f"s_cmp_lt_u32 s50, 8")
    A(f"s_cbranch_scc1 {name}_aitem")
    A.label(f"{name}_done")
    if PROF:
        stamp(A, 5 if PROF != 2 else 6)
        stamps_out(A, 1, 7, sWS, sWV, vS)
    rt_end(A, 1, sWV, vS)
    A(f"s_endpgm")

    A.label(f"{name}_loader")
    A(f"s_sub_u32 s35, s{sWV}, 8")
    A(f"s_lshl_b32 s34, s35, 10")
    A(f"s_add_u32 s43, s{sKMs}, {32<<16}")
    A(f"s_add_u32 s44, s{sVs}, {32*V_HEAD}")
    A(f"s_add_u32 s45, s{sKXs}, {16*16384}")
    A(f"s_lshl_b32 s46, s35, 2")
    A(f"v_add_u32 v{vT+8}, s46, v{vCA}")
    A(f"s_mov_b32 s47, -1")
    A(f"s_cmp_eq_u32 s35, 1")
    A(f"s_cselect_b32 s47, 0, s47")
    A("s_waitcnt lgkmcnt(0)")
    srd(A, sWS, 4, 5, WS_SIZE)
    def ld(lds_sreg, src_sreg, off):
        A(f"s_add_u32 m0, s{lds_sreg}, {off}")
        A(f"s_add_u32 s{sT3}, s{src_sreg}, {off}")
        A(f"buffer_load_dwordx4 v{vL16}, s[{sWS}:{sWS+3}], s{sT3} offen lds")
    A(f"s_mov_b32 s{sCnt}, {1 if G0 else 0}")
    A.label(f"{name}_lgrp")
    A(f"s_add_u32 s{sT0}, s{sQB}, s{sCnt}")
    A(f"s_and_b32 s{sT0}, s{sT0}, 7")
    A(f"s_lshl_b32 s48, s{sT0}, 13")
    A(f"s_add_u32 s48, s48, s43")
    A(f"s_add_u32 s48, s48, s34")
    A(f"s_lshl_b32 s49, s{sCnt}, 13")
    A(f"s_add_u32 s49, s49, s34")
    for j in range(4): ld(49, 48, j*2048)
    A(f"s_lshl_b32 s48, s{sT0}, 11")
    A(f"s_add_u32 s48, s48, s45")
    A(f"s_add_u32 s48, s48, s34")
    A(f"s_lshl_b32 s49, s{sCnt}, 11")
    A(f"s_add_u32 s49, s49, s34")
    A(f"s_add_u32 s49, s49, {L_KX}")
    ld(49, 48, 0)
    A(f"s_mul_i32 s48, s{sT0}, {8*V_TILE}")
    A(f"s_add_u32 s48, s48, s44")
    A(f"s_add_u32 s48, s48, s34")
    A(f"s_mul_i32 s49, s{sCnt}, {8*V_TILE}")
    A(f"s_add_u32 s49, s49, s34")
    A(f"s_add_u32 s49, s49, {L_V}")
    for j in range(4): ld(49, 48, j*2048)
    A(f"s_mov_b32 exec_hi, s47")
    ld(49, 48, 4*2048)
    A(f"s_mov_b32 exec_hi, -1")
    A(f"s_cmp_eq_u32 s{sCnt}, {1 if G0 else 0}")
    A(f"s_cbranch_scc0 {name}_lg1")
    A(f"s_barrier")
    if G0:
        A(f"s_barrier")
        A(f"v_mov_b32 v{vT}, 1")
        A(f"s_mov_b64 exec, 1")
        A(f"ds_add_u32 v{vT+8}, v{vT}")
        A(f"s_mov_b64 exec, -1")
    A(f"s_branch {name}_lg2")
    A.label(f"{name}_lg1")
    A(f"s_waitcnt vmcnt(10)")
    A(f"v_mov_b32 v{vT}, 1")
    A(f"s_mov_b64 exec, 1")
    A(f"ds_add_u32 v{vT+8}, v{vT}")
    A(f"s_mov_b64 exec, -1")
    A.label(f"{name}_lg2")
    A(f"s_add_u32 s{sCnt}, s{sCnt}, 1")
    A(f"s_cmp_lt_u32 s{sCnt}, 8")
    A(f"s_cbranch_scc1 {name}_lgrp")
    A(f"s_waitcnt vmcnt(0)")
    A(f"v_mov_b32 v{vT}, 1")
    A(f"s_mov_b64 exec, 1")
    A(f"ds_add_u32 v{vT+8}, v{vT}")
    A(f"s_mov_b64 exec, -1")
    poll(8, 8, "ld")
    def lgroup(ldsbase, sreg, n):
        lab = f"{name}_lg_{lgroup.n}"; lgroup.n += 1
        A(f"s_add_u32 s{sT3}, s{sreg}, s34")
        A(f"s_add_u32 s{sT2}, s34, {ldsbase}")
        A(f"s_mov_b32 s{sCnt}, s35")
        A.label(lab)
        A(f"s_mov_b32 m0, s{sT2}")
        A(f"s_add_u32 s{sT2}, s{sT2}, 2048")
        A(f"buffer_load_dwordx4 v{vL16}, s[{sWS}:{sWS+3}], s{sT3} offen lds")
        A(f"s_add_u32 s{sT3}, s{sT3}, 2048")
        A(f"s_add_u32 s{sCnt}, s{sCnt}, 2")
        A(f"s_cmp_lt_u32 s{sCnt}, {n}")
        A(f"s_cbranch_scc1 {lab}")
    lgroup.n = 0
    A(f"s_lshl_b32 s{sI}, s{sQB}, 3")
    A(f"s_sub_u32 s{sI}, s{sI}, 8")
    A(f"s_lshl_b32 s{sT0}, s{sI}, 10")
    A(f"s_add_u32 s28, s{sKMs}, s{sT0}")
    lgroup(L_KM, 28, 16)
    A(f"s_lshl_b32 s{sT0}, s{sI}, 8")
    A(f"s_add_u32 s28, s{sKXs}, s{sT0}")
    lgroup(L_KX, 28, 4)
    A(f"s_mul_i32 s{sT0}, s{sI}, {V_TILE}")
    A(f"s_add_u32 s28, s{sVs}, s{sT0}")
    lgroup(L_V, 28, 19)
    A(f"s_waitcnt vmcnt(0)")
    signal(12)
    if WOPF:
        A(f"s_lshl_b32 s{sT0}, s35, 1")
        A(f"s_mul_i32 s{sT0}, s{sT0}, 12")
        A(f"s_add_u32 s{sT0}, s{sT0}, 16")
        A(f"s_load_dwordx2 s[48:49], s[0:1], s{sT0}")
        A(f"s_lshr_b32 s{sT1}, s2, 3")
        A(f"s_mul_i32 s{sT1}, s{sT1}, {D*D*2 // 32}")
        A(f"v_lshlrev_b32 v{vT+1}, 6, v{vLane}")
        A(f"s_waitcnt lgkmcnt(0)")
        A(f"s_mov_b32 s52, s48")
        A(f"s_and_b32 s53, s49, 0xffff")
        A(f"s_mov_b32 s54, {D*D*2}")
        A(f"s_mov_b32 s55, 0x00020000")
        for j in range(6):
            A(f"buffer_load_dword v{vT+2}, v{vT+1}, s[52:55], s{sT1} offen")
            if j < 5: A(f"s_add_u32 s{sT1}, s{sT1}, 4096")
        A(f"s_waitcnt vmcnt(0)")
    A(f"s_waitcnt lgkmcnt(0)")
    A.label(f"{name}_end")
    A(f"s_endpgm")
    return khead(name) + A.finish(True), kdesc(name, NV, 100)
```

```python
from asmlib import *
from common import *

K3_LDS = 2 * 576 * 128
K3_THREADS = 512
K3_GRID = 216
NCH = int(__import__("os").environ.get("NCH", "6"))
KPC = 36 // NCH
import os
OINIT = int(os.environ.get('OINIT', '12'))
OPER = int(os.environ.get('OPER', '2'))
WAHEAD = int(os.environ.get('WAHEAD', '2'))

def gen_k3(name):
    A = Asm()
    sWS, sW, sOUT = 8, 12, 16
    sTG, sCG, sWV, sBR, sTT, sTILE = 20, 21, 22, 23, 24, 25
    sT0, sT1, sT2, sT3 = 26, 27, 28, 29
    sCH = 30
    vLane = 1
    vL16 = 2
    vLm, vLe = 3, 4
    vAW0, vAW1 = 5, 6
    vOx = 7
    vT = 8
    vWF = 16
    vACC = 32
    vOF = 64
    NV = 208

    A(f"s_cmp_ge_u32 s2, {K3_GRID}")
    A(f"s_cbranch_scc1 {name}_end")
    stamp(A, 0)
    rt_begin(A)
    A(f"s_load_dwordx2 s[4:5], s[0:1], {ARG['ws']}")
    A(f"s_load_dwordx2 s[6:7], s[0:1], {ARG['A_wo']}")
    A(f"s_load_dwordx2 s[32:33], s[0:1], {ARG['B_wo']}")
    A(f"s_load_dwordx2 s[34:35], s[0:1], {ARG['out']}")
    A(f"v_and_b32 v{vLane}, 63, v0")
    A(f"v_lshrrev_b32 v{vT}, 6, v0")
    A(f"s_and_b32 s{sT0}, s2, 7")
    A(f"v_readfirstlane_b32 s{sWV}, v{vT}")
    A(f"s_lshr_b32 s{sT1}, s2, 3")
    A(f"s_mul_i32 s{sT2}, s{sT1}, 57")
    A(f"s_lshr_b32 s{sT2}, s{sT2}, 9")
    A(f"s_mul_i32 s{sT3}, s{sT2}, 9")
    A(f"s_sub_u32 s{sCG}, s{sT1}, s{sT3}")
    A(f"s_lshl_b32 s{sT2}, s{sT2}, 3")
    A(f"s_add_u32 s{sTG}, s{sT0}, s{sT2}")
    A(f"s_cmp_ge_u32 s{sTG}, 22")
    A(f"s_cbranch_scc1 {name}_end")
    A(f"s_cmp_ge_u32 s{sWV}, 6")
    A(f"s_cbranch_scc0 {name}_comp")

    A(f"s_sub_u32 s{sBR}, s{sWV}, 6")
    A(f"v_lshrrev_b32 v{vT}, 3, v{vLane}")
    A(f"v_and_b32 v{vT+1}, 7, v{vLane}")
    A(f"v_bfe_u32 v{vT+2}, v{vLane}, 4, 1")
    A(f"v_lshlrev_b32 v{vT+3}, 2, v{vT+2}")
    A(f"v_xor_b32 v{vT+1}, v{vT+1}, v{vT+3}")
    A(f"v_lshlrev_b32 v{vT+1}, 4, v{vT+1}")
    A(f"v_lshrrev_b32 v{vT+3}, 2, v{vT}")
    A(f"v_lshlrev_b32 v{vT+3}, 3, v{vT+3}")
    A(f"v_and_b32 v{vT+4}, 3, v{vT}")
    A(f"v_add_u32 v{vT+3}, v{vT+3}, v{vT+4}")
    A(f"v_mul_u32_u24 v{vLm}, 1152, v{vT+3}")
    A(f"v_add_u32 v{vLm}, v{vLm}, v{vT+1}")
    A(f"v_lshrrev_b32 v{vT+3}, 1, v{vT}")
    A(f"v_mul_u32_u24 v{vT+3}, 18, v{vT+3}")
    A(f"v_lshlrev_b32 v{vT+4}, 4, v{vT+2}")
    A(f"v_sub_u32 v{vT+4}, 16, v{vT+4}")
    A(f"v_and_b32 v{vT+5}, 1, v{vT}")
    A(f"v_add3_u32 v{vT+3}, v{vT+3}, v{vT+4}, v{vT+5}")
    A(f"v_mul_u32_u24 v{vLe}, 1152, v{vT+3}")
    A(f"v_add_u32 v{vLe}, v{vLe}, v{vT+1}")
    A("s_waitcnt lgkmcnt(0)")
    A(f"s_cmp_eq_u32 s{sBR}, 0")
    A(f"s_cselect_b32 s{sW}, s6, s32")
    A(f"s_cselect_b32 s{sW+1}, s7, s33")
    A(f"s_and_b32 s{sW+1}, s{sW+1}, 0xffff")
    A(f"s_mov_b32 s{sW+2}, {D*D*2}")
    A(f"s_mov_b32 s{sW+3}, 0x00020000")
    A(f"s_mul_i32 s{sT0}, s{sBR}, {576*128}")
    A(f"s_mov_b32 m0, s{sT0}")
    A(f"s_lshl_b32 s{sT1}, s{sCG}, 7")
    A(f"s_lshl_b32 s36, s{sCG}, 2")
    def wchunk(ch):
        for s_ in range(KPC*ch, KPC*(ch+1)):
            if s_ < 32:
                A(f"s_add_u32 s{sT3}, s36, {s_}")
                A(f"s_and_b32 s{sT3}, s{sT3}, 31")
                A(f"s_mul_i32 s{sT3}, s{sT3}, {18*1152}")
                A(f"s_add_u32 s{sT3}, s{sT3}, s{sT1}")
            for hk in range(2):
                if s_ < 32:
                    A(f"s_add_u32 s{sT2}, s{sT3}, {(2*(s_ % 2) + 4*hk) * 1152}")
                    A(f"buffer_load_dwordx4 v{vLm}, s[{sW}:{sW+3}], s{sT2} offen lds")
                else:
                    A(f"s_add_u32 s{sT2}, s{sT1}, {18*(8*(s_-32) + 4*hk) * 1152}")
                    A(f"buffer_load_dwordx4 v{vLe}, s[{sW}:{sW+3}], s{sT2} offen lds")
                A(f"s_add_u32 m0, m0, 1024")
    AHEAD = WAHEAD
    for ch in range(AHEAD): wchunk(ch)
    for ch in range(NCH):
        inflight_after = min(NCH, ch + AHEAD) - (ch + 1)
        A(f"s_waitcnt vmcnt({2*KPC*inflight_after})")
        A(f"s_barrier")
        if ch + AHEAD < NCH: wchunk(ch + AHEAD)
    A(f"s_barrier")
    A(f"s_barrier")
    A(f"s_endpgm")

    A.label(f"{name}_comp")
    A(f"s_cmp_ge_u32 s{sWV}, 3")
    A(f"s_cselect_b32 s{sBR}, 1, 0")
    A(f"s_mul_i32 s{sT0}, s{sBR}, 3")
    A(f"s_sub_u32 s{sTT}, s{sWV}, s{sT0}")
    A(f"s_mul_i32 s{sTILE}, s{sTG}, 3")
    A(f"s_add_u32 s{sTILE}, s{sTILE}, s{sTT}")
    A(f"s_min_u32 s{sT3}, s{sTILE}, 63")
    A(f"v_lshlrev_b32 v{vL16}, 4, v{vLane}")
    A("s_waitcnt lgkmcnt(0)")
    srd(A, sWS, 4, 5, WS_SIZE)
    srd(A, sOUT, 34, 35, T*D*2)
    A(f"s_lshl_b32 s{sT0}, s{sBR}, 6")
    A(f"s_add_u32 s{sT0}, s{sT0}, s{sT3}")
    A(f"s_lshl_b32 s{sT1}, s{sT0}, 15")
    A(f"s_add_u32 s{sT1}, s{sT1}, {WS_OM}")
    A(f"s_lshl_b32 s36, s{sCG}, 2")
    A(f"s_mov_b32 s37, s{sT1}")
    A(f"v_and_b32 v{vT}, 31, v{vLane}")
    A(f"v_lshlrev_b32 v{vOx}, 2, v{vT}")
    A(f"v_lshrrev_b32 v{vT+1}, 5, v{vLane}")
    A(f"v_lshl_add_u32 v{vOx}, v{vT+1}, 9, v{vOx}")
    A(f"s_lshl_b32 s38, s{sT0}, 12")
    A(f"s_add_u32 s38, s38, {WS_OX}")
    nload = [0]
    def oload():
        k = nload[0]
        if k >= 48: return
        nload[0] += 1
        if k < 32:
            r = vOF + 4*k
            A(f"s_add_u32 s39, s36, {k}")
            A(f"s_and_b32 s39, s39, 31")
            A(f"s_lshl_b32 s39, s39, 10")
            A(f"s_add_u32 s39, s39, s37")
            A(f"buffer_load_dwordx4 v[{r}:{r+3}], v{vL16}, s[{sWS}:{sWS+3}], s39 offen")
        else:
            sp, i = (k-32) // 4, (k-32) % 4
            r = vOF + 4*(32+sp) + i
            A(f"buffer_load_dword v{r}, v{vOx}, s[{sWS}:{sWS+3}], s38 offen offset:{sp*1024 + i*128}")
    for _ in range(OINIT): oload()
    A(f"v_bfe_u32 v{vT+2}, v{vLane}, 2, 2")
    A(f"v_lshl_add_u32 v{vT+3}, v{vT+1}, 3, v{vT+2}")
    A(f"v_lshlrev_b32 v{vT+3}, 7, v{vT+3}")
    A(f"v_bfe_u32 v{vT+4}, v{vLane}, 4, 1")
    A(f"v_lshlrev_b32 v{vT+4}, 5, v{vT+4}")
    A(f"v_and_b32 v{vT+5}, 1, v{vLane}")
    A(f"v_lshlrev_b32 v{vT+5}, 1, v{vT+5}")
    A(f"v_bfe_u32 v{vT+6}, v{vLane}, 1, 1")
    A(f"v_or_b32 v{vT+5}, v{vT+5}, v{vT+6}")
    A(f"v_lshl_add_u32 v{vT+4}, v{vT+5}, 3, v{vT+4}")
    A(f"v_lshrrev_b32 v{vT+2}, 1, v{vT+2}")
    A(f"v_lshlrev_b32 v{vT+2}, 6, v{vT+2}")
    A(f"v_xor_b32 v{vT+4}, v{vT+4}, v{vT+2}")
    A(f"s_mul_i32 s{sT0}, s{sBR}, {576*128}")
    A(f"v_add3_u32 v{vAW0}, v{vT+3}, v{vT+4}, s{sT0}")
    A(f"v_xor_b32 v{vAW1}, 64, v{vAW0}")
    for i in range(32): A(f"v_mov_b32 v{vACC+i}, 0")
    stamp(A, 1)
    def wr(s_, buf, k):
        wf = vWF + 8*buf
        off = (s_ % KPC) * 2048
        va = vAW0 if k < 2 else vAW1
        A(f"ds_read_b64_tr_b16 v[{wf+2*k}:{wf+2*k+1}], v{va} offset:{off + 512*(k % 2)}")
    def mf(s_, buf, t):
        acc = vACC + 16*t; wf = vWF + 8*buf; of = vOF + 4*s_
        A(f"v_mfma_f32_32x32x16_bf16 v[{acc}:{acc+15}], v[{wf+4*t}:{wf+4*t+3}], v[{of}:{of+3}], v[{acc}:{acc+15}]")
    def owait(s_):
        need = s_ + 1 if s_ < 32 else 32 + 4*(s_ - 31)
        A(f"s_waitcnt vmcnt({nload[0] - need})")
    for ch in range(NCH):
        A(f"s_barrier")
        if ch == 0: stamp(A, 2)
        s0 = KPC*ch
        for k in range(4): wr(s0, 0, k)
        for q in range(KPC):
            s_ = s0 + q; b = q % 2
            last = (q == KPC-1)
            owait(s_)
            A(f"s_waitcnt lgkmcnt(2)")
            mf(s_, b, 0)
            if not last:
                wr(s_+1, 1-b, 0); wr(s_+1, 1-b, 1)
                A(f"s_waitcnt lgkmcnt(2)")
            else:
                A(f"s_waitcnt lgkmcnt(0)")
            mf(s_, b, 1)
            if not last:
                wr(s_+1, 1-b, 2); wr(s_+1, 1-b, 3)
            for _ in range(3 if ch == 3 else 1):
                if ch + 2 < NCH: oload()
        if ch < NCH-1:
            A(f"v_add_u32 v{vAW0}, {KPC*2048}, v{vAW0}")
            A(f"v_add_u32 v{vAW1}, {KPC*2048}, v{vAW1}")
    stamp(A, 3)
    A(f"s_barrier")
    A(f"s_lshl_b32 s{sT0}, s{sTT}, 13")
    A(f"s_lshl_b32 s{sT1}, s{sBR}, 12")
    A(f"s_add_u32 s{sT2}, s{sT0}, s{sT1}")
    A(f"v_add_u32 v{vT}, s{sT2}, v{vL16}")
    A(f"s_xor_b32 s{sT2}, s{sT2}, 4096")
    A(f"v_add_u32 v{vT+1}, s{sT2}, v{vL16}")
    A(f"s_nop 7")
    A(f"s_cmp_eq_u32 s{sBR}, 0")
    A(f"s_cbranch_scc1 {name}_xa")
    for i in range(4): A(f"ds_write_b128 v{vT}, v[{vACC+4*i}:{vACC+4*i+3}] offset:{i*1024}")
    for i in range(16): A(f"v_mov_b32 v{vACC+i}, v{vACC+16+i}")
    A(f"s_branch {name}_xb")
    A.label(f"{name}_xa")
    for i in range(4): A(f"ds_write_b128 v{vT}, v[{vACC+16+4*i}:{vACC+16+4*i+3}] offset:{i*1024}")
    A.label(f"{name}_xb")
    A(f"s_waitcnt lgkmcnt(0)")
    A(f"s_barrier")
    for i in range(4):
        A(f"ds_read_b128 v[{vOF+4*i}:{vOF+4*i+3}], v{vT+1} offset:{i*1024}")
    A(f"s_cmp_ge_u32 s{sTILE}, 64")
    A(f"s_cbranch_scc1 {name}_end")
    A(f"v_and_b32 v{vT+2}, 31, v{vLane}")
    A(f"v_mul_u32_u24 v{vT+2}, 1152, v{vT+2}")
    A(f"v_lshrrev_b32 v{vT+3}, 5, v{vLane}")
    A(f"v_lshl_add_u32 v{vT+2}, v{vT+3}, 4, v{vT+2}")
    A(f"s_mul_i32 s{sT0}, s{sTILE}, {32*1152}")
    A(f"s_lshl_b32 s{sT1}, s{sCG}, 7")
    A(f"s_add_u32 s{sT0}, s{sT0}, s{sT1}")
    A(f"s_lshl_b32 s{sT1}, s{sBR}, 6")
    A(f"s_add_u32 s{sT0}, s{sT0}, s{sT1}")
    A(f"s_waitcnt lgkmcnt(0)")
    for i in range(16): A(f"v_add_f32 v{vACC+i}, v{vACC+i}, v{vOF+i}")
    for i in range(8): A(f"v_cvt_pk_bf16_f32 v{vWF+i}, v{vACC+2*i}, v{vACC+2*i+1}")
    for half in range(2):
        r = vWF + 4*half
        A(f"buffer_store_dwordx4 v[{r}:{r+3}], v{vT+2}, s[{sOUT}:{sOUT+3}], s{sT0} offen offset:{half*32}")
    if PROF:
        stamp(A, 4)
        A("s_waitcnt vmcnt(0)")
        stamp(A, 5)
        stamps_out(A, 2, 6, sWS, sWV, vOF)
    rt_end(A, 2, sWV, vOF)
    A.label(f"{name}_end")
    A(f"s_endpgm")
    return khead(name) + A.finish(True), kdesc(name, NV, 100)
```

```python
from asmlib import *
from common import *
import os

K1_W0 = 32768
K1_STAGE = 49152
K1_LDS = 3 * K1_STAGE
K1_THREADS = 896
K1_GRID = 224
QKMOD = (" " + os.environ["QKMOD"]) if os.environ.get("QKMOD") else STORE_MOD
TLBW = int(os.environ.get("TLBW", "0"))
LDMOD = (" " + os.environ["LDMOD"]) if os.environ.get("LDMOD") else ""
GT = int(os.environ.get("GT", "0"))
EXP = int(os.environ.get("EXP", "0"))
TOUCH = int(os.environ.get("TOUCH", "0"))

def gen_k1(name):
    A = Asm()
    sX, sWS, sG = 8, 16, 20
    sCG, sTB, sWV, sCH = 24, 25, 26, 27
    sOff, sOffI, sOffC = 28, 29, 30
    sM0, sM0I = 31, 32
    sStL = 33
    sDelta = 34
    sStR = 35
    sT0, sT1, sT2, sT3 = 36, 37, 38, 39
    sFP, sTP, sBLK, sBR, sBETA, sTY = 40, 41, 42, 43, 50, 51
    vLane = 1
    vLo = 2
    vTo, vTd = 3, 4
    vAX = 6
    vAW0, vAW1 = 10, 11
    vT = 12
    vXF = 24
    vWF = 40
    vACC = 56
    vSO = 120
    vP = 24
    NV = 128

    A(f"s_cmp_ge_u32 s2, {K1_GRID}")
    A(f"s_cbranch_scc1 {name}_end")
    stamp(A, 0)
    rt_begin(A)
    A(f"s_load_dwordx4 s[4:7], s[0:1], 0")
    A(f"s_load_dwordx2 s[44:45], s[0:1], {ARG['B_wqkv']}")
    A(f"s_load_dwordx2 s[46:47], s[0:1], {ARG['gate_w']}")
    A(f"s_load_dwordx2 s[48:49], s[0:1], {ARG['ws']}")
    A(f"v_and_b32 v{vLane}, 63, v0")
    A(f"v_lshrrev_b32 v{vT}, 6, v0")
    A(f"s_and_b32 s{sT0}, s2, 7")
    A(f"v_readfirstlane_b32 s{sWV}, v{vT}")
    A(f"s_lshr_b32 s{sT1}, s2, 3")
    A(f"s_lshr_b32 s{sT2}, s{sT0}, 2")
    A(f"s_lshl_b32 s{sT2}, s{sT2}, 2")
    A(f"s_and_b32 s{sT3}, s{sT1}, 3")
    A(f"s_add_u32 s{sTB}, s{sT2}, s{sT3}")
    A(f"s_and_b32 s{sT2}, s{sT0}, 3")
    A(f"s_mul_i32 s{sT2}, s{sT2}, 7")
    A(f"s_lshr_b32 s{sT3}, s{sT1}, 2")
    A(f"s_add_u32 s{sCG}, s{sT2}, s{sT3}")
    A(f"s_cmp_ge_u32 s{sCG}, 27")
    A(f"s_cbranch_scc1 {name}_end")
    A(f"s_cmp_ge_u32 s{sWV}, 8")
    A(f"s_cbranch_scc0 {name}_comp")
    A(f"s_cmp_ge_u32 s{sWV}, 12")
    A(f"s_cbranch_scc1 {name}_ldw")

    A(f"s_sub_u32 s{sT3}, s{sWV}, 8")
    A(f"v_lshrrev_b32 v{vT}, 3, v{vLane}")
    A(f"s_lshl_b32 s{sT0}, s{sT3}, 3")
    A(f"v_add_u32 v{vT}, s{sT0}, v{vT}")
    A(f"v_mul_u32_u24 v{vLo}, 1152, v{vT}")
    A(f"v_lshrrev_b32 v{vT+1}, 4, v{vLane}")
    A(f"s_and_b32 s{sT0}, s{sT3}, 1")
    A(f"s_lshl_b32 s{sT0}, s{sT0}, 2")
    A(f"v_add_u32 v{vT+1}, s{sT0}, v{vT+1}")
    A(f"v_and_b32 v{vT+2}, 7, v{vLane}")
    A(f"v_xor_b32 v{vT+2}, v{vT+2}, v{vT+1}")
    A(f"v_lshl_add_u32 v{vLo}, v{vT+2}, 4, v{vLo}")
    A(f"s_lshr_b32 s{sT0}, s2, 5")
    A(f"s_mul_i32 s{sT0}, s{sT0}, 37")
    A(f"s_mul_i32 s{sT1}, s{sT3}, 10")
    A(f"s_add_u32 s{sT0}, s{sT0}, s{sT1}")
    A(f"v_lshrrev_b32 v{vT+3}, 1, v{vLane}")
    A(f"v_add_u32 v{vT+3}, s{sT0}, v{vT+3}")
    A(f"v_min_u32 v{vT+3}, 255, v{vT+3}")
    A(f"v_mul_u32_u24 v{vTo}, 1152, v{vT+3}")
    A(f"v_and_b32 v{vT+3}, 1, v{vLane}")
    A(f"v_lshl_add_u32 v{vTo}, v{vT+3}, 6, v{vTo}")
    A(f"s_mov_b32 s59, {(1 << 20) - 1}")
    A(f"s_lshl_b32 s{sM0}, s{sT3}, 10")
    A(f"s_mov_b32 s{sM0I}, 4096")
    A(f"s_mul_i32 s{sOff}, s{sTB}, {256*1152}")
    if EXP == 1: A(f"s_mov_b32 s{sOff}, 0")
    A(f"s_mov_b32 s{sOffI}, {32*1152}")
    A(f"s_mov_b32 s{sOffC}, 128")
    A("s_waitcnt lgkmcnt(0)")
    srd(A, sX, 4, 5, T * D * 2)
    A(f"s_mov_b32 s54, 1")
    A(f"s_branch {name}_ld")
    A.label(f"{name}_ldw")
    A(f"s_sub_u32 s{sT3}, s{sWV}, 12")
    A(f"s_lshl_b32 s{sBLK}, s{sCG}, 1")
    A(f"s_add_u32 s{sBLK}, s{sBLK}, s{sT3}")
    A(f"s_cmp_ge_u32 s{sBLK}, 27")
    A(f"s_cselect_b32 s{sBR}, 1, 0")
    A(f"s_mul_i32 s{sT0}, s{sBR}, 27")
    A(f"s_sub_u32 s{sBETA}, s{sBLK}, s{sT0}")
    A(f"v_lshrrev_b32 v{vT}, 3, v{vLane}")
    A(f"v_mul_u32_u24 v{vLo}, 3456, v{vT}")
    A(f"v_bfe_u32 v{vT+1}, v{vLane}, 4, 1")
    A(f"v_lshlrev_b32 v{vT+1}, 2, v{vT+1}")
    A(f"v_and_b32 v{vT+2}, 7, v{vLane}")
    A(f"v_xor_b32 v{vT+2}, v{vT+2}, v{vT+1}")
    A(f"v_lshl_add_u32 v{vLo}, v{vT+2}, 4, v{vLo}")
    A(f"s_and_b32 s{sT0}, s{sTB}, 3")
    A(f"s_lshl_b32 s{sT0}, s{sT0}, 4")
    A(f"v_lshrrev_b32 v{vT+3}, 1, v{vLane}")
    A(f"v_add_u32 v{vT+3}, s{sT0}, v{vT+3}")
    A(f"v_mul_u32_u24 v{vTo}, 3456, v{vT+3}")
    A(f"v_and_b32 v{vT+3}, 1, v{vLane}")
    A(f"v_lshl_add_u32 v{vTo}, v{vT+3}, 6, v{vTo}")
    A(f"s_mov_b32 s59, -1")
    A(f"s_lshl_b32 s{sM0}, s{sT3}, 13")
    A(f"s_add_u32 s{sM0}, s{sM0}, {K1_W0}")
    A(f"s_mov_b32 s{sM0I}, 1024")
    A(f"s_lshl_b32 s{sOff}, s{sBETA}, 7")
    if EXP == 1: A(f"s_mov_b32 s{sOff}, 0")
    A(f"s_mov_b32 s{sOffI}, {8*3456}")
    A(f"s_mov_b32 s{sOffC}, {64*3456}")
    A("s_waitcnt lgkmcnt(0)")
    A(f"s_cmp_eq_u32 s{sBR}, 0")
    A(f"s_cselect_b32 s{sX}, s6, s44")
    A(f"s_cselect_b32 s{sX+1}, s7, s45")
    A(f"s_and_b32 s{sX+1}, s{sX+1}, 0xffff")
    A(f"s_mov_b32 s{sX+2}, {D*3*D*2}")
    A(f"s_mov_b32 s{sX+3}, 0x00020000")
    A(f"s_mov_b32 s54, 0")
    A.label(f"{name}_ld")
    def issue():
        A(f"s_add_u32 m0, s{sStL}, s{sM0}")
        A(f"s_mov_b32 s{sT1}, s{sOff}")
        for j in range(8):
            if EXP != 2: A(f"buffer_load_dwordx4 v{vLo}, s[{sX}:{sX+3}], s{sT1} offen{LDMOD} lds")
            if j < 7:
                A(f"s_add_u32 m0, m0, s{sM0I}")
                A(f"s_add_u32 s{sT1}, s{sT1}, s{sOffI}")
        if TOUCH:
            A(f"s_mul_i32 s{sT1}, s{sOffC}, {TOUCH}")
            A(f"s_add_u32 s{sT1}, s{sT1}, s{sOff}")
            A(f"s_mov_b32 exec_lo, s59")
            A(f"s_mov_b32 exec_hi, 0")
            A(f"buffer_load_dword v{vTd}, v{vTo}, s[{sX}:{sX+3}], s{sT1} offen")
            A(f"s_mov_b64 exec, -1")
        A(f"s_add_u32 s{sOff}, s{sOff}, s{sOffC}")
        A(f"s_add_u32 s{sStL}, s{sStL}, {K1_STAGE}")
        A(f"s_cmp_eq_u32 s{sStL}, {3*K1_STAGE}")
        A(f"s_cselect_b32 s{sStL}, 0, s{sStL}")
    stamp(A, 1)
    A(f"s_mov_b32 s{sStL}, 0")
    A(f"s_mov_b32 s{sCH}, -2")
    A.label(f"{name}_ld_loop")
    A(f"s_cmp_lt_i32 s{sCH}, 0")
    A(f"s_cbranch_scc1 {name}_ld_issue")
    A(f"s_cmp_eq_u32 s{sCH}, 8")
    A(f"s_cbranch_scc1 {name}_ld_last")
    A(f"s_waitcnt vmcnt({9 if TOUCH else 8})")
    if PROF:
        A(f"s_cmp_eq_u32 s{sCH}, 0")
        A(f"s_cbranch_scc0 {name}_ld_ns")
        stamp(A, 2)
        A.label(f"{name}_ld_ns")
    A(f"s_barrier")
    A(f"s_cmp_eq_u32 s{sCH}, 7")
    A(f"s_cbranch_scc1 {name}_ld_skip")
    A.label(f"{name}_ld_issue")
    issue()
    A.label(f"{name}_ld_skip")
    A(f"s_add_u32 s{sCH}, s{sCH}, 1")
    A(f"s_branch {name}_ld_loop")
    A.label(f"{name}_ld_last")
    A(f"s_waitcnt vmcnt(0)")
    A(f"s_barrier")
    if PROF:
        stamp(A, 3)
        A("s_load_dwordx2 s[48:49], s[0:1], 72")
        A("s_waitcnt lgkmcnt(0)")
        srd(A, sWS, 48, 49, WS_SIZE)
        stamps_out(A, 0, 4, sWS, sWV, vP)
    A(f"s_endpgm")

    A.label(f"{name}_comp")
    A(f"s_lshr_b32 s{sFP}, s{sWV}, 2")
    A(f"s_and_b32 s{sTP}, s{sWV}, 3")
    A(f"s_lshl_b32 s{sBLK}, s{sCG}, 1")
    A(f"s_add_u32 s{sBLK}, s{sBLK}, s{sFP}")
    A(f"s_cmp_ge_u32 s{sBLK}, 27")
    A(f"s_cselect_b32 s{sBR}, 1, 0")
    A(f"s_mul_i32 s{sT0}, s{sBR}, 27")
    A(f"s_sub_u32 s{sBETA}, s{sBLK}, s{sT0}")
    A(f"s_mov_b32 s{sTY}, 0")
    A(f"s_cmp_ge_u32 s{sBETA}, 9")
    A(f"s_addc_u32 s{sTY}, s{sTY}, 0")
    A(f"s_cmp_ge_u32 s{sBETA}, 18")
    A(f"s_addc_u32 s{sTY}, s{sTY}, 0")
    vG = vACC
    for i in range(24): A(f"v_mov_b32 v{vG+i}, 0")
    A("s_waitcnt lgkmcnt(0)")
    srd(A, sX, 4, 5, T * D * 2)
    srd(A, sWS, 48, 49, WS_SIZE)
    if GT:
        A(f"s_lshl_b32 s{sT0}, s{sCG}, 3")
        A(f"s_add_u32 s{sT0}, s{sT0}, s{sTB}")
        A(f"v_mul_u32_u24 v{vT}, {GT}, v{vLane}")
        nper = 64 * GT
        nx = -(-11008 // nper); nw = -(-9216 // nper)
        lab = f"{name}_gt"
        A(f"s_cmp_lt_u32 s{sWV}, {nx}")
        A(f"s_cbranch_scc0 {lab}_w")
        A(f"s_mul_i32 s{sT1}, s{sT0}, 11008")
        A(f"s_mul_i32 s{sT2}, s{sWV}, {nper}")
        A(f"s_add_u32 s{sT1}, s{sT1}, s{sT2}")
        A(f"buffer_load_dword v{vTd}, v{vT}, s[{sX}:{sX+3}], s{sT1} offen")
        A(f"s_branch {lab}_e")
        A.label(f"{lab}_w")
        A(f"s_sub_u32 s{sT3}, s{sWV}, {nx}")
        A(f"s_cmp_lt_u32 s{sT3}, {2*nw}")
        A(f"s_cbranch_scc0 {lab}_e")
        A(f"s_cmp_lt_u32 s{sT3}, {nw}")
        A(f"s_cselect_b32 s{sG}, s6, s44")
        A(f"s_cselect_b32 s{sG+1}, s7, s45")
        A(f"s_cselect_b32 s{sT2}, 0, {nw}")
        A(f"s_sub_u32 s{sT3}, s{sT3}, s{sT2}")
        A(f"s_and_b32 s{sG+1}, s{sG+1}, 0xffff")
        A(f"s_mov_b32 s{sG+2}, {D*3*D*2}")
        A(f"s_mov_b32 s{sG+3}, 0x00020000")
        A(f"s_mul_i32 s{sT1}, s{sT0}, 9216")
        A(f"s_mul_i32 s{sT2}, s{sT3}, {nper}")
        A(f"s_add_u32 s{sT1}, s{sT1}, s{sT2}")
        A(f"buffer_load_dword v{vTd}, v{vT}, s[{sG}:{sG+3}], s{sT1} offen")
        A.label(f"{lab}_e")
    srd(A, sG, 46, 47, D * 2)
    A(f"s_cmp_ge_u32 s{sCG}, 16")
    A(f"s_cbranch_scc1 {name}_nog1")
    A(f"s_lshl_b32 s{sT0}, s{sTB}, 8")
    A(f"s_lshl_b32 s{sT1}, s{sCG}, 4")
    A(f"s_add_u32 s{sT0}, s{sT0}, s{sT1}")
    A(f"s_lshl_b32 s{sT1}, s{sWV}, 1")
    A(f"s_add_u32 s52, s{sT0}, s{sT1}")
    A(f"s_mul_i32 s{sT0}, s52, 1152")
    A(f"v_lshlrev_b32 v{vT}, 5, v{vLane}")
    A(f"s_bfm_b64 exec, 36, 0")
    A(f"buffer_load_dwordx4 v[{vG}:{vG+3}], v{vT}, s[{sX}:{sX+3}], s{sT0} offen")
    A(f"buffer_load_dwordx4 v[{vG+4}:{vG+7}], v{vT}, s[{sX}:{sX+3}], s{sT0} offen offset:16")
    A(f"buffer_load_dwordx4 v[{vG+8}:{vG+11}], v{vT}, s[{sX}:{sX+3}], s{sT0} offen offset:1152")
    A(f"buffer_load_dwordx4 v[{vG+12}:{vG+15}], v{vT}, s[{sX}:{sX+3}], s{sT0} offen offset:1168")
    A(f"buffer_load_dwordx4 v[{vG+16}:{vG+19}], v{vT}, s[{sG}:{sG+3}], 0 offen")
    A(f"buffer_load_dwordx4 v[{vG+20}:{vG+23}], v{vT}, s[{sG}:{sG+3}], 0 offen offset:16")
    A(f"s_mov_b64 exec, -1")
    A.label(f"{name}_nog1")
    A(f"v_and_b32 v{vT}, 31, v{vLane}")
    A(f"v_lshrrev_b32 v{vT+1}, 5, v{vLane}")
    A(f"v_bfe_u32 v{vT+2}, v{vLane}, 1, 3")
    A(f"v_xor_b32 v{vT+2}, v{vT+2}, v{vT+1}")
    A(f"v_lshlrev_b32 v{vT+2}, 4, v{vT+2}")
    A(f"s_lshl_b32 s{sT0}, s{sTP}, 6")
    A(f"v_add_u32 v{vT}, s{sT0}, v{vT}")
    A(f"v_lshlrev_b32 v{vT}, 7, v{vT}")
    for s_ in range(4):
        A(f"v_xor_b32 v{vT+3}, {32*s_}, v{vT+2}")
        A(f"v_add_u32 v{vAX+s_}, v{vT}, v{vT+3}")
    A(f"v_bfe_u32 v{vT+2}, v{vLane}, 2, 2")
    A(f"v_lshl_add_u32 v{vT+3}, v{vT+1}, 3, v{vT+2}")
    A(f"v_lshlrev_b32 v{vT+3}, 7, v{vT+3}")
    A(f"v_bfe_u32 v{vT+4}, v{vLane}, 4, 1")
    A(f"v_lshlrev_b32 v{vT+4}, 5, v{vT+4}")
    A(f"v_and_b32 v{vT+5}, 3, v{vLane}")
    A(f"v_lshl_add_u32 v{vT+4}, v{vT+5}, 3, v{vT+4}")
    A(f"v_lshrrev_b32 v{vT+2}, 1, v{vT+2}")
    A(f"v_lshlrev_b32 v{vT+2}, 6, v{vT+2}")
    A(f"v_xor_b32 v{vT+4}, v{vT+4}, v{vT+2}")
    A(f"s_lshl_b32 s{sT0}, s{sFP}, 13")
    A(f"s_add_u32 s{sT0}, s{sT0}, {K1_W0}")
    A(f"v_add3_u32 v{vAW0}, v{vT+3}, v{vT+4}, s{sT0}")
    A(f"v_xor_b32 v{vAW1}, 64, v{vAW0}")
    A(f"s_lshl_b32 s{sT0}, s{sTB}, 3")
    A(f"s_lshl_b32 s{sT1}, s{sTP}, 1")
    A(f"s_add_u32 s53, s{sT0}, s{sT1}")
    A(f"s_cmp_eq_u32 s{sTY}, 2")
    A(f"s_cbranch_scc1 {name}_sov")
    A(f"s_mul_i32 s{sT0}, s{sTY}, 9")
    A(f"s_sub_u32 s{sT0}, s{sBETA}, s{sT0}")
    A(f"s_lshl_b32 s{sT0}, s{sT0}, 4")
    A(f"s_mul_i32 s{sT1}, s{sTY}, {WS_KM-WS_QM}")
    A(f"s_lshl_b32 s{sT2}, s{sBR}, 21")
    A(f"s_add_u32 s{sT1}, s{sT1}, s{sT2}")
    A(f"s_lshl_b32 s{sT2}, s53, 10")
    A(f"s_add_u32 s{sT1}, s{sT1}, s{sT2}")
    A(f"s_add_u32 s54, s{sT1}, {WS_QM}")
    A(f"s_mul_i32 s{sT1}, s{sTY}, {WS_KX-WS_QX}")
    A(f"s_lshl_b32 s{sT2}, s{sBR}, 18")
    A(f"s_add_u32 s{sT1}, s{sT1}, s{sT2}")
    A(f"s_lshl_b32 s{sT2}, s53, 8")
    A(f"s_add_u32 s{sT1}, s{sT1}, s{sT2}")
    A(f"s_add_u32 s55, s{sT1}, {WS_QX}")
    A(f"v_and_b32 v{vT}, 31, v{vLane}")
    A(f"v_lshlrev_b32 v{vT+6}, 3, v{vT}")
    A(f"v_add_u32 v{vT+6}, s54, v{vT+6}")
    A(f"v_lshlrev_b32 v{vT+7}, 3, v{vT}")
    A(f"v_add_u32 v{vT+7}, s55, v{vT+7}")
    A(f"v_add_u32 v{vT+8}, s{sT0}, v{vT+1}")
    for t in range(2):
        for i in range(4):
            d = vSO + 4*t + i
            A(f"v_add_u32 v{vT}, {8*t+2*i}, v{vT+8}")
            A(f"v_mul_u32_u24 v{vT+2}, 7282, v{vT}")
            A(f"v_lshrrev_b32 v{vT+2}, 16, v{vT+2}")
            A(f"v_mul_u32_u24 v{vT+3}, 9, v{vT+2}")
            A(f"v_sub_u32 v{vT+3}, v{vT}, v{vT+3}")
            A(f"v_cmp_lt_u32 vcc, 4, v{vT+3}")
            A(f"v_cndmask_b32 v{vT+4}, 0, 1, vcc")
            A(f"v_lshl_add_u32 v{vT+5}, v{vT+2}, 1, v{vT+4}")
            A(f"v_lshlrev_b32 v{vT+5}, 16, v{vT+5}")
            A(f"v_mul_u32_u24 v{vT+4}, 5, v{vT+4}")
            A(f"v_sub_u32 v{vT+4}, v{vT+3}, v{vT+4}")
            A(f"v_and_b32 v{vT+9}, 1, v{vT+4}")
            A(f"v_lshl_add_u32 v{vT+5}, v{vT+9}, 9, v{vT+5}")
            A(f"v_lshrrev_b32 v{vT+9}, 1, v{vT+4}")
            A(f"v_lshl_add_u32 v{vT+5}, v{vT+9}, 8, v{vT+5}")
            A(f"v_add_u32 v{vT+5}, v{vT+5}, v{vT+6}")
            A(f"v_lshl_add_u32 v{vT+9}, v{vT+2}, 14, v{vT+7}")
            A(f"v_cmp_eq_u32 vcc, 4, v{vT+3}")
            A(f"v_cndmask_b32 v{d}, v{vT+5}, v{vT+9}, vcc")
            A(f"v_cndmask_b32 v{vT+9}, 0, 1, vcc")
            A(f"v_or_b32 v{d}, v{d}, v{vT+9}")
    A(f"s_branch {name}_sod")
    A.label(f"{name}_sov")
    A(f"s_sub_u32 s{sT0}, s{sBETA}, 18")
    A(f"s_lshl_b32 s{sT0}, s{sT0}, 6")
    A(f"s_mul_i32 s{sT1}, s{sBR}, {32*V_HEAD}")
    A(f"s_mul_i32 s{sT2}, s53, {V_TILE}")
    A(f"s_add_u32 s{sT1}, s{sT1}, s{sT2}")
    A(f"s_add_u32 s54, s{sT1}, {WS_V}")
    A(f"v_mul_u32_u24 v{vT+6}, 304, v{vT+1}")
    A(f"v_add_u32 v{vT+6}, s54, v{vT+6}")
    A(f"v_and_b32 v{vT+7}, 31, v{vLane}")
    A(f"v_add_u32 v{vT+7}, s{sT0}, v{vT+7}")
    A(f"s_mov_b32 s55, {V_HEAD}")
    for t in range(2):
        d = vSO + t
        A(f"v_add_u32 v{vT}, {32*t}, v{vT+7}")
        A(f"v_mul_u32_u24 v{vT+2}, 3641, v{vT}")
        A(f"v_lshrrev_b32 v{vT+2}, 16, v{vT+2}")
        A(f"v_mul_u32_u24 v{vT+3}, 18, v{vT+2}")
        A(f"v_sub_u32 v{vT+3}, v{vT}, v{vT+3}")
        A(f"v_and_b32 v{vT+4}, 1, v{vT+2}")
        A(f"v_add_u32 v{vT+5}, 16, v{vT+3}")
        A(f"v_subrev_u32 v{vT+9}, 18, v{vT+5}")
        A(f"v_min_u32 v{vT+5}, v{vT+5}, v{vT+9}")
        A(f"v_cmp_eq_u32 vcc, 1, v{vT+4}")
        A(f"v_cndmask_b32 v{vT+5}, v{vT+3}, v{vT+5}, vcc")
        A(f"v_mul_lo_u32 v{vT+2}, v{vT+2}, s55")
        A(f"v_lshl_add_u32 v{vT+5}, v{vT+5}, 4, v{vT+2}")
        A(f"v_add_u32 v{d}, v{vT+5}, v{vT+6}")
        A(f"v_cmp_eq_u32 vcc, 17, v{vT+3}")
        A(f"v_cndmask_b32 v{vSO+2+t}, 0, 1, vcc")
        A(f"v_add_u32 v{vT+9}, {18*16}, v{vT+2}")
        A(f"v_add_u32 v{vSO+4+t}, v{vT+9}, v{vT+6}")
    A.label(f"{name}_sod")
    if TLBW:
        for q_ in (0, 1, 4, 5):
            A(f"buffer_load_dword v{vTd+1}, v{vSO+q_}, s[{sWS}:{sWS+3}], 0 offen")
    A(f"s_cmp_ge_u32 s{sCG}, 16")
    A(f"s_cbranch_scc1 {name}_nog2")
    A(f"s_waitcnt vmcnt(0)")
    for tk in range(2):
        A(f"v_mov_b32 v{vT}, 0")
        for i in range(8): A(f"v_dot2c_f32_bf16 v{vT}, v{vG+8*tk+i}, v{vG+16+i}")
        A(f"s_nop 2")
        A(f"v_add_f32_dpp v{vT}, v{vT}, v{vT} quad_perm:[1,0,3,2] row_mask:0xf bank_mask:0xf")
        A(f"v_add_f32_dpp v{vT}, v{vT}, v{vT} quad_perm:[2,3,0,1] row_mask:0xf bank_mask:0xf")
        A(f"v_add_f32_dpp v{vT}, v{vT}, v{vT} row_half_mirror row_mask:0xf bank_mask:0xf")
        A(f"v_add_f32_dpp v{vT}, v{vT}, v{vT} row_mirror row_mask:0xf bank_mask:0xf")
        A(f"v_readlane_b32 s56, v{vT}, 0")
        A(f"v_readlane_b32 s57, v{vT}, 16")
        A(f"v_readlane_b32 s58, v{vT}, 32")
        A(f"v_mov_b32 v{vT+1}, s56")
        A(f"v_add_f32 v{vT+1}, s57, v{vT+1}")
        A(f"v_add_f32 v{vT+1}, s58, v{vT+1}")
        A(f"v_mul_f32 v{vT+1}, {f2u(-1.4426950408889634)}, v{vT+1}")
        A(f"v_exp_f32 v{vT+1}, v{vT+1}")
        A(f"v_add_f32 v{vT+1}, 1.0, v{vT+1}")
        A(f"v_rcp_f32 v{vT+1}, v{vT+1}")
        A(f"s_lshl_b32 s{sT0}, s52, 2")
        A(f"s_add_u32 s{sT0}, s{sT0}, {WS_G + 4*tk}")
        A(f"v_mov_b32 v{vT+2}, 0")
        A(f"s_mov_b64 exec, 1")
        A(f"buffer_store_dword v{vT+1}, v{vT+2}, s[{sWS}:{sWS+3}], s{sT0} offen" + STORE_MOD)
        A(f"s_mov_b64 exec, -1")
    A.label(f"{name}_nog2")
    for i in range(64): A(f"v_mov_b32 v{vACC+i}, 0")
    for i in range(8):
        A(f"v_mov_b32 v{vXF+8+i}, 0")
        A(f"v_mov_b32 v{vWF+8+i}, 0")
    A(f"s_mov_b32 s56, {(-2*K1_STAGE) & 0xffffffff}")
    A(f"s_mov_b32 s57, {K1_STAGE}")
    stamp(A, 1)
    A(f"s_mov_b32 s{sCH}, 0")
    A(f"s_mov_b32 s{sStR}, 0")
    A(f"s_cmp_eq_u32 s{sTY}, 2")
    A(f"s_cbranch_scc1 {name}_loop1")

    def reads(s_, buf):
        xf = vXF + 8*buf; wf = vWF + 8*buf
        A(f"ds_read_b128 v[{xf}:{xf+3}], v{vAX+s_}")
        A(f"ds_read_b128 v[{xf+4}:{xf+7}], v{vAX+s_} offset:4096")
        A(f"ds_read_b64_tr_b16 v[{wf}:{wf+1}], v{vAW0} offset:{s_*2048}")
        A(f"ds_read_b64_tr_b16 v[{wf+2}:{wf+3}], v{vAW0} offset:{s_*2048+512}")
        A(f"ds_read_b64_tr_b16 v[{wf+4}:{wf+5}], v{vAW1} offset:{s_*2048}")
        A(f"ds_read_b64_tr_b16 v[{wf+6}:{wf+7}], v{vAW1} offset:{s_*2048+512}")
    def mfmas(mode, buf):
        xf = vXF + 8*buf; wf = vWF + 8*buf
        for t in range(2):
            for tt in range(2):
                acc = vACC + (t*2+tt)*16
                W = f"v[{wf+4*t}:{wf+4*t+3}]"; X = f"v[{xf+4*tt}:{xf+4*tt+3}]"
                if mode == 1:
                    A(f"v_mfma_f32_32x32x16_bf16 v[{acc}:{acc+15}], {X}, {W}, v[{acc}:{acc+15}]")
                else:
                    A(f"v_mfma_f32_32x32x16_bf16 v[{acc}:{acc+15}], {W}, {X}, v[{acc}:{acc+15}]")

    for mode in range(2):
        L = f"{name}_loop{mode}"
        A.label(L)
        A(f"s_barrier")
        if PROF:
            A(f"s_cmp_eq_u32 s{sCH}, 0")
            A(f"s_cbranch_scc0 {L}_ns")
            stamp(A, 2)
            A.label(f"{L}_ns")
        def mf1(buf, t, tt):
            xf = vXF + 8*buf; wf = vWF + 8*buf
            acc = vACC + (t*2+tt)*16
            W = f"v[{wf+4*t}:{wf+4*t+3}]"; X = f"v[{xf+4*tt}:{xf+4*tt+3}]"
            if mode == 1: A(f"v_mfma_f32_32x32x16_bf16 v[{acc}:{acc+15}], {X}, {W}, v[{acc}:{acc+15}]")
            else: A(f"v_mfma_f32_32x32x16_bf16 v[{acc}:{acc+15}], {W}, {X}, v[{acc}:{acc+15}]")
        def step(buf, nxt, waits, tail=None):
            xf = vXF + 8*(1-buf); wf = vWF + 8*(1-buf)
            if waits: A(f"s_waitcnt lgkmcnt(3)")
            mf1(buf, 0, 0)
            A(f"ds_read_b128 v[{xf}:{xf+3}], v{vAX+nxt}")
            A(f"ds_read_b64_tr_b16 v[{wf}:{wf+1}], v{vAW0} offset:{nxt*2048}")
            if waits: A(f"s_waitcnt lgkmcnt(4)")
            mf1(buf, 0, 1)
            A(f"ds_read_b64_tr_b16 v[{wf+2}:{wf+3}], v{vAW0} offset:{nxt*2048+512}")
            A(f"ds_read_b128 v[{xf+4}:{xf+7}], v{vAX+nxt} offset:4096")
            if waits: A(f"s_waitcnt lgkmcnt(4)")
            mf1(buf, 1, 0)
            A(f"ds_read_b64_tr_b16 v[{wf+4}:{wf+5}], v{vAW1} offset:{nxt*2048}")
            A(f"ds_read_b64_tr_b16 v[{wf+6}:{wf+7}], v{vAW1} offset:{nxt*2048+512}")
            if tail: tail()
            mf1(buf, 1, 1)
        def tail():
            A(f"s_add_u32 s{sStR}, s{sStR}, 1")
            A(f"s_cmp_eq_u32 s{sStR}, 3")
            A(f"s_cselect_b32 s{sDelta}, s56, s57")
            A(f"s_cselect_b32 s{sStR}, 0, s{sStR}")
            for r in [vAX, vAX+1, vAX+2, vAX+3, vAW0, vAW1]:
                A(f"v_add_u32 v{r}, s{sDelta}, v{r}")
            A(f"s_add_u32 s{sCH}, s{sCH}, 1")
            A(f"s_cmp_lt_u32 s{sCH}, 9")
        step(1, 0, False)
        step(0, 1, True)
        step(1, 2, True)
        step(0, 3, True, tail)
        A(f"s_waitcnt lgkmcnt(0)")
        A(f"s_cbranch_scc1 {L}")
        mfmas(mode, 1)
        A(f"s_nop 15")
        A(f"s_branch {name}_epi{mode}")

    A.label(f"{name}_epi0")
    stamp(A, 3)
    A(f"s_mov_b32 s{sT0}, 1.0")
    A(f"s_cmp_eq_u32 s{sTY}, 0")
    A(f"s_cselect_b32 s{sT0}, {f2u(QSCALE)}, s{sT0}")
    for q in range(8):
        d = vSO + q
        A(f"v_and_b32 v{vT}, 1, v{d}")
        A(f"v_xor_b32 v{d}, v{d}, v{vT}")
        A(f"v_mul_u32_u24 v{vT}, 768, v{vT}")
        A(f"v_sub_u32 v{vT+1+q}, 1024, v{vT}")
        A(f"v_add_u32 v{vT+1+q}, v{vT+1+q}, v{d}")
    A(f"s_cmp_eq_u32 s{sTY}, 0")
    A(f"s_cbranch_scc0 {name}_nomul")
    for i in range(64): A(f"v_mul_f32 v{vACC+i}, s{sT0}, v{vACC+i}")
    A.label(f"{name}_nomul")
    k = 0
    for t in range(2):
        for tt in range(2):
            acc = vACC + (t*2+tt)*16
            p = vP + 8*(k % 4); k += 1
            for i in range(8): A(f"v_cvt_pk_bf16_f32 v{p+i}, v{acc+2*i}, v{acc+2*i+1}")
            for i in range(4):
                ad = (vSO + 4*t + i) if tt == 0 else (vT + 1 + 4*t + i)
                A(f"buffer_store_dwordx2 v[{p+2*i}:{p+2*i+1}], v{ad}, s[{sWS}:{sWS+3}], 0 offen" + QKMOD)
    A(f"s_branch {name}_fin")
    A.label(f"{name}_epi1")
    stamp(A, 3)
    k = 0
    for t in range(2):
        for tt in range(2):
            acc = vACC + (t*2+tt)*16
            p = vP + 8*(k % 4); k += 1
            for i in range(8): A(f"v_cvt_pk_bf16_f32 v{p+i}, v{acc+2*i}, v{acc+2*i+1}")
            A(f"buffer_store_dwordx4 v[{p}:{p+3}], v{vSO+t}, s[{sWS}:{sWS+3}], 0 offen offset:{tt*V_TILE}" + STORE_MOD)
            A(f"buffer_store_dwordx4 v[{p+4}:{p+7}], v{vSO+t}, s[{sWS}:{sWS+3}], 0 offen offset:{tt*V_TILE+608}" + STORE_MOD)
    for i in range(4): A(f"v_mov_b32 v{vT+i}, 0x3f803f80")
    for t in range(2):
        A(f"v_cmp_eq_u32 vcc, 1, v{vSO+2+t}")
        A(f"s_and_saveexec_b64 s[58:59], vcc")
        A(f"s_cbranch_execz {name}_no1_{t}")
        for tt in range(2):
            for g in range(2):
                A(f"buffer_store_dwordx4 v[{vT}:{vT+3}], v{vSO+4+t}, s[{sWS}:{sWS+3}], 0 offen offset:{tt*V_TILE+g*608}" + STORE_MOD)
        A.label(f"{name}_no1_{t}")
        A(f"s_mov_b64 exec, s[58:59]")
    A.label(f"{name}_fin")
    if PROF:
        stamp(A, 4)
        A("s_waitcnt vmcnt(0)")
        stamp(A, 5)
        stamps_out(A, 0, 6, sWS, sWV, vP)
    rt_end(A, 0, sWV, vP)
    A.label(f"{name}_end")
    A(f"s_endpgm")
    return khead(name) + A.finish(True) , kdesc(name, NV, 100)
```

```python
from asmlib import *
from common import *
import os

L_KM = 0
L_V = 65536
L_KX = 65536 + 64*1216
L_CNT = L_KX + 64*256
K2_LDS = L_CNT + 64
K2_THREADS = 640
NEG = f2u(-1.0e30)
NEGB = 0xF149
DBG = int(os.environ.get("DBG", "0"))
PF = int(os.environ.get("PF", "1"))
PRIO = int(os.environ.get("PRIO", "0"))
PDUTY = int(os.environ.get("PDUTY", "4"))
ORDER = int(os.environ.get("ORDER", "0"))
G0 = int(os.environ.get("G0", "1"))
CNT = int(os.environ.get("CNT", "0"))
OMOD = (" " + os.environ["OMOD"]) if os.environ.get("OMOD") else STORE_MOD
TLBW = int(os.environ.get("TLBW", "0"))
UNROLL = int(os.environ.get("UNROLL", "8"))
WOPF = int(os.environ.get("WOPF", "1"))
ZPAD = int(os.environ.get("ZPAD", "1"))

def gen_k2(name):
    A = Asm()
    sWS = 8
    sH, sQB, sWV, sTQ = 12, 13, 14, 15
    sT0, sT1, sT2, sT3 = 16, 17, 18, 19
    sCnt, sI = 20, 21
    sPass = 22
    sKMs, sVs, sKXs = 24, 25, 26
    vLane = 1
    vL16 = 2
    vKa, vVa, vXa = 3, 4, 5
    vKa0, vVa0, vXa0 = 6, 7, 8
    vG = 9
    vT = 10
    vQA, vQB = 20, 28
    vKF = 36
    vVF = 52
    vS = 68
    vP = 100
    vO = 108
    vMF, vMD = 124, 140
    vCM = vS + 16
    vM = 156
    vCA = 157
    vQo = 34
    vGA, vGC = 26, 27
    vVg, vXg = 158, 159
    NV = 160

    A(f"s_cmp_ge_u32 s2, 256")
    A(f"s_cbranch_scc1 {name}_end")
    stamp(A, 0)
    rt_begin(A)
    A(f"s_load_dwordx2 s[4:5], s[0:1], {ARG['ws']}")
    A(f"v_and_b32 v{vLane}, 63, v0")
    A(f"v_lshrrev_b32 v{vT}, 6, v0")
    A(f"s_and_b32 s{sT0}, s2, 7")
    A(f"v_readfirstlane_b32 s{sWV}, v{vT}")
    A(f"s_lshr_b32 s{sT1}, s2, 3")
    A(f"s_lshl_b32 s{sT0}, s{sT0}, 2")
    A(f"s_and_b32 s{sT2}, s{sT1}, 3")
    A(f"s_add_u32 s{sH}, s{sT0}, s{sT2}")
    A(f"s_lshr_b32 s{sQB}, s{sT1}, 2")
    A(f"v_lshlrev_b32 v{vL16}, 4, v{vLane}")
    A(f"s_lshl_b32 s{sT0}, s{sH}, 16")
    A(f"s_add_u32 s{sKMs}, s{sT0}, {WS_KM}")
    A(f"s_mul_i32 s{sT0}, s{sH}, {V_HEAD}")
    A(f"s_add_u32 s{sVs}, s{sT0}, {WS_V}")
    A(f"s_lshr_b32 s{sT0}, s{sH}, 1")
    A(f"s_lshl_b32 s{sT0}, s{sT0}, 14")
    A(f"s_add_u32 s{sKXs}, s{sT0}, {WS_KX}")
    A(f"v_mov_b32 v{vCA}, {L_CNT}")
    A(f"s_cmp_ge_u32 s{sWV}, 8")
    A(f"s_cbranch_scc1 {name}_loader")

    def dma_run(ldsbase, sreg, woff_sreg, stride, n_full, rem_limit_sreg=None, rem=None, tag=""):
        A(f"s_add_u32 s{sT3}, s{sreg}, s{woff_sreg}")
        A(f"s_add_u32 m0, s{woff_sreg}, {ldsbase}")
        for j in range(n_full):
            A(f"s_nop 0")
            A(f"buffer_load_dwordx4 v{vL16}, s[{sWS}:{sWS+3}], s{sT3} offen lds")
            if j < n_full - 1 or rem:
                A(f"s_add_u32 m0, m0, {stride}")
                A(f"s_add_u32 s{sT3}, s{sT3}, {stride}")
        if rem:
            lab = f"{name}_dg{dma_run.n}"; dma_run.n += 1
            A(f"s_cmp_lt_u32 s{rem_limit_sreg}, {rem}")
            A(f"s_cbranch_scc0 {lab}")
            A(f"buffer_load_dwordx4 v{vL16}, s[{sWS}:{sWS+3}], s{sT3} offen lds")
            A.label(lab)
    dma_run.n = 0
    def group(ldsbase, sreg, n, nw, widx_sreg, woff_sreg):
        dma_run(ldsbase, sreg, woff_sreg, nw*1024, n // nw, widx_sreg, n % nw)
    def poll(off, target, tag):
        A.label(f"{name}_poll{tag}")
        A(f"ds_read_b32 v{vT}, v{vCA} offset:{off}")
        A(f"s_waitcnt lgkmcnt(0)")
        A(f"v_readfirstlane_b32 s{sT0}, v{vT}")
        A(f"s_cmp_ge_u32 s{sT0}, {target}")
        A(f"s_cbranch_scc1 {name}_pollok{tag}")
        A(f"s_sleep 1")
        A(f"s_branch {name}_poll{tag}")
        A.label(f"{name}_pollok{tag}")
    def signal(off):
        A(f"v_mov_b32 v{vT}, 1")
        A(f"s_mov_b64 exec, 1")
        A(f"ds_add_u32 v{vCA}, v{vT} offset:{off}")
        A(f"s_mov_b64 exec, -1")

    A(f"s_lshl_b32 s{sTQ}, s{sQB}, 3")
    A(f"s_add_u32 s{sTQ}, s{sTQ}, s{sWV}")
    A(f"s_cmp_lg_u32 s{sWV}, 0")
    A(f"s_cbranch_scc1 {name}_noinit")
    A(f"v_mov_b32 v{vT+3}, 0")
    A(f"v_lshlrev_b32 v{vT+4}, 2, v{vLane}")
    A(f"v_add_u32 v{vT+4}, {L_CNT}, v{vT+4}")
    A(f"s_mov_b64 exec, 0xffff")
    A(f"ds_write_b32 v{vT+4}, v{vT+3}")
    A(f"s_mov_b64 exec, -1")
    A.label(f"{name}_noinit")
    A(f"v_and_b32 v{vT}, 31, v{vLane}")
    A(f"v_lshlrev_b32 v{vT+1}, 3, v{vT}")
    A(f"s_lshl_b32 s{sT0}, s{sH}, 16")
    A(f"s_lshl_b32 s{sT1}, s{sTQ}, 10")
    A(f"s_add_u32 s40, s{sT0}, s{sT1}")
    A(f"s_lshr_b32 s{sT2}, s{sH}, 1")
    A(f"s_lshl_b32 s{sT2}, s{sT2}, 14")
    A(f"s_and_b32 s{sT1}, s{sH}, 1")
    A(f"s_lshl_b32 s{sT1}, s{sT1}, 2")
    A(f"s_add_u32 s41, s{sT2}, s{sT1}")
    A(f"s_lshl_b32 s{sT1}, s{sTQ}, 8")
    A(f"s_add_u32 s41, s41, s{sT1}")
    A(f"s_add_u32 s41, s41, {WS_QX}")
    A("s_waitcnt lgkmcnt(0)")
    if PROF == 2: stamp(A, 1)
    srd(A, sWS, 4, 5, WS_SIZE)
    A(f"s_add_u32 s{sT0}, s40, {WS_QM + (32<<16)}")
    A(f"v_lshrrev_b32 v{vT+2}, 5, v{vLane}")
    A(f"v_lshl_add_u32 v{vQo}, v{vT+2}, 8, v{vT+1}")
    A(f"buffer_load_dwordx2 v[{vQB}:{vQB+1}], v{vQo}, s[{sWS}:{sWS+3}], s{sT0} offen")
    A(f"buffer_load_dwordx2 v[{vQB+2}:{vQB+3}], v{vQo}, s[{sWS}:{sWS+3}], s{sT0} offen offset:512")
    A(f"s_add_u32 s{sT0}, s41, {16*16384}")
    A(f"buffer_load_dword v{vQB+4}, v{vT+1}, s[{sWS}:{sWS+3}], s{sT0} offen")
    if G0:
        A(f"s_lshl_b32 s34, s{sWV}, 10")
        A(f"s_lshl_b32 s{sT0}, s{sQB}, 13")
        A(f"s_add_u32 s{sT0}, s{sT0}, s{sKMs}")
        A(f"s_add_u32 s{sT0}, s{sT0}, {32<<16}")
        A(f"s_add_u32 s{sT0}, s{sT0}, s34")
        A(f"s_mov_b32 m0, s34")
        A(f"s_mul_i32 s{sT1}, s{sQB}, {8*V_TILE}")
        A(f"buffer_load_dwordx4 v{vL16}, s[{sWS}:{sWS+3}], s{sT0} offen lds")
        A(f"s_add_u32 s{sT1}, s{sT1}, s{sVs}")
        A(f"s_add_u32 s{sT1}, s{sT1}, {32*V_HEAD}")
        A(f"s_add_u32 s{sT0}, s{sT1}, s34")
        A(f"s_add_u32 m0, s34, {L_V}")
        A(f"s_nop 0")
        A(f"buffer_load_dwordx4 v{vL16}, s[{sWS}:{sWS+3}], s{sT0} offen lds")
        A(f"s_cmp_lt_u32 s{sWV}, 2")
        A(f"s_cbranch_scc0 {name}_g0x")
        A(f"s_add_u32 s{sT0}, s{sT0}, 8192")
        A(f"s_add_u32 m0, s34, {L_V + 8192}")
        A(f"s_cmp_eq_u32 s{sWV}, 1")
        A(f"s_cselect_b32 s{sT2}, 0, -1")
        A(f"s_mov_b32 exec_hi, s{sT2}")
        A(f"buffer_load_dwordx4 v{vL16}, s[{sWS}:{sWS+3}], s{sT0} offen lds")
        A(f"s_mov_b32 exec_hi, -1")
        A(f"s_branch {name}_g0e")
        A.label(f"{name}_g0x")
        A(f"s_cmp_lt_u32 s{sWV}, 4")
        A(f"s_cbranch_scc0 {name}_g0e")
        A(f"s_lshl_b32 s{sT0}, s{sQB}, 11")
        A(f"s_add_u32 s{sT0}, s{sT0}, s{sKXs}")
        A(f"s_add_u32 s{sT0}, s{sT0}, {16*16384}")
        A(f"s_sub_u32 s{sT2}, s34, 2048")
        A(f"s_add_u32 s{sT0}, s{sT0}, s{sT2}")
        A(f"s_add_u32 m0, s{sT2}, {L_KX}")
        A(f"s_nop 0")
        A(f"buffer_load_dwordx4 v{vL16}, s[{sWS}:{sWS+3}], s{sT0} offen lds")
        A.label(f"{name}_g0e")
    A(f"s_barrier")
    if PROF == 2: stamp(A, 2)
    A(f"v_lshrrev_b32 v{vT+1}, 5, v{vLane}")
    A(f"v_mov_b32 v{vT+2}, 4")
    A(f"v_subrev_u32 v{vT+3}, 20, v{vT}")
    A(f"v_cmp_gt_u32 vcc, 8, v{vT+3}")
    A(f"v_cndmask_b32 v{vT+2}, v{vT+2}, 0, vcc")
    A(f"v_cmp_gt_u32 vcc, 19, v{vT}")
    A(f"v_cndmask_b32 v{vT+2}, v{vT+2}, v{vT}, vcc")
    A(f"v_mul_u32_u24 v{vVg}, 304, v{vT+1}")
    A(f"v_lshl_add_u32 v{vVg}, v{vT+2}, 4, v{vVg}")
    A(f"v_add_u32 v{vVa0}, {L_V}, v{vVg}")
    if ZPAD:
        A(f"v_cmp_gt_u32 vcc, 19, v{vT}")
        A(f"v_mov_b32 v{vT+3}, 0x40000")
        A(f"v_cndmask_b32 v{vVa0}, v{vT+3}, v{vVa0}, vcc")
    A(f"v_lshlrev_b32 v{vKa0}, 3, v{vT}")
    A(f"v_lshl_add_u32 v{vKa0}, v{vT+1}, 8, v{vKa0}")
    A(f"s_and_b32 s{sT0}, s{sH}, 1")
    A(f"s_lshl_b32 s{sT0}, s{sT0}, 2")
    A(f"v_lshlrev_b32 v{vXg}, 3, v{vT}")
    A(f"v_add_u32 v{vXg}, s{sT0}, v{vXg}")
    A(f"v_add_u32 v{vXa0}, {L_KX}, v{vXg}")
    if ZPAD:
        A(f"v_cmp_gt_u32 vcc, 32, v{vLane}")
        A(f"v_cndmask_b32 v{vXa0}, v{vT+3}, v{vXa0}, vcc")
    A(f"v_mov_b32 v{vKF+5}, 0x3f80")
    A(f"v_mov_b32 v{vKF+8+5}, 0x3f80")
    A(f"v_lshlrev_b32 v{vT+4}, 2, v{vT+1}")
    A(f"v_sub_u32 v{vT+4}, v{vT}, v{vT+4}")
    A(f"s_mov_b32 s29, {NEG}")
    for r in range(16):
        c = 8*(r//4) + r % 4
        A(f"v_subrev_u32 v{vT+5}, {c}, v{vT+4}")
        A(f"v_ashrrev_i32 v{vT+5}, 31, v{vT+5}")
        A(f"v_and_b32 v{vMD+r}, s29, v{vT+5}")
        A(f"v_xor_b32 v{vMF+r}, s29, v{vMD+r}")
    ONEHI = 0x3f800000
    def qext_fix(q):
        A(f"v_cmp_gt_u32 vcc, 32, v{vLane}")
        A(f"v_mov_b32 v{vT+6}, {ONEHI}")
        A(f"v_cndmask_b32 v{q+4}, 0, v{q+4}, vcc")
        A(f"v_cndmask_b32 v{q+5}, 0, v{vT+6}, vcc")
    if PROF == 2: stamp(A, 3)
    A(f"s_waitcnt vmcnt(0)")
    if PROF == 2: stamp(A, 4)
    if G0: A(f"s_barrier")
    qext_fix(vQB)
    A(f"v_and_b32 v{vT}, 31, v{vLane}")
    A(f"v_lshlrev_b32 v{vT+2}, 2, v{vT}")
    A(f"s_lshl_b32 s{sT0}, s{sTQ}, 7")
    A(f"s_add_u32 s{sT0}, s{sT0}, {WS_G}")
    A(f"buffer_load_dword v{vG}, v{vT+2}, s[{sWS}:{sWS+3}], s{sT0} offen")
    if TLBW:
        A(f"s_lshl_b32 s{sT0}, s{sTQ}, 5")
        A(f"s_add_u32 s{sT0}, s{sT0}, s{sH}")
        A(f"s_lshl_b32 s{sT1}, s{sT0}, 10")
        A(f"s_add_u32 s{sT1}, s{sT1}, {WS_OM}")
        A(f"buffer_load_dword v35, v{vL16}, s[{sWS}:{sWS+3}], s{sT1} offen")
        A(f"s_add_u32 s{sT1}, s{sT1}, {64*32*1024}")
        A(f"buffer_load_dword v35, v{vL16}, s[{sWS}:{sWS+3}], s{sT1} offen")
        A(f"s_mov_b32 s{sT1}, {WS_OX}")
        A(f"buffer_load_dword v35, v{vL16}, s[{sWS}:{sWS+3}], s{sT1} offen")
    def claim_item():
        lab = f"{name}_claim{claim_item.n}"; claim_item.n += 1
        A(f"v_mov_b32 v{vT}, 1")
        A(f"s_mov_b64 exec, 1")
        A(f"ds_add_rtn_u32 v{vT+1}, v{vCA}, v{vT} offset:16")
        A(f"s_mov_b64 exec, -1")
        A(f"s_waitcnt lgkmcnt(0)")
        A(f"v_readfirstlane_b32 s50, v{vT+1}")
        A(f"s_cmp_ge_u32 s50, 8")
        A(f"s_cbranch_scc1 {lab}")
        A(f"s_lshl_b32 s51, s{sQB}, 3")
        A(f"s_add_u32 s51, s51, s50")
        A(f"s_lshl_b32 s{sT0}, s{sH}, 16")
        A(f"s_lshl_b32 s{sT1}, s51, 10")
        A(f"s_add_u32 s{sT0}, s{sT0}, s{sT1}")
        A(f"buffer_load_dwordx2 v[{vQA}:{vQA+1}], v{vQo}, s[{sWS}:{sWS+3}], s{sT0} offen")
        A(f"buffer_load_dwordx2 v[{vQA+2}:{vQA+3}], v{vQo}, s[{sWS}:{sWS+3}], s{sT0} offen offset:512")
        A(f"s_lshl_b32 s{sT1}, s51, 8")
        A(f"s_add_u32 s{sT1}, s{sT1}, s52")
        A(f"v_and_b32 v{vT}, 31, v{vLane}")
        A(f"v_lshlrev_b32 v{vT+1}, 3, v{vT}")
        A(f"buffer_load_dword v{vQA+4}, v{vT+1}, s[{sWS}:{sWS+3}], s{sT1} offen")
        A(f"v_lshlrev_b32 v{vT+2}, 2, v{vT}")
        A(f"s_lshl_b32 s{sT0}, s51, 7")
        A(f"s_add_u32 s{sT0}, s{sT0}, {WS_G}")
        A(f"buffer_load_dword v{vGA}, v{vT+2}, s[{sWS}:{sWS+3}], s{sT0} offen")
        A.label(lab)
    claim_item.n = 0
    A(f"s_lshr_b32 s52, s{sH}, 1")
    A(f"s_lshl_b32 s52, s52, 14")
    A(f"s_and_b32 s{sT1}, s{sH}, 1")
    A(f"s_lshl_b32 s{sT1}, s{sT1}, 2")
    A(f"s_add_u32 s52, s52, s{sT1}")
    A(f"s_add_u32 s52, s52, {WS_QX}")
    def need_groups(n_imm=None, n_sreg=None, tag=""):
        tgt = f"{n_imm}" if n_imm is not None else f"s{n_sreg}"
        A(f"s_cmp_ge_u32 s42, {tgt}")
        A(f"s_cbranch_scc1 {name}_ng_ok{tag}")
        A.label(f"{name}_ng{tag}")
        A(f"ds_read_b64 v[{vT}:{vT+1}], v{vCA}")
        A(f"s_waitcnt lgkmcnt(0)")
        A(f"v_min_u32 v{vT}, v{vT}, v{vT+1}")
        A(f"v_readfirstlane_b32 s42, v{vT}")
        A(f"s_cmp_ge_u32 s42, {tgt}")
        A(f"s_cbranch_scc1 {name}_ng_ok{tag}")
        A(f"s_sleep 1")
        A(f"s_branch {name}_ng{tag}")
        A.label(f"{name}_ng_ok{tag}")
    A(f"s_mov_b32 s42, 0")

    def kreads(buf, off_slot):
        kf = vKF + 8*buf
        A(f"ds_read2st64_b64 v[{kf}:{kf+3}], v{vKa} offset0:{2*off_slot} offset1:{2*off_slot+1}")
        A(f"ds_read_b32 v{kf+4}, v{vXa} offset:{off_slot*256}")
    def vreads(buf, off_slot):
        vf = vVF + 8*buf
        A(f"ds_read_b128 v[{vf}:{vf+3}], v{vVa} offset:{off_slot*V_TILE}")
        A(f"ds_read_b128 v[{vf+4}:{vf+7}], v{vVa} offset:{off_slot*V_TILE+608}")
    def qk(sbuf, kbuf, q, cop):
        sd = vS + 16*sbuf; kf = vKF + 8*kbuf
        A(f"v_mfma_f32_32x32x16_bf16 v[{sd}:{sd+15}], v[{kf}:{kf+3}], v[{q}:{q+3}], {cop}")
        A(f"v_mfma_f32_32x32x8_bf16 v[{sd}:{sd+15}], v[{kf+4}:{kf+5}], v[{q+4}:{q+5}], v[{sd}:{sd+15}]")
    def setaddr(slot, sreg=False):
        if not sreg:
            A(f"v_add_u32 v{vKa}, {L_KM + slot*1024}, v{vKa0}")
            A(f"v_add_u32 v{vVa}, {slot*V_TILE}, v{vVa0}")
            A(f"v_add_u32 v{vXa}, {slot*256}, v{vXa0}")
        else:
            A(f"s_lshl_b32 s{sT0}, s{slot}, 10")
            A(f"v_add_u32 v{vKa}, s{sT0}, v{vKa0}")
            A(f"s_mul_i32 s{sT0}, s{slot}, {V_TILE}")
            A(f"v_add_u32 v{vVa}, s{sT0}, v{vVa0}")
            A(f"s_lshl_b32 s{sT0}, s{slot}, 8")
            A(f"v_add_u32 v{vXa}, s{sT0}, v{vXa0}")
    def adv(n):
        A(f"v_add_u32 v{vKa}, {n*1024}, v{vKa}")
        A(f"v_add_u32 v{vVa}, {n*V_TILE}, v{vVa}")
        A(f"v_add_u32 v{vXa}, {n*256}, v{vXa}")
    def maxtile(sbuf):
        sd = vS + 16*sbuf
        for i in range(8):
            A(f"v_max3_f32 v{vM}, v{sd+2*i}, v{sd+2*i+1}, v{vM}")
    def finish_max(q):
        A(f"v_mov_b32 v{vT}, v{vM}")
        A(f"v_permlane32_swap_b32 v{vM}, v{vT}")
        A(f"v_max_f32 v{vM}, v{vM}, v{vT}")
        A(f"v_sub_f32 v{vT}, 0, v{vM}")
        A(f"v_cvt_pk_bf16_f32 v{vT+1}, v{vT}, 1.0")
        A(f"v_lshlrev_b32 v{vT+2}, 16, v{vT+1}")
        A(f"v_sub_f32 v{vT+2}, v{vT}, v{vT+2}")
        A(f"v_cvt_pk_bf16_f32 v{vT+2}, v{vT+2}, 0")
        A(f"v_cmp_gt_u32 vcc, 32, v{vLane}")
        A(f"v_cndmask_b32 v{q+5}, v{vT+2}, v{vT+1}, vcc")
    def clear_max(q):
        A(f"v_mov_b32 v{vT}, {ONEHI}")
        A(f"v_cmp_gt_u32 vcc, 32, v{vLane}")
        A(f"v_cndmask_b32 v{q+5}, 0, v{vT}, vcc")
    def pv(g, vbuf):
        vf = vVF + 8*vbuf + 4*g
        A(f"v_mfma_f32_32x32x16_bf16 v[{vO}:{vO+15}], v[{vf}:{vf+3}], v[{vP+4*g}:{vP+4*g+3}], v[{vO}:{vO+15}]")
    def check_l(ok_label):
        A(f"s_nop 12")
        A(f"v_mov_b32 v{vT}, {f2u(2.0**100)}")
        A(f"v_cmp_nlt_f32 vcc, v{vO+10}, v{vT}")
        A(f"s_bfm_b64 s[32:33], 32, 0")
        A(f"s_and_b64 vcc, vcc, s[32:33]")
        A(f"s_cbranch_scc0 {ok_label}")
    def epilogue(br, tq, g):
        A(f"v_mov_b32 v{vT}, v{vO+10}")
        A(f"v_mov_b32 v{vT+1}, v{vO+10}")
        A(f"v_permlane32_swap_b32 v{vT}, v{vT+1}")
        A(f"v_rcp_f32 v{vT+2}, v{vT}")
        if br == 0:
            A(f"v_mul_f32 v{vT+2}, v{vT+2}, v{g}")
        else:
            A(f"v_sub_f32 v{vT+3}, 1.0, v{g}")
            A(f"v_mul_f32 v{vT+2}, v{vT+2}, v{vT+3}")
        for i in range(10): A(f"v_mul_f32 v{vO+i}, v{vO+i}, v{vT+2}")
        for i in range(5): A(f"v_cvt_pk_bf16_f32 v{vP+i}, v{vO+2*i}, v{vO+2*i+1}")
        A(f"s_lshl_b32 s{sT0}, s{tq}, 5")
        A(f"s_add_u32 s{sT0}, s{sT0}, s{sH}")
        A(f"s_lshl_b32 s{sT1}, s{sT0}, 10")
        A(f"s_add_u32 s{sT1}, s{sT1}, {WS_OM + br*64*32*1024}")
        A(f"buffer_store_dwordx4 v[{vP}:{vP+3}], v{vL16}, s[{sWS}:{sWS+3}], s{sT1} offen" + OMOD)
        A(f"s_lshl_b32 s{sT1}, s{sT0}, 7")
        A(f"s_add_u32 s{sT1}, s{sT1}, {WS_OX + br*64*32*128}")
        A(f"v_lshlrev_b32 v{vT+4}, 2, v{vLane}")
        A(f"s_bfm_b64 exec, 32, 0")
        A(f"buffer_store_dword v{vP+4}, v{vT+4}, s[{sWS}:{sWS+3}], s{sT1} offen" + OMOD)
        A(f"s_mov_b64 exec, -1")
    def tile_step(sb, nb, q, cnext, koff, voff, do_qk=True, do_k=True, do_v=True, first=False, pre_qk=None):
        sd = vS + 16*sb
        def e(lo, hi):
            for i in range(lo, hi): A(f"v_exp_f32 v{sd+i}, v{sd+i}")
        def c(lo, hi):
            for i in range(lo, hi): A(f"v_cvt_pk_bf16_f32 v{vP+i}, v{sd+2*i}, v{sd+2*i+1}")
        kf = vKF + 8*nb; sn = vS + 16*nb
        n_after = (2 if do_v else 0) + (2 if do_k else 0)
        m1 = lambda: A(f"v_mfma_f32_32x32x16_bf16 v[{sn}:{sn+15}], v[{kf}:{kf+3}], v[{q}:{q+3}], {cnext}")
        m2 = lambda: A(f"v_mfma_f32_32x32x8_bf16 v[{sn}:{sn+15}], v[{kf+4}:{kf+5}], v[{q+4}:{q+5}], v[{sn}:{sn+15}]")
        if ORDER == 0:
            e(0, 2)
            if not first: pv(1, nb)
            if pre_qk: pre_qk(nb)
            e(2, 6)
            if do_qk:
                A(f"s_waitcnt lgkmcnt(2)")
                m1()
            if do_k: kreads(sb, koff)
            e(6, 8); c(0, 4)
            if do_qk: m2()
            if do_v: vreads(nb, voff)
            e(8, 12)
            A(f"s_waitcnt lgkmcnt({n_after})")
            pv(0, sb)
            e(12, 16); c(4, 8)
        elif ORDER == 1:
            e(0, 2)
            if not first: pv(1, nb)
            if pre_qk: pre_qk(nb)
            e(2, 5)
            if do_qk:
                A(f"s_waitcnt lgkmcnt(2)")
                m1()
            if do_k: kreads(sb, koff)
            e(5, 8)
            c(0, 2)
            if do_qk: m2()
            if do_v: vreads(nb, voff)
            c(2, 4); e(8, 11)
            A(f"s_waitcnt lgkmcnt({n_after})")
            pv(0, sb)
            e(11, 16); c(4, 8)
        elif ORDER == 2:
            if pre_qk: pre_qk(nb)
            e(0, 2)
            if not first: pv(1, nb)
            if do_qk:
                A(f"s_waitcnt lgkmcnt(2)")
                m1()
            if do_k: kreads(sb, koff)
            e(2, 8); c(0, 4)
            if do_qk: m2()
            if do_v: vreads(nb, voff)
            A(f"s_waitcnt lgkmcnt({n_after})")
            pv(0, sb)
            e(8, 16); c(4, 8)

    if not G0: need_groups(n_imm=1, tag="0")
    stamp(A, 1 if PROF != 2 else 5)
    A(f"s_mov_b32 s{sPass}, 0")
    setaddr(0)
    kreads(0, 0)
    A(f"v_mov_b32 v{vM}, s29")
    A(f"s_waitcnt lgkmcnt(0)")
    qk(0, 0, vQB, "0")
    kreads(0, 0)
    kreads(1, 1)
    vreads(0, 0)
    for r in range(16): A(f"v_mov_b32 v{vO+r}, 0")
    for r in range(4): A(f"v_mov_b32 v{vP+4+r}, 0")
    for r in range(8): A(f"v_mov_b32 v{vVF+8+r}, 0")
    maxtile(0)
    finish_max(vQB)
    A(f"s_waitcnt lgkmcnt(4)")
    qk(0, 0, vQB, "0")
    A(f"s_mov_b32 s{sCnt}, 0")
    A(f"s_mov_b32 s38, 0")
    A(f"s_lshr_b32 s46, s{sWV}, 2")
    A(f"s_nop 7")
    UN = 4
    def prio_toggle(tag):
        if not PRIO: return
        A(f"s_add_u32 s39, s{sCnt}, s38")
        A(f"s_and_b32 s39, s39, {PDUTY-1}")
        A(f"s_cmp_eq_u32 s39, {PDUTY-1}")
        A(f"s_cselect_b32 s39, 0, s46")
        A(f"s_cmp_eq_u32 s39, 1")
        A(f"s_cbranch_scc1 {name}_p1{tag}")
        A(f"s_setprio 0")
        A(f"s_branch {name}_p2{tag}")
        A.label(f"{name}_p1{tag}")
        A(f"s_setprio 1")
        A.label(f"{name}_p2{tag}")
    A.label(f"{name}_bloop0")
    A(f"s_lshl_b32 s{sT1}, s{sCnt}, 2")
    A(f"s_add_u32 s{sT1}, s{sT1}, 13")
    A(f"s_lshr_b32 s{sT1}, s{sT1}, 3")
    need_groups(n_sreg=sT1, tag="l")
    prio_toggle("a")
    for u in range(UN):
        tile_step(u % 2, (u+1) % 2, vQB, "0", u + 2, u + 1)
    adv(UN)
    A(f"s_add_u32 s{sCnt}, s{sCnt}, 1")
    A(f"s_cmp_lt_u32 s{sCnt}, 4")
    A(f"s_cbranch_scc1 {name}_bloop0")
    signal(8)
    need_groups(n_imm=8, tag="m")
    A.label(f"{name}_bloop")
    prio_toggle("b")
    for u in range(UNROLL):
        tile_step(u % 2, (u+1) % 2, vQB, "0", u + 2, u + 1)
    adv(UNROLL)
    A(f"s_add_u32 s{sCnt}, s{sCnt}, {UNROLL // 4}")
    A(f"s_cmp_lt_u32 s{sCnt}, 16")
    A(f"s_cbranch_scc1 {name}_bloop")
    A(f"s_setprio 0")
    A(f"s_nop 1")
    pv(1, 1)
    if PROF != 2: stamp(A, 2)
    A(f"s_waitcnt vmcnt(0)")
    claim_item()
    check_l(f"{name}_bfin")
    if CNT:
        A(f"v_mov_b32 v{vT}, 0x15E0000")
        A(f"v_mov_b32 v{vT+1}, 1")
        A(f"s_mov_b64 exec, 1")
        A(f"buffer_atomic_add v{vT+1}, v{vT}, s[{sWS}:{sWS+3}], 0 offen")
        A(f"s_mov_b64 exec, -1")
    A(f"s_add_u32 s43, s{sKMs}, {32<<16}")
    A(f"s_add_u32 s44, s{sVs}, {32*V_HEAD}")
    A(f"s_add_u32 s45, s{sKXs}, {16*16384}")
    clear_max(vQB)
    A(f"v_mov_b32 v{vM}, s29")
    def gk(tile_sreg):
        A(f"s_lshl_b32 s{sT0}, s{tile_sreg}, 10")
        A(f"s_add_u32 s{sT0}, s{sT0}, s43")
        A(f"buffer_load_dwordx2 v[{vKF}:{vKF+1}], v{vQo}, s[{sWS}:{sWS+3}], s{sT0} offen")
        A(f"buffer_load_dwordx2 v[{vKF+2}:{vKF+3}], v{vQo}, s[{sWS}:{sWS+3}], s{sT0} offen offset:512")
        A(f"s_lshl_b32 s{sT0}, s{tile_sreg}, 8")
        A(f"s_add_u32 s{sT0}, s{sT0}, s45")
        A(f"buffer_load_dword v{vKF+4}, v{vXg}, s[{sWS}:{sWS+3}], s{sT0} offen")
    A(f"s_mov_b32 s{sCnt}, 0")
    A.label(f"{name}_bx1")
    gk(sCnt)
    A(f"s_waitcnt vmcnt(0)")
    qk(0, 0, vQB, "0")
    maxtile(0)
    A(f"s_add_u32 s{sCnt}, s{sCnt}, 1")
    A(f"s_cmp_lt_u32 s{sCnt}, 64")
    A(f"s_cbranch_scc1 {name}_bx1")
    finish_max(vQB)
    for r in range(16): A(f"v_mov_b32 v{vO+r}, 0")
    A(f"s_mov_b32 s{sCnt}, 0")
    A.label(f"{name}_bx2")
    gk(sCnt)
    A(f"s_mul_i32 s{sT0}, s{sCnt}, {V_TILE}")
    A(f"s_add_u32 s{sT0}, s{sT0}, s44")
    A(f"buffer_load_dwordx4 v[{vVF}:{vVF+3}], v{vVg}, s[{sWS}:{sWS+3}], s{sT0} offen")
    A(f"buffer_load_dwordx4 v[{vVF+4}:{vVF+7}], v{vVg}, s[{sWS}:{sWS+3}], s{sT0} offen offset:608")
    A(f"s_waitcnt vmcnt(0)")
    qk(0, 0, vQB, "0")
    for i in range(16): A(f"v_exp_f32 v{vS+i}, v{vS+i}")
    for i in range(8): A(f"v_cvt_pk_bf16_f32 v{vP+i}, v{vS+2*i}, v{vS+2*i+1}")
    pv(0, 0); pv(1, 0)
    A(f"s_add_u32 s{sCnt}, s{sCnt}, 1")
    A(f"s_cmp_lt_u32 s{sCnt}, 64")
    A(f"s_cbranch_scc1 {name}_bx2")
    A(f"s_nop 12")
    A.label(f"{name}_bfin")
    epilogue(1, sTQ, vG)
    if PROF != 2: stamp(A, 3)
    A(f"s_cmp_ge_u32 s50, 8")
    A(f"s_cbranch_scc1 {name}_done")
    poll(12, 2, "a")

    A.label(f"{name}_aitem")
    A(f"s_mov_b32 s{sTQ}, s51")
    A(f"s_mov_b32 s53, s50")
    A(f"s_waitcnt vmcnt(2)")
    A(f"v_mov_b32 v{vGC}, v{vGA}")
    qext_fix(vQA)
    def bias_for(i, kbuf):
        A(f"s_cmp_ge_u32 s{sTQ}, {8 - i}")
        A(f"s_cselect_b32 s{sT0}, s36, s37")
        A(f"v_mov_b32 v{vKF + 8*kbuf + 5}, s{sT0}")
    A(f"s_mov_b32 s36, 0x3f80")
    A(f"s_mov_b32 s37, {(NEGB << 16) | 0x3f80}")
    setaddr(53, True)
    A(f"v_mov_b32 v{vM}, s29")
    A(f"s_cmp_eq_u32 s{sTQ}, 0")
    A(f"s_cbranch_scc1 {name}_aref0")
    kreads(0, 7)
    A(f"s_waitcnt lgkmcnt(0)")
    qk(0, 0, vQA, "0")
    A(f"s_branch {name}_aref1")
    A.label(f"{name}_aref0")
    kreads(0, 8)
    A(f"s_waitcnt lgkmcnt(0)")
    qk(0, 0, vQA, f"v[{vMD}:{vMD+15}]")
    A.label(f"{name}_aref1")
    kreads(0, 0)
    kreads(1, 1)
    vreads(0, 0)
    for r in range(16): A(f"v_mov_b32 v{vO+r}, 0")
    maxtile(0)
    finish_max(vQA)
    bias_for(0, 0)
    A(f"s_waitcnt lgkmcnt(4)")
    qk(0, 0, vQA, f"v[{vMF}:{vMF+15}]")
    A(f"s_nop 7")
    for i in range(9):
        pre = (lambda nb, i=i: bias_for(i+1, nb)) if i < 7 else ((lambda nb: A(f"v_mov_b32 v{vKF + 8*nb + 5}, s36")) if i == 7 else None)
        tile_step(i % 2, (i+1) % 2, vQA, (f"v[{vMD}:{vMD+15}]" if i == 7 else "0"), i + 2, i + 1,
                  do_qk=(i < 8), do_k=(i < 7), do_v=(i < 8), first=(i == 0), pre_qk=pre)
    A(f"s_nop 1")
    pv(1, 0)
    A(f"v_mov_b32 v{vKF+5}, s36")
    A(f"v_mov_b32 v{vKF+8+5}, s36")
    check_l(f"{name}_aepi")
    if CNT:
        A(f"v_mov_b32 v{vT}, 0x15E0004")
        A(f"v_mov_b32 v{vT+1}, 1")
        A(f"s_mov_b64 exec, 1")
        A(f"buffer_atomic_add v{vT+1}, v{vT}, s[{sWS}:{sWS+3}], 0 offen")
        A(f"s_mov_b64 exec, -1")
    clear_max(vQA)
    A(f"s_sub_u32 s{sI}, 8, s{sTQ}")
    A(f"s_cmp_ge_u32 s{sTQ}, 8")
    A(f"s_cselect_b32 s{sI}, 0, s{sI}")
    A(f"s_mov_b32 s30, s{sI}")
    A(f"s_mov_b32 s31, s53")
    def set_cm_for(i_sreg):
        lab = f"{name}_cm{set_cm_for.n}"; set_cm_for.n += 1
        A(f"s_cmp_eq_u32 s{i_sreg}, 8")
        A(f"s_cbranch_scc1 {lab}_d")
        A(f"s_cmp_eq_u32 s{i_sreg}, 0")
        A(f"s_cbranch_scc1 {lab}_f")
        for r in range(16): A(f"v_mov_b32 v{vCM+r}, 0")
        A(f"s_branch {lab}_e")
        A.label(f"{lab}_d")
        for r in range(16): A(f"v_mov_b32 v{vCM+r}, v{vMD+r}")
        A(f"s_branch {lab}_e")
        A.label(f"{lab}_f")
        for r in range(16): A(f"v_mov_b32 v{vCM+r}, v{vMF+r}")
        A.label(f"{lab}_e")
    set_cm_for.n = 0
    A(f"v_mov_b32 v{vM}, s29")
    A.label(f"{name}_a1")
    A(f"s_add_u32 s{sT1}, s31, s{sI}")
    setaddr(sT1, True)
    kreads(0, 0)
    set_cm_for(sI)
    A(f"s_waitcnt lgkmcnt(0)")
    qk(0, 0, vQA, f"v[{vCM}:{vCM+15}]")
    maxtile(0)
    A(f"s_add_u32 s{sI}, s{sI}, 1")
    A(f"s_cmp_le_u32 s{sI}, 8")
    A(f"s_cbranch_scc1 {name}_a1")
    finish_max(vQA)
    for r in range(16): A(f"v_mov_b32 v{vO+r}, 0")
    A(f"s_mov_b32 s{sI}, s30")
    A.label(f"{name}_a2")
    A(f"s_add_u32 s{sT1}, s31, s{sI}")
    setaddr(sT1, True)
    kreads(0, 0)
    vreads(0, 0)
    set_cm_for(sI)
    A(f"s_waitcnt lgkmcnt(2)")
    qk(0, 0, vQA, f"v[{vCM}:{vCM+15}]")
    for i in range(16): A(f"v_exp_f32 v{vS+i}, v{vS+i}")
    for i in range(8): A(f"v_cvt_pk_bf16_f32 v{vP+i}, v{vS+2*i}, v{vS+2*i+1}")
    A(f"s_waitcnt lgkmcnt(0)")
    pv(0, 0); pv(1, 0)
    A(f"s_add_u32 s{sI}, s{sI}, 1")
    A(f"s_cmp_le_u32 s{sI}, 8")
    A(f"s_cbranch_scc1 {name}_a2")
    A(f"s_nop 12")
    A.label(f"{name}_aepi")
    claim_item()
    epilogue(0, sTQ, vGC)
    A(f"s_cmp_lt_u32 s50, 8")
    A(f"s_cbranch_scc1 {name}_aitem")
    A.label(f"{name}_done")
    if PROF:
        stamp(A, 5 if PROF != 2 else 6)
        stamps_out(A, 1, 7, sWS, sWV, vS)
    rt_end(A, 1, sWV, vS)
    A(f"s_endpgm")

    A.label(f"{name}_loader")
    A(f"s_sub_u32 s35, s{sWV}, 8")
    A(f"s_lshl_b32 s34, s35, 10")
    A(f"s_add_u32 s43, s{sKMs}, {32<<16}")
    A(f"s_add_u32 s44, s{sVs}, {32*V_HEAD}")
    A(f"s_add_u32 s45, s{sKXs}, {16*16384}")
    A(f"s_lshl_b32 s46, s35, 2")
    A(f"v_add_u32 v{vT+8}, s46, v{vCA}")
    A(f"s_mov_b32 s47, -1")
    A(f"s_cmp_eq_u32 s35, 1")
    A(f"s_cselect_b32 s47, 0, s47")
    A("s_waitcnt lgkmcnt(0)")
    srd(A, sWS, 4, 5, WS_SIZE)
    def ld(lds_sreg, src_sreg, off):
        A(f"s_add_u32 m0, s{lds_sreg}, {off}")
        A(f"s_add_u32 s{sT3}, s{src_sreg}, {off}")
        A(f"buffer_load_dwordx4 v{vL16}, s[{sWS}:{sWS+3}], s{sT3} offen lds")
    A(f"s_mov_b32 s{sCnt}, {1 if G0 else 0}")
    A.label(f"{name}_lgrp")
    A(f"s_add_u32 s{sT0}, s{sQB}, s{sCnt}")
    A(f"s_and_b32 s{sT0}, s{sT0}, 7")
    A(f"s_lshl_b32 s48, s{sT0}, 13")
    A(f"s_add_u32 s48, s48, s43")
    A(f"s_add_u32 s48, s48, s34")
    A(f"s_lshl_b32 s49, s{sCnt}, 13")
    A(f"s_add_u32 s49, s49, s34")
    for j in range(4): ld(49, 48, j*2048)
    A(f"s_lshl_b32 s48, s{sT0}, 11")
    A(f"s_add_u32 s48, s48, s45")
    A(f"s_add_u32 s48, s48, s34")
    A(f"s_lshl_b32 s49, s{sCnt}, 11")
    A(f"s_add_u32 s49, s49, s34")
    A(f"s_add_u32 s49, s49, {L_KX}")
    ld(49, 48, 0)
    A(f"s_mul_i32 s48, s{sT0}, {8*V_TILE}")
    A(f"s_add_u32 s48, s48, s44")
    A(f"s_add_u32 s48, s48, s34")
    A(f"s_mul_i32 s49, s{sCnt}, {8*V_TILE}")
    A(f"s_add_u32 s49, s49, s34")
    A(f"s_add_u32 s49, s49, {L_V}")
    for j in range(4): ld(49, 48, j*2048)
    A(f"s_mov_b32 exec_hi, s47")
    ld(49, 48, 4*2048)
    A(f"s_mov_b32 exec_hi, -1")
    A(f"s_cmp_eq_u32 s{sCnt}, {1 if G0 else 0}")
    A(f"s_cbranch_scc0 {name}_lg1")
    A(f"s_barrier")
    if G0:
        A(f"s_barrier")
        A(f"v_mov_b32 v{vT}, 1")
        A(f"s_mov_b64 exec, 1")
        A(f"ds_add_u32 v{vT+8}, v{vT}")
        A(f"s_mov_b64 exec, -1")
    A(f"s_branch {name}_lg2")
    A.label(f"{name}_lg1")
    A(f"s_waitcnt vmcnt(10)")
    A(f"v_mov_b32 v{vT}, 1")
    A(f"s_mov_b64 exec, 1")
    A(f"ds_add_u32 v{vT+8}, v{vT}")
    A(f"s_mov_b64 exec, -1")
    A.label(f"{name}_lg2")
    A(f"s_add_u32 s{sCnt}, s{sCnt}, 1")
    A(f"s_cmp_lt_u32 s{sCnt}, 8")
    A(f"s_cbranch_scc1 {name}_lgrp")
    A(f"s_waitcnt vmcnt(0)")
    A(f"v_mov_b32 v{vT}, 1")
    A(f"s_mov_b64 exec, 1")
    A(f"ds_add_u32 v{vT+8}, v{vT}")
    A(f"s_mov_b64 exec, -1")
    poll(8, 8, "ld")
    def lgroup(ldsbase, sreg, n):
        lab = f"{name}_lg_{lgroup.n}"; lgroup.n += 1
        A(f"s_add_u32 s{sT3}, s{sreg}, s34")
        A(f"s_add_u32 s{sT2}, s34, {ldsbase}")
        A(f"s_mov_b32 s{sCnt}, s35")
        A.label(lab)
        A(f"s_mov_b32 m0, s{sT2}")
        A(f"s_add_u32 s{sT2}, s{sT2}, 2048")
        A(f"buffer_load_dwordx4 v{vL16}, s[{sWS}:{sWS+3}], s{sT3} offen lds")
        A(f"s_add_u32 s{sT3}, s{sT3}, 2048")
        A(f"s_add_u32 s{sCnt}, s{sCnt}, 2")
        A(f"s_cmp_lt_u32 s{sCnt}, {n}")
        A(f"s_cbranch_scc1 {lab}")
    lgroup.n = 0
    A(f"s_lshl_b32 s{sI}, s{sQB}, 3")
    A(f"s_sub_u32 s{sI}, s{sI}, 8")
    A(f"s_lshl_b32 s{sT0}, s{sI}, 10")
    A(f"s_add_u32 s28, s{sKMs}, s{sT0}")
    lgroup(L_KM, 28, 16)
    A(f"s_lshl_b32 s{sT0}, s{sI}, 8")
    A(f"s_add_u32 s28, s{sKXs}, s{sT0}")
    lgroup(L_KX, 28, 4)
    A(f"s_mul_i32 s{sT0}, s{sI}, {V_TILE}")
    A(f"s_add_u32 s28, s{sVs}, s{sT0}")
    lgroup(L_V, 28, 19)
    A(f"s_waitcnt vmcnt(0)")
    signal(12)
    if WOPF:
        A(f"s_lshl_b32 s{sT0}, s35, 1")
        A(f"s_mul_i32 s{sT0}, s{sT0}, 12")
        A(f"s_add_u32 s{sT0}, s{sT0}, 16")
        A(f"s_load_dwordx2 s[48:49], s[0:1], s{sT0}")
        A(f"s_lshr_b32 s{sT1}, s2, 3")
        A(f"s_mul_i32 s{sT1}, s{sT1}, {D*D*2 // 32}")
        A(f"v_lshlrev_b32 v{vT+1}, 6, v{vLane}")
        A(f"s_waitcnt lgkmcnt(0)")
        A(f"s_mov_b32 s52, s48")
        A(f"s_and_b32 s53, s49, 0xffff")
        A(f"s_mov_b32 s54, {D*D*2}")
        A(f"s_mov_b32 s55, 0x00020000")
        for j in range(6):
            A(f"buffer_load_dword v{vT+2}, v{vT+1}, s[52:55], s{sT1} offen")
            if j < 5: A(f"s_add_u32 s{sT1}, s{sT1}, 4096")
        A(f"s_waitcnt vmcnt(0)")
    A(f"s_waitcnt lgkmcnt(0)")
    A.label(f"{name}_end")
    A(f"s_endpgm")
    return khead(name) + A.finish(True), kdesc(name, NV, 100)
```

```python
from asmlib import *
from common import *
import os

K1_W0 = 32768
K1_STAGE = 49152
K1_LDS = 3 * K1_STAGE
K1_THREADS = 896
K1_GRID = 224
QKMOD = " " + os.environ.get("QKMOD", "sc1")
VMOD = " " + os.environ.get("VMOD", "sc1")
TLBW = int(os.environ.get("TLBW", "0"))
LDMOD = (" " + os.environ["LDMOD"]) if os.environ.get("LDMOD") else ""
GT = int(os.environ.get("GT", "0"))
EXP = int(os.environ.get("EXP", "0"))
TOUCH = int(os.environ.get("TOUCH", "0"))

def gen_k1(name):
    A = Asm()
    sX, sWS, sG = 8, 16, 20
    sCG, sTB, sWV, sCH = 24, 25, 26, 27
    sOff, sOffI, sOffC = 28, 29, 30
    sM0, sM0I = 31, 32
    sStL = 33
    sDelta = 34
    sStR = 35
    sT0, sT1, sT2, sT3 = 36, 37, 38, 39
    sFP, sTP, sBLK, sBR, sBETA, sTY = 40, 41, 42, 43, 50, 51
    vLane = 1
    vLo = 2
    vTo, vTd = 3, 4
    vAX = 6
    vAW0, vAW1 = 10, 11
    vT = 12
    vXF = 24
    vWF = 40
    vACC = 56
    vSO = 120
    vP = 24
    NV = 128

    A(f"s_cmp_ge_u32 s2, {K1_GRID}")
    A(f"s_cbranch_scc1 {name}_end")
    stamp(A, 0)
    rt_begin(A)
    A(f"s_load_dwordx4 s[4:7], s[0:1], 0")
    A(f"s_load_dwordx2 s[44:45], s[0:1], {ARG['B_wqkv']}")
    A(f"s_load_dwordx2 s[46:47], s[0:1], {ARG['gate_w']}")
    A(f"s_load_dwordx2 s[48:49], s[0:1], {ARG['ws']}")
    A(f"v_and_b32 v{vLane}, 63, v0")
    A(f"v_lshrrev_b32 v{vT}, 6, v0")
    A(f"s_and_b32 s{sT0}, s2, 7")
    A(f"v_readfirstlane_b32 s{sWV}, v{vT}")
    A(f"s_lshr_b32 s{sT1}, s2, 3")
    A(f"s_lshr_b32 s{sT2}, s{sT0}, 2")
    A(f"s_lshl_b32 s{sT2}, s{sT2}, 2")
    A(f"s_and_b32 s{sT3}, s{sT1}, 3")
    A(f"s_add_u32 s{sTB}, s{sT2}, s{sT3}")
    A(f"s_and_b32 s{sT2}, s{sT0}, 3")
    A(f"s_mul_i32 s{sT2}, s{sT2}, 7")
    A(f"s_lshr_b32 s{sT3}, s{sT1}, 2")
    A(f"s_add_u32 s{sCG}, s{sT2}, s{sT3}")
    A(f"s_cmp_ge_u32 s{sCG}, 27")
    A(f"s_cbranch_scc1 {name}_end")
    A(f"s_cmp_ge_u32 s{sWV}, 8")
    A(f"s_cbranch_scc0 {name}_comp")
    A(f"s_cmp_ge_u32 s{sWV}, 12")
    A(f"s_cbranch_scc1 {name}_ldw")

    A(f"s_sub_u32 s{sT3}, s{sWV}, 8")
    A(f"v_lshrrev_b32 v{vT}, 3, v{vLane}")
    A(f"s_lshl_b32 s{sT0}, s{sT3}, 3")
    A(f"v_add_u32 v{vT}, s{sT0}, v{vT}")
    A(f"v_mul_u32_u24 v{vLo}, 1152, v{vT}")
    A(f"v_lshrrev_b32 v{vT+1}, 4, v{vLane}")
    A(f"s_and_b32 s{sT0}, s{sT3}, 1")
    A(f"s_lshl_b32 s{sT0}, s{sT0}, 2")
    A(f"v_add_u32 v{vT+1}, s{sT0}, v{vT+1}")
    A(f"v_and_b32 v{vT+2}, 7, v{vLane}")
    A(f"v_xor_b32 v{vT+2}, v{vT+2}, v{vT+1}")
    A(f"v_lshl_add_u32 v{vLo}, v{vT+2}, 4, v{vLo}")
    A(f"s_lshr_b32 s{sT0}, s2, 5")
    A(f"s_mul_i32 s{sT0}, s{sT0}, 37")
    A(f"s_mul_i32 s{sT1}, s{sT3}, 10")
    A(f"s_add_u32 s{sT0}, s{sT0}, s{sT1}")
    A(f"v_lshrrev_b32 v{vT+3}, 1, v{vLane}")
    A(f"v_add_u32 v{vT+3}, s{sT0}, v{vT+3}")
    A(f"v_min_u32 v{vT+3}, 255, v{vT+3}")
    A(f"v_mul_u32_u24 v{vTo}, 1152, v{vT+3}")
    A(f"v_and_b32 v{vT+3}, 1, v{vLane}")
    A(f"v_lshl_add_u32 v{vTo}, v{vT+3}, 6, v{vTo}")
    A(f"s_mov_b32 s59, {(1 << 20) - 1}")
    A(f"s_lshl_b32 s{sM0}, s{sT3}, 10")
    A(f"s_mov_b32 s{sM0I}, 4096")
    A(f"s_mul_i32 s{sOff}, s{sTB}, {256*1152}")
    if EXP == 1: A(f"s_mov_b32 s{sOff}, 0")
    A(f"s_mov_b32 s{sOffI}, {32*1152}")
    A(f"s_mov_b32 s{sOffC}, 128")
    A("s_waitcnt lgkmcnt(0)")
    srd(A, sX, 4, 5, T * D * 2)
    A(f"s_mov_b32 s54, 1")
    A(f"s_branch {name}_ld")
    A.label(f"{name}_ldw")
    A(f"s_sub_u32 s{sT3}, s{sWV}, 12")
    A(f"s_lshl_b32 s{sBLK}, s{sCG}, 1")
    A(f"s_add_u32 s{sBLK}, s{sBLK}, s{sT3}")
    A(f"s_cmp_ge_u32 s{sBLK}, 27")
    A(f"s_cselect_b32 s{sBR}, 1, 0")
    A(f"s_mul_i32 s{sT0}, s{sBR}, 27")
    A(f"s_sub_u32 s{sBETA}, s{sBLK}, s{sT0}")
    A(f"v_lshrrev_b32 v{vT}, 3, v{vLane}")
    A(f"v_mul_u32_u24 v{vLo}, 3456, v{vT}")
    A(f"v_bfe_u32 v{vT+1}, v{vLane}, 4, 1")
    A(f"v_lshlrev_b32 v{vT+1}, 2, v{vT+1}")
    A(f"v_and_b32 v{vT+2}, 7, v{vLane}")
    A(f"v_xor_b32 v{vT+2}, v{vT+2}, v{vT+1}")
    A(f"v_lshl_add_u32 v{vLo}, v{vT+2}, 4, v{vLo}")
    A(f"s_and_b32 s{sT0}, s{sTB}, 3")
    A(f"s_lshl_b32 s{sT0}, s{sT0}, 4")
    A(f"v_lshrrev_b32 v{vT+3}, 1, v{vLane}")
    A(f"v_add_u32 v{vT+3}, s{sT0}, v{vT+3}")
    A(f"v_mul_u32_u24 v{vTo}, 3456, v{vT+3}")
    A(f"v_and_b32 v{vT+3}, 1, v{vLane}")
    A(f"v_lshl_add_u32 v{vTo}, v{vT+3}, 6, v{vTo}")
    A(f"s_mov_b32 s59, -1")
    A(f"s_lshl_b32 s{sM0}, s{sT3}, 13")
    A(f"s_add_u32 s{sM0}, s{sM0}, {K1_W0}")
    A(f"s_mov_b32 s{sM0I}, 1024")
    A(f"s_lshl_b32 s{sOff}, s{sBETA}, 7")
    if EXP == 1: A(f"s_mov_b32 s{sOff}, 0")
    A(f"s_mov_b32 s{sOffI}, {8*3456}")
    A(f"s_mov_b32 s{sOffC}, {64*3456}")
    A("s_waitcnt lgkmcnt(0)")
    A(f"s_cmp_eq_u32 s{sBR}, 0")
    A(f"s_cselect_b32 s{sX}, s6, s44")
    A(f"s_cselect_b32 s{sX+1}, s7, s45")
    A(f"s_and_b32 s{sX+1}, s{sX+1}, 0xffff")
    A(f"s_mov_b32 s{sX+2}, {D*3*D*2}")
    A(f"s_mov_b32 s{sX+3}, 0x00020000")
    A(f"s_mov_b32 s54, 0")
    A.label(f"{name}_ld")
    def issue():
        A(f"s_add_u32 m0, s{sStL}, s{sM0}")
        A(f"s_mov_b32 s{sT1}, s{sOff}")
        for j in range(8):
            if EXP != 2: A(f"buffer_load_dwordx4 v{vLo}, s[{sX}:{sX+3}], s{sT1} offen{LDMOD} lds")
            if j < 7:
                A(f"s_add_u32 m0, m0, s{sM0I}")
                A(f"s_add_u32 s{sT1}, s{sT1}, s{sOffI}")
        if TOUCH:
            A(f"s_mul_i32 s{sT1}, s{sOffC}, {TOUCH}")
            A(f"s_add_u32 s{sT1}, s{sT1}, s{sOff}")
            A(f"s_mov_b32 exec_lo, s59")
            A(f"s_mov_b32 exec_hi, 0")
            A(f"buffer_load_dword v{vTd}, v{vTo}, s[{sX}:{sX+3}], s{sT1} offen")
            A(f"s_mov_b64 exec, -1")
        A(f"s_add_u32 s{sOff}, s{sOff}, s{sOffC}")
        A(f"s_add_u32 s{sStL}, s{sStL}, {K1_STAGE}")
        A(f"s_cmp_eq_u32 s{sStL}, {3*K1_STAGE}")
        A(f"s_cselect_b32 s{sStL}, 0, s{sStL}")
    stamp(A, 1)
    A(f"s_mov_b32 s{sStL}, 0")
    A(f"s_mov_b32 s{sCH}, -2")
    A.label(f"{name}_ld_loop")
    A(f"s_cmp_lt_i32 s{sCH}, 0")
    A(f"s_cbranch_scc1 {name}_ld_issue")
    A(f"s_cmp_eq_u32 s{sCH}, 8")
    A(f"s_cbranch_scc1 {name}_ld_last")
    A(f"s_waitcnt vmcnt({9 if TOUCH else 8})")
    if PROF:
        A(f"s_cmp_eq_u32 s{sCH}, 0")
        A(f"s_cbranch_scc0 {name}_ld_ns")
        stamp(A, 2)
        A.label(f"{name}_ld_ns")
    A(f"s_barrier")
    A(f"s_cmp_eq_u32 s{sCH}, 7")
    A(f"s_cbranch_scc1 {name}_ld_skip")
    A.label(f"{name}_ld_issue")
    issue()
    A.label(f"{name}_ld_skip")
    A(f"s_add_u32 s{sCH}, s{sCH}, 1")
    A(f"s_branch {name}_ld_loop")
    A.label(f"{name}_ld_last")
    A(f"s_waitcnt vmcnt(0)")
    A(f"s_barrier")
    if PROF:
        stamp(A, 3)
        A("s_load_dwordx2 s[48:49], s[0:1], 72")
        A("s_waitcnt lgkmcnt(0)")
        srd(A, sWS, 48, 49, WS_SIZE)
        stamps_out(A, 0, 4, sWS, sWV, vP)
    A(f"s_endpgm")

    A.label(f"{name}_comp")
    A(f"s_lshr_b32 s{sFP}, s{sWV}, 2")
    A(f"s_and_b32 s{sTP}, s{sWV}, 3")
    A(f"s_lshl_b32 s{sBLK}, s{sCG}, 1")
    A(f"s_add_u32 s{sBLK}, s{sBLK}, s{sFP}")
    A(f"s_cmp_ge_u32 s{sBLK}, 27")
    A(f"s_cselect_b32 s{sBR}, 1, 0")
    A(f"s_mul_i32 s{sT0}, s{sBR}, 27")
    A(f"s_sub_u32 s{sBETA}, s{sBLK}, s{sT0}")
    A(f"s_mov_b32 s{sTY}, 0")
    A(f"s_cmp_ge_u32 s{sBETA}, 9")
    A(f"s_addc_u32 s{sTY}, s{sTY}, 0")
    A(f"s_cmp_ge_u32 s{sBETA}, 18")
    A(f"s_addc_u32 s{sTY}, s{sTY}, 0")
    vG = vACC
    for i in range(24): A(f"v_mov_b32 v{vG+i}, 0")
    A("s_waitcnt lgkmcnt(0)")
    srd(A, sX, 4, 5, T * D * 2)
    srd(A, sWS, 48, 49, WS_SIZE)
    if GT:
        A(f"s_lshl_b32 s{sT0}, s{sCG}, 3")
        A(f"s_add_u32 s{sT0}, s{sT0}, s{sTB}")
        A(f"v_mul_u32_u24 v{vT}, {GT}, v{vLane}")
        nper = 64 * GT
        nx = -(-11008 // nper); nw = -(-9216 // nper)
        lab = f"{name}_gt"
        A(f"s_cmp_lt_u32 s{sWV}, {nx}")
        A(f"s_cbranch_scc0 {lab}_w")
        A(f"s_mul_i32 s{sT1}, s{sT0}, 11008")
        A(f"s_mul_i32 s{sT2}, s{sWV}, {nper}")
        A(f"s_add_u32 s{sT1}, s{sT1}, s{sT2}")
        A(f"buffer_load_dword v{vTd}, v{vT}, s[{sX}:{sX+3}], s{sT1} offen")
        A(f"s_branch {lab}_e")
        A.label(f"{lab}_w")
        A(f"s_sub_u32 s{sT3}, s{sWV}, {nx}")
        A(f"s_cmp_lt_u32 s{sT3}, {2*nw}")
        A(f"s_cbranch_scc0 {lab}_e")
        A(f"s_cmp_lt_u32 s{sT3}, {nw}")
        A(f"s_cselect_b32 s{sG}, s6, s44")
        A(f"s_cselect_b32 s{sG+1}, s7, s45")
        A(f"s_cselect_b32 s{sT2}, 0, {nw}")
        A(f"s_sub_u32 s{sT3}, s{sT3}, s{sT2}")
        A(f"s_and_b32 s{sG+1}, s{sG+1}, 0xffff")
        A(f"s_mov_b32 s{sG+2}, {D*3*D*2}")
        A(f"s_mov_b32 s{sG+3}, 0x00020000")
        A(f"s_mul_i32 s{sT1}, s{sT0}, 9216")
        A(f"s_mul_i32 s{sT2}, s{sT3}, {nper}")
        A(f"s_add_u32 s{sT1}, s{sT1}, s{sT2}")
        A(f"buffer_load_dword v{vTd}, v{vT}, s[{sG}:{sG+3}], s{sT1} offen")
        A.label(f"{lab}_e")
    srd(A, sG, 46, 47, D * 2)
    A(f"s_cmp_ge_u32 s{sCG}, 16")
    A(f"s_cbranch_scc1 {name}_nog1")
    A(f"s_lshl_b32 s{sT0}, s{sTB}, 8")
    A(f"s_lshl_b32 s{sT1}, s{sCG}, 4")
    A(f"s_add_u32 s{sT0}, s{sT0}, s{sT1}")
    A(f"s_lshl_b32 s{sT1}, s{sWV}, 1")
    A(f"s_add_u32 s52, s{sT0}, s{sT1}")
    A(f"s_mul_i32 s{sT0}, s52, 1152")
    A(f"v_lshlrev_b32 v{vT}, 5, v{vLane}")
    A(f"s_bfm_b64 exec, 36, 0")
    A(f"buffer_load_dwordx4 v[{vG}:{vG+3}], v{vT}, s[{sX}:{sX+3}], s{sT0} offen")
    A(f"buffer_load_dwordx4 v[{vG+4}:{vG+7}], v{vT}, s[{sX}:{sX+3}], s{sT0} offen offset:16")
    A(f"buffer_load_dwordx4 v[{vG+8}:{vG+11}], v{vT}, s[{sX}:{sX+3}], s{sT0} offen offset:1152")
    A(f"buffer_load_dwordx4 v[{vG+12}:{vG+15}], v{vT}, s[{sX}:{sX+3}], s{sT0} offen offset:1168")
    A(f"buffer_load_dwordx4 v[{vG+16}:{vG+19}], v{vT}, s[{sG}:{sG+3}], 0 offen")
    A(f"buffer_load_dwordx4 v[{vG+20}:{vG+23}], v{vT}, s[{sG}:{sG+3}], 0 offen offset:16")
    A(f"s_mov_b64 exec, -1")
    A.label(f"{name}_nog1")
    A(f"v_and_b32 v{vT}, 31, v{vLane}")
    A(f"v_lshrrev_b32 v{vT+1}, 5, v{vLane}")
    A(f"v_bfe_u32 v{vT+2}, v{vLane}, 1, 3")
    A(f"v_xor_b32 v{vT+2}, v{vT+2}, v{vT+1}")
    A(f"v_lshlrev_b32 v{vT+2}, 4, v{vT+2}")
    A(f"s_lshl_b32 s{sT0}, s{sTP}, 6")
    A(f"v_add_u32 v{vT}, s{sT0}, v{vT}")
    A(f"v_lshlrev_b32 v{vT}, 7, v{vT}")
    for s_ in range(4):
        A(f"v_xor_b32 v{vT+3}, {32*s_}, v{vT+2}")
        A(f"v_add_u32 v{vAX+s_}, v{vT}, v{vT+3}")
    A(f"v_bfe_u32 v{vT+2}, v{vLane}, 2, 2")
    A(f"v_lshl_add_u32 v{vT+3}, v{vT+1}, 3, v{vT+2}")
    A(f"v_lshlrev_b32 v{vT+3}, 7, v{vT+3}")
    A(f"v_bfe_u32 v{vT+4}, v{vLane}, 4, 1")
    A(f"v_lshlrev_b32 v{vT+4}, 5, v{vT+4}")
    A(f"v_and_b32 v{vT+5}, 3, v{vLane}")
    A(f"v_lshl_add_u32 v{vT+4}, v{vT+5}, 3, v{vT+4}")
    A(f"v_lshrrev_b32 v{vT+2}, 1, v{vT+2}")
    A(f"v_lshlrev_b32 v{vT+2}, 6, v{vT+2}")
    A(f"v_xor_b32 v{vT+4}, v{vT+4}, v{vT+2}")
    A(f"s_lshl_b32 s{sT0}, s{sFP}, 13")
    A(f"s_add_u32 s{sT0}, s{sT0}, {K1_W0}")
    A(f"v_add3_u32 v{vAW0}, v{vT+3}, v{vT+4}, s{sT0}")
    A(f"v_xor_b32 v{vAW1}, 64, v{vAW0}")
    A(f"s_lshl_b32 s{sT0}, s{sTB}, 3")
    A(f"s_lshl_b32 s{sT1}, s{sTP}, 1")
    A(f"s_add_u32 s53, s{sT0}, s{sT1}")
    A(f"s_cmp_eq_u32 s{sTY}, 2")
    A(f"s_cbranch_scc1 {name}_sov")
    A(f"s_mul_i32 s{sT0}, s{sTY}, 9")
    A(f"s_sub_u32 s{sT0}, s{sBETA}, s{sT0}")
    A(f"s_lshl_b32 s{sT0}, s{sT0}, 4")
    A(f"s_mul_i32 s{sT1}, s{sTY}, {WS_KM-WS_QM}")
    A(f"s_lshl_b32 s{sT2}, s{sBR}, 21")
    A(f"s_add_u32 s{sT1}, s{sT1}, s{sT2}")
    A(f"s_lshl_b32 s{sT2}, s53, 10")
    A(f"s_add_u32 s{sT1}, s{sT1}, s{sT2}")
    A(f"s_add_u32 s54, s{sT1}, {WS_QM}")
    A(f"s_mul_i32 s{sT1}, s{sTY}, {WS_KX-WS_QX}")
    A(f"s_lshl_b32 s{sT2}, s{sBR}, 18")
    A(f"s_add_u32 s{sT1}, s{sT1}, s{sT2}")
    A(f"s_lshl_b32 s{sT2}, s53, 8")
    A(f"s_add_u32 s{sT1}, s{sT1}, s{sT2}")
    A(f"s_add_u32 s55, s{sT1}, {WS_QX}")
    A(f"v_and_b32 v{vT}, 31, v{vLane}")
    A(f"v_lshlrev_b32 v{vT+6}, 3, v{vT}")
    A(f"v_add_u32 v{vT+6}, s54, v{vT+6}")
    A(f"v_lshlrev_b32 v{vT+7}, 3, v{vT}")
    A(f"v_add_u32 v{vT+7}, s55, v{vT+7}")
    A(f"v_add_u32 v{vT+8}, s{sT0}, v{vT+1}")
    for t in range(2):
        for i in range(4):
            d = vSO + 4*t + i
            A(f"v_add_u32 v{vT}, {8*t+2*i}, v{vT+8}")
            A(f"v_mul_u32_u24 v{vT+2}, 7282, v{vT}")
            A(f"v_lshrrev_b32 v{vT+2}, 16, v{vT+2}")
            A(f"v_mul_u32_u24 v{vT+3}, 9, v{vT+2}")
            A(f"v_sub_u32 v{vT+3}, v{vT}, v{vT+3}")
            A(f"v_cmp_lt_u32 vcc, 4, v{vT+3}")
            A(f"v_cndmask_b32 v{vT+4}, 0, 1, vcc")
            A(f"v_lshl_add_u32 v{vT+5}, v{vT+2}, 1, v{vT+4}")
            A(f"v_lshlrev_b32 v{vT+5}, 16, v{vT+5}")
            A(f"v_mul_u32_u24 v{vT+4}, 5, v{vT+4}")
            A(f"v_sub_u32 v{vT+4}, v{vT+3}, v{vT+4}")
            A(f"v_and_b32 v{vT+9}, 1, v{vT+4}")
            A(f"v_lshl_add_u32 v{vT+5}, v{vT+9}, 9, v{vT+5}")
            A(f"v_lshrrev_b32 v{vT+9}, 1, v{vT+4}")
            A(f"v_lshl_add_u32 v{vT+5}, v{vT+9}, 8, v{vT+5}")
            A(f"v_add_u32 v{vT+5}, v{vT+5}, v{vT+6}")
            A(f"v_lshl_add_u32 v{vT+9}, v{vT+2}, 14, v{vT+7}")
            A(f"v_cmp_eq_u32 vcc, 4, v{vT+3}")
            A(f"v_cndmask_b32 v{d}, v{vT+5}, v{vT+9}, vcc")
            A(f"v_cndmask_b32 v{vT+9}, 0, 1, vcc")
            A(f"v_or_b32 v{d}, v{d}, v{vT+9}")
    A(f"s_branch {name}_sod")
    A.label(f"{name}_sov")
    A(f"s_sub_u32 s{sT0}, s{sBETA}, 18")
    A(f"s_lshl_b32 s{sT0}, s{sT0}, 6")
    A(f"s_mul_i32 s{sT1}, s{sBR}, {32*V_HEAD}")
    A(f"s_mul_i32 s{sT2}, s53, {V_TILE}")
    A(f"s_add_u32 s{sT1}, s{sT1}, s{sT2}")
    A(f"s_add_u32 s54, s{sT1}, {WS_V}")
    A(f"s_mov_b32 s55, {V_HEAD}")
    def head_row(fv, hv, rv, t1, t2):
        A(f"v_mul_u32_u24 v{hv}, 3641, v{fv}")
        A(f"v_lshrrev_b32 v{hv}, 16, v{hv}")
        A(f"v_mul_u32_u24 v{t1}, 18, v{hv}")
        A(f"v_sub_u32 v{t1}, v{fv}, v{t1}")
        A(f"v_add_u32 v{rv}, 16, v{t1}")
        A(f"v_subrev_u32 v{t2}, 18, v{rv}")
        A(f"v_min_u32 v{rv}, v{rv}, v{t2}")
        A(f"v_and_b32 v{t2}, 1, v{hv}")
        A(f"v_cmp_eq_u32 vcc, 1, v{t2}")
        A(f"v_cndmask_b32 v{rv}, v{t1}, v{rv}, vcc")
    A(f"s_lshl_b32 s{sT2}, s{sWV}, 13")
    for t in range(2):
        A(f"v_and_b32 v{vT}, 31, v{vLane}")
        A(f"v_add_u32 v{vT}, s{sT0}, v{vT}")
        if t: A(f"v_add_u32 v{vT}, 32, v{vT}")
        head_row(vT, vT+2, vT+3, vT+4, vT+5)
        A(f"v_bfe_u32 v{vT+4}, v{vT+3}, 2, 2")
        A(f"v_xor_b32 v{vT+4}, v{vT+4}, v{vT+1}")
        A(f"v_lshlrev_b32 v{vT+4}, 4, v{vT+4}")
        A(f"v_and_b32 v{vT+5}, 31, v{vLane}")
        A(f"v_lshl_add_u32 v{vT+4}, v{vT+5}, 6, v{vT+4}")
        A(f"v_add_u32 v{vT+4}, s{sT2}, v{vT+4}")
        A(f"v_add_u32 v{vSO+t}, {t*4096}, v{vT+4}")
        A(f"v_mov_b32 v{vSO+6+t}, 0")
        for j in range(2):
            A(f"v_lshrrev_b32 v{vT}, 2, v{vLane}")
            A(f"v_add_u32 v{vT}, s{sT0}, v{vT}")
            A(f"v_add_u32 v{vT}, {32*t + 16*j}, v{vT}")
            head_row(vT, vT+2, vT+3, vT+4, vT+5)
            A(f"v_mul_lo_u32 v{vT+2}, v{vT+2}, s55")
            A(f"v_lshl_add_u32 v{vT+2}, v{vT+3}, 6, v{vT+2}")
            A(f"v_and_b32 v{vT+4}, 3, v{vLane}")
            A(f"v_lshl_add_u32 v{vT+2}, v{vT+4}, 4, v{vT+2}")
            A(f"v_add_u32 v{vSO+2+2*t+j}, s54, v{vT+2}")
            A(f"v_cmp_le_u32 vcc, 16, v{vT+3}")
            A(f"v_cndmask_b32 v{vT+4}, 0, 1, vcc")
            A(f"v_lshl_or_b32 v{vSO+6+t}, v{vT+4}, {j}, v{vSO+6+t}")
            A(f"v_cmp_eq_u32 vcc, 16, v{vT+3}")
            A(f"v_cndmask_b32 v{vT+4}, 0, 1, vcc")
            A(f"v_lshl_or_b32 v{vSO+6+t}, v{vT+4}, {2+j}, v{vSO+6+t}")
    A.label(f"{name}_sod")
    if TLBW:
        for q_ in (0, 1, 4, 5):
            A(f"buffer_load_dword v{vTd+1}, v{vSO+q_}, s[{sWS}:{sWS+3}], 0 offen")
    A(f"s_cmp_ge_u32 s{sCG}, 16")
    A(f"s_cbranch_scc1 {name}_nog2")
    A(f"s_waitcnt vmcnt(0)")
    for tk in range(2):
        A(f"v_mov_b32 v{vT}, 0")
        for i in range(8): A(f"v_dot2c_f32_bf16 v{vT}, v{vG+8*tk+i}, v{vG+16+i}")
        A(f"s_nop 2")
        A(f"v_add_f32_dpp v{vT}, v{vT}, v{vT} quad_perm:[1,0,3,2] row_mask:0xf bank_mask:0xf")
        A(f"v_add_f32_dpp v{vT}, v{vT}, v{vT} quad_perm:[2,3,0,1] row_mask:0xf bank_mask:0xf")
        A(f"v_add_f32_dpp v{vT}, v{vT}, v{vT} row_half_mirror row_mask:0xf bank_mask:0xf")
        A(f"v_add_f32_dpp v{vT}, v{vT}, v{vT} row_mirror row_mask:0xf bank_mask:0xf")
        A(f"v_readlane_b32 s56, v{vT}, 0")
        A(f"v_readlane_b32 s57, v{vT}, 16")
        A(f"v_readlane_b32 s58, v{vT}, 32")
        A(f"v_mov_b32 v{vT+1}, s56")
        A(f"v_add_f32 v{vT+1}, s57, v{vT+1}")
        A(f"v_add_f32 v{vT+1}, s58, v{vT+1}")
        A(f"v_mul_f32 v{vT+1}, {f2u(-1.4426950408889634)}, v{vT+1}")
        A(f"v_exp_f32 v{vT+1}, v{vT+1}")
        A(f"v_add_f32 v{vT+1}, 1.0, v{vT+1}")
        A(f"v_rcp_f32 v{vT+1}, v{vT+1}")
        A(f"s_lshl_b32 s{sT0}, s52, 2")
        A(f"s_add_u32 s{sT0}, s{sT0}, {WS_G + 4*tk}")
        A(f"v_mov_b32 v{vT+2}, 0")
        A(f"s_mov_b64 exec, 1")
        A(f"buffer_store_dword v{vT+1}, v{vT+2}, s[{sWS}:{sWS+3}], s{sT0} offen" + STORE_MOD)
        A(f"s_mov_b64 exec, -1")
    A.label(f"{name}_nog2")
    for i in range(64): A(f"v_mov_b32 v{vACC+i}, 0")
    for i in range(8):
        A(f"v_mov_b32 v{vXF+8+i}, 0")
        A(f"v_mov_b32 v{vWF+8+i}, 0")
    A(f"s_mov_b32 s56, {(-2*K1_STAGE) & 0xffffffff}")
    A(f"s_mov_b32 s57, {K1_STAGE}")
    stamp(A, 1)
    A(f"s_mov_b32 s{sCH}, 0")
    A(f"s_mov_b32 s{sStR}, 0")
    A(f"s_cmp_eq_u32 s{sTY}, 2")
    A(f"s_cbranch_scc1 {name}_loop1")

    def reads(s_, buf):
        xf = vXF + 8*buf; wf = vWF + 8*buf
        A(f"ds_read_b128 v[{xf}:{xf+3}], v{vAX+s_}")
        A(f"ds_read_b128 v[{xf+4}:{xf+7}], v{vAX+s_} offset:4096")
        A(f"ds_read_b64_tr_b16 v[{wf}:{wf+1}], v{vAW0} offset:{s_*2048}")
        A(f"ds_read_b64_tr_b16 v[{wf+2}:{wf+3}], v{vAW0} offset:{s_*2048+512}")
        A(f"ds_read_b64_tr_b16 v[{wf+4}:{wf+5}], v{vAW1} offset:{s_*2048}")
        A(f"ds_read_b64_tr_b16 v[{wf+6}:{wf+7}], v{vAW1} offset:{s_*2048+512}")
    def mfmas(mode, buf):
        xf = vXF + 8*buf; wf = vWF + 8*buf
        for t in range(2):
            for tt in range(2):
                acc = vACC + (t*2+tt)*16
                W = f"v[{wf+4*t}:{wf+4*t+3}]"; X = f"v[{xf+4*tt}:{xf+4*tt+3}]"
                if mode == 1:
                    A(f"v_mfma_f32_32x32x16_bf16 v[{acc}:{acc+15}], {X}, {W}, v[{acc}:{acc+15}]")
                else:
                    A(f"v_mfma_f32_32x32x16_bf16 v[{acc}:{acc+15}], {W}, {X}, v[{acc}:{acc+15}]")

    for mode in range(2):
        L = f"{name}_loop{mode}"
        A.label(L)
        A(f"s_barrier")
        if PROF:
            A(f"s_cmp_eq_u32 s{sCH}, 0")
            A(f"s_cbranch_scc0 {L}_ns")
            stamp(A, 2)
            A.label(f"{L}_ns")
        def mf1(buf, t, tt):
            xf = vXF + 8*buf; wf = vWF + 8*buf
            acc = vACC + (t*2+tt)*16
            W = f"v[{wf+4*t}:{wf+4*t+3}]"; X = f"v[{xf+4*tt}:{xf+4*tt+3}]"
            if mode == 1: A(f"v_mfma_f32_32x32x16_bf16 v[{acc}:{acc+15}], {X}, {W}, v[{acc}:{acc+15}]")
            else: A(f"v_mfma_f32_32x32x16_bf16 v[{acc}:{acc+15}], {W}, {X}, v[{acc}:{acc+15}]")
        def step(buf, nxt, waits, tail=None):
            xf = vXF + 8*(1-buf); wf = vWF + 8*(1-buf)
            if waits: A(f"s_waitcnt lgkmcnt(3)")
            mf1(buf, 0, 0)
            A(f"ds_read_b128 v[{xf}:{xf+3}], v{vAX+nxt}")
            A(f"ds_read_b64_tr_b16 v[{wf}:{wf+1}], v{vAW0} offset:{nxt*2048}")
            if waits: A(f"s_waitcnt lgkmcnt(4)")
            mf1(buf, 0, 1)
            A(f"ds_read_b64_tr_b16 v[{wf+2}:{wf+3}], v{vAW0} offset:{nxt*2048+512}")
            A(f"ds_read_b128 v[{xf+4}:{xf+7}], v{vAX+nxt} offset:4096")
            if waits: A(f"s_waitcnt lgkmcnt(4)")
            mf1(buf, 1, 0)
            A(f"ds_read_b64_tr_b16 v[{wf+4}:{wf+5}], v{vAW1} offset:{nxt*2048}")
            A(f"ds_read_b64_tr_b16 v[{wf+6}:{wf+7}], v{vAW1} offset:{nxt*2048+512}")
            if tail: tail()
            mf1(buf, 1, 1)
        def tail():
            A(f"s_add_u32 s{sStR}, s{sStR}, 1")
            A(f"s_cmp_eq_u32 s{sStR}, 3")
            A(f"s_cselect_b32 s{sDelta}, s56, s57")
            A(f"s_cselect_b32 s{sStR}, 0, s{sStR}")
            for r in [vAX, vAX+1, vAX+2, vAX+3, vAW0, vAW1]:
                A(f"v_add_u32 v{r}, s{sDelta}, v{r}")
            A(f"s_add_u32 s{sCH}, s{sCH}, 1")
            A(f"s_cmp_lt_u32 s{sCH}, 9")
        step(1, 0, False)
        step(0, 1, True)
        step(1, 2, True)
        step(0, 3, True, tail)
        A(f"s_waitcnt lgkmcnt(0)")
        A(f"s_cbranch_scc1 {L}")
        mfmas(mode, 1)
        A(f"s_nop 15")
        A(f"s_branch {name}_epi{mode}")

    A.label(f"{name}_epi0")
    stamp(A, 3)
    A(f"s_mov_b32 s{sT0}, 1.0")
    A(f"s_cmp_eq_u32 s{sTY}, 0")
    A(f"s_cselect_b32 s{sT0}, {f2u(QSCALE)}, s{sT0}")
    for q in range(8):
        d = vSO + q
        A(f"v_and_b32 v{vT}, 1, v{d}")
        A(f"v_xor_b32 v{d}, v{d}, v{vT}")
        A(f"v_mul_u32_u24 v{vT}, 768, v{vT}")
        A(f"v_sub_u32 v{vT+1+q}, 1024, v{vT}")
        A(f"v_add_u32 v{vT+1+q}, v{vT+1+q}, v{d}")
    A(f"s_cmp_eq_u32 s{sTY}, 0")
    A(f"s_cbranch_scc0 {name}_nomul")
    for i in range(64): A(f"v_mul_f32 v{vACC+i}, s{sT0}, v{vACC+i}")
    A.label(f"{name}_nomul")
    k = 0
    for t in range(2):
        for tt in range(2):
            acc = vACC + (t*2+tt)*16
            p = vP + 8*(k % 4); k += 1
            for i in range(8): A(f"v_cvt_pk_bf16_f32 v{p+i}, v{acc+2*i}, v{acc+2*i+1}")
            for i in range(4):
                ad = (vSO + 4*t + i) if tt == 0 else (vT + 1 + 4*t + i)
                A(f"buffer_store_dwordx2 v[{p+2*i}:{p+2*i+1}], v{ad}, s[{sWS}:{sWS+3}], 0 offen" + QKMOD)
    A(f"s_branch {name}_fin")
    A.label(f"{name}_epi1")
    stamp(A, 3)
    k = 0
    for t in range(2):
        for tt in range(2):
            acc = vACC + (t*2+tt)*16
            p = vP + 8*(k % 4); k += 1
            for i in range(8): A(f"v_cvt_pk_bf16_f32 v{p+i}, v{acc+2*i}, v{acc+2*i+1}")
            A(f"ds_write_b128 v{vSO+t}, v[{p}:{p+3}] offset:{tt*2048}")
            A(f"v_xor_b32 v{vT}, 32, v{vSO+t}")
            A(f"ds_write_b128 v{vT}, v[{p+4}:{p+7}] offset:{tt*2048}")
    A(f"s_lshl_b32 s{sT2}, s{sWV}, 13")
    A(f"v_lshlrev_b32 v{vT+1}, 4, v{vLane}")
    A(f"v_add_u32 v{vT+1}, s{sT2}, v{vT+1}")
    A(f"s_waitcnt lgkmcnt(0)")
    k = 0
    for t in range(2):
        for tt in range(2):
            for j in range(2):
                r = vACC + 4*k; k += 1
                A(f"ds_read_b128 v[{r}:{r+3}], v{vT+1} offset:{t*4096 + tt*2048 + j*1024}")
    k = 0
    for t in range(2):
        for tt in range(2):
            for j in range(2):
                r = vACC + 4*k; k += 1
                A(f"s_waitcnt lgkmcnt({7-(k-1)})")
                A(f"buffer_store_dwordx4 v[{r}:{r+3}], v{vSO+2+2*t+j}, s[{sWS}:{sWS+3}], 0 offen offset:{tt*V_TILE}" + VMOD)
    for t in range(2):
        for j in range(2):
            lb = f"{name}_on{t}{j}"
            A(f"v_bfe_u32 v{vT}, v{vSO+6+t}, {2+j}, 1")
            A(f"v_mul_u32_u24 v{vT}, 0x3f80, v{vT}")
            A(f"v_lshl_or_b32 v{vT+4}, v{vT}, 16, v{vT}")
            for i in range(1, 4): A(f"v_mov_b32 v{vT+4+i}, v{vT+4}")
            A(f"v_bfe_u32 v{vT}, v{vSO+6+t}, {j}, 1")
            A(f"v_cmp_eq_u32 vcc, 1, v{vT}")
            A(f"s_and_saveexec_b64 s[58:59], vcc")
            A(f"s_cbranch_execz {lb}")
            for tt in range(2):
                A(f"buffer_store_dwordx4 v[{vT+4}:{vT+7}], v{vSO+2+2*t+j}, s[{sWS}:{sWS+3}], 0 offen offset:{tt*V_TILE+128}" + VMOD)
            A.label(lb)
            A(f"s_mov_b64 exec, s[58:59]")
    A.label(f"{name}_fin")
    if PROF:
        stamp(A, 4)
        A("s_waitcnt vmcnt(0)")
        stamp(A, 5)
        stamps_out(A, 0, 6, sWS, sWV, vP)
    rt_end(A, 0, sWV, vP)
    A.label(f"{name}_end")
    A(f"s_endpgm")
    return khead(name) + A.finish(True) , kdesc(name, NV, 100)
```

```python
from asmlib import *
from common import *
import os

L_KM = 0
L_V = 65536
L_KX = 65536 + 64*1280
L_CNT = L_KX + 64*128
K2_LDS = L_CNT + 64
K2_THREADS = 640
NEG = f2u(-1.0e30)
NEGB = 0xF149
DBG = int(os.environ.get("DBG", "0"))
PF = int(os.environ.get("PF", "1"))
PRIO = int(os.environ.get("PRIO", "0"))
PDUTY = int(os.environ.get("PDUTY", "4"))
ORDER = int(os.environ.get("ORDER", "0"))
G0 = int(os.environ.get("G0", "1"))
CNT = int(os.environ.get("CNT", "0"))
LPRIO = int(os.environ.get("LPRIO", "0"))
OMOD = " " + os.environ.get("OMOD", "sc1")
TLBW = int(os.environ.get("TLBW", "0"))
UNROLL = int(os.environ.get("UNROLL", "8"))
WOPF = int(os.environ.get("WOPF", "1"))
ZPAD = int(os.environ.get("ZPAD", "1"))

def gen_k2(name):
    A = Asm()
    sWS = 8
    sH, sQB, sWV, sTQ = 12, 13, 14, 15
    sT0, sT1, sT2, sT3 = 16, 17, 18, 19
    sCnt, sI = 20, 21
    sPass = 22
    sKMs, sVs, sKXs = 24, 25, 26
    vLane = 1
    vL16 = 2
    vKa, vVa, vXa = 3, 4, 5
    vKa0, vVa0, vXa0 = 6, 7, 8
    vG = 9
    vT = 10
    vQA, vQB = 20, 28
    vKF = 36
    vVF = 52
    vS = 68
    vP = 100
    vO = 108
    vMF, vMD = 124, 140
    vCM = vS + 16
    vM = 156
    vCA = 157
    vQo = 34
    vGA, vGC = 26, 27
    vVb, vVb0, vVg2, vX8 = 160, 161, 162, 163
    vVg, vXg = 158, 159
    NV = 164

    A(f"s_cmp_ge_u32 s2, 256")
    A(f"s_cbranch_scc1 {name}_end")
    stamp(A, 0)
    rt_begin(A)
    A(f"s_load_dwordx2 s[4:5], s[0:1], {ARG['ws']}")
    A(f"v_and_b32 v{vLane}, 63, v0")
    A(f"v_lshrrev_b32 v{vT}, 6, v0")
    A(f"s_and_b32 s{sT0}, s2, 7")
    A(f"v_readfirstlane_b32 s{sWV}, v{vT}")
    A(f"s_lshr_b32 s{sT1}, s2, 3")
    A(f"s_lshl_b32 s{sT0}, s{sT0}, 2")
    A(f"s_and_b32 s{sT2}, s{sT1}, 3")
    A(f"s_add_u32 s{sH}, s{sT0}, s{sT2}")
    A(f"s_lshr_b32 s{sQB}, s{sT1}, 2")
    A(f"v_lshlrev_b32 v{vL16}, 4, v{vLane}")
    A(f"s_lshl_b32 s{sT0}, s{sH}, 16")
    A(f"s_add_u32 s{sKMs}, s{sT0}, {WS_KM}")
    A(f"s_mul_i32 s{sT0}, s{sH}, {V_HEAD}")
    A(f"s_add_u32 s{sVs}, s{sT0}, {WS_V}")
    A(f"s_lshr_b32 s{sT0}, s{sH}, 1")
    A(f"s_lshl_b32 s{sT0}, s{sT0}, 14")
    A(f"s_add_u32 s{sKXs}, s{sT0}, {WS_KX}")
    A(f"v_mov_b32 v{vCA}, {L_CNT}")
    A(f"s_and_b32 s{sT0}, s{sH}, 1")
    A(f"s_lshl_b32 s{sT0}, s{sT0}, 2")
    A(f"v_lshlrev_b32 v{vX8}, 3, v{vLane}")
    A(f"v_add_u32 v{vX8}, s{sT0}, v{vX8}")
    A(f"s_cmp_ge_u32 s{sWV}, 8")
    A(f"s_cbranch_scc1 {name}_loader")

    def dma_run(ldsbase, sreg, woff_sreg, stride, n_full, rem_limit_sreg=None, rem=None, tag=""):
        A(f"s_add_u32 s{sT3}, s{sreg}, s{woff_sreg}")
        A(f"s_add_u32 m0, s{woff_sreg}, {ldsbase}")
        for j in range(n_full):
            A(f"s_nop 0")
            A(f"buffer_load_dwordx4 v{vL16}, s[{sWS}:{sWS+3}], s{sT3} offen lds")
            if j < n_full - 1 or rem:
                A(f"s_add_u32 m0, m0, {stride}")
                A(f"s_add_u32 s{sT3}, s{sT3}, {stride}")
        if rem:
            lab = f"{name}_dg{dma_run.n}"; dma_run.n += 1
            A(f"s_cmp_lt_u32 s{rem_limit_sreg}, {rem}")
            A(f"s_cbranch_scc0 {lab}")
            A(f"buffer_load_dwordx4 v{vL16}, s[{sWS}:{sWS+3}], s{sT3} offen lds")
            A.label(lab)
    dma_run.n = 0
    def group(ldsbase, sreg, n, nw, widx_sreg, woff_sreg):
        dma_run(ldsbase, sreg, woff_sreg, nw*1024, n // nw, widx_sreg, n % nw)
    def poll(off, target, tag):
        A.label(f"{name}_poll{tag}")
        A(f"ds_read_b32 v{vT}, v{vCA} offset:{off}")
        A(f"s_waitcnt lgkmcnt(0)")
        A(f"v_readfirstlane_b32 s{sT0}, v{vT}")
        A(f"s_cmp_ge_u32 s{sT0}, {target}")
        A(f"s_cbranch_scc1 {name}_pollok{tag}")
        A(f"s_sleep 1")
        A(f"s_branch {name}_poll{tag}")
        A.label(f"{name}_pollok{tag}")
    def signal(off):
        A(f"v_mov_b32 v{vT}, 1")
        A(f"s_mov_b64 exec, 1")
        A(f"ds_add_u32 v{vCA}, v{vT} offset:{off}")
        A(f"s_mov_b64 exec, -1")

    A(f"s_lshl_b32 s{sTQ}, s{sQB}, 3")
    A(f"s_add_u32 s{sTQ}, s{sTQ}, s{sWV}")
    A(f"s_cmp_lg_u32 s{sWV}, 0")
    A(f"s_cbranch_scc1 {name}_noinit")
    A(f"v_mov_b32 v{vT+3}, 0")
    A(f"v_lshlrev_b32 v{vT+4}, 2, v{vLane}")
    A(f"v_add_u32 v{vT+4}, {L_CNT}, v{vT+4}")
    A(f"s_mov_b64 exec, 0xffff")
    A(f"ds_write_b32 v{vT+4}, v{vT+3}")
    A(f"s_mov_b64 exec, -1")
    A.label(f"{name}_noinit")
    A(f"v_and_b32 v{vT}, 31, v{vLane}")
    A(f"v_lshlrev_b32 v{vT+1}, 3, v{vT}")
    A(f"s_lshl_b32 s{sT0}, s{sH}, 16")
    A(f"s_lshl_b32 s{sT1}, s{sTQ}, 10")
    A(f"s_add_u32 s40, s{sT0}, s{sT1}")
    A(f"s_lshr_b32 s{sT2}, s{sH}, 1")
    A(f"s_lshl_b32 s{sT2}, s{sT2}, 14")
    A(f"s_and_b32 s{sT1}, s{sH}, 1")
    A(f"s_lshl_b32 s{sT1}, s{sT1}, 2")
    A(f"s_add_u32 s41, s{sT2}, s{sT1}")
    A(f"s_lshl_b32 s{sT1}, s{sTQ}, 8")
    A(f"s_add_u32 s41, s41, s{sT1}")
    A(f"s_add_u32 s41, s41, {WS_QX}")
    A("s_waitcnt lgkmcnt(0)")
    if PROF == 2: stamp(A, 1)
    srd(A, sWS, 4, 5, WS_SIZE)
    A(f"s_add_u32 s{sT0}, s40, {WS_QM + (32<<16)}")
    A(f"v_lshrrev_b32 v{vT+2}, 5, v{vLane}")
    A(f"v_lshl_add_u32 v{vQo}, v{vT+2}, 8, v{vT+1}")
    A(f"buffer_load_dwordx2 v[{vQB}:{vQB+1}], v{vQo}, s[{sWS}:{sWS+3}], s{sT0} offen")
    A(f"buffer_load_dwordx2 v[{vQB+2}:{vQB+3}], v{vQo}, s[{sWS}:{sWS+3}], s{sT0} offen offset:512")
    A(f"s_add_u32 s{sT0}, s41, {16*16384}")
    A(f"buffer_load_dword v{vQB+4}, v{vT+1}, s[{sWS}:{sWS+3}], s{sT0} offen")
    if G0:
        A(f"s_lshl_b32 s34, s{sWV}, 10")
        A(f"s_lshl_b32 s{sT0}, s{sQB}, 13")
        A(f"s_add_u32 s{sT0}, s{sT0}, s{sKMs}")
        A(f"s_add_u32 s{sT0}, s{sT0}, {32<<16}")
        A(f"s_add_u32 s{sT0}, s{sT0}, s34")
        A(f"s_mov_b32 m0, s34")
        A(f"s_mul_i32 s{sT1}, s{sQB}, {8*V_TILE}")
        A(f"buffer_load_dwordx4 v{vL16}, s[{sWS}:{sWS+3}], s{sT0} offen lds")
        A(f"s_add_u32 s{sT1}, s{sT1}, s{sVs}")
        A(f"s_add_u32 s{sT1}, s{sT1}, {32*V_HEAD}")
        A(f"s_add_u32 s{sT0}, s{sT1}, s34")
        A(f"s_add_u32 m0, s34, {L_V}")
        A(f"s_nop 0")
        A(f"buffer_load_dwordx4 v{vL16}, s[{sWS}:{sWS+3}], s{sT0} offen lds")
        A(f"s_cmp_lt_u32 s{sWV}, 2")
        A(f"s_cbranch_scc0 {name}_g0x")
        A(f"s_add_u32 s{sT0}, s{sT0}, 8192")
        A(f"s_add_u32 m0, s34, {L_V + 8192}")
        A(f"s_nop 0")
        A(f"buffer_load_dwordx4 v{vL16}, s[{sWS}:{sWS+3}], s{sT0} offen lds")
        A(f"s_branch {name}_g0e")
        A.label(f"{name}_g0x")
        A(f"s_cmp_lt_u32 s{sWV}, 6")
        A(f"s_cbranch_scc0 {name}_g0e")
        A(f"s_lshl_b32 s{sT0}, s{sQB}, 11")
        A(f"s_add_u32 s{sT0}, s{sT0}, s{sKXs}")
        A(f"s_add_u32 s{sT0}, s{sT0}, {16*16384}")
        A(f"s_sub_u32 s{sT2}, s{sWV}, 2")
        A(f"s_lshl_b32 s{sT1}, s{sT2}, 9")
        A(f"s_add_u32 s{sT0}, s{sT0}, s{sT1}")
        A(f"s_lshl_b32 s{sT2}, s{sT2}, 8")
        A(f"s_add_u32 m0, s{sT2}, {L_KX}")
        A(f"s_nop 0")
        A(f"buffer_load_dword v{vX8}, s[{sWS}:{sWS+3}], s{sT0} offen lds")
        A.label(f"{name}_g0e")
    A(f"s_barrier")
    if PROF == 2: stamp(A, 2)
    A(f"v_lshrrev_b32 v{vT+1}, 5, v{vLane}")
    A(f"v_bfe_u32 v{vT+2}, v{vT}, 2, 2")
    A(f"v_xor_b32 v{vT+2}, v{vT+2}, v{vT+1}")
    A(f"v_min_u32 v{vT+3}, 19, v{vT}")
    A(f"v_lshlrev_b32 v{vVg}, 6, v{vT+3}")
    A(f"v_lshl_add_u32 v{vVg}, v{vT+2}, 4, v{vVg}")
    A(f"v_xor_b32 v{vVg2}, 32, v{vVg}")
    A(f"v_add_u32 v{vVa0}, {L_V}, v{vVg}")
    A(f"v_add_u32 v{vVb0}, {L_V}, v{vVg2}")
    A(f"v_cmp_gt_u32 vcc, 19, v{vT}")
    A(f"v_mov_b32 v{vT+3}, 0x40000")
    A(f"v_cndmask_b32 v{vVa0}, v{vT+3}, v{vVa0}, vcc")
    A(f"v_cndmask_b32 v{vVb0}, v{vT+3}, v{vVb0}, vcc")
    A(f"v_lshlrev_b32 v{vKa0}, 3, v{vT}")
    A(f"v_lshl_add_u32 v{vKa0}, v{vT+1}, 8, v{vKa0}")
    A(f"s_and_b32 s{sT0}, s{sH}, 1")
    A(f"s_lshl_b32 s{sT0}, s{sT0}, 2")
    A(f"v_lshlrev_b32 v{vXg}, 3, v{vT}")
    A(f"v_add_u32 v{vXg}, s{sT0}, v{vXg}")
    A(f"v_lshlrev_b32 v{vXa0}, 2, v{vT}")
    A(f"v_add_u32 v{vXa0}, {L_KX}, v{vXa0}")
    A(f"v_cmp_gt_u32 vcc, 32, v{vLane}")
    A(f"v_cndmask_b32 v{vXa0}, v{vT+3}, v{vXa0}, vcc")
    A(f"v_mov_b32 v{vKF+5}, 0x3f80")
    A(f"v_mov_b32 v{vKF+8+5}, 0x3f80")
    A(f"v_lshlrev_b32 v{vT+4}, 2, v{vT+1}")
    A(f"v_sub_u32 v{vT+4}, v{vT}, v{vT+4}")
    A(f"s_mov_b32 s29, {NEG}")
    for r in range(16):
        c = 8*(r//4) + r % 4
        A(f"v_subrev_u32 v{vT+5}, {c}, v{vT+4}")
        A(f"v_ashrrev_i32 v{vT+5}, 31, v{vT+5}")
        A(f"v_and_b32 v{vMD+r}, s29, v{vT+5}")
        A(f"v_xor_b32 v{vMF+r}, s29, v{vMD+r}")
    ONEHI = 0x3f800000
    def qext_fix(q):
        A(f"v_cmp_gt_u32 vcc, 32, v{vLane}")
        A(f"v_mov_b32 v{vT+6}, {ONEHI}")
        A(f"v_cndmask_b32 v{q+4}, 0, v{q+4}, vcc")
        A(f"v_cndmask_b32 v{q+5}, 0, v{vT+6}, vcc")
    if PROF == 2: stamp(A, 3)
    A(f"s_waitcnt vmcnt(0)")
    if PROF == 2: stamp(A, 4)
    if G0: A(f"s_barrier")
    qext_fix(vQB)
    A(f"v_and_b32 v{vT}, 31, v{vLane}")
    A(f"v_lshlrev_b32 v{vT+2}, 2, v{vT}")
    A(f"s_lshl_b32 s{sT0}, s{sTQ}, 7")
    A(f"s_add_u32 s{sT0}, s{sT0}, {WS_G}")
    A(f"buffer_load_dword v{vG}, v{vT+2}, s[{sWS}:{sWS+3}], s{sT0} offen")
    if TLBW:
        A(f"s_lshl_b32 s{sT0}, s{sTQ}, 5")
        A(f"s_add_u32 s{sT0}, s{sT0}, s{sH}")
        A(f"s_lshl_b32 s{sT1}, s{sT0}, 10")
        A(f"s_add_u32 s{sT1}, s{sT1}, {WS_OM}")
        A(f"buffer_load_dword v35, v{vL16}, s[{sWS}:{sWS+3}], s{sT1} offen")
        A(f"s_add_u32 s{sT1}, s{sT1}, {64*32*1024}")
        A(f"buffer_load_dword v35, v{vL16}, s[{sWS}:{sWS+3}], s{sT1} offen")
        A(f"s_mov_b32 s{sT1}, {WS_OX}")
        A(f"buffer_load_dword v35, v{vL16}, s[{sWS}:{sWS+3}], s{sT1} offen")
    def claim_item():
        lab = f"{name}_claim{claim_item.n}"; claim_item.n += 1
        A(f"v_mov_b32 v{vT}, 1")
        A(f"s_mov_b64 exec, 1")
        A(f"ds_add_rtn_u32 v{vT+1}, v{vCA}, v{vT} offset:16")
        A(f"s_mov_b64 exec, -1")
        A(f"s_waitcnt lgkmcnt(0)")
        A(f"v_readfirstlane_b32 s50, v{vT+1}")
        A(f"s_cmp_ge_u32 s50, 8")
        A(f"s_cbranch_scc1 {lab}")
        A(f"s_lshl_b32 s51, s{sQB}, 3")
        A(f"s_add_u32 s51, s51, s50")
        A(f"s_lshl_b32 s{sT0}, s{sH}, 16")
        A(f"s_lshl_b32 s{sT1}, s51, 10")
        A(f"s_add_u32 s{sT0}, s{sT0}, s{sT1}")
        A(f"buffer_load_dwordx2 v[{vQA}:{vQA+1}], v{vQo}, s[{sWS}:{sWS+3}], s{sT0} offen")
        A(f"buffer_load_dwordx2 v[{vQA+2}:{vQA+3}], v{vQo}, s[{sWS}:{sWS+3}], s{sT0} offen offset:512")
        A(f"s_lshl_b32 s{sT1}, s51, 8")
        A(f"s_add_u32 s{sT1}, s{sT1}, s52")
        A(f"v_and_b32 v{vT}, 31, v{vLane}")
        A(f"v_lshlrev_b32 v{vT+1}, 3, v{vT}")
        A(f"buffer_load_dword v{vQA+4}, v{vT+1}, s[{sWS}:{sWS+3}], s{sT1} offen")
        A(f"v_lshlrev_b32 v{vT+2}, 2, v{vT}")
        A(f"s_lshl_b32 s{sT0}, s51, 7")
        A(f"s_add_u32 s{sT0}, s{sT0}, {WS_G}")
        A(f"buffer_load_dword v{vGA}, v{vT+2}, s[{sWS}:{sWS+3}], s{sT0} offen")
        A.label(lab)
    claim_item.n = 0
    A(f"s_lshr_b32 s52, s{sH}, 1")
    A(f"s_lshl_b32 s52, s52, 14")
    A(f"s_and_b32 s{sT1}, s{sH}, 1")
    A(f"s_lshl_b32 s{sT1}, s{sT1}, 2")
    A(f"s_add_u32 s52, s52, s{sT1}")
    A(f"s_add_u32 s52, s52, {WS_QX}")
    def need_groups(n_imm=None, n_sreg=None, tag=""):
        tgt = f"{n_imm}" if n_imm is not None else f"s{n_sreg}"
        A(f"s_cmp_ge_u32 s42, {tgt}")
        A(f"s_cbranch_scc1 {name}_ng_ok{tag}")
        A.label(f"{name}_ng{tag}")
        A(f"ds_read_b64 v[{vT}:{vT+1}], v{vCA}")
        A(f"s_waitcnt lgkmcnt(0)")
        A(f"v_min_u32 v{vT}, v{vT}, v{vT+1}")
        A(f"v_readfirstlane_b32 s42, v{vT}")
        A(f"s_cmp_ge_u32 s42, {tgt}")
        A(f"s_cbranch_scc1 {name}_ng_ok{tag}")
        A(f"s_sleep 1")
        A(f"s_branch {name}_ng{tag}")
        A.label(f"{name}_ng_ok{tag}")
    A(f"s_mov_b32 s42, 0")

    def kreads(buf, off_slot):
        kf = vKF + 8*buf
        A(f"ds_read2st64_b64 v[{kf}:{kf+3}], v{vKa} offset0:{2*off_slot} offset1:{2*off_slot+1}")
        A(f"ds_read_b32 v{kf+4}, v{vXa} offset:{off_slot*128}")
    def vreads(buf, off_slot):
        vf = vVF + 8*buf
        A(f"ds_read_b128 v[{vf}:{vf+3}], v{vVa} offset:{off_slot*V_TILE}")
        A(f"ds_read_b128 v[{vf+4}:{vf+7}], v{vVb} offset:{off_slot*V_TILE}")
    def qk(sbuf, kbuf, q, cop):
        sd = vS + 16*sbuf; kf = vKF + 8*kbuf
        A(f"v_mfma_f32_32x32x16_bf16 v[{sd}:{sd+15}], v[{kf}:{kf+3}], v[{q}:{q+3}], {cop}")
        A(f"v_mfma_f32_32x32x8_bf16 v[{sd}:{sd+15}], v[{kf+4}:{kf+5}], v[{q+4}:{q+5}], v[{sd}:{sd+15}]")
    def setaddr(slot, sreg=False):
        if not sreg:
            A(f"v_add_u32 v{vKa}, {L_KM + slot*1024}, v{vKa0}")
            A(f"v_add_u32 v{vVa}, {slot*V_TILE}, v{vVa0}")
            A(f"v_add_u32 v{vVb}, {slot*V_TILE}, v{vVb0}")
            A(f"v_add_u32 v{vXa}, {slot*128}, v{vXa0}")
        else:
            A(f"s_lshl_b32 s{sT0}, s{slot}, 10")
            A(f"v_add_u32 v{vKa}, s{sT0}, v{vKa0}")
            A(f"s_mul_i32 s{sT0}, s{slot}, {V_TILE}")
            A(f"v_add_u32 v{vVa}, s{sT0}, v{vVa0}")
            A(f"v_add_u32 v{vVb}, s{sT0}, v{vVb0}")
            A(f"s_lshl_b32 s{sT0}, s{slot}, 7")
            A(f"v_add_u32 v{vXa}, s{sT0}, v{vXa0}")
    def adv(n):
        A(f"v_add_u32 v{vKa}, {n*1024}, v{vKa}")
        A(f"v_add_u32 v{vVa}, {n*V_TILE}, v{vVa}")
        A(f"v_add_u32 v{vVb}, {n*V_TILE}, v{vVb}")
        A(f"v_add_u32 v{vXa}, {n*128}, v{vXa}")
    def maxtile(sbuf):
        sd = vS + 16*sbuf
        for i in range(8):
            A(f"v_max3_f32 v{vM}, v{sd+2*i}, v{sd+2*i+1}, v{vM}")
    def finish_max(q):
        A(f"v_mov_b32 v{vT}, v{vM}")
        A(f"v_permlane32_swap_b32 v{vM}, v{vT}")
        A(f"v_max_f32 v{vM}, v{vM}, v{vT}")
        A(f"v_sub_f32 v{vT}, 0, v{vM}")
        A(f"v_cvt_pk_bf16_f32 v{vT+1}, v{vT}, 1.0")
        A(f"v_lshlrev_b32 v{vT+2}, 16, v{vT+1}")
        A(f"v_sub_f32 v{vT+2}, v{vT}, v{vT+2}")
        A(f"v_cvt_pk_bf16_f32 v{vT+2}, v{vT+2}, 0")
        A(f"v_cmp_gt_u32 vcc, 32, v{vLane}")
        A(f"v_cndmask_b32 v{q+5}, v{vT+2}, v{vT+1}, vcc")
    def clear_max(q):
        A(f"v_mov_b32 v{vT}, {ONEHI}")
        A(f"v_cmp_gt_u32 vcc, 32, v{vLane}")
        A(f"v_cndmask_b32 v{q+5}, 0, v{vT}, vcc")
    def pv(g, vbuf):
        vf = vVF + 8*vbuf + 4*g
        A(f"v_mfma_f32_32x32x16_bf16 v[{vO}:{vO+15}], v[{vf}:{vf+3}], v[{vP+4*g}:{vP+4*g+3}], v[{vO}:{vO+15}]")
    def check_l(ok_label):
        A(f"s_nop 12")
        A(f"v_mov_b32 v{vT}, {f2u(2.0**100)}")
        A(f"v_cmp_nlt_f32 vcc, v{vO+10}, v{vT}")
        A(f"s_bfm_b64 s[32:33], 32, 0")
        A(f"s_and_b64 vcc, vcc, s[32:33]")
        A(f"s_cbranch_scc0 {ok_label}")
    def epilogue(br, tq, g):
        A(f"v_mov_b32 v{vT}, v{vO+10}")
        A(f"v_mov_b32 v{vT+1}, v{vO+10}")
        A(f"v_permlane32_swap_b32 v{vT}, v{vT+1}")
        A(f"v_rcp_f32 v{vT+2}, v{vT}")
        if br == 0:
            A(f"v_mul_f32 v{vT+2}, v{vT+2}, v{g}")
        else:
            A(f"v_sub_f32 v{vT+3}, 1.0, v{g}")
            A(f"v_mul_f32 v{vT+2}, v{vT+2}, v{vT+3}")
        for i in range(10): A(f"v_mul_f32 v{vO+i}, v{vO+i}, v{vT+2}")
        for i in range(5): A(f"v_cvt_pk_bf16_f32 v{vP+i}, v{vO+2*i}, v{vO+2*i+1}")
        A(f"s_lshl_b32 s{sT0}, s{tq}, 5")
        A(f"s_add_u32 s{sT0}, s{sT0}, s{sH}")
        A(f"s_lshl_b32 s{sT1}, s{sT0}, 10")
        A(f"s_add_u32 s{sT1}, s{sT1}, {WS_OM + br*64*32*1024}")
        A(f"buffer_store_dwordx4 v[{vP}:{vP+3}], v{vL16}, s[{sWS}:{sWS+3}], s{sT1} offen" + OMOD)
        A(f"s_lshl_b32 s{sT1}, s{sT0}, 7")
        A(f"s_add_u32 s{sT1}, s{sT1}, {WS_OX + br*64*32*128}")
        A(f"v_lshlrev_b32 v{vT+4}, 2, v{vLane}")
        A(f"s_bfm_b64 exec, 32, 0")
        A(f"buffer_store_dword v{vP+4}, v{vT+4}, s[{sWS}:{sWS+3}], s{sT1} offen" + OMOD)
        A(f"s_mov_b64 exec, -1")
    def tile_step(sb, nb, q, cnext, koff, voff, do_qk=True, do_k=True, do_v=True, first=False, pre_qk=None):
        sd = vS + 16*sb
        def e(lo, hi):
            for i in range(lo, hi): A(f"v_exp_f32 v{sd+i}, v{sd+i}")
        def c(lo, hi):
            for i in range(lo, hi): A(f"v_cvt_pk_bf16_f32 v{vP+i}, v{sd+2*i}, v{sd+2*i+1}")
        kf = vKF + 8*nb; sn = vS + 16*nb
        n_after = (2 if do_v else 0) + (2 if do_k else 0)
        m1 = lambda: A(f"v_mfma_f32_32x32x16_bf16 v[{sn}:{sn+15}], v[{kf}:{kf+3}], v[{q}:{q+3}], {cnext}")
        m2 = lambda: A(f"v_mfma_f32_32x32x8_bf16 v[{sn}:{sn+15}], v[{kf+4}:{kf+5}], v[{q+4}:{q+5}], v[{sn}:{sn+15}]")
        if ORDER == 0:
            e(0, 2)
            if not first: pv(1, nb)
            if pre_qk: pre_qk(nb)
            e(2, 6)
            if do_qk:
                A(f"s_waitcnt lgkmcnt(2)")
                m1()
            if do_k: kreads(sb, koff)
            e(6, 8); c(0, 4)
            if do_qk: m2()
            if do_v: vreads(nb, voff)
            e(8, 12)
            A(f"s_waitcnt lgkmcnt({n_after})")
            pv(0, sb)
            e(12, 16); c(4, 8)
        elif ORDER == 1:
            e(0, 2)
            if not first: pv(1, nb)
            if pre_qk: pre_qk(nb)
            e(2, 5)
            if do_qk:
                A(f"s_waitcnt lgkmcnt(2)")
                m1()
            if do_k: kreads(sb, koff)
            e(5, 8)
            c(0, 2)
            if do_qk: m2()
            if do_v: vreads(nb, voff)
            c(2, 4); e(8, 11)
            A(f"s_waitcnt lgkmcnt({n_after})")
            pv(0, sb)
            e(11, 16); c(4, 8)
        elif ORDER == 2:
            if pre_qk: pre_qk(nb)
            e(0, 2)
            if not first: pv(1, nb)
            if do_qk:
                A(f"s_waitcnt lgkmcnt(2)")
                m1()
            if do_k: kreads(sb, koff)
            e(2, 8); c(0, 4)
            if do_qk: m2()
            if do_v: vreads(nb, voff)
            A(f"s_waitcnt lgkmcnt({n_after})")
            pv(0, sb)
            e(8, 16); c(4, 8)

    if not G0: need_groups(n_imm=1, tag="0")
    stamp(A, 1 if PROF != 2 else 5)
    A(f"s_mov_b32 s{sPass}, 0")
    setaddr(0)
    kreads(0, 0)
    A(f"v_mov_b32 v{vM}, s29")
    A(f"s_waitcnt lgkmcnt(0)")
    qk(0, 0, vQB, "0")
    kreads(0, 0)
    kreads(1, 1)
    vreads(0, 0)
    for r in range(16): A(f"v_mov_b32 v{vO+r}, 0")
    for r in range(4): A(f"v_mov_b32 v{vP+4+r}, 0")
    for r in range(8): A(f"v_mov_b32 v{vVF+8+r}, 0")
    maxtile(0)
    finish_max(vQB)
    A(f"s_waitcnt lgkmcnt(4)")
    qk(0, 0, vQB, "0")
    A(f"s_mov_b32 s{sCnt}, 0")
    A(f"s_mov_b32 s38, 0")
    A(f"s_lshr_b32 s46, s{sWV}, 2")
    A(f"s_nop 7")
    UN = 4
    def prio_toggle(tag):
        if not PRIO: return
        A(f"s_add_u32 s39, s{sCnt}, s38")
        A(f"s_and_b32 s39, s39, {PDUTY-1}")
        A(f"s_cmp_eq_u32 s39, {PDUTY-1}")
        A(f"s_cselect_b32 s39, 0, s46")
        A(f"s_cmp_eq_u32 s39, 1")
        A(f"s_cbranch_scc1 {name}_p1{tag}")
        A(f"s_setprio 0")
        A(f"s_branch {name}_p2{tag}")
        A.label(f"{name}_p1{tag}")
        A(f"s_setprio 1")
        A.label(f"{name}_p2{tag}")
    A.label(f"{name}_bloop0")
    A(f"s_lshl_b32 s{sT1}, s{sCnt}, 2")
    A(f"s_add_u32 s{sT1}, s{sT1}, 13")
    A(f"s_lshr_b32 s{sT1}, s{sT1}, 3")
    need_groups(n_sreg=sT1, tag="l")
    prio_toggle("a")
    for u in range(UN):
        tile_step(u % 2, (u+1) % 2, vQB, "0", u + 2, u + 1)
    adv(UN)
    A(f"s_add_u32 s{sCnt}, s{sCnt}, 1")
    A(f"s_cmp_lt_u32 s{sCnt}, 4")
    A(f"s_cbranch_scc1 {name}_bloop0")
    signal(8)
    need_groups(n_imm=8, tag="m")
    A.label(f"{name}_bloop")
    prio_toggle("b")
    for u in range(UNROLL):
        tile_step(u % 2, (u+1) % 2, vQB, "0", u + 2, u + 1)
    adv(UNROLL)
    A(f"s_add_u32 s{sCnt}, s{sCnt}, {UNROLL // 4}")
    A(f"s_cmp_lt_u32 s{sCnt}, 16")
    A(f"s_cbranch_scc1 {name}_bloop")
    A(f"s_setprio 0")
    A(f"s_nop 1")
    pv(1, 1)
    if PROF != 2: stamp(A, 2)
    A(f"s_waitcnt vmcnt(0)")
    claim_item()
    check_l(f"{name}_bfin")
    if CNT:
        A(f"v_mov_b32 v{vT}, 0x15E0000")
        A(f"v_mov_b32 v{vT+1}, 1")
        A(f"s_mov_b64 exec, 1")
        A(f"buffer_atomic_add v{vT+1}, v{vT}, s[{sWS}:{sWS+3}], 0 offen")
        A(f"s_mov_b64 exec, -1")
    A(f"s_add_u32 s43, s{sKMs}, {32<<16}")
    A(f"s_add_u32 s44, s{sVs}, {32*V_HEAD}")
    A(f"s_add_u32 s45, s{sKXs}, {16*16384}")
    clear_max(vQB)
    A(f"v_mov_b32 v{vM}, s29")
    def gk(tile_sreg):
        A(f"s_lshl_b32 s{sT0}, s{tile_sreg}, 10")
        A(f"s_add_u32 s{sT0}, s{sT0}, s43")
        A(f"buffer_load_dwordx2 v[{vKF}:{vKF+1}], v{vQo}, s[{sWS}:{sWS+3}], s{sT0} offen")
        A(f"buffer_load_dwordx2 v[{vKF+2}:{vKF+3}], v{vQo}, s[{sWS}:{sWS+3}], s{sT0} offen offset:512")
        A(f"s_lshl_b32 s{sT0}, s{tile_sreg}, 8")
        A(f"s_add_u32 s{sT0}, s{sT0}, s45")
        A(f"buffer_load_dword v{vKF+4}, v{vXg}, s[{sWS}:{sWS+3}], s{sT0} offen")
    A(f"s_mov_b32 s{sCnt}, 0")
    A.label(f"{name}_bx1")
    gk(sCnt)
    A(f"s_waitcnt vmcnt(0)")
    qk(0, 0, vQB, "0")
    maxtile(0)
    A(f"s_add_u32 s{sCnt}, s{sCnt}, 1")
    A(f"s_cmp_lt_u32 s{sCnt}, 64")
    A(f"s_cbranch_scc1 {name}_bx1")
    finish_max(vQB)
    for r in range(16): A(f"v_mov_b32 v{vO+r}, 0")
    A(f"s_mov_b32 s{sCnt}, 0")
    A.label(f"{name}_bx2")
    gk(sCnt)
    A(f"s_mul_i32 s{sT0}, s{sCnt}, {V_TILE}")
    A(f"s_add_u32 s{sT0}, s{sT0}, s44")
    A(f"buffer_load_dwordx4 v[{vVF}:{vVF+3}], v{vVg}, s[{sWS}:{sWS+3}], s{sT0} offen")
    A(f"buffer_load_dwordx4 v[{vVF+4}:{vVF+7}], v{vVg2}, s[{sWS}:{sWS+3}], s{sT0} offen")
    A(f"s_waitcnt vmcnt(0)")
    qk(0, 0, vQB, "0")
    for i in range(16): A(f"v_exp_f32 v{vS+i}, v{vS+i}")
    for i in range(8): A(f"v_cvt_pk_bf16_f32 v{vP+i}, v{vS+2*i}, v{vS+2*i+1}")
    pv(0, 0); pv(1, 0)
    A(f"s_add_u32 s{sCnt}, s{sCnt}, 1")
    A(f"s_cmp_lt_u32 s{sCnt}, 64")
    A(f"s_cbranch_scc1 {name}_bx2")
    A(f"s_nop 12")
    A.label(f"{name}_bfin")
    epilogue(1, sTQ, vG)
    if PROF != 2: stamp(A, 3)
    A(f"s_cmp_ge_u32 s50, 8")
    A(f"s_cbranch_scc1 {name}_done")
    poll(12, 2, "a")

    A.label(f"{name}_aitem")
    A(f"s_mov_b32 s{sTQ}, s51")
    A(f"s_mov_b32 s53, s50")
    A(f"s_waitcnt vmcnt(2)")
    A(f"v_mov_b32 v{vGC}, v{vGA}")
    qext_fix(vQA)
    def bias_for(i, kbuf):
        A(f"s_cmp_ge_u32 s{sTQ}, {8 - i}")
        A(f"s_cselect_b32 s{sT0}, s36, s37")
        A(f"v_mov_b32 v{vKF + 8*kbuf + 5}, s{sT0}")
    A(f"s_mov_b32 s36, 0x3f80")
    A(f"s_mov_b32 s37, {(NEGB << 16) | 0x3f80}")
    setaddr(53, True)
    A(f"v_mov_b32 v{vM}, s29")
    A(f"s_cmp_eq_u32 s{sTQ}, 0")
    A(f"s_cbranch_scc1 {name}_aref0")
    kreads(0, 7)
    A(f"s_waitcnt lgkmcnt(0)")
    qk(0, 0, vQA, "0")
    A(f"s_branch {name}_aref1")
    A.label(f"{name}_aref0")
    kreads(0, 8)
    A(f"s_waitcnt lgkmcnt(0)")
    qk(0, 0, vQA, f"v[{vMD}:{vMD+15}]")
    A.label(f"{name}_aref1")
    kreads(0, 0)
    kreads(1, 1)
    vreads(0, 0)
    for r in range(16): A(f"v_mov_b32 v{vO+r}, 0")
    maxtile(0)
    finish_max(vQA)
    bias_for(0, 0)
    A(f"s_waitcnt lgkmcnt(4)")
    qk(0, 0, vQA, f"v[{vMF}:{vMF+15}]")
    A(f"s_nop 7")
    for i in range(9):
        pre = (lambda nb, i=i: bias_for(i+1, nb)) if i < 7 else ((lambda nb: A(f"v_mov_b32 v{vKF + 8*nb + 5}, s36")) if i == 7 else None)
        tile_step(i % 2, (i+1) % 2, vQA, (f"v[{vMD}:{vMD+15}]" if i == 7 else "0"), i + 2, i + 1,
                  do_qk=(i < 8), do_k=(i < 7), do_v=(i < 8), first=(i == 0), pre_qk=pre)
    A(f"s_nop 1")
    pv(1, 0)
    A(f"v_mov_b32 v{vKF+5}, s36")
    A(f"v_mov_b32 v{vKF+8+5}, s36")
    check_l(f"{name}_aepi")
    if CNT:
        A(f"v_mov_b32 v{vT}, 0x15E0004")
        A(f"v_mov_b32 v{vT+1}, 1")
        A(f"s_mov_b64 exec, 1")
        A(f"buffer_atomic_add v{vT+1}, v{vT}, s[{sWS}:{sWS+3}], 0 offen")
        A(f"s_mov_b64 exec, -1")
    clear_max(vQA)
    A(f"s_sub_u32 s{sI}, 8, s{sTQ}")
    A(f"s_cmp_ge_u32 s{sTQ}, 8")
    A(f"s_cselect_b32 s{sI}, 0, s{sI}")
    A(f"s_mov_b32 s30, s{sI}")
    A(f"s_mov_b32 s31, s53")
    def set_cm_for(i_sreg):
        lab = f"{name}_cm{set_cm_for.n}"; set_cm_for.n += 1
        A(f"s_cmp_eq_u32 s{i_sreg}, 8")
        A(f"s_cbranch_scc1 {lab}_d")
        A(f"s_cmp_eq_u32 s{i_sreg}, 0")
        A(f"s_cbranch_scc1 {lab}_f")
        for r in range(16): A(f"v_mov_b32 v{vCM+r}, 0")
        A(f"s_branch {lab}_e")
        A.label(f"{lab}_d")
        for r in range(16): A(f"v_mov_b32 v{vCM+r}, v{vMD+r}")
        A(f"s_branch {lab}_e")
        A.label(f"{lab}_f")
        for r in range(16): A(f"v_mov_b32 v{vCM+r}, v{vMF+r}")
        A.label(f"{lab}_e")
    set_cm_for.n = 0
    A(f"v_mov_b32 v{vM}, s29")
    A.label(f"{name}_a1")
    A(f"s_add_u32 s{sT1}, s31, s{sI}")
    setaddr(sT1, True)
    kreads(0, 0)
    set_cm_for(sI)
    A(f"s_waitcnt lgkmcnt(0)")
    qk(0, 0, vQA, f"v[{vCM}:{vCM+15}]")
    maxtile(0)
    A(f"s_add_u32 s{sI}, s{sI}, 1")
    A(f"s_cmp_le_u32 s{sI}, 8")
    A(f"s_cbranch_scc1 {name}_a1")
    finish_max(vQA)
    for r in range(16): A(f"v_mov_b32 v{vO+r}, 0")
    A(f"s_mov_b32 s{sI}, s30")
    A.label(f"{name}_a2")
    A(f"s_add_u32 s{sT1}, s31, s{sI}")
    setaddr(sT1, True)
    kreads(0, 0)
    vreads(0, 0)
    set_cm_for(sI)
    A(f"s_waitcnt lgkmcnt(2)")
    qk(0, 0, vQA, f"v[{vCM}:{vCM+15}]")
    for i in range(16): A(f"v_exp_f32 v{vS+i}, v{vS+i}")
    for i in range(8): A(f"v_cvt_pk_bf16_f32 v{vP+i}, v{vS+2*i}, v{vS+2*i+1}")
    A(f"s_waitcnt lgkmcnt(0)")
    pv(0, 0); pv(1, 0)
    A(f"s_add_u32 s{sI}, s{sI}, 1")
    A(f"s_cmp_le_u32 s{sI}, 8")
    A(f"s_cbranch_scc1 {name}_a2")
    A(f"s_nop 12")
    A.label(f"{name}_aepi")
    claim_item()
    epilogue(0, sTQ, vGC)
    A(f"s_cmp_lt_u32 s50, 8")
    A(f"s_cbranch_scc1 {name}_aitem")
    A.label(f"{name}_done")
    if PROF:
        stamp(A, 5 if PROF != 2 else 6)
        stamps_out(A, 1, 7, sWS, sWV, vS)
    rt_end(A, 1, sWV, vS)
    A(f"s_endpgm")

    A.label(f"{name}_loader")
    if LPRIO: A(f"s_setprio {LPRIO}")
    A(f"s_sub_u32 s35, s{sWV}, 8")
    A(f"s_lshl_b32 s34, s35, 10")
    A(f"s_add_u32 s43, s{sKMs}, {32<<16}")
    A(f"s_add_u32 s44, s{sVs}, {32*V_HEAD}")
    A(f"s_add_u32 s45, s{sKXs}, {16*16384}")
    A(f"s_lshl_b32 s46, s35, 2")
    A(f"v_add_u32 v{vT+8}, s46, v{vCA}")
    A("s_waitcnt lgkmcnt(0)")
    srd(A, sWS, 4, 5, WS_SIZE)
    def ld(lds_sreg, src_sreg, off):
        A(f"s_add_u32 m0, s{lds_sreg}, {off}")
        A(f"s_add_u32 s{sT3}, s{src_sreg}, {off}")
        A(f"buffer_load_dwordx4 v{vL16}, s[{sWS}:{sWS+3}], s{sT3} offen lds")
    A(f"s_mov_b32 s{sCnt}, {1 if G0 else 0}")
    A.label(f"{name}_lgrp")
    A(f"s_add_u32 s{sT0}, s{sQB}, s{sCnt}")
    A(f"s_and_b32 s{sT0}, s{sT0}, 7")
    A(f"s_lshl_b32 s48, s{sT0}, 13")
    A(f"s_add_u32 s48, s48, s43")
    A(f"s_add_u32 s48, s48, s34")
    A(f"s_lshl_b32 s49, s{sCnt}, 13")
    A(f"s_add_u32 s49, s49, s34")
    for j in range(4): ld(49, 48, j*2048)
    A(f"s_lshl_b32 s48, s{sT0}, 11")
    A(f"s_add_u32 s48, s48, s45")
    A(f"s_lshl_b32 s{sT2}, s35, 9")
    A(f"s_add_u32 s48, s48, s{sT2}")
    A(f"s_lshl_b32 s49, s{sCnt}, 10")
    A(f"s_lshl_b32 s{sT2}, s35, 8")
    A(f"s_add_u32 s49, s49, s{sT2}")
    A(f"s_add_u32 s49, s49, {L_KX}")
    for j in range(2):
        A(f"s_add_u32 m0, s49, {j*512}")
        A(f"s_add_u32 s{sT3}, s48, {j*1024}")
        A(f"buffer_load_dword v{vX8}, s[{sWS}:{sWS+3}], s{sT3} offen lds")
    A(f"s_mul_i32 s48, s{sT0}, {8*V_TILE}")
    A(f"s_add_u32 s48, s48, s44")
    A(f"s_add_u32 s48, s48, s34")
    A(f"s_mul_i32 s49, s{sCnt}, {8*V_TILE}")
    A(f"s_add_u32 s49, s49, s34")
    A(f"s_add_u32 s49, s49, {L_V}")
    for j in range(5): ld(49, 48, j*2048)
    A(f"s_cmp_eq_u32 s{sCnt}, {1 if G0 else 0}")
    A(f"s_cbranch_scc0 {name}_lg1")
    A(f"s_barrier")
    if G0:
        A(f"s_barrier")
        A(f"v_mov_b32 v{vT}, 1")
        A(f"s_mov_b64 exec, 1")
        A(f"ds_add_u32 v{vT+8}, v{vT}")
        A(f"s_mov_b64 exec, -1")
    A(f"s_branch {name}_lg2")
    A.label(f"{name}_lg1")
    A(f"s_waitcnt vmcnt(11)")
    A(f"v_mov_b32 v{vT}, 1")
    A(f"s_mov_b64 exec, 1")
    A(f"ds_add_u32 v{vT+8}, v{vT}")
    A(f"s_mov_b64 exec, -1")
    A.label(f"{name}_lg2")
    A(f"s_add_u32 s{sCnt}, s{sCnt}, 1")
    A(f"s_cmp_lt_u32 s{sCnt}, 8")
    A(f"s_cbranch_scc1 {name}_lgrp")
    A(f"s_waitcnt vmcnt(0)")
    A(f"v_mov_b32 v{vT}, 1")
    A(f"s_mov_b64 exec, 1")
    A(f"ds_add_u32 v{vT+8}, v{vT}")
    A(f"s_mov_b64 exec, -1")
    poll(8, 8, "ld")
    def lgroup(ldsbase, sreg, n):
        lab = f"{name}_lg_{lgroup.n}"; lgroup.n += 1
        A(f"s_add_u32 s{sT3}, s{sreg}, s34")
        A(f"s_add_u32 s{sT2}, s34, {ldsbase}")
        A(f"s_mov_b32 s{sCnt}, s35")
        A.label(lab)
        A(f"s_mov_b32 m0, s{sT2}")
        A(f"s_add_u32 s{sT2}, s{sT2}, 2048")
        A(f"buffer_load_dwordx4 v{vL16}, s[{sWS}:{sWS+3}], s{sT3} offen lds")
        A(f"s_add_u32 s{sT3}, s{sT3}, 2048")
        A(f"s_add_u32 s{sCnt}, s{sCnt}, 2")
        A(f"s_cmp_lt_u32 s{sCnt}, {n}")
        A(f"s_cbranch_scc1 {lab}")
    lgroup.n = 0
    A(f"s_lshl_b32 s{sI}, s{sQB}, 3")
    A(f"s_sub_u32 s{sI}, s{sI}, 8")
    A(f"s_lshl_b32 s{sT0}, s{sI}, 10")
    A(f"s_add_u32 s28, s{sKMs}, s{sT0}")
    lgroup(L_KM, 28, 16)
    A(f"s_lshl_b32 s{sT0}, s{sI}, 8")
    A(f"s_add_u32 s28, s{sKXs}, s{sT0}")
    A(f"s_lshl_b32 s{sT2}, s35, 9")
    A(f"s_add_u32 s28, s28, s{sT2}")
    A(f"s_lshl_b32 s{sT2}, s35, 8")
    A(f"s_add_u32 s{sT2}, s{sT2}, {L_KX}")
    for j in range(4):
        A(f"s_add_u32 m0, s{sT2}, {j*512}")
        A(f"s_add_u32 s{sT3}, s28, {j*1024}")
        A(f"buffer_load_dword v{vX8}, s[{sWS}:{sWS+3}], s{sT3} offen lds")
    A(f"s_mul_i32 s{sT0}, s{sI}, {V_TILE}")
    A(f"s_add_u32 s28, s{sVs}, s{sT0}")
    lgroup(L_V, 28, 20)
    A(f"s_waitcnt vmcnt(0)")
    signal(12)
    if WOPF:
        A(f"s_lshl_b32 s{sT0}, s35, 1")
        A(f"s_mul_i32 s{sT0}, s{sT0}, 12")
        A(f"s_add_u32 s{sT0}, s{sT0}, 16")
        A(f"s_load_dwordx2 s[48:49], s[0:1], s{sT0}")
        A(f"s_lshr_b32 s{sT1}, s2, 3")
        A(f"s_mul_i32 s{sT1}, s{sT1}, {D*D*2 // 32}")
        A(f"v_lshlrev_b32 v{vT+1}, 6, v{vLane}")
        A(f"s_waitcnt lgkmcnt(0)")
        A(f"s_mov_b32 s52, s48")
        A(f"s_and_b32 s53, s49, 0xffff")
        A(f"s_mov_b32 s54, {D*D*2}")
        A(f"s_mov_b32 s55, 0x00020000")
        for j in range(6):
            A(f"buffer_load_dword v{vT+2}, v{vT+1}, s[52:55], s{sT1} offen")
            if j < 5: A(f"s_add_u32 s{sT1}, s{sT1}, 4096")
        A(f"s_waitcnt vmcnt(0)")
    A(f"s_waitcnt lgkmcnt(0)")
    A.label(f"{name}_end")
    A(f"s_endpgm")
    return khead(name) + A.finish(True), kdesc(name, NV, 100)
```

```python
from asmlib import *
from common import *

K3_LDS = 2 * 576 * 128
K3_THREADS = 512
K3_GRID = 216
NCH = int(__import__("os").environ.get("NCH", "6"))
KPC = 36 // NCH
import os
OUTT = int(os.environ.get('OUTT', '0'))
LPRIO = int(os.environ.get('LPRIO3', os.environ.get('LPRIO', '0')))
OINIT = int(os.environ.get('OINIT', '12'))
OPER = int(os.environ.get('OPER', '2'))
WAHEAD = int(os.environ.get('WAHEAD', '2'))

def gen_k3(name):
    A = Asm()
    sWS, sW, sOUT = 8, 12, 16
    sTG, sCG, sWV, sBR, sTT, sTILE = 20, 21, 22, 23, 24, 25
    sT0, sT1, sT2, sT3 = 26, 27, 28, 29
    sCH = 30
    vLane = 1
    vL16 = 2
    vLm, vLe = 3, 4
    vAW0, vAW1 = 5, 6
    vOx = 7
    vT = 8
    vWF = 16
    vACC = 32
    vOF = 64
    NV = 208

    A(f"s_cmp_ge_u32 s2, {K3_GRID}")
    A(f"s_cbranch_scc1 {name}_end")
    stamp(A, 0)
    rt_begin(A)
    A(f"s_load_dwordx2 s[4:5], s[0:1], {ARG['ws']}")
    A(f"s_load_dwordx2 s[6:7], s[0:1], {ARG['A_wo']}")
    A(f"s_load_dwordx2 s[32:33], s[0:1], {ARG['B_wo']}")
    A(f"s_load_dwordx2 s[34:35], s[0:1], {ARG['out']}")
    A(f"v_and_b32 v{vLane}, 63, v0")
    A(f"v_lshrrev_b32 v{vT}, 6, v0")
    A(f"s_and_b32 s{sT0}, s2, 7")
    A(f"v_readfirstlane_b32 s{sWV}, v{vT}")
    A(f"s_lshr_b32 s{sT1}, s2, 3")
    A(f"s_mul_i32 s{sT2}, s{sT1}, 57")
    A(f"s_lshr_b32 s{sT2}, s{sT2}, 9")
    A(f"s_mul_i32 s{sT3}, s{sT2}, 9")
    A(f"s_sub_u32 s{sCG}, s{sT1}, s{sT3}")
    A(f"s_lshl_b32 s{sT2}, s{sT2}, 3")
    A(f"s_add_u32 s{sTG}, s{sT0}, s{sT2}")
    A(f"s_cmp_ge_u32 s{sTG}, 22")
    A(f"s_cbranch_scc1 {name}_end")
    A(f"s_cmp_ge_u32 s{sWV}, 6")
    A(f"s_cbranch_scc0 {name}_comp")

    if LPRIO: A(f"s_setprio {LPRIO}")
    A(f"s_sub_u32 s{sBR}, s{sWV}, 6")
    A(f"v_lshrrev_b32 v{vT}, 3, v{vLane}")
    A(f"v_and_b32 v{vT+1}, 7, v{vLane}")
    A(f"v_bfe_u32 v{vT+2}, v{vLane}, 4, 1")
    A(f"v_lshlrev_b32 v{vT+3}, 2, v{vT+2}")
    A(f"v_xor_b32 v{vT+1}, v{vT+1}, v{vT+3}")
    A(f"v_lshlrev_b32 v{vT+1}, 4, v{vT+1}")
    A(f"v_lshrrev_b32 v{vT+3}, 2, v{vT}")
    A(f"v_lshlrev_b32 v{vT+3}, 3, v{vT+3}")
    A(f"v_and_b32 v{vT+4}, 3, v{vT}")
    A(f"v_add_u32 v{vT+3}, v{vT+3}, v{vT+4}")
    A(f"v_mul_u32_u24 v{vLm}, 1152, v{vT+3}")
    A(f"v_add_u32 v{vLm}, v{vLm}, v{vT+1}")
    A(f"v_lshrrev_b32 v{vT+3}, 1, v{vT}")
    A(f"v_mul_u32_u24 v{vT+3}, 18, v{vT+3}")
    A(f"v_lshlrev_b32 v{vT+4}, 4, v{vT+2}")
    A(f"v_sub_u32 v{vT+4}, 16, v{vT+4}")
    A(f"v_and_b32 v{vT+5}, 1, v{vT}")
    A(f"v_add3_u32 v{vT+3}, v{vT+3}, v{vT+4}, v{vT+5}")
    A(f"v_mul_u32_u24 v{vLe}, 1152, v{vT+3}")
    A(f"v_add_u32 v{vLe}, v{vLe}, v{vT+1}")
    A("s_waitcnt lgkmcnt(0)")
    A(f"s_cmp_eq_u32 s{sBR}, 0")
    A(f"s_cselect_b32 s{sW}, s6, s32")
    A(f"s_cselect_b32 s{sW+1}, s7, s33")
    A(f"s_and_b32 s{sW+1}, s{sW+1}, 0xffff")
    A(f"s_mov_b32 s{sW+2}, {D*D*2}")
    A(f"s_mov_b32 s{sW+3}, 0x00020000")
    A(f"s_mul_i32 s{sT0}, s{sBR}, {576*128}")
    A(f"s_mov_b32 m0, s{sT0}")
    A(f"s_lshl_b32 s{sT1}, s{sCG}, 7")
    A(f"s_lshl_b32 s36, s{sCG}, 2")
    def wchunk(ch):
        for s_ in range(KPC*ch, KPC*(ch+1)):
            if s_ < 32:
                A(f"s_add_u32 s{sT3}, s36, {s_}")
                A(f"s_and_b32 s{sT3}, s{sT3}, 31")
                A(f"s_mul_i32 s{sT3}, s{sT3}, {18*1152}")
                A(f"s_add_u32 s{sT3}, s{sT3}, s{sT1}")
            for hk in range(2):
                if s_ < 32:
                    A(f"s_add_u32 s{sT2}, s{sT3}, {(2*(s_ % 2) + 4*hk) * 1152}")
                    A(f"buffer_load_dwordx4 v{vLm}, s[{sW}:{sW+3}], s{sT2} offen lds")
                else:
                    A(f"s_add_u32 s{sT2}, s{sT1}, {18*(8*(s_-32) + 4*hk) * 1152}")
                    A(f"buffer_load_dwordx4 v{vLe}, s[{sW}:{sW+3}], s{sT2} offen lds")
                A(f"s_add_u32 m0, m0, 1024")
    AHEAD = WAHEAD
    for ch in range(AHEAD): wchunk(ch)
    for ch in range(NCH):
        inflight_after = min(NCH, ch + AHEAD) - (ch + 1)
        A(f"s_waitcnt vmcnt({2*KPC*inflight_after})")
        A(f"s_barrier")
        if ch + AHEAD < NCH: wchunk(ch + AHEAD)
    A(f"s_barrier")
    A(f"s_barrier")
    A(f"s_endpgm")

    A.label(f"{name}_comp")
    A(f"s_cmp_ge_u32 s{sWV}, 3")
    A(f"s_cselect_b32 s{sBR}, 1, 0")
    A(f"s_mul_i32 s{sT0}, s{sBR}, 3")
    A(f"s_sub_u32 s{sTT}, s{sWV}, s{sT0}")
    A(f"s_mul_i32 s{sTILE}, s{sTG}, 3")
    A(f"s_add_u32 s{sTILE}, s{sTILE}, s{sTT}")
    A(f"s_min_u32 s{sT3}, s{sTILE}, 63")
    A(f"v_lshlrev_b32 v{vL16}, 4, v{vLane}")
    A("s_waitcnt lgkmcnt(0)")
    srd(A, sWS, 4, 5, WS_SIZE)
    srd(A, sOUT, 34, 35, T*D*2)
    A(f"s_lshl_b32 s{sT0}, s{sBR}, 6")
    A(f"s_add_u32 s{sT0}, s{sT0}, s{sT3}")
    A(f"s_lshl_b32 s{sT1}, s{sT0}, 15")
    A(f"s_add_u32 s{sT1}, s{sT1}, {WS_OM}")
    A(f"s_lshl_b32 s36, s{sCG}, 2")
    A(f"s_mov_b32 s37, s{sT1}")
    A(f"v_and_b32 v{vT}, 31, v{vLane}")
    A(f"v_lshlrev_b32 v{vOx}, 2, v{vT}")
    A(f"v_lshrrev_b32 v{vT+1}, 5, v{vLane}")
    A(f"v_lshl_add_u32 v{vOx}, v{vT+1}, 9, v{vOx}")
    A(f"s_lshl_b32 s38, s{sT0}, 12")
    A(f"s_add_u32 s38, s38, {WS_OX}")
    nload = [0]
    def oload():
        k = nload[0]
        if k >= 48: return
        nload[0] += 1
        if k < 32:
            r = vOF + 4*k
            A(f"s_add_u32 s39, s36, {k}")
            A(f"s_and_b32 s39, s39, 31")
            A(f"s_lshl_b32 s39, s39, 10")
            A(f"s_add_u32 s39, s39, s37")
            A(f"buffer_load_dwordx4 v[{r}:{r+3}], v{vL16}, s[{sWS}:{sWS+3}], s39 offen")
        else:
            sp, i = (k-32) // 4, (k-32) % 4
            r = vOF + 4*(32+sp) + i
            A(f"buffer_load_dword v{r}, v{vOx}, s[{sWS}:{sWS+3}], s38 offen offset:{sp*1024 + i*128}")
    for _ in range(OINIT): oload()
    A(f"v_bfe_u32 v{vT+2}, v{vLane}, 2, 2")
    A(f"v_lshl_add_u32 v{vT+3}, v{vT+1}, 3, v{vT+2}")
    A(f"v_lshlrev_b32 v{vT+3}, 7, v{vT+3}")
    A(f"v_bfe_u32 v{vT+4}, v{vLane}, 4, 1")
    A(f"v_lshlrev_b32 v{vT+4}, 5, v{vT+4}")
    A(f"v_and_b32 v{vT+5}, 1, v{vLane}")
    A(f"v_lshlrev_b32 v{vT+5}, 1, v{vT+5}")
    A(f"v_bfe_u32 v{vT+6}, v{vLane}, 1, 1")
    A(f"v_or_b32 v{vT+5}, v{vT+5}, v{vT+6}")
    A(f"v_lshl_add_u32 v{vT+4}, v{vT+5}, 3, v{vT+4}")
    A(f"v_lshrrev_b32 v{vT+2}, 1, v{vT+2}")
    A(f"v_lshlrev_b32 v{vT+2}, 6, v{vT+2}")
    A(f"v_xor_b32 v{vT+4}, v{vT+4}, v{vT+2}")
    A(f"s_mul_i32 s{sT0}, s{sBR}, {576*128}")
    A(f"v_add3_u32 v{vAW0}, v{vT+3}, v{vT+4}, s{sT0}")
    A(f"v_xor_b32 v{vAW1}, 64, v{vAW0}")
    for i in range(32): A(f"v_mov_b32 v{vACC+i}, 0")
    stamp(A, 1)
    def wr(s_, buf, k):
        wf = vWF + 8*buf
        off = (s_ % KPC) * 2048
        va = vAW0 if k < 2 else vAW1
        A(f"ds_read_b64_tr_b16 v[{wf+2*k}:{wf+2*k+1}], v{va} offset:{off + 512*(k % 2)}")
    def mf(s_, buf, t):
        acc = vACC + 16*t; wf = vWF + 8*buf; of = vOF + 4*s_
        A(f"v_mfma_f32_32x32x16_bf16 v[{acc}:{acc+15}], v[{wf+4*t}:{wf+4*t+3}], v[{of}:{of+3}], v[{acc}:{acc+15}]")
    def owait(s_):
        need = s_ + 1 if s_ < 32 else 32 + 4*(s_ - 31)
        A(f"s_waitcnt vmcnt({nload[0] - need})")
    for ch in range(NCH):
        A(f"s_barrier")
        if ch == 0: stamp(A, 2)
        s0 = KPC*ch
        for k in range(4): wr(s0, 0, k)
        for q in range(KPC):
            s_ = s0 + q; b = q % 2
            last = (q == KPC-1)
            owait(s_)
            A(f"s_waitcnt lgkmcnt(2)")
            mf(s_, b, 0)
            if not last:
                wr(s_+1, 1-b, 0); wr(s_+1, 1-b, 1)
                A(f"s_waitcnt lgkmcnt(2)")
            else:
                A(f"s_waitcnt lgkmcnt(0)")
            mf(s_, b, 1)
            if not last:
                wr(s_+1, 1-b, 2); wr(s_+1, 1-b, 3)
            for _ in range(3 if ch == 3 else 1):
                if ch + 2 < NCH: oload()
        if ch < NCH-1:
            A(f"v_add_u32 v{vAW0}, {KPC*2048}, v{vAW0}")
            A(f"v_add_u32 v{vAW1}, {KPC*2048}, v{vAW1}")
    stamp(A, 3)
    A(f"s_barrier")
    A(f"s_lshl_b32 s{sT0}, s{sTT}, 13")
    A(f"s_lshl_b32 s{sT1}, s{sBR}, 12")
    A(f"s_add_u32 s{sT2}, s{sT0}, s{sT1}")
    A(f"v_add_u32 v{vT}, s{sT2}, v{vL16}")
    A(f"s_xor_b32 s{sT2}, s{sT2}, 4096")
    A(f"v_add_u32 v{vT+1}, s{sT2}, v{vL16}")
    A(f"s_nop 7")
    A(f"s_cmp_eq_u32 s{sBR}, 0")
    A(f"s_cbranch_scc1 {name}_xa")
    for i in range(4): A(f"ds_write_b128 v{vT}, v[{vACC+4*i}:{vACC+4*i+3}] offset:{i*1024}")
    for i in range(16): A(f"v_mov_b32 v{vACC+i}, v{vACC+16+i}")
    A(f"s_branch {name}_xb")
    A.label(f"{name}_xa")
    for i in range(4): A(f"ds_write_b128 v{vT}, v[{vACC+16+4*i}:{vACC+16+4*i+3}] offset:{i*1024}")
    A.label(f"{name}_xb")
    A(f"s_waitcnt lgkmcnt(0)")
    A(f"s_barrier")
    for i in range(4):
        A(f"ds_read_b128 v[{vOF+4*i}:{vOF+4*i+3}], v{vT+1} offset:{i*1024}")
    A(f"s_cmp_ge_u32 s{sTILE}, 64")
    A(f"s_cbranch_scc1 {name}_end")
    A(f"s_waitcnt lgkmcnt(0)")
    for i in range(16): A(f"v_add_f32 v{vACC+i}, v{vACC+i}, v{vOF+i}")
    for i in range(8): A(f"v_cvt_pk_bf16_f32 v{vWF+i}, v{vACC+2*i}, v{vACC+2*i+1}")
    if OUTT:
        A(f"v_and_b32 v{vT+2}, 31, v{vLane}")
        A(f"v_lshlrev_b32 v{vT+2}, 7, v{vT+2}")
        A(f"v_lshrrev_b32 v{vT+3}, 5, v{vLane}")
        A(f"v_lshl_add_u32 v{vT+2}, v{vT+3}, 4, v{vT+2}")
        A(f"s_lshl_b32 s{sT0}, s{sTT}, 12")
        A(f"s_lshl_b32 s{sT1}, s{sBR}, 6")
        A(f"s_add_u32 s{sT1}, s{sT1}, s{sT0}")
        A(f"s_add_u32 s{sT1}, s{sT1}, 32768")
        A(f"v_add_u32 v{vT+2}, s{sT1}, v{vT+2}")
        A(f"ds_write_b128 v{vT+2}, v[{vWF}:{vWF+3}]")
        A(f"ds_write_b128 v{vT+2}, v[{vWF+4}:{vWF+7}] offset:32")
        A(f"s_waitcnt lgkmcnt(0)")
        A(f"s_barrier")
        A(f"s_lshl_b32 s{sT1}, s{sBR}, 11")
        A(f"s_add_u32 s{sT1}, s{sT1}, s{sT0}")
        A(f"s_add_u32 s{sT1}, s{sT1}, 32768")
        A(f"v_add_u32 v{vT+3}, s{sT1}, v{vL16}")
        A(f"ds_read_b128 v[{vWF}:{vWF+3}], v{vT+3}")
        A(f"ds_read_b128 v[{vWF+4}:{vWF+7}], v{vT+3} offset:1024")
        A(f"v_lshrrev_b32 v{vT+4}, 3, v{vLane}")
        A(f"v_mul_u32_u24 v{vT+4}, 1152, v{vT+4}")
        A(f"v_and_b32 v{vT+5}, 7, v{vLane}")
        A(f"v_lshl_add_u32 v{vT+4}, v{vT+5}, 4, v{vT+4}")
        A(f"s_lshl_b32 s{sT0}, s{sTILE}, 5")
        A(f"s_lshl_b32 s{sT1}, s{sBR}, 4")
        A(f"s_add_u32 s{sT0}, s{sT0}, s{sT1}")
        A(f"s_mul_i32 s{sT0}, s{sT0}, 1152")
        A(f"s_lshl_b32 s{sT1}, s{sCG}, 7")
        A(f"s_add_u32 s{sT0}, s{sT0}, s{sT1}")
        A(f"s_waitcnt lgkmcnt(1)")
        A(f"buffer_store_dwordx4 v[{vWF}:{vWF+3}], v{vT+4}, s[{sOUT}:{sOUT+3}], s{sT0} offen sc1")
        A(f"s_add_u32 s{sT0}, s{sT0}, {8*1152}")
        A(f"s_waitcnt lgkmcnt(0)")
        A(f"buffer_store_dwordx4 v[{vWF+4}:{vWF+7}], v{vT+4}, s[{sOUT}:{sOUT+3}], s{sT0} offen sc1")
    else:
        A(f"v_and_b32 v{vT+2}, 31, v{vLane}")
        A(f"v_mul_u32_u24 v{vT+2}, 1152, v{vT+2}")
        A(f"v_lshrrev_b32 v{vT+3}, 5, v{vLane}")
        A(f"v_lshl_add_u32 v{vT+2}, v{vT+3}, 4, v{vT+2}")
        A(f"s_mul_i32 s{sT0}, s{sTILE}, {32*1152}")
        A(f"s_lshl_b32 s{sT1}, s{sCG}, 7")
        A(f"s_add_u32 s{sT0}, s{sT0}, s{sT1}")
        A(f"s_lshl_b32 s{sT1}, s{sBR}, 6")
        A(f"s_add_u32 s{sT0}, s{sT0}, s{sT1}")
        for half in range(2):
            r = vWF + 4*half
            A(f"buffer_store_dwordx4 v[{r}:{r+3}], v{vT+2}, s[{sOUT}:{sOUT+3}], s{sT0} offen offset:{half*32}")
    if PROF:
        stamp(A, 4)
        A("s_waitcnt vmcnt(0)")
        stamp(A, 5)
        stamps_out(A, 2, 6, sWS, sWV, vOF)
    rt_end(A, 2, sWV, vOF)
    A.label(f"{name}_end")
    A(f"s_endpgm")
    return khead(name) + A.finish(True), kdesc(name, NV, 100)
```

```python
from asmlib import *
from common import *
import os

K1_W0 = 32768
K1_STAGE = 49152
K1_LDS = 3 * K1_STAGE
import os as _os
NX = int(_os.environ.get('NX', '4'))
K1_THREADS = (8 + NX + 2) * 64
K1_GRID = 224
QKMOD = " " + os.environ.get("QKMOD", "sc1")
VMOD = " " + os.environ.get("VMOD", "sc1")
TLBW = int(os.environ.get("TLBW", "0"))
LDMOD = (" " + os.environ["LDMOD"]) if os.environ.get("LDMOD") else ""
GT = int(os.environ.get("GT", "0"))
EXP = int(os.environ.get("EXP", "0"))
TOUCH = int(os.environ.get("TOUCH", "0"))

def gen_k1(name):
    A = Asm()
    sX, sWS, sG = 8, 16, 20
    sCG, sTB, sWV, sCH = 24, 25, 26, 27
    sOff, sOffI, sOffC = 28, 29, 30
    sM0, sM0I = 31, 32
    sStL = 33
    sDelta = 34
    sStR = 35
    sT0, sT1, sT2, sT3 = 36, 37, 38, 39
    sFP, sTP, sBLK, sBR, sBETA, sTY = 40, 41, 42, 43, 50, 51
    vLane = 1
    vLo = 2
    vTo, vTd = 3, 4
    vAX = 6
    vAW0, vAW1 = 10, 11
    vT = 12
    vXF = 24
    vWF = 40
    vACC = 56
    vSO = 120
    vP = 24
    NV = 128

    A(f"s_cmp_ge_u32 s2, {K1_GRID}")
    A(f"s_cbranch_scc1 {name}_end")
    stamp(A, 0)
    rt_begin(A)
    A(f"s_load_dwordx4 s[4:7], s[0:1], 0")
    A(f"s_load_dwordx2 s[44:45], s[0:1], {ARG['B_wqkv']}")
    A(f"s_load_dwordx2 s[46:47], s[0:1], {ARG['gate_w']}")
    A(f"s_load_dwordx2 s[48:49], s[0:1], {ARG['ws']}")
    A(f"v_and_b32 v{vLane}, 63, v0")
    A(f"v_lshrrev_b32 v{vT}, 6, v0")
    A(f"s_and_b32 s{sT0}, s2, 7")
    A(f"v_readfirstlane_b32 s{sWV}, v{vT}")
    A(f"s_lshr_b32 s{sT1}, s2, 3")
    A(f"s_lshr_b32 s{sT2}, s{sT0}, 2")
    A(f"s_lshl_b32 s{sT2}, s{sT2}, 2")
    A(f"s_and_b32 s{sT3}, s{sT1}, 3")
    A(f"s_add_u32 s{sTB}, s{sT2}, s{sT3}")
    A(f"s_and_b32 s{sT2}, s{sT0}, 3")
    A(f"s_mul_i32 s{sT2}, s{sT2}, 7")
    A(f"s_lshr_b32 s{sT3}, s{sT1}, 2")
    A(f"s_add_u32 s{sCG}, s{sT2}, s{sT3}")
    A(f"s_cmp_ge_u32 s{sCG}, 27")
    A(f"s_cbranch_scc1 {name}_end")
    A(f"s_cmp_ge_u32 s{sWV}, 8")
    A(f"s_cbranch_scc0 {name}_comp")
    A(f"s_cmp_ge_u32 s{sWV}, {8+NX}")
    A(f"s_cbranch_scc1 {name}_ldw")

    A(f"s_sub_u32 s{sT3}, s{sWV}, 8")
    A(f"v_lshrrev_b32 v{vT}, 3, v{vLane}")
    A(f"s_lshl_b32 s{sT0}, s{sT3}, 3")
    A(f"v_add_u32 v{vT}, s{sT0}, v{vT}")
    A(f"v_mul_u32_u24 v{vLo}, 1152, v{vT}")
    A(f"v_lshrrev_b32 v{vT+1}, 4, v{vLane}")
    A(f"s_and_b32 s{sT0}, s{sT3}, 1")
    A(f"s_lshl_b32 s{sT0}, s{sT0}, 2")
    A(f"v_add_u32 v{vT+1}, s{sT0}, v{vT+1}")
    A(f"v_and_b32 v{vT+2}, 7, v{vLane}")
    A(f"v_xor_b32 v{vT+2}, v{vT+2}, v{vT+1}")
    A(f"v_lshl_add_u32 v{vLo}, v{vT+2}, 4, v{vLo}")
    A(f"s_lshr_b32 s{sT0}, s2, 5")
    A(f"s_mul_i32 s{sT0}, s{sT0}, 37")
    A(f"s_mul_i32 s{sT1}, s{sT3}, 10")
    A(f"s_add_u32 s{sT0}, s{sT0}, s{sT1}")
    A(f"v_lshrrev_b32 v{vT+3}, 1, v{vLane}")
    A(f"v_add_u32 v{vT+3}, s{sT0}, v{vT+3}")
    A(f"v_min_u32 v{vT+3}, 255, v{vT+3}")
    A(f"v_mul_u32_u24 v{vTo}, 1152, v{vT+3}")
    A(f"v_and_b32 v{vT+3}, 1, v{vLane}")
    A(f"v_lshl_add_u32 v{vTo}, v{vT+3}, 6, v{vTo}")
    A(f"s_mov_b32 s59, {(1 << 20) - 1}")
    A(f"s_lshl_b32 s{sM0}, s{sT3}, 10")
    A(f"s_mov_b32 s{sM0I}, {NX*1024}")
    A(f"s_mul_i32 s{sOff}, s{sTB}, {256*1152}")
    if EXP == 1: A(f"s_mov_b32 s{sOff}, 0")
    A(f"s_mov_b32 s{sOffI}, {NX*8*1152}")
    A(f"s_mov_b32 s{sOffC}, 128")
    A("s_waitcnt lgkmcnt(0)")
    srd(A, sX, 4, 5, T * D * 2)
    A(f"s_mov_b32 s54, 1")
    A(f"s_branch {name}_lpx")
    A.label(f"{name}_ldw")
    A(f"s_sub_u32 s{sT3}, s{sWV}, {8+NX}")
    A(f"s_lshl_b32 s{sBLK}, s{sCG}, 1")
    A(f"s_add_u32 s{sBLK}, s{sBLK}, s{sT3}")
    A(f"s_cmp_ge_u32 s{sBLK}, 27")
    A(f"s_cselect_b32 s{sBR}, 1, 0")
    A(f"s_mul_i32 s{sT0}, s{sBR}, 27")
    A(f"s_sub_u32 s{sBETA}, s{sBLK}, s{sT0}")
    A(f"v_lshrrev_b32 v{vT}, 3, v{vLane}")
    A(f"v_mul_u32_u24 v{vLo}, 3456, v{vT}")
    A(f"v_bfe_u32 v{vT+1}, v{vLane}, 4, 1")
    A(f"v_lshlrev_b32 v{vT+1}, 2, v{vT+1}")
    A(f"v_and_b32 v{vT+2}, 7, v{vLane}")
    A(f"v_xor_b32 v{vT+2}, v{vT+2}, v{vT+1}")
    A(f"v_lshl_add_u32 v{vLo}, v{vT+2}, 4, v{vLo}")
    A(f"s_and_b32 s{sT0}, s{sTB}, 3")
    A(f"s_lshl_b32 s{sT0}, s{sT0}, 4")
    A(f"v_lshrrev_b32 v{vT+3}, 1, v{vLane}")
    A(f"v_add_u32 v{vT+3}, s{sT0}, v{vT+3}")
    A(f"v_mul_u32_u24 v{vTo}, 3456, v{vT+3}")
    A(f"v_and_b32 v{vT+3}, 1, v{vLane}")
    A(f"v_lshl_add_u32 v{vTo}, v{vT+3}, 6, v{vTo}")
    A(f"s_mov_b32 s59, -1")
    A(f"s_lshl_b32 s{sM0}, s{sT3}, 13")
    A(f"s_add_u32 s{sM0}, s{sM0}, {K1_W0}")
    A(f"s_mov_b32 s{sM0I}, 1024")
    A(f"s_lshl_b32 s{sOff}, s{sBETA}, 7")
    if EXP == 1: A(f"s_mov_b32 s{sOff}, 0")
    A(f"s_mov_b32 s{sOffI}, {8*3456}")
    A(f"s_mov_b32 s{sOffC}, {64*3456}")
    A("s_waitcnt lgkmcnt(0)")
    A(f"s_cmp_eq_u32 s{sBR}, 0")
    A(f"s_cselect_b32 s{sX}, s6, s44")
    A(f"s_cselect_b32 s{sX+1}, s7, s45")
    A(f"s_and_b32 s{sX+1}, s{sX+1}, 0xffff")
    A(f"s_mov_b32 s{sX+2}, {D*3*D*2}")
    A(f"s_mov_b32 s{sX+3}, 0x00020000")
    A(f"s_mov_b32 s54, 0")
    def loader_loop(tag, cnt):
        A.label(f"{name}_lp{tag}")
        def issue():
            A(f"s_add_u32 m0, s{sStL}, s{sM0}")
            A(f"s_mov_b32 s{sT1}, s{sOff}")
            for j in range(cnt):
                if EXP != 2: A(f"buffer_load_dwordx4 v{vLo}, s[{sX}:{sX+3}], s{sT1} offen{LDMOD} lds")
                if j < cnt-1:
                    A(f"s_add_u32 m0, m0, s{sM0I}")
                    A(f"s_add_u32 s{sT1}, s{sT1}, s{sOffI}")
            A(f"s_add_u32 s{sOff}, s{sOff}, s{sOffC}")
            A(f"s_add_u32 s{sStL}, s{sStL}, {K1_STAGE}")
            A(f"s_cmp_eq_u32 s{sStL}, {3*K1_STAGE}")
            A(f"s_cselect_b32 s{sStL}, 0, s{sStL}")
        stamp(A, 1)
        A(f"s_mov_b32 s{sStL}, 0")
        A(f"s_mov_b32 s{sCH}, -2")
        A.label(f"{name}_lp{tag}_loop")
        A(f"s_cmp_lt_i32 s{sCH}, 0")
        A(f"s_cbranch_scc1 {name}_lp{tag}_issue")
        A(f"s_cmp_eq_u32 s{sCH}, 8")
        A(f"s_cbranch_scc1 {name}_lp{tag}_last")
        A(f"s_waitcnt vmcnt({cnt})")
        A(f"s_barrier")
        A(f"s_cmp_eq_u32 s{sCH}, 7")
        A(f"s_cbranch_scc1 {name}_lp{tag}_skip")
        A.label(f"{name}_lp{tag}_issue")
        issue()
        A.label(f"{name}_lp{tag}_skip")
        A(f"s_add_u32 s{sCH}, s{sCH}, 1")
        A(f"s_branch {name}_lp{tag}_loop")
        A.label(f"{name}_lp{tag}_last")
        A(f"s_waitcnt vmcnt(0)")
        A(f"s_barrier")
        A(f"s_endpgm")
    loader_loop("w", 8)
    loader_loop("x", 32 // NX)

    A.label(f"{name}_comp")
    A(f"s_lshr_b32 s{sFP}, s{sWV}, 2")
    A(f"s_and_b32 s{sTP}, s{sWV}, 3")
    A(f"s_lshl_b32 s{sBLK}, s{sCG}, 1")
    A(f"s_add_u32 s{sBLK}, s{sBLK}, s{sFP}")
    A(f"s_cmp_ge_u32 s{sBLK}, 27")
    A(f"s_cselect_b32 s{sBR}, 1, 0")
    A(f"s_mul_i32 s{sT0}, s{sBR}, 27")
    A(f"s_sub_u32 s{sBETA}, s{sBLK}, s{sT0}")
    A(f"s_mov_b32 s{sTY}, 0")
    A(f"s_cmp_ge_u32 s{sBETA}, 9")
    A(f"s_addc_u32 s{sTY}, s{sTY}, 0")
    A(f"s_cmp_ge_u32 s{sBETA}, 18")
    A(f"s_addc_u32 s{sTY}, s{sTY}, 0")
    vG = vACC
    for i in range(24): A(f"v_mov_b32 v{vG+i}, 0")
    A("s_waitcnt lgkmcnt(0)")
    srd(A, sX, 4, 5, T * D * 2)
    srd(A, sWS, 48, 49, WS_SIZE)
    if GT:
        A(f"s_lshl_b32 s{sT0}, s{sCG}, 3")
        A(f"s_add_u32 s{sT0}, s{sT0}, s{sTB}")
        A(f"v_mul_u32_u24 v{vT}, {GT}, v{vLane}")
        nper = 64 * GT
        nx = -(-11008 // nper); nw = -(-9216 // nper)
        lab = f"{name}_gt"
        A(f"s_cmp_lt_u32 s{sWV}, {nx}")
        A(f"s_cbranch_scc0 {lab}_w")
        A(f"s_mul_i32 s{sT1}, s{sT0}, 11008")
        A(f"s_mul_i32 s{sT2}, s{sWV}, {nper}")
        A(f"s_add_u32 s{sT1}, s{sT1}, s{sT2}")
        A(f"buffer_load_dword v{vTd}, v{vT}, s[{sX}:{sX+3}], s{sT1} offen")
        A(f"s_branch {lab}_e")
        A.label(f"{lab}_w")
        A(f"s_sub_u32 s{sT3}, s{sWV}, {nx}")
        A(f"s_cmp_lt_u32 s{sT3}, {2*nw}")
        A(f"s_cbranch_scc0 {lab}_e")
        A(f"s_cmp_lt_u32 s{sT3}, {nw}")
        A(f"s_cselect_b32 s{sG}, s6, s44")
        A(f"s_cselect_b32 s{sG+1}, s7, s45")
        A(f"s_cselect_b32 s{sT2}, 0, {nw}")
        A(f"s_sub_u32 s{sT3}, s{sT3}, s{sT2}")
        A(f"s_and_b32 s{sG+1}, s{sG+1}, 0xffff")
        A(f"s_mov_b32 s{sG+2}, {D*3*D*2}")
        A(f"s_mov_b32 s{sG+3}, 0x00020000")
        A(f"s_mul_i32 s{sT1}, s{sT0}, 9216")
        A(f"s_mul_i32 s{sT2}, s{sT3}, {nper}")
        A(f"s_add_u32 s{sT1}, s{sT1}, s{sT2}")
        A(f"buffer_load_dword v{vTd}, v{vT}, s[{sG}:{sG+3}], s{sT1} offen")
        A.label(f"{lab}_e")
    srd(A, sG, 46, 47, D * 2)
    A(f"s_cmp_ge_u32 s{sCG}, 16")
    A(f"s_cbranch_scc1 {name}_nog1")
    A(f"s_lshl_b32 s{sT0}, s{sTB}, 8")
    A(f"s_lshl_b32 s{sT1}, s{sCG}, 4")
    A(f"s_add_u32 s{sT0}, s{sT0}, s{sT1}")
    A(f"s_lshl_b32 s{sT1}, s{sWV}, 1")
    A(f"s_add_u32 s52, s{sT0}, s{sT1}")
    A(f"s_mul_i32 s{sT0}, s52, 1152")
    A(f"v_lshlrev_b32 v{vT}, 5, v{vLane}")
    A(f"s_bfm_b64 exec, 36, 0")
    A(f"buffer_load_dwordx4 v[{vG}:{vG+3}], v{vT}, s[{sX}:{sX+3}], s{sT0} offen")
    A(f"buffer_load_dwordx4 v[{vG+4}:{vG+7}], v{vT}, s[{sX}:{sX+3}], s{sT0} offen offset:16")
    A(f"buffer_load_dwordx4 v[{vG+8}:{vG+11}], v{vT}, s[{sX}:{sX+3}], s{sT0} offen offset:1152")
    A(f"buffer_load_dwordx4 v[{vG+12}:{vG+15}], v{vT}, s[{sX}:{sX+3}], s{sT0} offen offset:1168")
    A(f"buffer_load_dwordx4 v[{vG+16}:{vG+19}], v{vT}, s[{sG}:{sG+3}], 0 offen")
    A(f"buffer_load_dwordx4 v[{vG+20}:{vG+23}], v{vT}, s[{sG}:{sG+3}], 0 offen offset:16")
    A(f"s_mov_b64 exec, -1")
    A.label(f"{name}_nog1")
    A(f"v_and_b32 v{vT}, 31, v{vLane}")
    A(f"v_lshrrev_b32 v{vT+1}, 5, v{vLane}")
    A(f"v_bfe_u32 v{vT+2}, v{vLane}, 1, 3")
    A(f"v_xor_b32 v{vT+2}, v{vT+2}, v{vT+1}")
    A(f"v_lshlrev_b32 v{vT+2}, 4, v{vT+2}")
    A(f"s_lshl_b32 s{sT0}, s{sTP}, 6")
    A(f"v_add_u32 v{vT}, s{sT0}, v{vT}")
    A(f"v_lshlrev_b32 v{vT}, 7, v{vT}")
    for s_ in range(4):
        A(f"v_xor_b32 v{vT+3}, {32*s_}, v{vT+2}")
        A(f"v_add_u32 v{vAX+s_}, v{vT}, v{vT+3}")
    A(f"v_bfe_u32 v{vT+2}, v{vLane}, 2, 2")
    A(f"v_lshl_add_u32 v{vT+3}, v{vT+1}, 3, v{vT+2}")
    A(f"v_lshlrev_b32 v{vT+3}, 7, v{vT+3}")
    A(f"v_bfe_u32 v{vT+4}, v{vLane}, 4, 1")
    A(f"v_lshlrev_b32 v{vT+4}, 5, v{vT+4}")
    A(f"v_and_b32 v{vT+5}, 3, v{vLane}")
    A(f"v_lshl_add_u32 v{vT+4}, v{vT+5}, 3, v{vT+4}")
    A(f"v_lshrrev_b32 v{vT+2}, 1, v{vT+2}")
    A(f"v_lshlrev_b32 v{vT+2}, 6, v{vT+2}")
    A(f"v_xor_b32 v{vT+4}, v{vT+4}, v{vT+2}")
    A(f"s_lshl_b32 s{sT0}, s{sFP}, 13")
    A(f"s_add_u32 s{sT0}, s{sT0}, {K1_W0}")
    A(f"v_add3_u32 v{vAW0}, v{vT+3}, v{vT+4}, s{sT0}")
    A(f"v_xor_b32 v{vAW1}, 64, v{vAW0}")
    A(f"s_lshl_b32 s{sT0}, s{sTB}, 3")
    A(f"s_lshl_b32 s{sT1}, s{sTP}, 1")
    A(f"s_add_u32 s53, s{sT0}, s{sT1}")
    A(f"s_cmp_eq_u32 s{sTY}, 2")
    A(f"s_cbranch_scc1 {name}_sov")
    A(f"s_mul_i32 s{sT0}, s{sTY}, 9")
    A(f"s_sub_u32 s{sT0}, s{sBETA}, s{sT0}")
    A(f"s_lshl_b32 s{sT0}, s{sT0}, 4")
    A(f"s_mul_i32 s{sT1}, s{sTY}, {WS_KM-WS_QM}")
    A(f"s_lshl_b32 s{sT2}, s{sBR}, 21")
    A(f"s_add_u32 s{sT1}, s{sT1}, s{sT2}")
    A(f"s_lshl_b32 s{sT2}, s53, 10")
    A(f"s_add_u32 s{sT1}, s{sT1}, s{sT2}")
    A(f"s_add_u32 s54, s{sT1}, {WS_QM}")
    A(f"s_mul_i32 s{sT1}, s{sTY}, {WS_KX-WS_QX}")
    A(f"s_lshl_b32 s{sT2}, s{sBR}, 18")
    A(f"s_add_u32 s{sT1}, s{sT1}, s{sT2}")
    A(f"s_lshl_b32 s{sT2}, s53, 8")
    A(f"s_add_u32 s{sT1}, s{sT1}, s{sT2}")
    A(f"s_add_u32 s55, s{sT1}, {WS_QX}")
    A(f"v_and_b32 v{vT}, 31, v{vLane}")
    A(f"v_lshlrev_b32 v{vT+6}, 3, v{vT}")
    A(f"v_add_u32 v{vT+6}, s54, v{vT+6}")
    A(f"v_lshlrev_b32 v{vT+7}, 3, v{vT}")
    A(f"v_add_u32 v{vT+7}, s55, v{vT+7}")
    A(f"v_add_u32 v{vT+8}, s{sT0}, v{vT+1}")
    for t in range(2):
        for i in range(4):
            d = vSO + 4*t + i
            A(f"v_add_u32 v{vT}, {8*t+2*i}, v{vT+8}")
            A(f"v_mul_u32_u24 v{vT+2}, 7282, v{vT}")
            A(f"v_lshrrev_b32 v{vT+2}, 16, v{vT+2}")
            A(f"v_mul_u32_u24 v{vT+3}, 9, v{vT+2}")
            A(f"v_sub_u32 v{vT+3}, v{vT}, v{vT+3}")
            A(f"v_cmp_lt_u32 vcc, 4, v{vT+3}")
            A(f"v_cndmask_b32 v{vT+4}, 0, 1, vcc")
            A(f"v_lshl_add_u32 v{vT+5}, v{vT+2}, 1, v{vT+4}")
            A(f"v_lshlrev_b32 v{vT+5}, 16, v{vT+5}")
            A(f"v_mul_u32_u24 v{vT+4}, 5, v{vT+4}")
            A(f"v_sub_u32 v{vT+4}, v{vT+3}, v{vT+4}")
            A(f"v_and_b32 v{vT+9}, 1, v{vT+4}")
            A(f"v_lshl_add_u32 v{vT+5}, v{vT+9}, 9, v{vT+5}")
            A(f"v_lshrrev_b32 v{vT+9}, 1, v{vT+4}")
            A(f"v_lshl_add_u32 v{vT+5}, v{vT+9}, 8, v{vT+5}")
            A(f"v_add_u32 v{vT+5}, v{vT+5}, v{vT+6}")
            A(f"v_lshl_add_u32 v{vT+9}, v{vT+2}, 14, v{vT+7}")
            A(f"v_cmp_eq_u32 vcc, 4, v{vT+3}")
            A(f"v_cndmask_b32 v{d}, v{vT+5}, v{vT+9}, vcc")
            A(f"v_cndmask_b32 v{vT+9}, 0, 1, vcc")
            A(f"v_or_b32 v{d}, v{d}, v{vT+9}")
    A(f"s_branch {name}_sod")
    A.label(f"{name}_sov")
    A(f"s_sub_u32 s{sT0}, s{sBETA}, 18")
    A(f"s_lshl_b32 s{sT0}, s{sT0}, 6")
    A(f"s_mul_i32 s{sT1}, s{sBR}, {32*V_HEAD}")
    A(f"s_mul_i32 s{sT2}, s53, {V_TILE}")
    A(f"s_add_u32 s{sT1}, s{sT1}, s{sT2}")
    A(f"s_add_u32 s54, s{sT1}, {WS_V}")
    A(f"s_mov_b32 s55, {V_HEAD}")
    def head_row(fv, hv, rv, t1, t2):
        A(f"v_mul_u32_u24 v{hv}, 3641, v{fv}")
        A(f"v_lshrrev_b32 v{hv}, 16, v{hv}")
        A(f"v_mul_u32_u24 v{t1}, 18, v{hv}")
        A(f"v_sub_u32 v{t1}, v{fv}, v{t1}")
        A(f"v_add_u32 v{rv}, 16, v{t1}")
        A(f"v_subrev_u32 v{t2}, 18, v{rv}")
        A(f"v_min_u32 v{rv}, v{rv}, v{t2}")
        A(f"v_and_b32 v{t2}, 1, v{hv}")
        A(f"v_cmp_eq_u32 vcc, 1, v{t2}")
        A(f"v_cndmask_b32 v{rv}, v{t1}, v{rv}, vcc")
    A(f"s_lshl_b32 s{sT2}, s{sWV}, 13")
    for t in range(2):
        A(f"v_and_b32 v{vT}, 31, v{vLane}")
        A(f"v_add_u32 v{vT}, s{sT0}, v{vT}")
        if t: A(f"v_add_u32 v{vT}, 32, v{vT}")
        head_row(vT, vT+2, vT+3, vT+4, vT+5)
        A(f"v_bfe_u32 v{vT+4}, v{vT+3}, 2, 2")
        A(f"v_xor_b32 v{vT+4}, v{vT+4}, v{vT+1}")
        A(f"v_lshlrev_b32 v{vT+4}, 4, v{vT+4}")
        A(f"v_and_b32 v{vT+5}, 31, v{vLane}")
        A(f"v_lshl_add_u32 v{vT+4}, v{vT+5}, 6, v{vT+4}")
        A(f"v_add_u32 v{vT+4}, s{sT2}, v{vT+4}")
        A(f"v_add_u32 v{vSO+t}, {t*4096}, v{vT+4}")
        A(f"v_mov_b32 v{vSO+6+t}, 0")
        for j in range(2):
            A(f"v_lshrrev_b32 v{vT}, 2, v{vLane}")
            A(f"v_add_u32 v{vT}, s{sT0}, v{vT}")
            A(f"v_add_u32 v{vT}, {32*t + 16*j}, v{vT}")
            head_row(vT, vT+2, vT+3, vT+4, vT+5)
            A(f"v_mul_lo_u32 v{vT+2}, v{vT+2}, s55")
            A(f"v_lshl_add_u32 v{vT+2}, v{vT+3}, 6, v{vT+2}")
            A(f"v_and_b32 v{vT+4}, 3, v{vLane}")
            A(f"v_lshl_add_u32 v{vT+2}, v{vT+4}, 4, v{vT+2}")
            A(f"v_add_u32 v{vSO+2+2*t+j}, s54, v{vT+2}")
            A(f"v_cmp_le_u32 vcc, 16, v{vT+3}")
            A(f"v_cndmask_b32 v{vT+4}, 0, 1, vcc")
            A(f"v_lshl_or_b32 v{vSO+6+t}, v{vT+4}, {j}, v{vSO+6+t}")
            A(f"v_cmp_eq_u32 vcc, 16, v{vT+3}")
            A(f"v_cndmask_b32 v{vT+4}, 0, 1, vcc")
            A(f"v_lshl_or_b32 v{vSO+6+t}, v{vT+4}, {2+j}, v{vSO+6+t}")
    A.label(f"{name}_sod")
    if TLBW:
        for q_ in (0, 1, 4, 5):
            A(f"buffer_load_dword v{vTd+1}, v{vSO+q_}, s[{sWS}:{sWS+3}], 0 offen")
    A(f"s_cmp_ge_u32 s{sCG}, 16")
    A(f"s_cbranch_scc1 {name}_nog2")
    A(f"s_waitcnt vmcnt(0)")
    for tk in range(2):
        A(f"v_mov_b32 v{vT}, 0")
        for i in range(8): A(f"v_dot2c_f32_bf16 v{vT}, v{vG+8*tk+i}, v{vG+16+i}")
        A(f"s_nop 2")
        A(f"v_add_f32_dpp v{vT}, v{vT}, v{vT} quad_perm:[1,0,3,2] row_mask:0xf bank_mask:0xf")
        A(f"v_add_f32_dpp v{vT}, v{vT}, v{vT} quad_perm:[2,3,0,1] row_mask:0xf bank_mask:0xf")
        A(f"v_add_f32_dpp v{vT}, v{vT}, v{vT} row_half_mirror row_mask:0xf bank_mask:0xf")
        A(f"v_add_f32_dpp v{vT}, v{vT}, v{vT} row_mirror row_mask:0xf bank_mask:0xf")
        A(f"v_readlane_b32 s56, v{vT}, 0")
        A(f"v_readlane_b32 s57, v{vT}, 16")
        A(f"v_readlane_b32 s58, v{vT}, 32")
        A(f"v_mov_b32 v{vT+1}, s56")
        A(f"v_add_f32 v{vT+1}, s57, v{vT+1}")
        A(f"v_add_f32 v{vT+1}, s58, v{vT+1}")
        A(f"v_mul_f32 v{vT+1}, {f2u(-1.4426950408889634)}, v{vT+1}")
        A(f"v_exp_f32 v{vT+1}, v{vT+1}")
        A(f"v_add_f32 v{vT+1}, 1.0, v{vT+1}")
        A(f"v_rcp_f32 v{vT+1}, v{vT+1}")
        A(f"s_lshl_b32 s{sT0}, s52, 2")
        A(f"s_add_u32 s{sT0}, s{sT0}, {WS_G + 4*tk}")
        A(f"v_mov_b32 v{vT+2}, 0")
        A(f"s_mov_b64 exec, 1")
        A(f"buffer_store_dword v{vT+1}, v{vT+2}, s[{sWS}:{sWS+3}], s{sT0} offen" + STORE_MOD)
        A(f"s_mov_b64 exec, -1")
    A.label(f"{name}_nog2")
    for i in range(64): A(f"v_mov_b32 v{vACC+i}, 0")
    for i in range(8):
        A(f"v_mov_b32 v{vXF+8+i}, 0")
        A(f"v_mov_b32 v{vWF+8+i}, 0")
    A(f"s_mov_b32 s56, {(-2*K1_STAGE) & 0xffffffff}")
    A(f"s_mov_b32 s57, {K1_STAGE}")
    stamp(A, 1)
    A(f"s_mov_b32 s{sCH}, 0")
    A(f"s_mov_b32 s{sStR}, 0")
    A(f"s_cmp_eq_u32 s{sTY}, 2")
    A(f"s_cbranch_scc1 {name}_loop1")

    def reads(s_, buf):
        xf = vXF + 8*buf; wf = vWF + 8*buf
        A(f"ds_read_b128 v[{xf}:{xf+3}], v{vAX+s_}")
        A(f"ds_read_b128 v[{xf+4}:{xf+7}], v{vAX+s_} offset:4096")
        A(f"ds_read_b64_tr_b16 v[{wf}:{wf+1}], v{vAW0} offset:{s_*2048}")
        A(f"ds_read_b64_tr_b16 v[{wf+2}:{wf+3}], v{vAW0} offset:{s_*2048+512}")
        A(f"ds_read_b64_tr_b16 v[{wf+4}:{wf+5}], v{vAW1} offset:{s_*2048}")
        A(f"ds_read_b64_tr_b16 v[{wf+6}:{wf+7}], v{vAW1} offset:{s_*2048+512}")
    def mfmas(mode, buf):
        xf = vXF + 8*buf; wf = vWF + 8*buf
        for t in range(2):
            for tt in range(2):
                acc = vACC + (t*2+tt)*16
                W = f"v[{wf+4*t}:{wf+4*t+3}]"; X = f"v[{xf+4*tt}:{xf+4*tt+3}]"
                if mode == 1:
                    A(f"v_mfma_f32_32x32x16_bf16 v[{acc}:{acc+15}], {X}, {W}, v[{acc}:{acc+15}]")
                else:
                    A(f"v_mfma_f32_32x32x16_bf16 v[{acc}:{acc+15}], {W}, {X}, v[{acc}:{acc+15}]")

    for mode in range(2):
        L = f"{name}_loop{mode}"
        A.label(L)
        A(f"s_barrier")
        if PROF:
            A(f"s_cmp_eq_u32 s{sCH}, 0")
            A(f"s_cbranch_scc0 {L}_ns")
            stamp(A, 2)
            A.label(f"{L}_ns")
        def mf1(buf, t, tt):
            xf = vXF + 8*buf; wf = vWF + 8*buf
            acc = vACC + (t*2+tt)*16
            W = f"v[{wf+4*t}:{wf+4*t+3}]"; X = f"v[{xf+4*tt}:{xf+4*tt+3}]"
            if mode == 1: A(f"v_mfma_f32_32x32x16_bf16 v[{acc}:{acc+15}], {X}, {W}, v[{acc}:{acc+15}]")
            else: A(f"v_mfma_f32_32x32x16_bf16 v[{acc}:{acc+15}], {W}, {X}, v[{acc}:{acc+15}]")
        def step(buf, nxt, waits, tail=None):
            xf = vXF + 8*(1-buf); wf = vWF + 8*(1-buf)
            if waits: A(f"s_waitcnt lgkmcnt(3)")
            mf1(buf, 0, 0)
            A(f"ds_read_b128 v[{xf}:{xf+3}], v{vAX+nxt}")
            A(f"ds_read_b64_tr_b16 v[{wf}:{wf+1}], v{vAW0} offset:{nxt*2048}")
            if waits: A(f"s_waitcnt lgkmcnt(4)")
            mf1(buf, 0, 1)
            A(f"ds_read_b64_tr_b16 v[{wf+2}:{wf+3}], v{vAW0} offset:{nxt*2048+512}")
            A(f"ds_read_b128 v[{xf+4}:{xf+7}], v{vAX+nxt} offset:4096")
            if waits: A(f"s_waitcnt lgkmcnt(4)")
            mf1(buf, 1, 0)
            A(f"ds_read_b64_tr_b16 v[{wf+4}:{wf+5}], v{vAW1} offset:{nxt*2048}")
            A(f"ds_read_b64_tr_b16 v[{wf+6}:{wf+7}], v{vAW1} offset:{nxt*2048+512}")
            if tail: tail()
            mf1(buf, 1, 1)
        def tail():
            A(f"s_add_u32 s{sStR}, s{sStR}, 1")
            A(f"s_cmp_eq_u32 s{sStR}, 3")
            A(f"s_cselect_b32 s{sDelta}, s56, s57")
            A(f"s_cselect_b32 s{sStR}, 0, s{sStR}")
            for r in [vAX, vAX+1, vAX+2, vAX+3, vAW0, vAW1]:
                A(f"v_add_u32 v{r}, s{sDelta}, v{r}")
            A(f"s_add_u32 s{sCH}, s{sCH}, 1")
            A(f"s_cmp_lt_u32 s{sCH}, 9")
        step(1, 0, False)
        step(0, 1, True)
        step(1, 2, True)
        step(0, 3, True, tail)
        A(f"s_waitcnt lgkmcnt(0)")
        A(f"s_cbranch_scc1 {L}")
        mfmas(mode, 1)
        A(f"s_nop 15")
        A(f"s_branch {name}_epi{mode}")

    A.label(f"{name}_epi0")
    stamp(A, 3)
    A(f"s_mov_b32 s{sT0}, 1.0")
    A(f"s_cmp_eq_u32 s{sTY}, 0")
    A(f"s_cselect_b32 s{sT0}, {f2u(QSCALE)}, s{sT0}")
    for q in range(8):
        d = vSO + q
        A(f"v_and_b32 v{vT}, 1, v{d}")
        A(f"v_xor_b32 v{d}, v{d}, v{vT}")
        A(f"v_mul_u32_u24 v{vT}, 768, v{vT}")
        A(f"v_sub_u32 v{vT+1+q}, 1024, v{vT}")
        A(f"v_add_u32 v{vT+1+q}, v{vT+1+q}, v{d}")
    A(f"s_cmp_eq_u32 s{sTY}, 0")
    A(f"s_cbranch_scc0 {name}_nomul")
    for i in range(64): A(f"v_mul_f32 v{vACC+i}, s{sT0}, v{vACC+i}")
    A.label(f"{name}_nomul")
    k = 0
    for t in range(2):
        for tt in range(2):
            acc = vACC + (t*2+tt)*16
            p = vP + 8*(k % 4); k += 1
            for i in range(8): A(f"v_cvt_pk_bf16_f32 v{p+i}, v{acc+2*i}, v{acc+2*i+1}")
            for i in range(4):
                ad = (vSO + 4*t + i) if tt == 0 else (vT + 1 + 4*t + i)
                A(f"buffer_store_dwordx2 v[{p+2*i}:{p+2*i+1}], v{ad}, s[{sWS}:{sWS+3}], 0 offen" + QKMOD)
    A(f"s_branch {name}_fin")
    A.label(f"{name}_epi1")
    stamp(A, 3)
    k = 0
    for t in range(2):
        for tt in range(2):
            acc = vACC + (t*2+tt)*16
            p = vP + 8*(k % 4); k += 1
            for i in range(8): A(f"v_cvt_pk_bf16_f32 v{p+i}, v{acc+2*i}, v{acc+2*i+1}")
            A(f"ds_write_b128 v{vSO+t}, v[{p}:{p+3}] offset:{tt*2048}")
            A(f"v_xor_b32 v{vT}, 32, v{vSO+t}")
            A(f"ds_write_b128 v{vT}, v[{p+4}:{p+7}] offset:{tt*2048}")
    A(f"s_lshl_b32 s{sT2}, s{sWV}, 13")
    A(f"v_lshlrev_b32 v{vT+1}, 4, v{vLane}")
    A(f"v_add_u32 v{vT+1}, s{sT2}, v{vT+1}")
    A(f"s_waitcnt lgkmcnt(0)")
    k = 0
    for t in range(2):
        for tt in range(2):
            for j in range(2):
                r = vACC + 4*k; k += 1
                A(f"ds_read_b128 v[{r}:{r+3}], v{vT+1} offset:{t*4096 + tt*2048 + j*1024}")
    k = 0
    for t in range(2):
        for tt in range(2):
            for j in range(2):
                r = vACC + 4*k; k += 1
                A(f"s_waitcnt lgkmcnt({7-(k-1)})")
                A(f"buffer_store_dwordx4 v[{r}:{r+3}], v{vSO+2+2*t+j}, s[{sWS}:{sWS+3}], 0 offen offset:{tt*V_TILE}" + VMOD)
    for t in range(2):
        for j in range(2):
            lb = f"{name}_on{t}{j}"
            A(f"v_bfe_u32 v{vT}, v{vSO+6+t}, {2+j}, 1")
            A(f"v_mul_u32_u24 v{vT}, 0x3f80, v{vT}")
            A(f"v_lshl_or_b32 v{vT+4}, v{vT}, 16, v{vT}")
            for i in range(1, 4): A(f"v_mov_b32 v{vT+4+i}, v{vT+4}")
            A(f"v_bfe_u32 v{vT}, v{vSO+6+t}, {j}, 1")
            A(f"v_cmp_eq_u32 vcc, 1, v{vT}")
            A(f"s_and_saveexec_b64 s[58:59], vcc")
            A(f"s_cbranch_execz {lb}")
            for tt in range(2):
                A(f"buffer_store_dwordx4 v[{vT+4}:{vT+7}], v{vSO+2+2*t+j}, s[{sWS}:{sWS+3}], 0 offen offset:{tt*V_TILE+128}" + VMOD)
            A.label(lb)
            A(f"s_mov_b64 exec, s[58:59]")
    A.label(f"{name}_fin")
    if PROF:
        stamp(A, 4)
        A("s_waitcnt vmcnt(0)")
        stamp(A, 5)
        stamps_out(A, 0, 6, sWS, sWV, vP)
    rt_end(A, 0, sWV, vP)
    A.label(f"{name}_end")
    A(f"s_endpgm")
    return khead(name) + A.finish(True) , kdesc(name, NV, 100)
```

```python
from asmlib import *
from common import *
import os

K1_W0 = 32768
K1_STAGE = 49152
K1_LDS = 3 * K1_STAGE
import os as _os
NX = int(_os.environ.get('NX', '4'))
K1_THREADS = (8 + NX + 2) * 64
K1_GRID = 224
LPRIO = int(os.environ.get("LPRIO1", os.environ.get("LPRIO", "0")))
SKIP0 = int(os.environ.get("SKIP0", "0"))
QKMOD = " " + os.environ.get("QKMOD", "sc1")
VMOD = " " + os.environ.get("VMOD", "sc1")
TLBW = int(os.environ.get("TLBW", "0"))
LDMOD = (" " + os.environ["LDMOD"]) if os.environ.get("LDMOD") else ""
GT = int(os.environ.get("GT", "0"))
EXP = int(os.environ.get("EXP", "0"))
TOUCH = int(os.environ.get("TOUCH", "0"))

def gen_k1(name):
    A = Asm()
    sX, sWS, sG = 8, 16, 20
    sCG, sTB, sWV, sCH = 24, 25, 26, 27
    sOff, sOffI, sOffC = 28, 29, 30
    sM0, sM0I = 31, 32
    sStL = 33
    sDelta = 34
    sStR = 35
    sT0, sT1, sT2, sT3 = 36, 37, 38, 39
    sFP, sTP, sBLK, sBR, sBETA, sTY = 40, 41, 42, 43, 50, 51
    vLane = 1
    vLo = 2
    vTo, vTd = 3, 4
    vAX = 6
    vAW0, vAW1 = 10, 11
    vT = 12
    vXF = 24
    vWF = 40
    vACC = 56
    vSO = 120
    vP = 24
    NV = 128

    A(f"s_cmp_ge_u32 s2, {K1_GRID}")
    A(f"s_cbranch_scc1 {name}_end")
    stamp(A, 0)
    rt_begin(A)
    A(f"s_load_dwordx4 s[4:7], s[0:1], 0")
    A(f"s_load_dwordx2 s[44:45], s[0:1], {ARG['B_wqkv']}")
    A(f"s_load_dwordx2 s[46:47], s[0:1], {ARG['gate_w']}")
    A(f"s_load_dwordx2 s[48:49], s[0:1], {ARG['ws']}")
    A(f"v_and_b32 v{vLane}, 63, v0")
    A(f"v_lshrrev_b32 v{vT}, 6, v0")
    A(f"s_and_b32 s{sT0}, s2, 7")
    A(f"v_readfirstlane_b32 s{sWV}, v{vT}")
    A(f"s_lshr_b32 s{sT1}, s2, 3")
    A(f"s_lshr_b32 s{sT2}, s{sT0}, 2")
    A(f"s_lshl_b32 s{sT2}, s{sT2}, 2")
    A(f"s_and_b32 s{sT3}, s{sT1}, 3")
    A(f"s_add_u32 s{sTB}, s{sT2}, s{sT3}")
    A(f"s_and_b32 s{sT2}, s{sT0}, 3")
    A(f"s_mul_i32 s{sT2}, s{sT2}, 7")
    A(f"s_lshr_b32 s{sT3}, s{sT1}, 2")
    A(f"s_add_u32 s{sCG}, s{sT2}, s{sT3}")
    A(f"s_cmp_ge_u32 s{sCG}, 27")
    A(f"s_cbranch_scc1 {name}_end")
    A(f"s_cmp_ge_u32 s{sWV}, 8")
    A(f"s_cbranch_scc0 {name}_comp")
    if LPRIO: A(f"s_setprio {LPRIO}")
    A(f"s_cmp_ge_u32 s{sWV}, {8+NX}")
    A(f"s_cbranch_scc1 {name}_ldw")

    A(f"s_sub_u32 s{sT3}, s{sWV}, 8")
    A(f"v_lshrrev_b32 v{vT}, 3, v{vLane}")
    A(f"s_lshl_b32 s{sT0}, s{sT3}, 3")
    A(f"v_add_u32 v{vT}, s{sT0}, v{vT}")
    A(f"v_mul_u32_u24 v{vLo}, 1152, v{vT}")
    A(f"v_lshrrev_b32 v{vT+1}, 4, v{vLane}")
    A(f"s_and_b32 s{sT0}, s{sT3}, 1")
    A(f"s_lshl_b32 s{sT0}, s{sT0}, 2")
    A(f"v_add_u32 v{vT+1}, s{sT0}, v{vT+1}")
    A(f"v_and_b32 v{vT+2}, 7, v{vLane}")
    A(f"v_xor_b32 v{vT+2}, v{vT+2}, v{vT+1}")
    A(f"v_lshl_add_u32 v{vLo}, v{vT+2}, 4, v{vLo}")
    A(f"s_lshr_b32 s{sT0}, s2, 5")
    A(f"s_mul_i32 s{sT0}, s{sT0}, 37")
    A(f"s_mul_i32 s{sT1}, s{sT3}, 10")
    A(f"s_add_u32 s{sT0}, s{sT0}, s{sT1}")
    A(f"v_lshrrev_b32 v{vT+3}, 1, v{vLane}")
    A(f"v_add_u32 v{vT+3}, s{sT0}, v{vT+3}")
    A(f"v_min_u32 v{vT+3}, 255, v{vT+3}")
    A(f"v_mul_u32_u24 v{vTo}, 1152, v{vT+3}")
    A(f"v_and_b32 v{vT+3}, 1, v{vLane}")
    A(f"v_lshl_add_u32 v{vTo}, v{vT+3}, 6, v{vTo}")
    A(f"s_mov_b32 s59, {(1 << 20) - 1}")
    A(f"s_lshl_b32 s{sM0}, s{sT3}, 10")
    A(f"s_mov_b32 s{sM0I}, {NX*1024}")
    A(f"s_mul_i32 s{sOff}, s{sTB}, {256*1152}")
    if EXP == 1: A(f"s_mov_b32 s{sOff}, 0")
    A(f"s_mov_b32 s{sOffI}, {NX*8*1152}")
    A(f"s_mov_b32 s{sOffC}, 128")
    A("s_waitcnt lgkmcnt(0)")
    srd(A, sX, 4, 5, T * D * 2)
    A(f"s_mov_b32 s54, 1")
    A(f"s_branch {name}_lpx")
    A.label(f"{name}_ldw")
    A(f"s_sub_u32 s{sT3}, s{sWV}, {8+NX}")
    A(f"s_lshl_b32 s{sBLK}, s{sCG}, 1")
    A(f"s_add_u32 s{sBLK}, s{sBLK}, s{sT3}")
    A(f"s_cmp_ge_u32 s{sBLK}, 27")
    A(f"s_cselect_b32 s{sBR}, 1, 0")
    A(f"s_mul_i32 s{sT0}, s{sBR}, 27")
    A(f"s_sub_u32 s{sBETA}, s{sBLK}, s{sT0}")
    A(f"v_lshrrev_b32 v{vT}, 3, v{vLane}")
    A(f"v_mul_u32_u24 v{vLo}, 3456, v{vT}")
    A(f"v_bfe_u32 v{vT+1}, v{vLane}, 4, 1")
    A(f"v_lshlrev_b32 v{vT+1}, 2, v{vT+1}")
    A(f"v_and_b32 v{vT+2}, 7, v{vLane}")
    A(f"v_xor_b32 v{vT+2}, v{vT+2}, v{vT+1}")
    A(f"v_lshl_add_u32 v{vLo}, v{vT+2}, 4, v{vLo}")
    A(f"s_and_b32 s{sT0}, s{sTB}, 3")
    A(f"s_lshl_b32 s{sT0}, s{sT0}, 4")
    A(f"v_lshrrev_b32 v{vT+3}, 1, v{vLane}")
    A(f"v_add_u32 v{vT+3}, s{sT0}, v{vT+3}")
    A(f"v_mul_u32_u24 v{vTo}, 3456, v{vT+3}")
    A(f"v_and_b32 v{vT+3}, 1, v{vLane}")
    A(f"v_lshl_add_u32 v{vTo}, v{vT+3}, 6, v{vTo}")
    A(f"s_mov_b32 s59, -1")
    A(f"s_lshl_b32 s{sM0}, s{sT3}, 13")
    A(f"s_add_u32 s{sM0}, s{sM0}, {K1_W0}")
    A(f"s_mov_b32 s{sM0I}, 1024")
    A(f"s_lshl_b32 s{sOff}, s{sBETA}, 7")
    if EXP == 1: A(f"s_mov_b32 s{sOff}, 0")
    A(f"s_mov_b32 s{sOffI}, {8*3456}")
    A(f"s_mov_b32 s{sOffC}, {64*3456}")
    A("s_waitcnt lgkmcnt(0)")
    A(f"s_cmp_eq_u32 s{sBR}, 0")
    A(f"s_cselect_b32 s{sX}, s6, s44")
    A(f"s_cselect_b32 s{sX+1}, s7, s45")
    A(f"s_and_b32 s{sX+1}, s{sX+1}, 0xffff")
    A(f"s_mov_b32 s{sX+2}, {D*3*D*2}")
    A(f"s_mov_b32 s{sX+3}, 0x00020000")
    A(f"s_mov_b32 s54, 0")
    def loader_loop(tag, cnt):
        A.label(f"{name}_lp{tag}")
        def issue():
            A(f"s_add_u32 m0, s{sStL}, s{sM0}")
            A(f"s_mov_b32 s{sT1}, s{sOff}")
            for j in range(cnt):
                if EXP != 2: A(f"buffer_load_dwordx4 v{vLo}, s[{sX}:{sX+3}], s{sT1} offen{LDMOD} lds")
                if j < cnt-1:
                    A(f"s_add_u32 m0, m0, s{sM0I}")
                    A(f"s_add_u32 s{sT1}, s{sT1}, s{sOffI}")
            A(f"s_add_u32 s{sOff}, s{sOff}, s{sOffC}")
            A(f"s_add_u32 s{sStL}, s{sStL}, {K1_STAGE}")
            A(f"s_cmp_eq_u32 s{sStL}, {3*K1_STAGE}")
            A(f"s_cselect_b32 s{sStL}, 0, s{sStL}")
        stamp(A, 1)
        A(f"s_mov_b32 s{sStL}, 0")
        A(f"s_mov_b32 s{sCH}, -2")
        A.label(f"{name}_lp{tag}_loop")
        A(f"s_cmp_lt_i32 s{sCH}, 0")
        A(f"s_cbranch_scc1 {name}_lp{tag}_issue")
        A(f"s_cmp_eq_u32 s{sCH}, 8")
        A(f"s_cbranch_scc1 {name}_lp{tag}_last")
        A(f"s_waitcnt vmcnt({cnt})")
        A(f"s_barrier")
        A(f"s_cmp_eq_u32 s{sCH}, 7")
        A(f"s_cbranch_scc1 {name}_lp{tag}_skip")
        A.label(f"{name}_lp{tag}_issue")
        issue()
        A.label(f"{name}_lp{tag}_skip")
        A(f"s_add_u32 s{sCH}, s{sCH}, 1")
        A(f"s_branch {name}_lp{tag}_loop")
        A.label(f"{name}_lp{tag}_last")
        A(f"s_waitcnt vmcnt(0)")
        A(f"s_barrier")
        A(f"s_endpgm")
    loader_loop("w", 8)
    loader_loop("x", 32 // NX)

    A.label(f"{name}_comp")
    A(f"s_lshr_b32 s{sFP}, s{sWV}, 2")
    A(f"s_and_b32 s{sTP}, s{sWV}, 3")
    A(f"s_lshl_b32 s{sBLK}, s{sCG}, 1")
    A(f"s_add_u32 s{sBLK}, s{sBLK}, s{sFP}")
    A(f"s_cmp_ge_u32 s{sBLK}, 27")
    A(f"s_cselect_b32 s{sBR}, 1, 0")
    A(f"s_mul_i32 s{sT0}, s{sBR}, 27")
    A(f"s_sub_u32 s{sBETA}, s{sBLK}, s{sT0}")
    A(f"s_mov_b32 s{sTY}, 0")
    A(f"s_cmp_ge_u32 s{sBETA}, 9")
    A(f"s_addc_u32 s{sTY}, s{sTY}, 0")
    A(f"s_cmp_ge_u32 s{sBETA}, 18")
    A(f"s_addc_u32 s{sTY}, s{sTY}, 0")
    vG = vACC
    for i in range(24): A(f"v_mov_b32 v{vG+i}, 0")
    A("s_waitcnt lgkmcnt(0)")
    srd(A, sX, 4, 5, T * D * 2)
    srd(A, sWS, 48, 49, WS_SIZE)
    if GT:
        A(f"s_lshl_b32 s{sT0}, s{sCG}, 3")
        A(f"s_add_u32 s{sT0}, s{sT0}, s{sTB}")
        A(f"v_mul_u32_u24 v{vT}, {GT}, v{vLane}")
        nper = 64 * GT
        nx = -(-11008 // nper); nw = -(-9216 // nper)
        lab = f"{name}_gt"
        A(f"s_cmp_lt_u32 s{sWV}, {nx}")
        A(f"s_cbranch_scc0 {lab}_w")
        A(f"s_mul_i32 s{sT1}, s{sT0}, 11008")
        A(f"s_mul_i32 s{sT2}, s{sWV}, {nper}")
        A(f"s_add_u32 s{sT1}, s{sT1}, s{sT2}")
        A(f"buffer_load_dword v{vTd}, v{vT}, s[{sX}:{sX+3}], s{sT1} offen")
        A(f"s_branch {lab}_e")
        A.label(f"{lab}_w")
        A(f"s_sub_u32 s{sT3}, s{sWV}, {nx}")
        A(f"s_cmp_lt_u32 s{sT3}, {2*nw}")
        A(f"s_cbranch_scc0 {lab}_e")
        A(f"s_cmp_lt_u32 s{sT3}, {nw}")
        A(f"s_cselect_b32 s{sG}, s6, s44")
        A(f"s_cselect_b32 s{sG+1}, s7, s45")
        A(f"s_cselect_b32 s{sT2}, 0, {nw}")
        A(f"s_sub_u32 s{sT3}, s{sT3}, s{sT2}")
        A(f"s_and_b32 s{sG+1}, s{sG+1}, 0xffff")
        A(f"s_mov_b32 s{sG+2}, {D*3*D*2}")
        A(f"s_mov_b32 s{sG+3}, 0x00020000")
        A(f"s_mul_i32 s{sT1}, s{sT0}, 9216")
        A(f"s_mul_i32 s{sT2}, s{sT3}, {nper}")
        A(f"s_add_u32 s{sT1}, s{sT1}, s{sT2}")
        A(f"buffer_load_dword v{vTd}, v{vT}, s[{sG}:{sG+3}], s{sT1} offen")
        A.label(f"{lab}_e")
    srd(A, sG, 46, 47, D * 2)
    A(f"s_cmp_ge_u32 s{sCG}, 16")
    A(f"s_cbranch_scc1 {name}_nog1")
    A(f"s_lshl_b32 s{sT0}, s{sTB}, 8")
    A(f"s_lshl_b32 s{sT1}, s{sCG}, 4")
    A(f"s_add_u32 s{sT0}, s{sT0}, s{sT1}")
    A(f"s_lshl_b32 s{sT1}, s{sWV}, 1")
    A(f"s_add_u32 s52, s{sT0}, s{sT1}")
    A(f"s_mul_i32 s{sT0}, s52, 1152")
    A(f"v_lshlrev_b32 v{vT}, 5, v{vLane}")
    A(f"s_bfm_b64 exec, 36, 0")
    A(f"buffer_load_dwordx4 v[{vG}:{vG+3}], v{vT}, s[{sX}:{sX+3}], s{sT0} offen")
    A(f"buffer_load_dwordx4 v[{vG+4}:{vG+7}], v{vT}, s[{sX}:{sX+3}], s{sT0} offen offset:16")
    A(f"buffer_load_dwordx4 v[{vG+8}:{vG+11}], v{vT}, s[{sX}:{sX+3}], s{sT0} offen offset:1152")
    A(f"buffer_load_dwordx4 v[{vG+12}:{vG+15}], v{vT}, s[{sX}:{sX+3}], s{sT0} offen offset:1168")
    A(f"buffer_load_dwordx4 v[{vG+16}:{vG+19}], v{vT}, s[{sG}:{sG+3}], 0 offen")
    A(f"buffer_load_dwordx4 v[{vG+20}:{vG+23}], v{vT}, s[{sG}:{sG+3}], 0 offen offset:16")
    A(f"s_mov_b64 exec, -1")
    A.label(f"{name}_nog1")
    A(f"v_and_b32 v{vT}, 31, v{vLane}")
    A(f"v_lshrrev_b32 v{vT+1}, 5, v{vLane}")
    A(f"v_bfe_u32 v{vT+2}, v{vLane}, 1, 3")
    A(f"v_xor_b32 v{vT+2}, v{vT+2}, v{vT+1}")
    A(f"v_lshlrev_b32 v{vT+2}, 4, v{vT+2}")
    A(f"s_lshl_b32 s{sT0}, s{sTP}, 6")
    A(f"v_add_u32 v{vT}, s{sT0}, v{vT}")
    A(f"v_lshlrev_b32 v{vT}, 7, v{vT}")
    for s_ in range(4):
        A(f"v_xor_b32 v{vT+3}, {32*s_}, v{vT+2}")
        A(f"v_add_u32 v{vAX+s_}, v{vT}, v{vT+3}")
    A(f"v_bfe_u32 v{vT+2}, v{vLane}, 2, 2")
    A(f"v_lshl_add_u32 v{vT+3}, v{vT+1}, 3, v{vT+2}")
    A(f"v_lshlrev_b32 v{vT+3}, 7, v{vT+3}")
    A(f"v_bfe_u32 v{vT+4}, v{vLane}, 4, 1")
    A(f"v_lshlrev_b32 v{vT+4}, 5, v{vT+4}")
    A(f"v_and_b32 v{vT+5}, 3, v{vLane}")
    A(f"v_lshl_add_u32 v{vT+4}, v{vT+5}, 3, v{vT+4}")
    A(f"v_lshrrev_b32 v{vT+2}, 1, v{vT+2}")
    A(f"v_lshlrev_b32 v{vT+2}, 6, v{vT+2}")
    A(f"v_xor_b32 v{vT+4}, v{vT+4}, v{vT+2}")
    A(f"s_lshl_b32 s{sT0}, s{sFP}, 13")
    A(f"s_add_u32 s{sT0}, s{sT0}, {K1_W0}")
    A(f"v_add3_u32 v{vAW0}, v{vT+3}, v{vT+4}, s{sT0}")
    A(f"v_xor_b32 v{vAW1}, 64, v{vAW0}")
    A(f"s_lshl_b32 s{sT0}, s{sTB}, 3")
    A(f"s_lshl_b32 s{sT1}, s{sTP}, 1")
    A(f"s_add_u32 s53, s{sT0}, s{sT1}")
    A(f"s_cmp_eq_u32 s{sTY}, 2")
    A(f"s_cbranch_scc1 {name}_sov")
    A(f"s_mul_i32 s{sT0}, s{sTY}, 9")
    A(f"s_sub_u32 s{sT0}, s{sBETA}, s{sT0}")
    A(f"s_lshl_b32 s{sT0}, s{sT0}, 4")
    A(f"s_mul_i32 s{sT1}, s{sTY}, {WS_KM-WS_QM}")
    A(f"s_lshl_b32 s{sT2}, s{sBR}, 21")
    A(f"s_add_u32 s{sT1}, s{sT1}, s{sT2}")
    A(f"s_lshl_b32 s{sT2}, s53, 10")
    A(f"s_add_u32 s{sT1}, s{sT1}, s{sT2}")
    A(f"s_add_u32 s54, s{sT1}, {WS_QM}")
    A(f"s_mul_i32 s{sT1}, s{sTY}, {WS_KX-WS_QX}")
    A(f"s_lshl_b32 s{sT2}, s{sBR}, 18")
    A(f"s_add_u32 s{sT1}, s{sT1}, s{sT2}")
    A(f"s_lshl_b32 s{sT2}, s53, 8")
    A(f"s_add_u32 s{sT1}, s{sT1}, s{sT2}")
    A(f"s_add_u32 s55, s{sT1}, {WS_QX}")
    A(f"v_and_b32 v{vT}, 31, v{vLane}")
    A(f"v_lshlrev_b32 v{vT+6}, 3, v{vT}")
    A(f"v_add_u32 v{vT+6}, s54, v{vT+6}")
    A(f"v_lshlrev_b32 v{vT+7}, 3, v{vT}")
    A(f"v_add_u32 v{vT+7}, s55, v{vT+7}")
    A(f"v_add_u32 v{vT+8}, s{sT0}, v{vT+1}")
    for t in range(2):
        for i in range(4):
            d = vSO + 4*t + i
            A(f"v_add_u32 v{vT}, {8*t+2*i}, v{vT+8}")
            A(f"v_mul_u32_u24 v{vT+2}, 7282, v{vT}")
            A(f"v_lshrrev_b32 v{vT+2}, 16, v{vT+2}")
            A(f"v_mul_u32_u24 v{vT+3}, 9, v{vT+2}")
            A(f"v_sub_u32 v{vT+3}, v{vT}, v{vT+3}")
            A(f"v_cmp_lt_u32 vcc, 4, v{vT+3}")
            A(f"v_cndmask_b32 v{vT+4}, 0, 1, vcc")
            A(f"v_lshl_add_u32 v{vT+5}, v{vT+2}, 1, v{vT+4}")
            A(f"v_lshlrev_b32 v{vT+5}, 16, v{vT+5}")
            A(f"v_mul_u32_u24 v{vT+4}, 5, v{vT+4}")
            A(f"v_sub_u32 v{vT+4}, v{vT+3}, v{vT+4}")
            A(f"v_and_b32 v{vT+9}, 1, v{vT+4}")
            A(f"v_lshl_add_u32 v{vT+5}, v{vT+9}, 9, v{vT+5}")
            A(f"v_lshrrev_b32 v{vT+9}, 1, v{vT+4}")
            A(f"v_lshl_add_u32 v{vT+5}, v{vT+9}, 8, v{vT+5}")
            A(f"v_add_u32 v{vT+5}, v{vT+5}, v{vT+6}")
            A(f"v_lshl_add_u32 v{vT+9}, v{vT+2}, 14, v{vT+7}")
            A(f"v_cmp_eq_u32 vcc, 4, v{vT+3}")
            A(f"v_cndmask_b32 v{d}, v{vT+5}, v{vT+9}, vcc")
            A(f"v_cndmask_b32 v{vT+9}, 0, 1, vcc")
            A(f"v_or_b32 v{d}, v{d}, v{vT+9}")
    A(f"s_branch {name}_sod")
    A.label(f"{name}_sov")
    A(f"s_sub_u32 s{sT0}, s{sBETA}, 18")
    A(f"s_lshl_b32 s{sT0}, s{sT0}, 6")
    A(f"s_mul_i32 s{sT1}, s{sBR}, {32*V_HEAD}")
    A(f"s_mul_i32 s{sT2}, s53, {V_TILE}")
    A(f"s_add_u32 s{sT1}, s{sT1}, s{sT2}")
    A(f"s_add_u32 s54, s{sT1}, {WS_V}")
    A(f"s_mov_b32 s55, {V_HEAD}")
    def head_row(fv, hv, rv, t1, t2):
        A(f"v_mul_u32_u24 v{hv}, 3641, v{fv}")
        A(f"v_lshrrev_b32 v{hv}, 16, v{hv}")
        A(f"v_mul_u32_u24 v{t1}, 18, v{hv}")
        A(f"v_sub_u32 v{t1}, v{fv}, v{t1}")
        A(f"v_add_u32 v{rv}, 16, v{t1}")
        A(f"v_subrev_u32 v{t2}, 18, v{rv}")
        A(f"v_min_u32 v{rv}, v{rv}, v{t2}")
        A(f"v_and_b32 v{t2}, 1, v{hv}")
        A(f"v_cmp_eq_u32 vcc, 1, v{t2}")
        A(f"v_cndmask_b32 v{rv}, v{t1}, v{rv}, vcc")
    A(f"s_lshl_b32 s{sT2}, s{sWV}, 13")
    for t in range(2):
        A(f"v_and_b32 v{vT}, 31, v{vLane}")
        A(f"v_add_u32 v{vT}, s{sT0}, v{vT}")
        if t: A(f"v_add_u32 v{vT}, 32, v{vT}")
        head_row(vT, vT+2, vT+3, vT+4, vT+5)
        A(f"v_bfe_u32 v{vT+4}, v{vT+3}, 2, 2")
        A(f"v_xor_b32 v{vT+4}, v{vT+4}, v{vT+1}")
        A(f"v_lshlrev_b32 v{vT+4}, 4, v{vT+4}")
        A(f"v_and_b32 v{vT+5}, 31, v{vLane}")
        A(f"v_lshl_add_u32 v{vT+4}, v{vT+5}, 6, v{vT+4}")
        A(f"v_add_u32 v{vT+4}, s{sT2}, v{vT+4}")
        A(f"v_add_u32 v{vSO+t}, {t*4096}, v{vT+4}")
        A(f"v_mov_b32 v{vSO+6+t}, 0")
        for j in range(2):
            A(f"v_lshrrev_b32 v{vT}, 2, v{vLane}")
            A(f"v_add_u32 v{vT}, s{sT0}, v{vT}")
            A(f"v_add_u32 v{vT}, {32*t + 16*j}, v{vT}")
            head_row(vT, vT+2, vT+3, vT+4, vT+5)
            A(f"v_mul_lo_u32 v{vT+2}, v{vT+2}, s55")
            A(f"v_lshl_add_u32 v{vT+2}, v{vT+3}, 6, v{vT+2}")
            A(f"v_and_b32 v{vT+4}, 3, v{vLane}")
            A(f"v_lshl_add_u32 v{vT+2}, v{vT+4}, 4, v{vT+2}")
            A(f"v_add_u32 v{vSO+2+2*t+j}, s54, v{vT+2}")
            A(f"v_cmp_le_u32 vcc, 16, v{vT+3}")
            A(f"v_cndmask_b32 v{vT+4}, 0, 1, vcc")
            A(f"v_lshl_or_b32 v{vSO+6+t}, v{vT+4}, {j}, v{vSO+6+t}")
            A(f"v_cmp_eq_u32 vcc, 16, v{vT+3}")
            A(f"v_cndmask_b32 v{vT+4}, 0, 1, vcc")
            A(f"v_lshl_or_b32 v{vSO+6+t}, v{vT+4}, {2+j}, v{vSO+6+t}")
    A.label(f"{name}_sod")
    if TLBW:
        for q_ in (0, 1, 4, 5):
            A(f"buffer_load_dword v{vTd+1}, v{vSO+q_}, s[{sWS}:{sWS+3}], 0 offen")
    A(f"s_cmp_ge_u32 s{sCG}, 16")
    A(f"s_cbranch_scc1 {name}_nog2")
    A(f"s_waitcnt vmcnt(0)")
    for tk in range(2):
        A(f"v_mov_b32 v{vT}, 0")
        for i in range(8): A(f"v_dot2c_f32_bf16 v{vT}, v{vG+8*tk+i}, v{vG+16+i}")
        A(f"s_nop 2")
        A(f"v_add_f32_dpp v{vT}, v{vT}, v{vT} quad_perm:[1,0,3,2] row_mask:0xf bank_mask:0xf")
        A(f"v_add_f32_dpp v{vT}, v{vT}, v{vT} quad_perm:[2,3,0,1] row_mask:0xf bank_mask:0xf")
        A(f"v_add_f32_dpp v{vT}, v{vT}, v{vT} row_half_mirror row_mask:0xf bank_mask:0xf")
        A(f"v_add_f32_dpp v{vT}, v{vT}, v{vT} row_mirror row_mask:0xf bank_mask:0xf")
        A(f"v_readlane_b32 s56, v{vT}, 0")
        A(f"v_readlane_b32 s57, v{vT}, 16")
        A(f"v_readlane_b32 s58, v{vT}, 32")
        A(f"v_mov_b32 v{vT+1}, s56")
        A(f"v_add_f32 v{vT+1}, s57, v{vT+1}")
        A(f"v_add_f32 v{vT+1}, s58, v{vT+1}")
        A(f"v_mul_f32 v{vT+1}, {f2u(-1.4426950408889634)}, v{vT+1}")
        A(f"v_exp_f32 v{vT+1}, v{vT+1}")
        A(f"v_add_f32 v{vT+1}, 1.0, v{vT+1}")
        A(f"v_rcp_f32 v{vT+1}, v{vT+1}")
        A(f"s_lshl_b32 s{sT0}, s52, 2")
        A(f"s_add_u32 s{sT0}, s{sT0}, {WS_G + 4*tk}")
        A(f"v_mov_b32 v{vT+2}, 0")
        A(f"s_mov_b64 exec, 1")
        A(f"buffer_store_dword v{vT+1}, v{vT+2}, s[{sWS}:{sWS+3}], s{sT0} offen" + STORE_MOD)
        A(f"s_mov_b64 exec, -1")
    A.label(f"{name}_nog2")
    for i in range(64): A(f"v_mov_b32 v{vACC+i}, 0")
    for i in range(8):
        A(f"v_mov_b32 v{vXF+8+i}, 0")
        A(f"v_mov_b32 v{vWF+8+i}, 0")
    A(f"s_mov_b32 s56, {(-2*K1_STAGE) & 0xffffffff}")
    A(f"s_mov_b32 s57, {K1_STAGE}")
    stamp(A, 1)
    A(f"s_mov_b32 s{sCH}, 0")
    A(f"s_mov_b32 s{sStR}, 0")
    A(f"s_cmp_eq_u32 s{sTY}, 2")
    A(f"s_cbranch_scc1 {name}_loop1")

    def reads(s_, buf):
        xf = vXF + 8*buf; wf = vWF + 8*buf
        A(f"ds_read_b128 v[{xf}:{xf+3}], v{vAX+s_}")
        A(f"ds_read_b128 v[{xf+4}:{xf+7}], v{vAX+s_} offset:4096")
        A(f"ds_read_b64_tr_b16 v[{wf}:{wf+1}], v{vAW0} offset:{s_*2048}")
        A(f"ds_read_b64_tr_b16 v[{wf+2}:{wf+3}], v{vAW0} offset:{s_*2048+512}")
        A(f"ds_read_b64_tr_b16 v[{wf+4}:{wf+5}], v{vAW1} offset:{s_*2048}")
        A(f"ds_read_b64_tr_b16 v[{wf+6}:{wf+7}], v{vAW1} offset:{s_*2048+512}")
    def mfmas(mode, buf):
        xf = vXF + 8*buf; wf = vWF + 8*buf
        for t in range(2):
            for tt in range(2):
                acc = vACC + (t*2+tt)*16
                W = f"v[{wf+4*t}:{wf+4*t+3}]"; X = f"v[{xf+4*tt}:{xf+4*tt+3}]"
                if mode == 1:
                    A(f"v_mfma_f32_32x32x16_bf16 v[{acc}:{acc+15}], {X}, {W}, v[{acc}:{acc+15}]")
                else:
                    A(f"v_mfma_f32_32x32x16_bf16 v[{acc}:{acc+15}], {W}, {X}, v[{acc}:{acc+15}]")

    for mode in range(2):
        L = f"{name}_loop{mode}"
        A.label(L)
        A(f"s_barrier")
        if PROF:
            A(f"s_cmp_eq_u32 s{sCH}, 0")
            A(f"s_cbranch_scc0 {L}_ns")
            stamp(A, 2)
            A.label(f"{L}_ns")
        def mf1(buf, t, tt):
            xf = vXF + 8*buf; wf = vWF + 8*buf
            acc = vACC + (t*2+tt)*16
            W = f"v[{wf+4*t}:{wf+4*t+3}]"; X = f"v[{xf+4*tt}:{xf+4*tt+3}]"
            if mode == 1: A(f"v_mfma_f32_32x32x16_bf16 v[{acc}:{acc+15}], {X}, {W}, v[{acc}:{acc+15}]")
            else: A(f"v_mfma_f32_32x32x16_bf16 v[{acc}:{acc+15}], {W}, {X}, v[{acc}:{acc+15}]")
        def step(buf, nxt, waits, tail=None):
            xf = vXF + 8*(1-buf); wf = vWF + 8*(1-buf)
            if waits: A(f"s_waitcnt lgkmcnt(3)")
            mf1(buf, 0, 0)
            A(f"ds_read_b128 v[{xf}:{xf+3}], v{vAX+nxt}")
            A(f"ds_read_b64_tr_b16 v[{wf}:{wf+1}], v{vAW0} offset:{nxt*2048}")
            if waits: A(f"s_waitcnt lgkmcnt(4)")
            mf1(buf, 0, 1)
            A(f"ds_read_b64_tr_b16 v[{wf+2}:{wf+3}], v{vAW0} offset:{nxt*2048+512}")
            A(f"ds_read_b128 v[{xf+4}:{xf+7}], v{vAX+nxt} offset:4096")
            if waits: A(f"s_waitcnt lgkmcnt(4)")
            mf1(buf, 1, 0)
            A(f"ds_read_b64_tr_b16 v[{wf+4}:{wf+5}], v{vAW1} offset:{nxt*2048}")
            A(f"ds_read_b64_tr_b16 v[{wf+6}:{wf+7}], v{vAW1} offset:{nxt*2048+512}")
            if tail: tail()
            mf1(buf, 1, 1)
        def tail():
            A(f"s_add_u32 s{sStR}, s{sStR}, 1")
            A(f"s_cmp_eq_u32 s{sStR}, 3")
            A(f"s_cselect_b32 s{sDelta}, s56, s57")
            A(f"s_cselect_b32 s{sStR}, 0, s{sStR}")
            for r in [vAX, vAX+1, vAX+2, vAX+3, vAW0, vAW1]:
                A(f"v_add_u32 v{r}, s{sDelta}, v{r}")
            A(f"s_add_u32 s{sCH}, s{sCH}, 1")
            A(f"s_cmp_lt_u32 s{sCH}, 9")
        if SKIP0:
            lz = f"{L}_z"
            A(f"s_cmp_eq_u32 s{sCH}, 0")
            A(f"s_cbranch_scc0 {lz}")
            for k_ in range(6):
                xf = vXF; wf = vWF
                A([f"ds_read_b128 v[{xf}:{xf+3}], v{vAX}", f"ds_read_b64_tr_b16 v[{wf}:{wf+1}], v{vAW0}", f"ds_read_b64_tr_b16 v[{wf+2}:{wf+3}], v{vAW0} offset:512",
                   f"ds_read_b128 v[{xf+4}:{xf+7}], v{vAX} offset:4096", f"ds_read_b64_tr_b16 v[{wf+4}:{wf+5}], v{vAW1}", f"ds_read_b64_tr_b16 v[{wf+6}:{wf+7}], v{vAW1} offset:512"][k_])
            A(f"s_branch {lz}_e")
            A.label(lz)
        step(1, 0, False)
        if SKIP0: A.label(f"{lz}_e")
        step(0, 1, True)
        step(1, 2, True)
        step(0, 3, True, tail)
        A(f"s_waitcnt lgkmcnt(0)")
        A(f"s_cbranch_scc1 {L}")
        mfmas(mode, 1)
        A(f"s_nop 15")
        A(f"s_branch {name}_epi{mode}")

    A.label(f"{name}_epi0")
    stamp(A, 3)
    A(f"s_mov_b32 s{sT0}, 1.0")
    A(f"s_cmp_eq_u32 s{sTY}, 0")
    A(f"s_cselect_b32 s{sT0}, {f2u(QSCALE)}, s{sT0}")
    for q in range(8):
        d = vSO + q
        A(f"v_and_b32 v{vT}, 1, v{d}")
        A(f"v_xor_b32 v{d}, v{d}, v{vT}")
        A(f"v_mul_u32_u24 v{vT}, 768, v{vT}")
        A(f"v_sub_u32 v{vT+1+q}, 1024, v{vT}")
        A(f"v_add_u32 v{vT+1+q}, v{vT+1+q}, v{d}")
    A(f"s_cmp_eq_u32 s{sTY}, 0")
    A(f"s_cbranch_scc0 {name}_nomul")
    for i in range(64): A(f"v_mul_f32 v{vACC+i}, s{sT0}, v{vACC+i}")
    A.label(f"{name}_nomul")
    k = 0
    for t in range(2):
        for tt in range(2):
            acc = vACC + (t*2+tt)*16
            p = vP + 8*(k % 4); k += 1
            for i in range(8): A(f"v_cvt_pk_bf16_f32 v{p+i}, v{acc+2*i}, v{acc+2*i+1}")
            for i in range(4):
                ad = (vSO + 4*t + i) if tt == 0 else (vT + 1 + 4*t + i)
                A(f"buffer_store_dwordx2 v[{p+2*i}:{p+2*i+1}], v{ad}, s[{sWS}:{sWS+3}], 0 offen" + QKMOD)
    A(f"s_branch {name}_fin")
    A.label(f"{name}_epi1")
    stamp(A, 3)
    k = 0
    for t in range(2):
        for tt in range(2):
            acc = vACC + (t*2+tt)*16
            p = vP + 8*(k % 4); k += 1
            for i in range(8): A(f"v_cvt_pk_bf16_f32 v{p+i}, v{acc+2*i}, v{acc+2*i+1}")
            A(f"ds_write_b128 v{vSO+t}, v[{p}:{p+3}] offset:{tt*2048}")
            A(f"v_xor_b32 v{vT}, 32, v{vSO+t}")
            A(f"ds_write_b128 v{vT}, v[{p+4}:{p+7}] offset:{tt*2048}")
    A(f"s_lshl_b32 s{sT2}, s{sWV}, 13")
    A(f"v_lshlrev_b32 v{vT+1}, 4, v{vLane}")
    A(f"v_add_u32 v{vT+1}, s{sT2}, v{vT+1}")
    A(f"s_waitcnt lgkmcnt(0)")
    k = 0
    for t in range(2):
        for tt in range(2):
            for j in range(2):
                r = vACC + 4*k; k += 1
                A(f"ds_read_b128 v[{r}:{r+3}], v{vT+1} offset:{t*4096 + tt*2048 + j*1024}")
    k = 0
    for t in range(2):
        for tt in range(2):
            for j in range(2):
                r = vACC + 4*k; k += 1
                A(f"s_waitcnt lgkmcnt({7-(k-1)})")
                A(f"buffer_store_dwordx4 v[{r}:{r+3}], v{vSO+2+2*t+j}, s[{sWS}:{sWS+3}], 0 offen offset:{tt*V_TILE}" + VMOD)
    for t in range(2):
        for j in range(2):
            lb = f"{name}_on{t}{j}"
            A(f"v_bfe_u32 v{vT}, v{vSO+6+t}, {2+j}, 1")
            A(f"v_mul_u32_u24 v{vT}, 0x3f80, v{vT}")
            A(f"v_lshl_or_b32 v{vT+4}, v{vT}, 16, v{vT}")
            for i in range(1, 4): A(f"v_mov_b32 v{vT+4+i}, v{vT+4}")
            A(f"v_bfe_u32 v{vT}, v{vSO+6+t}, {j}, 1")
            A(f"v_cmp_eq_u32 vcc, 1, v{vT}")
            A(f"s_and_saveexec_b64 s[58:59], vcc")
            A(f"s_cbranch_execz {lb}")
            for tt in range(2):
                A(f"buffer_store_dwordx4 v[{vT+4}:{vT+7}], v{vSO+2+2*t+j}, s[{sWS}:{sWS+3}], 0 offen offset:{tt*V_TILE+128}" + VMOD)
            A.label(lb)
            A(f"s_mov_b64 exec, s[58:59]")
    A.label(f"{name}_fin")
    if PROF:
        stamp(A, 4)
        A("s_waitcnt vmcnt(0)")
        stamp(A, 5)
        stamps_out(A, 0, 6, sWS, sWV, vP)
    rt_end(A, 0, sWV, vP)
    A.label(f"{name}_end")
    A(f"s_endpgm")
    return khead(name) + A.finish(True) , kdesc(name, NV, 100)
```

```python
from asmlib import *
from common import *
import os

L_KM = 0
L_V = 65536
L_KX = 65536 + 64*1280
L_CNT = L_KX + 64*128
K2_LDS = L_CNT + 64
K2_THREADS = 640
NEG = f2u(-1.0e30)
NEGB = 0xF149
DBG = int(os.environ.get("DBG", "0"))
PF = int(os.environ.get("PF", "1"))
PRIO = int(os.environ.get("PRIO", "0"))
PDUTY = int(os.environ.get("PDUTY", "4"))
ORDER = int(os.environ.get("ORDER", "0"))
G0 = int(os.environ.get("G0", "1"))
CNT = int(os.environ.get("CNT", "0"))
LPRIO = int(os.environ.get("LPRIO2", os.environ.get("LPRIO", "0")))
OMOD = " " + os.environ.get("OMOD", "sc1")
TLBW = int(os.environ.get("TLBW", "0"))
UNROLL = int(os.environ.get("UNROLL", "8"))
WOPF = int(os.environ.get("WOPF", "1"))
ZPAD = int(os.environ.get("ZPAD", "1"))

def gen_k2(name):
    A = Asm()
    sWS = 8
    sH, sQB, sWV, sTQ = 12, 13, 14, 15
    sT0, sT1, sT2, sT3 = 16, 17, 18, 19
    sCnt, sI = 20, 21
    sPass = 22
    sKMs, sVs, sKXs = 24, 25, 26
    vLane = 1
    vL16 = 2
    vKa, vVa, vXa = 3, 4, 5
    vKa0, vVa0, vXa0 = 6, 7, 8
    vG = 9
    vT = 10
    vQA, vQB = 20, 28
    vKF = 36
    vVF = 52
    vS = 68
    vP = 100
    vO = 108
    vMF, vMD = 124, 140
    vCM = vS + 16
    vM = 156
    vCA = 157
    vQo = 34
    vGA, vGC = 26, 27
    vVb, vVb0, vVg2, vX8 = 160, 161, 162, 163
    vVg, vXg = 158, 159
    NV = 164

    A(f"s_cmp_ge_u32 s2, 256")
    A(f"s_cbranch_scc1 {name}_end")
    stamp(A, 0)
    rt_begin(A)
    A(f"s_load_dwordx2 s[4:5], s[0:1], {ARG['ws']}")
    A(f"v_and_b32 v{vLane}, 63, v0")
    A(f"v_lshrrev_b32 v{vT}, 6, v0")
    A(f"s_and_b32 s{sT0}, s2, 7")
    A(f"v_readfirstlane_b32 s{sWV}, v{vT}")
    A(f"s_lshr_b32 s{sT1}, s2, 3")
    A(f"s_lshl_b32 s{sT0}, s{sT0}, 2")
    A(f"s_and_b32 s{sT2}, s{sT1}, 3")
    A(f"s_add_u32 s{sH}, s{sT0}, s{sT2}")
    A(f"s_lshr_b32 s{sQB}, s{sT1}, 2")
    A(f"v_lshlrev_b32 v{vL16}, 4, v{vLane}")
    A(f"s_lshl_b32 s{sT0}, s{sH}, 16")
    A(f"s_add_u32 s{sKMs}, s{sT0}, {WS_KM}")
    A(f"s_mul_i32 s{sT0}, s{sH}, {V_HEAD}")
    A(f"s_add_u32 s{sVs}, s{sT0}, {WS_V}")
    A(f"s_lshr_b32 s{sT0}, s{sH}, 1")
    A(f"s_lshl_b32 s{sT0}, s{sT0}, 14")
    A(f"s_add_u32 s{sKXs}, s{sT0}, {WS_KX}")
    A(f"v_mov_b32 v{vCA}, {L_CNT}")
    A(f"s_and_b32 s{sT0}, s{sH}, 1")
    A(f"s_lshl_b32 s{sT0}, s{sT0}, 2")
    A(f"v_lshlrev_b32 v{vX8}, 3, v{vLane}")
    A(f"v_add_u32 v{vX8}, s{sT0}, v{vX8}")
    A(f"s_cmp_ge_u32 s{sWV}, 8")
    A(f"s_cbranch_scc1 {name}_loader")

    def dma_run(ldsbase, sreg, woff_sreg, stride, n_full, rem_limit_sreg=None, rem=None, tag=""):
        A(f"s_add_u32 s{sT3}, s{sreg}, s{woff_sreg}")
        A(f"s_add_u32 m0, s{woff_sreg}, {ldsbase}")
        for j in range(n_full):
            A(f"s_nop 0")
            A(f"buffer_load_dwordx4 v{vL16}, s[{sWS}:{sWS+3}], s{sT3} offen lds")
            if j < n_full - 1 or rem:
                A(f"s_add_u32 m0, m0, {stride}")
                A(f"s_add_u32 s{sT3}, s{sT3}, {stride}")
        if rem:
            lab = f"{name}_dg{dma_run.n}"; dma_run.n += 1
            A(f"s_cmp_lt_u32 s{rem_limit_sreg}, {rem}")
            A(f"s_cbranch_scc0 {lab}")
            A(f"buffer_load_dwordx4 v{vL16}, s[{sWS}:{sWS+3}], s{sT3} offen lds")
            A.label(lab)
    dma_run.n = 0
    def group(ldsbase, sreg, n, nw, widx_sreg, woff_sreg):
        dma_run(ldsbase, sreg, woff_sreg, nw*1024, n // nw, widx_sreg, n % nw)
    def poll(off, target, tag):
        A.label(f"{name}_poll{tag}")
        A(f"ds_read_b32 v{vT}, v{vCA} offset:{off}")
        A(f"s_waitcnt lgkmcnt(0)")
        A(f"v_readfirstlane_b32 s{sT0}, v{vT}")
        A(f"s_cmp_ge_u32 s{sT0}, {target}")
        A(f"s_cbranch_scc1 {name}_pollok{tag}")
        A(f"s_sleep 1")
        A(f"s_branch {name}_poll{tag}")
        A.label(f"{name}_pollok{tag}")
    def signal(off):
        A(f"v_mov_b32 v{vT}, 1")
        A(f"s_mov_b64 exec, 1")
        A(f"ds_add_u32 v{vCA}, v{vT} offset:{off}")
        A(f"s_mov_b64 exec, -1")

    A(f"s_lshl_b32 s{sTQ}, s{sQB}, 3")
    A(f"s_add_u32 s{sTQ}, s{sTQ}, s{sWV}")
    A(f"s_cmp_lg_u32 s{sWV}, 0")
    A(f"s_cbranch_scc1 {name}_noinit")
    A(f"v_mov_b32 v{vT+3}, 0")
    A(f"v_lshlrev_b32 v{vT+4}, 2, v{vLane}")
    A(f"v_add_u32 v{vT+4}, {L_CNT}, v{vT+4}")
    A(f"s_mov_b64 exec, 0xffff")
    A(f"ds_write_b32 v{vT+4}, v{vT+3}")
    A(f"s_mov_b64 exec, -1")
    A.label(f"{name}_noinit")
    A(f"v_and_b32 v{vT}, 31, v{vLane}")
    A(f"v_lshlrev_b32 v{vT+1}, 3, v{vT}")
    A(f"s_lshl_b32 s{sT0}, s{sH}, 16")
    A(f"s_lshl_b32 s{sT1}, s{sTQ}, 10")
    A(f"s_add_u32 s40, s{sT0}, s{sT1}")
    A(f"s_lshr_b32 s{sT2}, s{sH}, 1")
    A(f"s_lshl_b32 s{sT2}, s{sT2}, 14")
    A(f"s_and_b32 s{sT1}, s{sH}, 1")
    A(f"s_lshl_b32 s{sT1}, s{sT1}, 2")
    A(f"s_add_u32 s41, s{sT2}, s{sT1}")
    A(f"s_lshl_b32 s{sT1}, s{sTQ}, 8")
    A(f"s_add_u32 s41, s41, s{sT1}")
    A(f"s_add_u32 s41, s41, {WS_QX}")
    A("s_waitcnt lgkmcnt(0)")
    if PROF == 2: stamp(A, 1)
    srd(A, sWS, 4, 5, WS_SIZE)
    A(f"s_add_u32 s{sT0}, s40, {WS_QM + (32<<16)}")
    A(f"v_lshrrev_b32 v{vT+2}, 5, v{vLane}")
    A(f"v_lshl_add_u32 v{vQo}, v{vT+2}, 8, v{vT+1}")
    A(f"buffer_load_dwordx2 v[{vQB}:{vQB+1}], v{vQo}, s[{sWS}:{sWS+3}], s{sT0} offen")
    A(f"buffer_load_dwordx2 v[{vQB+2}:{vQB+3}], v{vQo}, s[{sWS}:{sWS+3}], s{sT0} offen offset:512")
    A(f"s_add_u32 s{sT0}, s41, {16*16384}")
    A(f"buffer_load_dword v{vQB+4}, v{vT+1}, s[{sWS}:{sWS+3}], s{sT0} offen")
    if G0:
        A(f"s_lshl_b32 s34, s{sWV}, 10")
        A(f"s_lshl_b32 s{sT0}, s{sQB}, 13")
        A(f"s_add_u32 s{sT0}, s{sT0}, s{sKMs}")
        A(f"s_add_u32 s{sT0}, s{sT0}, {32<<16}")
        A(f"s_add_u32 s{sT0}, s{sT0}, s34")
        A(f"s_mov_b32 m0, s34")
        A(f"s_mul_i32 s{sT1}, s{sQB}, {8*V_TILE}")
        A(f"buffer_load_dwordx4 v{vL16}, s[{sWS}:{sWS+3}], s{sT0} offen lds")
        A(f"s_add_u32 s{sT1}, s{sT1}, s{sVs}")
        A(f"s_add_u32 s{sT1}, s{sT1}, {32*V_HEAD}")
        A(f"s_add_u32 s{sT0}, s{sT1}, s34")
        A(f"s_add_u32 m0, s34, {L_V}")
        A(f"s_nop 0")
        A(f"buffer_load_dwordx4 v{vL16}, s[{sWS}:{sWS+3}], s{sT0} offen lds")
        A(f"s_cmp_lt_u32 s{sWV}, 2")
        A(f"s_cbranch_scc0 {name}_g0x")
        A(f"s_add_u32 s{sT0}, s{sT0}, 8192")
        A(f"s_add_u32 m0, s34, {L_V + 8192}")
        A(f"s_nop 0")
        A(f"buffer_load_dwordx4 v{vL16}, s[{sWS}:{sWS+3}], s{sT0} offen lds")
        A(f"s_branch {name}_g0e")
        A.label(f"{name}_g0x")
        A(f"s_cmp_lt_u32 s{sWV}, 6")
        A(f"s_cbranch_scc0 {name}_g0e")
        A(f"s_lshl_b32 s{sT0}, s{sQB}, 11")
        A(f"s_add_u32 s{sT0}, s{sT0}, s{sKXs}")
        A(f"s_add_u32 s{sT0}, s{sT0}, {16*16384}")
        A(f"s_sub_u32 s{sT2}, s{sWV}, 2")
        A(f"s_lshl_b32 s{sT1}, s{sT2}, 9")
        A(f"s_add_u32 s{sT0}, s{sT0}, s{sT1}")
        A(f"s_lshl_b32 s{sT2}, s{sT2}, 8")
        A(f"s_add_u32 m0, s{sT2}, {L_KX}")
        A(f"s_nop 0")
        A(f"buffer_load_dword v{vX8}, s[{sWS}:{sWS+3}], s{sT0} offen lds")
        A.label(f"{name}_g0e")
    A(f"s_barrier")
    if PROF == 2: stamp(A, 2)
    A(f"v_lshrrev_b32 v{vT+1}, 5, v{vLane}")
    A(f"v_bfe_u32 v{vT+2}, v{vT}, 2, 2")
    A(f"v_xor_b32 v{vT+2}, v{vT+2}, v{vT+1}")
    A(f"v_min_u32 v{vT+3}, 19, v{vT}")
    A(f"v_lshlrev_b32 v{vVg}, 6, v{vT+3}")
    A(f"v_lshl_add_u32 v{vVg}, v{vT+2}, 4, v{vVg}")
    A(f"v_xor_b32 v{vVg2}, 32, v{vVg}")
    A(f"v_add_u32 v{vVa0}, {L_V}, v{vVg}")
    A(f"v_add_u32 v{vVb0}, {L_V}, v{vVg2}")
    A(f"v_cmp_gt_u32 vcc, 19, v{vT}")
    A(f"v_mov_b32 v{vT+3}, 0x40000")
    A(f"v_cndmask_b32 v{vVa0}, v{vT+3}, v{vVa0}, vcc")
    A(f"v_cndmask_b32 v{vVb0}, v{vT+3}, v{vVb0}, vcc")
    A(f"v_lshlrev_b32 v{vKa0}, 3, v{vT}")
    A(f"v_lshl_add_u32 v{vKa0}, v{vT+1}, 8, v{vKa0}")
    A(f"s_and_b32 s{sT0}, s{sH}, 1")
    A(f"s_lshl_b32 s{sT0}, s{sT0}, 2")
    A(f"v_lshlrev_b32 v{vXg}, 3, v{vT}")
    A(f"v_add_u32 v{vXg}, s{sT0}, v{vXg}")
    A(f"v_lshlrev_b32 v{vXa0}, 2, v{vT}")
    A(f"v_add_u32 v{vXa0}, {L_KX}, v{vXa0}")
    A(f"v_cmp_gt_u32 vcc, 32, v{vLane}")
    A(f"v_cndmask_b32 v{vXa0}, v{vT+3}, v{vXa0}, vcc")
    A(f"v_mov_b32 v{vKF+5}, 0x3f80")
    A(f"v_mov_b32 v{vKF+8+5}, 0x3f80")
    A(f"v_lshlrev_b32 v{vT+4}, 2, v{vT+1}")
    A(f"v_sub_u32 v{vT+4}, v{vT}, v{vT+4}")
    A(f"s_mov_b32 s29, {NEG}")
    for r in range(16):
        c = 8*(r//4) + r % 4
        A(f"v_subrev_u32 v{vT+5}, {c}, v{vT+4}")
        A(f"v_ashrrev_i32 v{vT+5}, 31, v{vT+5}")
        A(f"v_and_b32 v{vMD+r}, s29, v{vT+5}")
        A(f"v_xor_b32 v{vMF+r}, s29, v{vMD+r}")
    ONEHI = 0x3f800000
    def qext_fix(q):
        A(f"v_cmp_gt_u32 vcc, 32, v{vLane}")
        A(f"v_mov_b32 v{vT+6}, {ONEHI}")
        A(f"v_cndmask_b32 v{q+4}, 0, v{q+4}, vcc")
        A(f"v_cndmask_b32 v{q+5}, 0, v{vT+6}, vcc")
    if PROF == 2: stamp(A, 3)
    A(f"s_waitcnt vmcnt(0)")
    if PROF == 2: stamp(A, 4)
    if G0: A(f"s_barrier")
    qext_fix(vQB)
    A(f"v_and_b32 v{vT}, 31, v{vLane}")
    A(f"v_lshlrev_b32 v{vT+2}, 2, v{vT}")
    A(f"s_lshl_b32 s{sT0}, s{sTQ}, 7")
    A(f"s_add_u32 s{sT0}, s{sT0}, {WS_G}")
    A(f"buffer_load_dword v{vG}, v{vT+2}, s[{sWS}:{sWS+3}], s{sT0} offen")
    if TLBW:
        A(f"s_lshl_b32 s{sT0}, s{sTQ}, 5")
        A(f"s_add_u32 s{sT0}, s{sT0}, s{sH}")
        A(f"s_lshl_b32 s{sT1}, s{sT0}, 10")
        A(f"s_add_u32 s{sT1}, s{sT1}, {WS_OM}")
        A(f"buffer_load_dword v35, v{vL16}, s[{sWS}:{sWS+3}], s{sT1} offen")
        A(f"s_add_u32 s{sT1}, s{sT1}, {64*32*1024}")
        A(f"buffer_load_dword v35, v{vL16}, s[{sWS}:{sWS+3}], s{sT1} offen")
        A(f"s_mov_b32 s{sT1}, {WS_OX}")
        A(f"buffer_load_dword v35, v{vL16}, s[{sWS}:{sWS+3}], s{sT1} offen")
    def claim_item():
        lab = f"{name}_claim{claim_item.n}"; claim_item.n += 1
        A(f"v_mov_b32 v{vT}, 1")
        A(f"s_mov_b64 exec, 1")
        A(f"ds_add_rtn_u32 v{vT+1}, v{vCA}, v{vT} offset:16")
        A(f"s_mov_b64 exec, -1")
        A(f"s_waitcnt lgkmcnt(0)")
        A(f"v_readfirstlane_b32 s50, v{vT+1}")
        A(f"s_cmp_ge_u32 s50, 8")
        A(f"s_cbranch_scc1 {lab}")
        A(f"s_lshl_b32 s51, s{sQB}, 3")
        A(f"s_add_u32 s51, s51, s50")
        A(f"s_lshl_b32 s{sT0}, s{sH}, 16")
        A(f"s_lshl_b32 s{sT1}, s51, 10")
        A(f"s_add_u32 s{sT0}, s{sT0}, s{sT1}")
        A(f"buffer_load_dwordx2 v[{vQA}:{vQA+1}], v{vQo}, s[{sWS}:{sWS+3}], s{sT0} offen")
        A(f"buffer_load_dwordx2 v[{vQA+2}:{vQA+3}], v{vQo}, s[{sWS}:{sWS+3}], s{sT0} offen offset:512")
        A(f"s_lshl_b32 s{sT1}, s51, 8")
        A(f"s_add_u32 s{sT1}, s{sT1}, s52")
        A(f"v_and_b32 v{vT}, 31, v{vLane}")
        A(f"v_lshlrev_b32 v{vT+1}, 3, v{vT}")
        A(f"buffer_load_dword v{vQA+4}, v{vT+1}, s[{sWS}:{sWS+3}], s{sT1} offen")
        A(f"v_lshlrev_b32 v{vT+2}, 2, v{vT}")
        A(f"s_lshl_b32 s{sT0}, s51, 7")
        A(f"s_add_u32 s{sT0}, s{sT0}, {WS_G}")
        A(f"buffer_load_dword v{vGA}, v{vT+2}, s[{sWS}:{sWS+3}], s{sT0} offen")
        A.label(lab)
    claim_item.n = 0
    A(f"s_lshr_b32 s52, s{sH}, 1")
    A(f"s_lshl_b32 s52, s52, 14")
    A(f"s_and_b32 s{sT1}, s{sH}, 1")
    A(f"s_lshl_b32 s{sT1}, s{sT1}, 2")
    A(f"s_add_u32 s52, s52, s{sT1}")
    A(f"s_add_u32 s52, s52, {WS_QX}")
    def need_groups(n_imm=None, n_sreg=None, tag=""):
        tgt = f"{n_imm}" if n_imm is not None else f"s{n_sreg}"
        A(f"s_cmp_ge_u32 s42, {tgt}")
        A(f"s_cbranch_scc1 {name}_ng_ok{tag}")
        A.label(f"{name}_ng{tag}")
        A(f"ds_read_b64 v[{vT}:{vT+1}], v{vCA}")
        A(f"s_waitcnt lgkmcnt(0)")
        A(f"v_min_u32 v{vT}, v{vT}, v{vT+1}")
        A(f"v_readfirstlane_b32 s42, v{vT}")
        A(f"s_cmp_ge_u32 s42, {tgt}")
        A(f"s_cbranch_scc1 {name}_ng_ok{tag}")
        A(f"s_sleep 1")
        A(f"s_branch {name}_ng{tag}")
        A.label(f"{name}_ng_ok{tag}")
    A(f"s_mov_b32 s42, 0")

    def kreads(buf, off_slot):
        kf = vKF + 8*buf
        A(f"ds_read2st64_b64 v[{kf}:{kf+3}], v{vKa} offset0:{2*off_slot} offset1:{2*off_slot+1}")
        A(f"ds_read_b32 v{kf+4}, v{vXa} offset:{off_slot*128}")
    def vreads(buf, off_slot):
        vf = vVF + 8*buf
        A(f"ds_read_b128 v[{vf}:{vf+3}], v{vVa} offset:{off_slot*V_TILE}")
        A(f"ds_read_b128 v[{vf+4}:{vf+7}], v{vVb} offset:{off_slot*V_TILE}")
    def qk(sbuf, kbuf, q, cop):
        sd = vS + 16*sbuf; kf = vKF + 8*kbuf
        A(f"v_mfma_f32_32x32x16_bf16 v[{sd}:{sd+15}], v[{kf}:{kf+3}], v[{q}:{q+3}], {cop}")
        A(f"v_mfma_f32_32x32x8_bf16 v[{sd}:{sd+15}], v[{kf+4}:{kf+5}], v[{q+4}:{q+5}], v[{sd}:{sd+15}]")
    def setaddr(slot, sreg=False):
        if not sreg:
            A(f"v_add_u32 v{vKa}, {L_KM + slot*1024}, v{vKa0}")
            A(f"v_add_u32 v{vVa}, {slot*V_TILE}, v{vVa0}")
            A(f"v_add_u32 v{vVb}, {slot*V_TILE}, v{vVb0}")
            A(f"v_add_u32 v{vXa}, {slot*128}, v{vXa0}")
        else:
            A(f"s_lshl_b32 s{sT0}, s{slot}, 10")
            A(f"v_add_u32 v{vKa}, s{sT0}, v{vKa0}")
            A(f"s_mul_i32 s{sT0}, s{slot}, {V_TILE}")
            A(f"v_add_u32 v{vVa}, s{sT0}, v{vVa0}")
            A(f"v_add_u32 v{vVb}, s{sT0}, v{vVb0}")
            A(f"s_lshl_b32 s{sT0}, s{slot}, 7")
            A(f"v_add_u32 v{vXa}, s{sT0}, v{vXa0}")
    def adv(n):
        A(f"v_add_u32 v{vKa}, {n*1024}, v{vKa}")
        A(f"v_add_u32 v{vVa}, {n*V_TILE}, v{vVa}")
        A(f"v_add_u32 v{vVb}, {n*V_TILE}, v{vVb}")
        A(f"v_add_u32 v{vXa}, {n*128}, v{vXa}")
    def maxtile(sbuf):
        sd = vS + 16*sbuf
        for i in range(8):
            A(f"v_max3_f32 v{vM}, v{sd+2*i}, v{sd+2*i+1}, v{vM}")
    def finish_max(q):
        A(f"v_mov_b32 v{vT}, v{vM}")
        A(f"v_permlane32_swap_b32 v{vM}, v{vT}")
        A(f"v_max_f32 v{vM}, v{vM}, v{vT}")
        A(f"v_sub_f32 v{vT}, 0, v{vM}")
        A(f"v_cvt_pk_bf16_f32 v{vT+1}, v{vT}, 1.0")
        A(f"v_lshlrev_b32 v{vT+2}, 16, v{vT+1}")
        A(f"v_sub_f32 v{vT+2}, v{vT}, v{vT+2}")
        A(f"v_cvt_pk_bf16_f32 v{vT+2}, v{vT+2}, 0")
        A(f"v_cmp_gt_u32 vcc, 32, v{vLane}")
        A(f"v_cndmask_b32 v{q+5}, v{vT+2}, v{vT+1}, vcc")
    def clear_max(q):
        A(f"v_mov_b32 v{vT}, {ONEHI}")
        A(f"v_cmp_gt_u32 vcc, 32, v{vLane}")
        A(f"v_cndmask_b32 v{q+5}, 0, v{vT}, vcc")
    def pv(g, vbuf):
        vf = vVF + 8*vbuf + 4*g
        A(f"v_mfma_f32_32x32x16_bf16 v[{vO}:{vO+15}], v[{vf}:{vf+3}], v[{vP+4*g}:{vP+4*g+3}], v[{vO}:{vO+15}]")
    def check_l(ok_label):
        A(f"s_nop 12")
        A(f"v_mov_b32 v{vT}, {f2u(2.0**100)}")
        A(f"v_cmp_nlt_f32 vcc, v{vO+10}, v{vT}")
        A(f"v_max3_f32 v{vT+1}, |v{vO}|, |v{vO+1}|, |v{vO+2}|")
        A(f"v_max3_f32 v{vT+2}, |v{vO+3}|, |v{vO+4}|, |v{vO+5}|")
        A(f"v_max3_f32 v{vT+3}, |v{vO+6}|, |v{vO+7}|, |v{vO+8}|")
        A(f"v_max3_f32 v{vT+1}, v{vT+1}, v{vT+2}, v{vT+3}")
        A(f"v_max_f32 v{vT+1}, v{vT+1}, |v{vO+9}|") if False else A(f"v_max3_f32 v{vT+1}, v{vT+1}, |v{vO+9}|, |v{vO+9}|")
        A(f"s_bfm_b64 s[32:33], 32, 0")
        A(f"s_and_b64 s[32:33], vcc, s[32:33]")
        A(f"v_mov_b32 v{vT}, 0x7f800000")
        A(f"v_cmp_nlt_f32 vcc, v{vT+1}, v{vT}")
        A(f"s_or_b64 vcc, vcc, s[32:33]")
        A(f"s_cbranch_scc0 {ok_label}")
    def epilogue(br, tq, g):
        A(f"v_mov_b32 v{vT}, v{vO+10}")
        A(f"v_mov_b32 v{vT+1}, v{vO+10}")
        A(f"v_permlane32_swap_b32 v{vT}, v{vT+1}")
        A(f"v_rcp_f32 v{vT+2}, v{vT}")
        if br == 0:
            A(f"v_mul_f32 v{vT+2}, v{vT+2}, v{g}")
        else:
            A(f"v_sub_f32 v{vT+3}, 1.0, v{g}")
            A(f"v_mul_f32 v{vT+2}, v{vT+2}, v{vT+3}")
        for i in range(10): A(f"v_mul_f32 v{vO+i}, v{vO+i}, v{vT+2}")
        for i in range(5): A(f"v_cvt_pk_bf16_f32 v{vP+i}, v{vO+2*i}, v{vO+2*i+1}")
        A(f"s_lshl_b32 s{sT0}, s{tq}, 5")
        A(f"s_add_u32 s{sT0}, s{sT0}, s{sH}")
        A(f"s_lshl_b32 s{sT1}, s{sT0}, 10")
        A(f"s_add_u32 s{sT1}, s{sT1}, {WS_OM + br*64*32*1024}")
        A(f"buffer_store_dwordx4 v[{vP}:{vP+3}], v{vL16}, s[{sWS}:{sWS+3}], s{sT1} offen" + OMOD)
        A(f"s_lshl_b32 s{sT1}, s{sT0}, 7")
        A(f"s_add_u32 s{sT1}, s{sT1}, {WS_OX + br*64*32*128}")
        A(f"v_lshlrev_b32 v{vT+4}, 2, v{vLane}")
        A(f"s_bfm_b64 exec, 32, 0")
        A(f"buffer_store_dword v{vP+4}, v{vT+4}, s[{sWS}:{sWS+3}], s{sT1} offen" + OMOD)
        A(f"s_mov_b64 exec, -1")
    def tile_step(sb, nb, q, cnext, koff, voff, do_qk=True, do_k=True, do_v=True, first=False, pre_qk=None):
        sd = vS + 16*sb
        def e(lo, hi):
            for i in range(lo, hi): A(f"v_exp_f32 v{sd+i}, v{sd+i}")
        def c(lo, hi):
            for i in range(lo, hi): A(f"v_cvt_pk_bf16_f32 v{vP+i}, v{sd+2*i}, v{sd+2*i+1}")
        kf = vKF + 8*nb; sn = vS + 16*nb
        n_after = (2 if do_v else 0) + (2 if do_k else 0)
        m1 = lambda: A(f"v_mfma_f32_32x32x16_bf16 v[{sn}:{sn+15}], v[{kf}:{kf+3}], v[{q}:{q+3}], {cnext}")
        m2 = lambda: A(f"v_mfma_f32_32x32x8_bf16 v[{sn}:{sn+15}], v[{kf+4}:{kf+5}], v[{q+4}:{q+5}], v[{sn}:{sn+15}]")
        if ORDER == 0:
            e(0, 2)
            if not first: pv(1, nb)
            if pre_qk: pre_qk(nb)
            e(2, 6)
            if do_qk:
                A(f"s_waitcnt lgkmcnt(2)")
                m1()
            if do_k: kreads(sb, koff)
            e(6, 8); c(0, 4)
            if do_qk: m2()
            if do_v: vreads(nb, voff)
            e(8, 12)
            A(f"s_waitcnt lgkmcnt({n_after})")
            pv(0, sb)
            e(12, 16); c(4, 8)
        elif ORDER == 1:
            e(0, 2)
            if not first: pv(1, nb)
            if pre_qk: pre_qk(nb)
            e(2, 5)
            if do_qk:
                A(f"s_waitcnt lgkmcnt(2)")
                m1()
            if do_k: kreads(sb, koff)
            e(5, 8)
            c(0, 2)
            if do_qk: m2()
            if do_v: vreads(nb, voff)
            c(2, 4); e(8, 11)
            A(f"s_waitcnt lgkmcnt({n_after})")
            pv(0, sb)
            e(11, 16); c(4, 8)
        elif ORDER == 2:
            if pre_qk: pre_qk(nb)
            e(0, 2)
            if not first: pv(1, nb)
            if do_qk:
                A(f"s_waitcnt lgkmcnt(2)")
                m1()
            if do_k: kreads(sb, koff)
            e(2, 8); c(0, 4)
            if do_qk: m2()
            if do_v: vreads(nb, voff)
            A(f"s_waitcnt lgkmcnt({n_after})")
            pv(0, sb)
            e(8, 16); c(4, 8)

    if not G0: need_groups(n_imm=1, tag="0")
    stamp(A, 1 if PROF != 2 else 5)
    A(f"s_mov_b32 s{sPass}, 0")
    setaddr(0)
    kreads(0, 0)
    A(f"v_mov_b32 v{vM}, s29")
    A(f"s_waitcnt lgkmcnt(0)")
    qk(0, 0, vQB, "0")
    kreads(0, 0)
    kreads(1, 1)
    vreads(0, 0)
    for r in range(16): A(f"v_mov_b32 v{vO+r}, 0")
    for r in range(4): A(f"v_mov_b32 v{vP+4+r}, 0")
    for r in range(8): A(f"v_mov_b32 v{vVF+8+r}, 0")
    maxtile(0)
    finish_max(vQB)
    A(f"s_waitcnt lgkmcnt(4)")
    qk(0, 0, vQB, "0")
    A(f"s_mov_b32 s{sCnt}, 0")
    A(f"s_mov_b32 s38, 0")
    A(f"s_lshr_b32 s46, s{sWV}, 2")
    A(f"s_nop 7")
    UN = 4
    def prio_toggle(tag):
        if not PRIO: return
        A(f"s_add_u32 s39, s{sCnt}, s38")
        A(f"s_and_b32 s39, s39, {PDUTY-1}")
        A(f"s_cmp_eq_u32 s39, {PDUTY-1}")
        A(f"s_cselect_b32 s39, 0, s46")
        A(f"s_cmp_eq_u32 s39, 1")
        A(f"s_cbranch_scc1 {name}_p1{tag}")
        A(f"s_setprio 0")
        A(f"s_branch {name}_p2{tag}")
        A.label(f"{name}_p1{tag}")
        A(f"s_setprio 1")
        A.label(f"{name}_p2{tag}")
    A.label(f"{name}_bloop0")
    A(f"s_lshl_b32 s{sT1}, s{sCnt}, 2")
    A(f"s_add_u32 s{sT1}, s{sT1}, 13")
    A(f"s_lshr_b32 s{sT1}, s{sT1}, 3")
    need_groups(n_sreg=sT1, tag="l")
    prio_toggle("a")
    for u in range(UN):
        tile_step(u % 2, (u+1) % 2, vQB, "0", u + 2, u + 1)
    adv(UN)
    A(f"s_add_u32 s{sCnt}, s{sCnt}, 1")
    A(f"s_cmp_lt_u32 s{sCnt}, 4")
    A(f"s_cbranch_scc1 {name}_bloop0")
    signal(8)
    need_groups(n_imm=8, tag="m")
    A.label(f"{name}_bloop")
    prio_toggle("b")
    for u in range(UNROLL):
        tile_step(u % 2, (u+1) % 2, vQB, "0", u + 2, u + 1)
    adv(UNROLL)
    A(f"s_add_u32 s{sCnt}, s{sCnt}, {UNROLL // 4}")
    A(f"s_cmp_lt_u32 s{sCnt}, 16")
    A(f"s_cbranch_scc1 {name}_bloop")
    A(f"s_setprio 0")
    A(f"s_nop 1")
    pv(1, 1)
    if PROF != 2: stamp(A, 2)
    A(f"s_waitcnt vmcnt(0)")
    claim_item()
    check_l(f"{name}_bfin")
    if CNT:
        A(f"v_mov_b32 v{vT}, 0x15E0000")
        A(f"v_mov_b32 v{vT+1}, 1")
        A(f"s_mov_b64 exec, 1")
        A(f"buffer_atomic_add v{vT+1}, v{vT}, s[{sWS}:{sWS+3}], 0 offen")
        A(f"s_mov_b64 exec, -1")
    A(f"s_add_u32 s43, s{sKMs}, {32<<16}")
    A(f"s_add_u32 s44, s{sVs}, {32*V_HEAD}")
    A(f"s_add_u32 s45, s{sKXs}, {16*16384}")
    clear_max(vQB)
    A(f"v_mov_b32 v{vM}, s29")
    def gk(tile_sreg):
        A(f"s_lshl_b32 s{sT0}, s{tile_sreg}, 10")
        A(f"s_add_u32 s{sT0}, s{sT0}, s43")
        A(f"buffer_load_dwordx2 v[{vKF}:{vKF+1}], v{vQo}, s[{sWS}:{sWS+3}], s{sT0} offen")
        A(f"buffer_load_dwordx2 v[{vKF+2}:{vKF+3}], v{vQo}, s[{sWS}:{sWS+3}], s{sT0} offen offset:512")
        A(f"s_lshl_b32 s{sT0}, s{tile_sreg}, 8")
        A(f"s_add_u32 s{sT0}, s{sT0}, s45")
        A(f"buffer_load_dword v{vKF+4}, v{vXg}, s[{sWS}:{sWS+3}], s{sT0} offen")
    A(f"s_mov_b32 s{sCnt}, 0")
    A.label(f"{name}_bx1")
    gk(sCnt)
    A(f"s_waitcnt vmcnt(0)")
    qk(0, 0, vQB, "0")
    maxtile(0)
    A(f"s_add_u32 s{sCnt}, s{sCnt}, 1")
    A(f"s_cmp_lt_u32 s{sCnt}, 64")
    A(f"s_cbranch_scc1 {name}_bx1")
    finish_max(vQB)
    for r in range(16): A(f"v_mov_b32 v{vO+r}, 0")
    A(f"s_mov_b32 s{sCnt}, 0")
    A.label(f"{name}_bx2")
    gk(sCnt)
    A(f"s_mul_i32 s{sT0}, s{sCnt}, {V_TILE}")
    A(f"s_add_u32 s{sT0}, s{sT0}, s44")
    A(f"buffer_load_dwordx4 v[{vVF}:{vVF+3}], v{vVg}, s[{sWS}:{sWS+3}], s{sT0} offen")
    A(f"buffer_load_dwordx4 v[{vVF+4}:{vVF+7}], v{vVg2}, s[{sWS}:{sWS+3}], s{sT0} offen")
    A(f"s_waitcnt vmcnt(0)")
    qk(0, 0, vQB, "0")
    for i in range(16): A(f"v_exp_f32 v{vS+i}, v{vS+i}")
    for i in range(8): A(f"v_cvt_pk_bf16_f32 v{vP+i}, v{vS+2*i}, v{vS+2*i+1}")
    pv(0, 0); pv(1, 0)
    A(f"s_add_u32 s{sCnt}, s{sCnt}, 1")
    A(f"s_cmp_lt_u32 s{sCnt}, 64")
    A(f"s_cbranch_scc1 {name}_bx2")
    A(f"s_nop 12")
    A.label(f"{name}_bfin")
    epilogue(1, sTQ, vG)
    if PROF != 2: stamp(A, 3)
    A(f"s_cmp_ge_u32 s50, 8")
    A(f"s_cbranch_scc1 {name}_done")
    poll(12, 2, "a")

    A.label(f"{name}_aitem")
    A(f"s_mov_b32 s{sTQ}, s51")
    A(f"s_mov_b32 s53, s50")
    A(f"s_waitcnt vmcnt(2)")
    A(f"v_mov_b32 v{vGC}, v{vGA}")
    qext_fix(vQA)
    def bias_for(i, kbuf):
        A(f"s_cmp_ge_u32 s{sTQ}, {8 - i}")
        A(f"s_cselect_b32 s{sT0}, s36, s37")
        A(f"v_mov_b32 v{vKF + 8*kbuf + 5}, s{sT0}")
    A(f"s_mov_b32 s36, 0x3f80")
    A(f"s_mov_b32 s37, {(NEGB << 16) | 0x3f80}")
    setaddr(53, True)
    A(f"v_mov_b32 v{vM}, s29")
    A(f"s_cmp_eq_u32 s{sTQ}, 0")
    A(f"s_cbranch_scc1 {name}_aref0")
    kreads(0, 7)
    A(f"s_waitcnt lgkmcnt(0)")
    qk(0, 0, vQA, "0")
    A(f"s_branch {name}_aref1")
    A.label(f"{name}_aref0")
    kreads(0, 8)
    A(f"s_waitcnt lgkmcnt(0)")
    qk(0, 0, vQA, f"v[{vMD}:{vMD+15}]")
    A.label(f"{name}_aref1")
    kreads(0, 0)
    kreads(1, 1)
    vreads(0, 0)
    for r in range(16): A(f"v_mov_b32 v{vO+r}, 0")
    maxtile(0)
    finish_max(vQA)
    bias_for(0, 0)
    A(f"s_waitcnt lgkmcnt(4)")
    qk(0, 0, vQA, f"v[{vMF}:{vMF+15}]")
    A(f"s_nop 7")
    for i in range(9):
        pre = (lambda nb, i=i: bias_for(i+1, nb)) if i < 7 else ((lambda nb: A(f"v_mov_b32 v{vKF + 8*nb + 5}, s36")) if i == 7 else None)
        tile_step(i % 2, (i+1) % 2, vQA, (f"v[{vMD}:{vMD+15}]" if i == 7 else "0"), i + 2, i + 1,
                  do_qk=(i < 8), do_k=(i < 7), do_v=(i < 8), first=(i == 0), pre_qk=pre)
    A(f"s_nop 1")
    pv(1, 0)
    A(f"v_mov_b32 v{vKF+5}, s36")
    A(f"v_mov_b32 v{vKF+8+5}, s36")
    check_l(f"{name}_aepi")
    if CNT:
        A(f"v_mov_b32 v{vT}, 0x15E0004")
        A(f"v_mov_b32 v{vT+1}, 1")
        A(f"s_mov_b64 exec, 1")
        A(f"buffer_atomic_add v{vT+1}, v{vT}, s[{sWS}:{sWS+3}], 0 offen")
        A(f"s_mov_b64 exec, -1")
    clear_max(vQA)
    A(f"s_sub_u32 s{sI}, 8, s{sTQ}")
    A(f"s_cmp_ge_u32 s{sTQ}, 8")
    A(f"s_cselect_b32 s{sI}, 0, s{sI}")
    A(f"s_mov_b32 s30, s{sI}")
    A(f"s_mov_b32 s31, s53")
    def set_cm_for(i_sreg):
        lab = f"{name}_cm{set_cm_for.n}"; set_cm_for.n += 1
        A(f"s_cmp_eq_u32 s{i_sreg}, 8")
        A(f"s_cbranch_scc1 {lab}_d")
        A(f"s_cmp_eq_u32 s{i_sreg}, 0")
        A(f"s_cbranch_scc1 {lab}_f")
        for r in range(16): A(f"v_mov_b32 v{vCM+r}, 0")
        A(f"s_branch {lab}_e")
        A.label(f"{lab}_d")
        for r in range(16): A(f"v_mov_b32 v{vCM+r}, v{vMD+r}")
        A(f"s_branch {lab}_e")
        A.label(f"{lab}_f")
        for r in range(16): A(f"v_mov_b32 v{vCM+r}, v{vMF+r}")
        A.label(f"{lab}_e")
    set_cm_for.n = 0
    A(f"v_mov_b32 v{vM}, s29")
    A.label(f"{name}_a1")
    A(f"s_add_u32 s{sT1}, s31, s{sI}")
    setaddr(sT1, True)
    kreads(0, 0)
    set_cm_for(sI)
    A(f"s_waitcnt lgkmcnt(0)")
    qk(0, 0, vQA, f"v[{vCM}:{vCM+15}]")
    maxtile(0)
    A(f"s_add_u32 s{sI}, s{sI}, 1")
    A(f"s_cmp_le_u32 s{sI}, 8")
    A(f"s_cbranch_scc1 {name}_a1")
    finish_max(vQA)
    for r in range(16): A(f"v_mov_b32 v{vO+r}, 0")
    A(f"s_mov_b32 s{sI}, s30")
    A.label(f"{name}_a2")
    A(f"s_add_u32 s{sT1}, s31, s{sI}")
    setaddr(sT1, True)
    kreads(0, 0)
    vreads(0, 0)
    set_cm_for(sI)
    A(f"s_waitcnt lgkmcnt(2)")
    qk(0, 0, vQA, f"v[{vCM}:{vCM+15}]")
    for i in range(16): A(f"v_exp_f32 v{vS+i}, v{vS+i}")
    for i in range(8): A(f"v_cvt_pk_bf16_f32 v{vP+i}, v{vS+2*i}, v{vS+2*i+1}")
    A(f"s_waitcnt lgkmcnt(0)")
    pv(0, 0); pv(1, 0)
    A(f"s_add_u32 s{sI}, s{sI}, 1")
    A(f"s_cmp_le_u32 s{sI}, 8")
    A(f"s_cbranch_scc1 {name}_a2")
    A(f"s_nop 12")
    A.label(f"{name}_aepi")
    claim_item()
    epilogue(0, sTQ, vGC)
    A(f"s_cmp_lt_u32 s50, 8")
    A(f"s_cbranch_scc1 {name}_aitem")
    A.label(f"{name}_done")
    if PROF:
        stamp(A, 5 if PROF != 2 else 6)
        stamps_out(A, 1, 7, sWS, sWV, vS)
    rt_end(A, 1, sWV, vS)
    A(f"s_endpgm")

    A.label(f"{name}_loader")
    if LPRIO: A(f"s_setprio {LPRIO}")
    A(f"s_sub_u32 s35, s{sWV}, 8")
    A(f"s_lshl_b32 s34, s35, 10")
    A(f"s_add_u32 s43, s{sKMs}, {32<<16}")
    A(f"s_add_u32 s44, s{sVs}, {32*V_HEAD}")
    A(f"s_add_u32 s45, s{sKXs}, {16*16384}")
    A(f"s_lshl_b32 s46, s35, 2")
    A(f"v_add_u32 v{vT+8}, s46, v{vCA}")
    A("s_waitcnt lgkmcnt(0)")
    srd(A, sWS, 4, 5, WS_SIZE)
    def ld(lds_sreg, src_sreg, off):
        A(f"s_add_u32 m0, s{lds_sreg}, {off}")
        A(f"s_add_u32 s{sT3}, s{src_sreg}, {off}")
        A(f"buffer_load_dwordx4 v{vL16}, s[{sWS}:{sWS+3}], s{sT3} offen lds")
    A(f"s_mov_b32 s{sCnt}, {1 if G0 else 0}")
    A.label(f"{name}_lgrp")
    A(f"s_add_u32 s{sT0}, s{sQB}, s{sCnt}")
    A(f"s_and_b32 s{sT0}, s{sT0}, 7")
    A(f"s_lshl_b32 s48, s{sT0}, 13")
    A(f"s_add_u32 s48, s48, s43")
    A(f"s_add_u32 s48, s48, s34")
    A(f"s_lshl_b32 s49, s{sCnt}, 13")
    A(f"s_add_u32 s49, s49, s34")
    for j in range(4): ld(49, 48, j*2048)
    A(f"s_lshl_b32 s48, s{sT0}, 11")
    A(f"s_add_u32 s48, s48, s45")
    A(f"s_lshl_b32 s{sT2}, s35, 9")
    A(f"s_add_u32 s48, s48, s{sT2}")
    A(f"s_lshl_b32 s49, s{sCnt}, 10")
    A(f"s_lshl_b32 s{sT2}, s35, 8")
    A(f"s_add_u32 s49, s49, s{sT2}")
    A(f"s_add_u32 s49, s49, {L_KX}")
    for j in range(2):
        A(f"s_add_u32 m0, s49, {j*512}")
        A(f"s_add_u32 s{sT3}, s48, {j*1024}")
        A(f"buffer_load_dword v{vX8}, s[{sWS}:{sWS+3}], s{sT3} offen lds")
    A(f"s_mul_i32 s48, s{sT0}, {8*V_TILE}")
    A(f"s_add_u32 s48, s48, s44")
    A(f"s_add_u32 s48, s48, s34")
    A(f"s_mul_i32 s49, s{sCnt}, {8*V_TILE}")
    A(f"s_add_u32 s49, s49, s34")
    A(f"s_add_u32 s49, s49, {L_V}")
    for j in range(5): ld(49, 48, j*2048)
    A(f"s_cmp_eq_u32 s{sCnt}, {1 if G0 else 0}")
    A(f"s_cbranch_scc0 {name}_lg1")
    A(f"s_barrier")
    if G0:
        A(f"s_barrier")
        A(f"v_mov_b32 v{vT}, 1")
        A(f"s_mov_b64 exec, 1")
        A(f"ds_add_u32 v{vT+8}, v{vT}")
        A(f"s_mov_b64 exec, -1")
    A(f"s_branch {name}_lg2")
    A.label(f"{name}_lg1")
    A(f"s_waitcnt vmcnt(11)")
    A(f"v_mov_b32 v{vT}, 1")
    A(f"s_mov_b64 exec, 1")
    A(f"ds_add_u32 v{vT+8}, v{vT}")
    A(f"s_mov_b64 exec, -1")
    A.label(f"{name}_lg2")
    A(f"s_add_u32 s{sCnt}, s{sCnt}, 1")
    A(f"s_cmp_lt_u32 s{sCnt}, 8")
    A(f"s_cbranch_scc1 {name}_lgrp")
    A(f"s_waitcnt vmcnt(0)")
    A(f"v_mov_b32 v{vT}, 1")
    A(f"s_mov_b64 exec, 1")
    A(f"ds_add_u32 v{vT+8}, v{vT}")
    A(f"s_mov_b64 exec, -1")
    poll(8, 8, "ld")
    def lgroup(ldsbase, sreg, n):
        lab = f"{name}_lg_{lgroup.n}"; lgroup.n += 1
        A(f"s_add_u32 s{sT3}, s{sreg}, s34")
        A(f"s_add_u32 s{sT2}, s34, {ldsbase}")
        A(f"s_mov_b32 s{sCnt}, s35")
        A.label(lab)
        A(f"s_mov_b32 m0, s{sT2}")
        A(f"s_add_u32 s{sT2}, s{sT2}, 2048")
        A(f"buffer_load_dwordx4 v{vL16}, s[{sWS}:{sWS+3}], s{sT3} offen lds")
        A(f"s_add_u32 s{sT3}, s{sT3}, 2048")
        A(f"s_add_u32 s{sCnt}, s{sCnt}, 2")
        A(f"s_cmp_lt_u32 s{sCnt}, {n}")
        A(f"s_cbranch_scc1 {lab}")
    lgroup.n = 0
    A(f"s_lshl_b32 s{sI}, s{sQB}, 3")
    A(f"s_sub_u32 s{sI}, s{sI}, 8")
    A(f"s_lshl_b32 s{sT0}, s{sI}, 10")
    A(f"s_add_u32 s28, s{sKMs}, s{sT0}")
    lgroup(L_KM, 28, 16)
    A(f"s_lshl_b32 s{sT0}, s{sI}, 8")
    A(f"s_add_u32 s28, s{sKXs}, s{sT0}")
    A(f"s_lshl_b32 s{sT2}, s35, 9")
    A(f"s_add_u32 s28, s28, s{sT2}")
    A(f"s_lshl_b32 s{sT2}, s35, 8")
    A(f"s_add_u32 s{sT2}, s{sT2}, {L_KX}")
    for j in range(4):
        A(f"s_add_u32 m0, s{sT2}, {j*512}")
        A(f"s_add_u32 s{sT3}, s28, {j*1024}")
        A(f"buffer_load_dword v{vX8}, s[{sWS}:{sWS+3}], s{sT3} offen lds")
    A(f"s_mul_i32 s{sT0}, s{sI}, {V_TILE}")
    A(f"s_add_u32 s28, s{sVs}, s{sT0}")
    lgroup(L_V, 28, 20)
    A(f"s_waitcnt vmcnt(0)")
    signal(12)
    if WOPF:
        A(f"s_lshl_b32 s{sT0}, s35, 1")
        A(f"s_mul_i32 s{sT0}, s{sT0}, 12")
        A(f"s_add_u32 s{sT0}, s{sT0}, 16")
        A(f"s_load_dwordx2 s[48:49], s[0:1], s{sT0}")
        A(f"s_lshr_b32 s{sT1}, s2, 3")
        A(f"s_mul_i32 s{sT1}, s{sT1}, {D*D*2 // 32}")
        A(f"v_lshlrev_b32 v{vT+1}, 6, v{vLane}")
        A(f"s_waitcnt lgkmcnt(0)")
        A(f"s_mov_b32 s52, s48")
        A(f"s_and_b32 s53, s49, 0xffff")
        A(f"s_mov_b32 s54, {D*D*2}")
        A(f"s_mov_b32 s55, 0x00020000")
        for j in range(6):
            A(f"buffer_load_dword v{vT+2}, v{vT+1}, s[52:55], s{sT1} offen")
            if j < 5: A(f"s_add_u32 s{sT1}, s{sT1}, 4096")
        A(f"s_waitcnt vmcnt(0)")
    code_prefetch(A, "k3_out_kernel", 6400, "k2", vT)
    A(f"s_waitcnt lgkmcnt(0)")
    A.label(f"{name}_end")
    A(f"s_endpgm")
    return khead(name) + A.finish(True), kdesc(name, NV, 100)
```

```python
import sys, importlib
sys.path.insert(0, 'gen')
from common import *
import k1
NAME = "gated_mix__sliding_block__softmax_full_mha__prompt"

DOC = """
; ---------------------------------------------------------------------------------------------------------------------
;
; ---------------------------------------------------------------------------------------------------------------------
"""
def build(kernels, path):
    hdr = open('cdna_kernels/%s.s.ref' % NAME).read().split('; Override launch')[0]
    txt = hdr
    for k in kernels:
        txt += f"; @launch kernel={k['name']} grid=({k['grid']},1,1) block=({k['block']},1,1) lds={k['lds']}\n"
    txt += '.amdgcn_target "amdgcn-amd-amdhsa--gfx950"\n' + DOC.lstrip('\n') + '.text\n'
    descs = ''
    for k in kernels:
        txt += k['code'] + '\n'
        descs += k['desc']
    txt += descs
    open(path, 'w').write(txt)
    return txt
if __name__ == '__main__':
    ks = []
    c, d = k1.gen_k1('k1_qkv_kernel')
    ks.append(dict(name='k1_qkv_kernel', grid=k1.K1_GRID, block=k1.K1_THREADS, lds=k1.K1_LDS, code=c, desc=d))
    which = sys.argv[1] if len(sys.argv) > 1 else '1'
    if '2' in which:
        import k2
        c, d = k2.gen_k2('k2_attn_kernel')
        ks.append(dict(name='k2_attn_kernel', grid=256, block=k2.K2_THREADS, lds=k2.K2_LDS, code=c, desc=d))
    if '3' in which:
        import k3
        c, d = k3.gen_k3('k3_out_kernel')
        ks.append(dict(name='k3_out_kernel', grid=k3.K3_GRID, block=k3.K3_THREADS, lds=k3.K3_LDS, code=c, desc=d))
    out = sys.argv[2] if len(sys.argv) > 2 else 'cur.s'
    build(ks, out)
    print('wrote', out)
```

```python
T = 2048; D = 576; H = 32; DH = 18
WS_QM = 0x000000
WS_KM = 0x400000
WS_V  = 0x800000
V_HEAD = 81920
V_TILE = 1280
WS_QX = 0xD00000
WS_KX = 0xD80000
WS_G  = 0xE00000
WS_OM = 0x1000000
WS_OX = 0x1400000
WS_SIZE = 0x1600000
QSCALE = 1.4426950408889634 / (18 ** 0.5)
import struct, os
def f2u(x): return struct.unpack('<I', struct.pack('<f', x))[0]
ARG = dict(A_x=0, A_wqkv=8, A_wo=16, B_x=24, B_wqkv=32, B_wo=40, gate_w=48, out=56, dbg=64, ws=72)

def kdesc(name, nv, ns, acc=None):
    acc = acc if acc is not None else (nv + 3) // 4 * 4
    return f""".section .rodata,"a"
.p2align 6
.amdhsa_kernel {name}
  .amdhsa_next_free_vgpr {nv}
  .amdhsa_next_free_sgpr {ns}
  .amdhsa_accum_offset {acc}
  .amdhsa_group_segment_fixed_size 0
  .amdhsa_kernarg_size 80
  .amdhsa_user_sgpr_count 2
  .amdhsa_user_sgpr_kernarg_segment_ptr 1
  .amdhsa_system_sgpr_workgroup_id_x 1
.end_amdhsa_kernel
.text
"""
def khead(name):
    return f""".globl {name}
.p2align 8
.type {name},@function
{name}:
"""
WSOFF = int(os.environ.get("WSOFF", "0"), 0)
def srd(A, base, ptr_lo, ptr_hi, nbytes):
    if nbytes == WS_SIZE and WSOFF:
        A(f"s_add_u32 s{base}, s{ptr_lo}, {WSOFF}")
        A(f"s_addc_u32 s{base+1}, s{ptr_hi}, 0")
        A(f"s_and_b32 s{base+1}, s{base+1}, 0xffff")
    else:
        A(f"s_mov_b32 s{base}, s{ptr_lo}")
        A(f"s_and_b32 s{base+1}, s{ptr_hi}, 0xffff")
    A(f"s_mov_b32 s{base+2}, {nbytes}")
    A(f"s_mov_b32 s{base+3}, 0x00020000")

WS_PROF = 0x1500000
import os
PROF = int(os.environ.get("PROF", "0"))
def stamp(A, i, base=64):
    if PROF:
        A(f"s_memtime s[{base+2*i}:{base+2*i+1}]")
        A(f"s_waitcnt lgkmcnt(0)")
def stamps_out(A, kidx, n, sWS, sWave, vt, base=64):
    if not PROF: return
    A(f"s_lshl_b32 s{base+30}, s2, 4")
    A(f"s_add_u32 s{base+30}, s{base+30}, s{sWave}")
    A(f"s_lshl_b32 s{base+30}, s{base+30}, 5")
    A(f"s_add_u32 s{base+30}, s{base+30}, {WS_PROF + kidx*0x40000}")
    A(f"v_mov_b32 v{vt+8}, 0")
    for i in range(8):
        if i < n:
            A(f"s_sub_u32 s{base+31}, s{base+2*i}, s{base}" if i else f"s_mov_b32 s{base+31}, s{base}")
            A(f"v_mov_b32 v{vt+i}, s{base+31}")
        else:
            A(f"v_mov_b32 v{vt+i}, 0")
    A(f"s_bfm_b64 exec, 1, 0")
    A(f"buffer_store_dwordx4 v[{vt}:{vt+3}], v{vt+8}, s[{sWS}:{sWS+3}], s{base+30} offen")
    A(f"buffer_store_dwordx4 v[{vt+4}:{vt+7}], v{vt+8}, s[{sWS}:{sWS+3}], s{base+30} offen offset:16")
    A(f"s_mov_b64 exec, -1")

RT = int(os.environ.get("RT", "0"))
def rt_begin(A):
    if RT:
        A("s_memrealtime s[96:97]")
        A("s_memtime s[92:93]")
def rt_all(A, kidx, wave_sreg, vt):
    if RT != 2: return
    A("s_waitcnt vmcnt(0)")
    A("s_memrealtime s[98:99]")
    A("s_load_dwordx2 s[88:89], s[0:1], 72")
    A("s_waitcnt lgkmcnt(0)")
    A(f"s_add_u32 s90, s2, {kidx*256}")
    A("s_lshl_b32 s90, s90, 4")
    A(f"s_add_u32 s90, s90, s{wave_sreg}")
    A("s_lshl_b32 s90, s90, 3")
    A("s_add_u32 s90, s90, 0x1580000")
    A(f"v_mov_b32 v{vt}, s96")
    A(f"v_mov_b32 v{vt+1}, s98")
    A(f"v_mov_b32 v{vt+2}, s90")
    A(f"s_mov_b64 exec, 1")
    A(f"global_store_dwordx2 v{vt+2}, v[{vt}:{vt+1}], s[88:89]")
    A(f"s_waitcnt vmcnt(0)")
    A(f"s_mov_b64 exec, -1")
def rt_end(A, kidx, cond_sreg_wave, vt):
    if RT == 2: return rt_all(A, kidx, cond_sreg_wave, vt)
    if not RT: return
    lab = f"rt_skip_{kidx}_{rt_end.n}"; rt_end.n += 1
    A("s_waitcnt vmcnt(0)")
    A("s_memrealtime s[98:99]")
    A("s_memtime s[94:95]")
    A("s_load_dwordx2 s[90:91], s[0:1], 64")
    A("s_load_dwordx2 s[88:89], s[0:1], 72")
    A("s_waitcnt lgkmcnt(0)")
    A("s_cmp_lg_u32 s2, 0")
    A(f"s_cbranch_scc1 {lab}")
    A(f"s_cmp_lg_u32 s{cond_sreg_wave}, 0")
    A(f"s_cbranch_scc1 {lab}")
    A(f"s_sub_u32 s94, s94, s92")
    A(f"v_mov_b32 v{vt}, s96")
    A(f"v_mov_b32 v{vt+1}, s98")
    A(f"v_mov_b32 v{vt+2}, s94")
    A(f"v_mov_b32 v{vt+3}, {0x1000 + kidx}")
    A(f"v_mov_b32 v{vt+4}, {0x15F0000 + 16*kidx}")
    A(f"s_mov_b64 exec, 1")
    A(f"global_store_dwordx4 v{vt+4}, v[{vt}:{vt+3}], s[88:89]")
    A(f"v_mov_b32 v{vt+4}, {16*kidx}")
    A(f"global_store_dwordx4 v{vt+4}, v[{vt}:{vt+3}], s[90:91]")
    if kidx == 2:
        for k in range(2):
            A(f"v_mov_b32 v{vt+4}, {0x15F0000 + 16*k}")
            A(f"global_load_dwordx4 v[{vt+8}:{vt+11}], v{vt+4}, s[88:89]")
            A(f"s_waitcnt vmcnt(0)")
            A(f"v_mov_b32 v{vt+4}, {16*k}")
            A(f"global_store_dwordx4 v{vt+4}, v[{vt+8}:{vt+11}], s[90:91]")
            A(f"s_waitcnt vmcnt(0)")
    A(f"s_waitcnt vmcnt(0)")
    A(f"s_mov_b64 exec, -1")
    A.label(lab)
rt_end.n = 0

STORE_MOD = os.environ.get("STORE_MOD", "")
if STORE_MOD: STORE_MOD = " " + STORE_MOD

FZ_BR = 0x200000

CPF = int(os.environ.get("CPF", "0"))
def code_prefetch(A, target, nbytes, uniq, vt):
    if not CPF: return
    A(f"s_getpc_b64 s[60:61]")
    A.label(f"cpf_{uniq}")
    A(f"s_add_u32 s60, s60, {target}-cpf_{uniq}")
    A(f"s_addc_u32 s61, s61, 0")
    A(f"v_lshlrev_b32 v{vt}, 6, v1")
    nl = nbytes // 64
    while nl > 0:
        k_ = min(64, nl); nl -= k_
        if k_ < 64: A(f"s_bfm_b64 exec, {k_}, 0")
        A(f"global_load_dword v{vt+1}, v{vt}, s[60:61] offset:0")
        A(f"v_add_u32 v{vt}, 4096, v{vt}")
    A(f"s_mov_b64 exec, -1")
    A(f"s_waitcnt vmcnt(0)")
```

```python
from asmlib import *
from common import *
import os

K1_W0 = 32768
K1_STAGE = 49152
K1_LDS = 3 * K1_STAGE
import os as _os
NX = int(_os.environ.get('NX', '4'))
K1_THREADS = (8 + NX + 2) * 64
K1_GRID = 224
GT2 = int(os.environ.get("GT2", "0"))
GT2AT = int(os.environ.get("GT2AT", "0"))
LPRIO = int(os.environ.get("LPRIO1", os.environ.get("LPRIO", "0")))
SKIP0 = int(os.environ.get("SKIP0", "0"))
QKMOD = " " + os.environ.get("QKMOD", "sc1")
VMOD = " " + os.environ.get("VMOD", "sc1")
TLBW = int(os.environ.get("TLBW", "0"))
LDMOD = (" " + os.environ["LDMOD"]) if os.environ.get("LDMOD") else ""
GT = int(os.environ.get("GT", "0"))
EXP = int(os.environ.get("EXP", "0"))
TOUCH = int(os.environ.get("TOUCH", "0"))

def gen_k1(name):
    A = Asm()
    sX, sWS, sG = 8, 16, 20
    sCG, sTB, sWV, sCH = 24, 25, 26, 27
    sOff, sOffI, sOffC = 28, 29, 30
    sM0, sM0I = 31, 32
    sStL = 33
    sDelta = 34
    sStR = 35
    sT0, sT1, sT2, sT3 = 36, 37, 38, 39
    sFP, sTP, sBLK, sBR, sBETA, sTY = 40, 41, 42, 43, 50, 51
    vLane = 1
    vLo = 2
    vTo, vTd = 3, 4
    vAX = 6
    vAW0, vAW1 = 10, 11
    vT = 12
    vXF = 24
    vWF = 40
    vACC = 56
    vSO = 120
    vP = 24
    NV = 128

    A(f"s_cmp_ge_u32 s2, {K1_GRID}")
    A(f"s_cbranch_scc1 {name}_end")
    stamp(A, 0)
    rt_begin(A)
    A(f"s_load_dwordx4 s[4:7], s[0:1], 0")
    A(f"s_load_dwordx2 s[44:45], s[0:1], {ARG['B_wqkv']}")
    A(f"s_load_dwordx2 s[46:47], s[0:1], {ARG['gate_w']}")
    A(f"s_load_dwordx2 s[48:49], s[0:1], {ARG['ws']}")
    A(f"v_and_b32 v{vLane}, 63, v0")
    A(f"v_lshrrev_b32 v{vT}, 6, v0")
    A(f"s_and_b32 s{sT0}, s2, 7")
    A(f"v_readfirstlane_b32 s{sWV}, v{vT}")
    A(f"s_lshr_b32 s{sT1}, s2, 3")
    A(f"s_lshr_b32 s{sT2}, s{sT0}, 2")
    A(f"s_lshl_b32 s{sT2}, s{sT2}, 2")
    A(f"s_and_b32 s{sT3}, s{sT1}, 3")
    A(f"s_add_u32 s{sTB}, s{sT2}, s{sT3}")
    A(f"s_and_b32 s{sT2}, s{sT0}, 3")
    A(f"s_mul_i32 s{sT2}, s{sT2}, 7")
    A(f"s_lshr_b32 s{sT3}, s{sT1}, 2")
    A(f"s_add_u32 s{sCG}, s{sT2}, s{sT3}")
    A(f"s_cmp_ge_u32 s{sCG}, 27")
    A(f"s_cbranch_scc1 {name}_end")
    A(f"s_cmp_ge_u32 s{sWV}, 8")
    A(f"s_cbranch_scc0 {name}_comp")
    if LPRIO: A(f"s_setprio {LPRIO}")
    A(f"s_cmp_ge_u32 s{sWV}, {8+NX}")
    A(f"s_cbranch_scc1 {name}_ldw")

    A(f"s_sub_u32 s{sT3}, s{sWV}, 8")
    A(f"v_lshrrev_b32 v{vT}, 3, v{vLane}")
    A(f"s_lshl_b32 s{sT0}, s{sT3}, 3")
    A(f"v_add_u32 v{vT}, s{sT0}, v{vT}")
    A(f"v_mul_u32_u24 v{vLo}, 1152, v{vT}")
    A(f"v_lshrrev_b32 v{vT+1}, 4, v{vLane}")
    A(f"s_and_b32 s{sT0}, s{sT3}, 1")
    A(f"s_lshl_b32 s{sT0}, s{sT0}, 2")
    A(f"v_add_u32 v{vT+1}, s{sT0}, v{vT+1}")
    A(f"v_and_b32 v{vT+2}, 7, v{vLane}")
    A(f"v_xor_b32 v{vT+2}, v{vT+2}, v{vT+1}")
    A(f"v_lshl_add_u32 v{vLo}, v{vT+2}, 4, v{vLo}")
    A(f"s_lshr_b32 s{sT0}, s2, 5")
    A(f"s_mul_i32 s{sT0}, s{sT0}, 37")
    A(f"s_mul_i32 s{sT1}, s{sT3}, 10")
    A(f"s_add_u32 s{sT0}, s{sT0}, s{sT1}")
    A(f"v_lshrrev_b32 v{vT+3}, 1, v{vLane}")
    A(f"v_add_u32 v{vT+3}, s{sT0}, v{vT+3}")
    A(f"v_min_u32 v{vT+3}, 255, v{vT+3}")
    A(f"v_mul_u32_u24 v{vTo}, 1152, v{vT+3}")
    A(f"v_and_b32 v{vT+3}, 1, v{vLane}")
    A(f"v_lshl_add_u32 v{vTo}, v{vT+3}, 6, v{vTo}")
    A(f"s_mov_b32 s59, {(1 << 20) - 1}")
    A(f"s_lshl_b32 s{sM0}, s{sT3}, 10")
    A(f"s_mov_b32 s{sM0I}, {NX*1024}")
    A(f"s_mul_i32 s{sOff}, s{sTB}, {256*1152}")
    if EXP == 1: A(f"s_mov_b32 s{sOff}, 0")
    A(f"s_mov_b32 s{sOffI}, {NX*8*1152}")
    A(f"s_mov_b32 s{sOffC}, 128")
    A("s_waitcnt lgkmcnt(0)")
    srd(A, sX, 4, 5, T * D * 2)
    A(f"s_mov_b32 s54, 1")
    A(f"s_branch {name}_lpx")
    A.label(f"{name}_ldw")
    A(f"s_sub_u32 s{sT3}, s{sWV}, {8+NX}")
    A(f"s_lshl_b32 s{sBLK}, s{sCG}, 1")
    A(f"s_add_u32 s{sBLK}, s{sBLK}, s{sT3}")
    A(f"s_cmp_ge_u32 s{sBLK}, 27")
    A(f"s_cselect_b32 s{sBR}, 1, 0")
    A(f"s_mul_i32 s{sT0}, s{sBR}, 27")
    A(f"s_sub_u32 s{sBETA}, s{sBLK}, s{sT0}")
    A(f"v_lshrrev_b32 v{vT}, 3, v{vLane}")
    A(f"v_mul_u32_u24 v{vLo}, 3456, v{vT}")
    A(f"v_bfe_u32 v{vT+1}, v{vLane}, 4, 1")
    A(f"v_lshlrev_b32 v{vT+1}, 2, v{vT+1}")
    A(f"v_and_b32 v{vT+2}, 7, v{vLane}")
    A(f"v_xor_b32 v{vT+2}, v{vT+2}, v{vT+1}")
    A(f"v_lshl_add_u32 v{vLo}, v{vT+2}, 4, v{vLo}")
    A(f"s_and_b32 s{sT0}, s{sTB}, 3")
    A(f"s_lshl_b32 s{sT0}, s{sT0}, 4")
    A(f"v_lshrrev_b32 v{vT+3}, 1, v{vLane}")
    A(f"v_add_u32 v{vT+3}, s{sT0}, v{vT+3}")
    A(f"v_mul_u32_u24 v{vTo}, 3456, v{vT+3}")
    A(f"v_and_b32 v{vT+3}, 1, v{vLane}")
    A(f"v_lshl_add_u32 v{vTo}, v{vT+3}, 6, v{vTo}")
    A(f"s_mov_b32 s59, -1")
    A(f"s_lshl_b32 s{sM0}, s{sT3}, 13")
    A(f"s_add_u32 s{sM0}, s{sM0}, {K1_W0}")
    A(f"s_mov_b32 s{sM0I}, 1024")
    A(f"s_lshl_b32 s{sOff}, s{sBETA}, 7")
    if EXP == 1: A(f"s_mov_b32 s{sOff}, 0")
    A(f"s_mov_b32 s{sOffI}, {8*3456}")
    A(f"s_mov_b32 s{sOffC}, {64*3456}")
    A("s_waitcnt lgkmcnt(0)")
    A(f"s_cmp_eq_u32 s{sBR}, 0")
    A(f"s_cselect_b32 s{sX}, s6, s44")
    A(f"s_cselect_b32 s{sX+1}, s7, s45")
    A(f"s_and_b32 s{sX+1}, s{sX+1}, 0xffff")
    A(f"s_mov_b32 s{sX+2}, {D*3*D*2}")
    A(f"s_mov_b32 s{sX+3}, 0x00020000")
    A(f"s_mov_b32 s54, 0")
    def loader_loop(tag, cnt):
        A.label(f"{name}_lp{tag}")
        def issue():
            A(f"s_add_u32 m0, s{sStL}, s{sM0}")
            A(f"s_mov_b32 s{sT1}, s{sOff}")
            for j in range(cnt):
                if EXP != 2: A(f"buffer_load_dwordx4 v{vLo}, s[{sX}:{sX+3}], s{sT1} offen{LDMOD} lds")
                if j < cnt-1:
                    A(f"s_add_u32 m0, m0, s{sM0I}")
                    A(f"s_add_u32 s{sT1}, s{sT1}, s{sOffI}")
            A(f"s_add_u32 s{sOff}, s{sOff}, s{sOffC}")
            A(f"s_add_u32 s{sStL}, s{sStL}, {K1_STAGE}")
            A(f"s_cmp_eq_u32 s{sStL}, {3*K1_STAGE}")
            A(f"s_cselect_b32 s{sStL}, 0, s{sStL}")
        stamp(A, 1)
        A(f"s_mov_b32 s{sStL}, 0")
        A(f"s_mov_b32 s{sCH}, -2")
        A.label(f"{name}_lp{tag}_loop")
        A(f"s_cmp_lt_i32 s{sCH}, 0")
        A(f"s_cbranch_scc1 {name}_lp{tag}_issue")
        A(f"s_cmp_eq_u32 s{sCH}, 8")
        A(f"s_cbranch_scc1 {name}_lp{tag}_last")
        A(f"s_waitcnt vmcnt({cnt})")
        A(f"s_barrier")
        A(f"s_cmp_eq_u32 s{sCH}, 7")
        A(f"s_cbranch_scc1 {name}_lp{tag}_skip")
        A.label(f"{name}_lp{tag}_issue")
        issue()
        A.label(f"{name}_lp{tag}_skip")
        A(f"s_add_u32 s{sCH}, s{sCH}, 1")
        A(f"s_branch {name}_lp{tag}_loop")
        A.label(f"{name}_lp{tag}_last")
        A(f"s_waitcnt vmcnt(0)")
        A(f"s_barrier")
        if tag == "w": code_prefetch(A, "k2_attn_kernel", 9728, "k1", 12)
        A(f"s_endpgm")
    loader_loop("w", 8)
    loader_loop("x", 32 // NX)

    A.label(f"{name}_comp")
    A(f"s_lshr_b32 s{sFP}, s{sWV}, 2")
    A(f"s_and_b32 s{sTP}, s{sWV}, 3")
    A(f"s_lshl_b32 s{sBLK}, s{sCG}, 1")
    A(f"s_add_u32 s{sBLK}, s{sBLK}, s{sFP}")
    A(f"s_cmp_ge_u32 s{sBLK}, 27")
    A(f"s_cselect_b32 s{sBR}, 1, 0")
    A(f"s_mul_i32 s{sT0}, s{sBR}, 27")
    A(f"s_sub_u32 s{sBETA}, s{sBLK}, s{sT0}")
    A(f"s_mov_b32 s{sTY}, 0")
    A(f"s_cmp_ge_u32 s{sBETA}, 9")
    A(f"s_addc_u32 s{sTY}, s{sTY}, 0")
    A(f"s_cmp_ge_u32 s{sBETA}, 18")
    A(f"s_addc_u32 s{sTY}, s{sTY}, 0")
    vG = vACC
    for i in range(24): A(f"v_mov_b32 v{vG+i}, 0")
    A("s_waitcnt lgkmcnt(0)")
    srd(A, sX, 4, 5, T * D * 2)
    srd(A, sWS, 48, 49, WS_SIZE)
    def gtouch(GT, lab):
            A(f"s_lshl_b32 s{sT0}, s{sCG}, 3")
            A(f"s_add_u32 s{sT0}, s{sT0}, s{sTB}")
            A(f"v_mul_u32_u24 v{vT}, {GT}, v{vLane}")
            nper = 64 * GT
            nx = -(-11008 // nper); nw = -(-9216 // nper)
            A(f"s_cmp_lt_u32 s{sWV}, {nx}")
            A(f"s_cbranch_scc0 {lab}_w")
            A(f"s_mul_i32 s{sT1}, s{sT0}, 11008")
            A(f"s_mul_i32 s{sT2}, s{sWV}, {nper}")
            A(f"s_add_u32 s{sT1}, s{sT1}, s{sT2}")
            A(f"buffer_load_dword v{vTd}, v{vT}, s[{sX}:{sX+3}], s{sT1} offen")
            A(f"s_branch {lab}_e")
            A.label(f"{lab}_w")
            A(f"s_sub_u32 s{sT3}, s{sWV}, {nx}")
            A(f"s_cmp_lt_u32 s{sT3}, {2*nw}")
            A(f"s_cbranch_scc0 {lab}_e")
            A(f"s_cmp_lt_u32 s{sT3}, {nw}")
            A(f"s_cselect_b32 s{sG}, s6, s44")
            A(f"s_cselect_b32 s{sG+1}, s7, s45")
            A(f"s_cselect_b32 s{sT2}, 0, {nw}")
            A(f"s_sub_u32 s{sT3}, s{sT3}, s{sT2}")
            A(f"s_and_b32 s{sG+1}, s{sG+1}, 0xffff")
            A(f"s_mov_b32 s{sG+2}, {D*3*D*2}")
            A(f"s_mov_b32 s{sG+3}, 0x00020000")
            A(f"s_mul_i32 s{sT1}, s{sT0}, 9216")
            A(f"s_mul_i32 s{sT2}, s{sT3}, {nper}")
            A(f"s_add_u32 s{sT1}, s{sT1}, s{sT2}")
            A(f"buffer_load_dword v{vTd}, v{vT}, s[{sG}:{sG+3}], s{sT1} offen")
            A.label(f"{lab}_e")

    if GT: gtouch(GT, f"{name}_gt")
    srd(A, sG, 46, 47, D * 2)
    A(f"s_cmp_ge_u32 s{sCG}, 16")
    A(f"s_cbranch_scc1 {name}_nog1")
    A(f"s_lshl_b32 s{sT0}, s{sTB}, 8")
    A(f"s_lshl_b32 s{sT1}, s{sCG}, 4")
    A(f"s_add_u32 s{sT0}, s{sT0}, s{sT1}")
    A(f"s_lshl_b32 s{sT1}, s{sWV}, 1")
    A(f"s_add_u32 s52, s{sT0}, s{sT1}")
    A(f"s_mul_i32 s{sT0}, s52, 1152")
    A(f"v_lshlrev_b32 v{vT}, 5, v{vLane}")
    A(f"s_bfm_b64 exec, 36, 0")
    A(f"buffer_load_dwordx4 v[{vG}:{vG+3}], v{vT}, s[{sX}:{sX+3}], s{sT0} offen")
    A(f"buffer_load_dwordx4 v[{vG+4}:{vG+7}], v{vT}, s[{sX}:{sX+3}], s{sT0} offen offset:16")
    A(f"buffer_load_dwordx4 v[{vG+8}:{vG+11}], v{vT}, s[{sX}:{sX+3}], s{sT0} offen offset:1152")
    A(f"buffer_load_dwordx4 v[{vG+12}:{vG+15}], v{vT}, s[{sX}:{sX+3}], s{sT0} offen offset:1168")
    A(f"buffer_load_dwordx4 v[{vG+16}:{vG+19}], v{vT}, s[{sG}:{sG+3}], 0 offen")
    A(f"buffer_load_dwordx4 v[{vG+20}:{vG+23}], v{vT}, s[{sG}:{sG+3}], 0 offen offset:16")
    A(f"s_mov_b64 exec, -1")
    A.label(f"{name}_nog1")
    A(f"v_and_b32 v{vT}, 31, v{vLane}")
    A(f"v_lshrrev_b32 v{vT+1}, 5, v{vLane}")
    A(f"v_bfe_u32 v{vT+2}, v{vLane}, 1, 3")
    A(f"v_xor_b32 v{vT+2}, v{vT+2}, v{vT+1}")
    A(f"v_lshlrev_b32 v{vT+2}, 4, v{vT+2}")
    A(f"s_lshl_b32 s{sT0}, s{sTP}, 6")
    A(f"v_add_u32 v{vT}, s{sT0}, v{vT}")
    A(f"v_lshlrev_b32 v{vT}, 7, v{vT}")
    for s_ in range(4):
        A(f"v_xor_b32 v{vT+3}, {32*s_}, v{vT+2}")
        A(f"v_add_u32 v{vAX+s_}, v{vT}, v{vT+3}")
    A(f"v_bfe_u32 v{vT+2}, v{vLane}, 2, 2")
    A(f"v_lshl_add_u32 v{vT+3}, v{vT+1}, 3, v{vT+2}")
    A(f"v_lshlrev_b32 v{vT+3}, 7, v{vT+3}")
    A(f"v_bfe_u32 v{vT+4}, v{vLane}, 4, 1")
    A(f"v_lshlrev_b32 v{vT+4}, 5, v{vT+4}")
    A(f"v_and_b32 v{vT+5}, 3, v{vLane}")
    A(f"v_lshl_add_u32 v{vT+4}, v{vT+5}, 3, v{vT+4}")
    A(f"v_lshrrev_b32 v{vT+2}, 1, v{vT+2}")
    A(f"v_lshlrev_b32 v{vT+2}, 6, v{vT+2}")
    A(f"v_xor_b32 v{vT+4}, v{vT+4}, v{vT+2}")
    A(f"s_lshl_b32 s{sT0}, s{sFP}, 13")
    A(f"s_add_u32 s{sT0}, s{sT0}, {K1_W0}")
    A(f"v_add3_u32 v{vAW0}, v{vT+3}, v{vT+4}, s{sT0}")
    A(f"v_xor_b32 v{vAW1}, 64, v{vAW0}")
    A(f"s_lshl_b32 s{sT0}, s{sTB}, 3")
    A(f"s_lshl_b32 s{sT1}, s{sTP}, 1")
    A(f"s_add_u32 s53, s{sT0}, s{sT1}")
    A(f"s_cmp_eq_u32 s{sTY}, 2")
    A(f"s_cbranch_scc1 {name}_sov")
    A(f"s_mul_i32 s{sT0}, s{sTY}, 9")
    A(f"s_sub_u32 s{sT0}, s{sBETA}, s{sT0}")
    A(f"s_lshl_b32 s{sT0}, s{sT0}, 4")
    A(f"s_mul_i32 s{sT1}, s{sTY}, {WS_KM-WS_QM}")
    A(f"s_lshl_b32 s{sT2}, s{sBR}, 21")
    A(f"s_add_u32 s{sT1}, s{sT1}, s{sT2}")
    A(f"s_lshl_b32 s{sT2}, s53, 10")
    A(f"s_add_u32 s{sT1}, s{sT1}, s{sT2}")
    A(f"s_add_u32 s54, s{sT1}, {WS_QM}")
    A(f"s_mul_i32 s{sT1}, s{sTY}, {WS_KX-WS_QX}")
    A(f"s_lshl_b32 s{sT2}, s{sBR}, 18")
    A(f"s_add_u32 s{sT1}, s{sT1}, s{sT2}")
    A(f"s_lshl_b32 s{sT2}, s53, 8")
    A(f"s_add_u32 s{sT1}, s{sT1}, s{sT2}")
    A(f"s_add_u32 s55, s{sT1}, {WS_QX}")
    A(f"v_and_b32 v{vT}, 31, v{vLane}")
    A(f"v_lshlrev_b32 v{vT+6}, 3, v{vT}")
    A(f"v_add_u32 v{vT+6}, s54, v{vT+6}")
    A(f"v_lshlrev_b32 v{vT+7}, 3, v{vT}")
    A(f"v_add_u32 v{vT+7}, s55, v{vT+7}")
    A(f"v_add_u32 v{vT+8}, s{sT0}, v{vT+1}")
    for t in range(2):
        for i in range(4):
            d = vSO + 4*t + i
            A(f"v_add_u32 v{vT}, {8*t+2*i}, v{vT+8}")
            A(f"v_mul_u32_u24 v{vT+2}, 7282, v{vT}")
            A(f"v_lshrrev_b32 v{vT+2}, 16, v{vT+2}")
            A(f"v_mul_u32_u24 v{vT+3}, 9, v{vT+2}")
            A(f"v_sub_u32 v{vT+3}, v{vT}, v{vT+3}")
            A(f"v_cmp_lt_u32 vcc, 4, v{vT+3}")
            A(f"v_cndmask_b32 v{vT+4}, 0, 1, vcc")
            A(f"v_lshl_add_u32 v{vT+5}, v{vT+2}, 1, v{vT+4}")
            A(f"v_lshlrev_b32 v{vT+5}, 16, v{vT+5}")
            A(f"v_mul_u32_u24 v{vT+4}, 5, v{vT+4}")
            A(f"v_sub_u32 v{vT+4}, v{vT+3}, v{vT+4}")
            A(f"v_and_b32 v{vT+9}, 1, v{vT+4}")
            A(f"v_lshl_add_u32 v{vT+5}, v{vT+9}, 9, v{vT+5}")
            A(f"v_lshrrev_b32 v{vT+9}, 1, v{vT+4}")
            A(f"v_lshl_add_u32 v{vT+5}, v{vT+9}, 8, v{vT+5}")
            A(f"v_add_u32 v{vT+5}, v{vT+5}, v{vT+6}")
            A(f"v_lshl_add_u32 v{vT+9}, v{vT+2}, 14, v{vT+7}")
            A(f"v_cmp_eq_u32 vcc, 4, v{vT+3}")
            A(f"v_cndmask_b32 v{d}, v{vT+5}, v{vT+9}, vcc")
            A(f"v_cndmask_b32 v{vT+9}, 0, 1, vcc")
            A(f"v_or_b32 v{d}, v{d}, v{vT+9}")
    A(f"s_branch {name}_sod")
    A.label(f"{name}_sov")
    A(f"s_sub_u32 s{sT0}, s{sBETA}, 18")
    A(f"s_lshl_b32 s{sT0}, s{sT0}, 6")
    A(f"s_mul_i32 s{sT1}, s{sBR}, {32*V_HEAD}")
    A(f"s_mul_i32 s{sT2}, s53, {V_TILE}")
    A(f"s_add_u32 s{sT1}, s{sT1}, s{sT2}")
    A(f"s_add_u32 s54, s{sT1}, {WS_V}")
    A(f"s_mov_b32 s55, {V_HEAD}")
    def head_row(fv, hv, rv, t1, t2):
        A(f"v_mul_u32_u24 v{hv}, 3641, v{fv}")
        A(f"v_lshrrev_b32 v{hv}, 16, v{hv}")
        A(f"v_mul_u32_u24 v{t1}, 18, v{hv}")
        A(f"v_sub_u32 v{t1}, v{fv}, v{t1}")
        A(f"v_add_u32 v{rv}, 16, v{t1}")
        A(f"v_subrev_u32 v{t2}, 18, v{rv}")
        A(f"v_min_u32 v{rv}, v{rv}, v{t2}")
        A(f"v_and_b32 v{t2}, 1, v{hv}")
        A(f"v_cmp_eq_u32 vcc, 1, v{t2}")
        A(f"v_cndmask_b32 v{rv}, v{t1}, v{rv}, vcc")
    A(f"s_lshl_b32 s{sT2}, s{sWV}, 13")
    for t in range(2):
        A(f"v_and_b32 v{vT}, 31, v{vLane}")
        A(f"v_add_u32 v{vT}, s{sT0}, v{vT}")
        if t: A(f"v_add_u32 v{vT}, 32, v{vT}")
        head_row(vT, vT+2, vT+3, vT+4, vT+5)
        A(f"v_bfe_u32 v{vT+4}, v{vT+3}, 2, 2")
        A(f"v_xor_b32 v{vT+4}, v{vT+4}, v{vT+1}")
        A(f"v_lshlrev_b32 v{vT+4}, 4, v{vT+4}")
        A(f"v_and_b32 v{vT+5}, 31, v{vLane}")
        A(f"v_lshl_add_u32 v{vT+4}, v{vT+5}, 6, v{vT+4}")
        A(f"v_add_u32 v{vT+4}, s{sT2}, v{vT+4}")
        A(f"v_add_u32 v{vSO+t}, {t*4096}, v{vT+4}")
        A(f"v_mov_b32 v{vSO+6+t}, 0")
        for j in range(2):
            A(f"v_lshrrev_b32 v{vT}, 2, v{vLane}")
            A(f"v_add_u32 v{vT}, s{sT0}, v{vT}")
            A(f"v_add_u32 v{vT}, {32*t + 16*j}, v{vT}")
            head_row(vT, vT+2, vT+3, vT+4, vT+5)
            A(f"v_mul_lo_u32 v{vT+2}, v{vT+2}, s55")
            A(f"v_lshl_add_u32 v{vT+2}, v{vT+3}, 6, v{vT+2}")
            A(f"v_and_b32 v{vT+4}, 3, v{vLane}")
            A(f"v_lshl_add_u32 v{vT+2}, v{vT+4}, 4, v{vT+2}")
            A(f"v_add_u32 v{vSO+2+2*t+j}, s54, v{vT+2}")
            A(f"v_cmp_le_u32 vcc, 16, v{vT+3}")
            A(f"v_cndmask_b32 v{vT+4}, 0, 1, vcc")
            A(f"v_lshl_or_b32 v{vSO+6+t}, v{vT+4}, {j}, v{vSO+6+t}")
            A(f"v_cmp_eq_u32 vcc, 16, v{vT+3}")
            A(f"v_cndmask_b32 v{vT+4}, 0, 1, vcc")
            A(f"v_lshl_or_b32 v{vSO+6+t}, v{vT+4}, {2+j}, v{vSO+6+t}")
    A.label(f"{name}_sod")
    if TLBW:
        for q_ in (0, 1, 4, 5):
            A(f"buffer_load_dword v{vTd+1}, v{vSO+q_}, s[{sWS}:{sWS+3}], 0 offen")
    A(f"s_cmp_ge_u32 s{sCG}, 16")
    A(f"s_cbranch_scc1 {name}_nog2")
    A(f"s_waitcnt vmcnt(0)")
    for tk in range(2):
        A(f"v_mov_b32 v{vT}, 0")
        for i in range(8): A(f"v_dot2c_f32_bf16 v{vT}, v{vG+8*tk+i}, v{vG+16+i}")
        A(f"s_nop 2")
        A(f"v_add_f32_dpp v{vT}, v{vT}, v{vT} quad_perm:[1,0,3,2] row_mask:0xf bank_mask:0xf")
        A(f"v_add_f32_dpp v{vT}, v{vT}, v{vT} quad_perm:[2,3,0,1] row_mask:0xf bank_mask:0xf")
        A(f"v_add_f32_dpp v{vT}, v{vT}, v{vT} row_half_mirror row_mask:0xf bank_mask:0xf")
        A(f"v_add_f32_dpp v{vT}, v{vT}, v{vT} row_mirror row_mask:0xf bank_mask:0xf")
        A(f"v_readlane_b32 s56, v{vT}, 0")
        A(f"v_readlane_b32 s57, v{vT}, 16")
        A(f"v_readlane_b32 s58, v{vT}, 32")
        A(f"v_mov_b32 v{vT+1}, s56")
        A(f"v_add_f32 v{vT+1}, s57, v{vT+1}")
        A(f"v_add_f32 v{vT+1}, s58, v{vT+1}")
        A(f"v_mul_f32 v{vT+1}, {f2u(-1.4426950408889634)}, v{vT+1}")
        A(f"v_exp_f32 v{vT+1}, v{vT+1}")
        A(f"v_add_f32 v{vT+1}, 1.0, v{vT+1}")
        A(f"v_rcp_f32 v{vT+1}, v{vT+1}")
        A(f"s_lshl_b32 s{sT0}, s52, 2")
        A(f"s_add_u32 s{sT0}, s{sT0}, {WS_G + 4*tk}")
        A(f"v_mov_b32 v{vT+2}, 0")
        A(f"s_mov_b64 exec, 1")
        A(f"buffer_store_dword v{vT+1}, v{vT+2}, s[{sWS}:{sWS+3}], s{sT0} offen" + STORE_MOD)
        A(f"s_mov_b64 exec, -1")
    A.label(f"{name}_nog2")
    for i in range(64): A(f"v_mov_b32 v{vACC+i}, 0")
    for i in range(8):
        A(f"v_mov_b32 v{vXF+8+i}, 0")
        A(f"v_mov_b32 v{vWF+8+i}, 0")
    A(f"s_mov_b32 s56, {(-2*K1_STAGE) & 0xffffffff}")
    A(f"s_mov_b32 s57, {K1_STAGE}")
    stamp(A, 1)
    A(f"s_mov_b32 s{sCH}, 0")
    A(f"s_mov_b32 s{sStR}, 0")
    A(f"s_cmp_eq_u32 s{sTY}, 2")
    A(f"s_cbranch_scc1 {name}_loop1")

    def reads(s_, buf):
        xf = vXF + 8*buf; wf = vWF + 8*buf
        A(f"ds_read_b128 v[{xf}:{xf+3}], v{vAX+s_}")
        A(f"ds_read_b128 v[{xf+4}:{xf+7}], v{vAX+s_} offset:4096")
        A(f"ds_read_b64_tr_b16 v[{wf}:{wf+1}], v{vAW0} offset:{s_*2048}")
        A(f"ds_read_b64_tr_b16 v[{wf+2}:{wf+3}], v{vAW0} offset:{s_*2048+512}")
        A(f"ds_read_b64_tr_b16 v[{wf+4}:{wf+5}], v{vAW1} offset:{s_*2048}")
        A(f"ds_read_b64_tr_b16 v[{wf+6}:{wf+7}], v{vAW1} offset:{s_*2048+512}")
    def mfmas(mode, buf):
        xf = vXF + 8*buf; wf = vWF + 8*buf
        for t in range(2):
            for tt in range(2):
                acc = vACC + (t*2+tt)*16
                W = f"v[{wf+4*t}:{wf+4*t+3}]"; X = f"v[{xf+4*tt}:{xf+4*tt+3}]"
                if mode == 1:
                    A(f"v_mfma_f32_32x32x16_bf16 v[{acc}:{acc+15}], {X}, {W}, v[{acc}:{acc+15}]")
                else:
                    A(f"v_mfma_f32_32x32x16_bf16 v[{acc}:{acc+15}], {W}, {X}, v[{acc}:{acc+15}]")

    for mode in range(2):
        L = f"{name}_loop{mode}"
        A.label(L)
        A(f"s_barrier")
        if GT2:
            A(f"s_cmp_eq_u32 s{sCH}, {GT2AT}")
            A(f"s_cbranch_scc0 {L}_ngt")
            gtouch(GT2, f"{L}_gt")
            A.label(f"{L}_ngt")
        if PROF:
            A(f"s_cmp_eq_u32 s{sCH}, 0")
            A(f"s_cbranch_scc0 {L}_ns")
            stamp(A, 2)
            A.label(f"{L}_ns")
        def mf1(buf, t, tt):
            xf = vXF + 8*buf; wf = vWF + 8*buf
            acc = vACC + (t*2+tt)*16
            W = f"v[{wf+4*t}:{wf+4*t+3}]"; X = f"v[{xf+4*tt}:{xf+4*tt+3}]"
            if mode == 1: A(f"v_mfma_f32_32x32x16_bf16 v[{acc}:{acc+15}], {X}, {W}, v[{acc}:{acc+15}]")
            else: A(f"v_mfma_f32_32x32x16_bf16 v[{acc}:{acc+15}], {W}, {X}, v[{acc}:{acc+15}]")
        def step(buf, nxt, waits, tail=None):
            xf = vXF + 8*(1-buf); wf = vWF + 8*(1-buf)
            if waits: A(f"s_waitcnt lgkmcnt(3)")
            mf1(buf, 0, 0)
            A(f"ds_read_b128 v[{xf}:{xf+3}], v{vAX+nxt}")
            A(f"ds_read_b64_tr_b16 v[{wf}:{wf+1}], v{vAW0} offset:{nxt*2048}")
            if waits: A(f"s_waitcnt lgkmcnt(4)")
            mf1(buf, 0, 1)
            A(f"ds_read_b64_tr_b16 v[{wf+2}:{wf+3}], v{vAW0} offset:{nxt*2048+512}")
            A(f"ds_read_b128 v[{xf+4}:{xf+7}], v{vAX+nxt} offset:4096")
            if waits: A(f"s_waitcnt lgkmcnt(4)")
            mf1(buf, 1, 0)
            A(f"ds_read_b64_tr_b16 v[{wf+4}:{wf+5}], v{vAW1} offset:{nxt*2048}")
            A(f"ds_read_b64_tr_b16 v[{wf+6}:{wf+7}], v{vAW1} offset:{nxt*2048+512}")
            if tail: tail()
            mf1(buf, 1, 1)
        def tail():
            A(f"s_add_u32 s{sStR}, s{sStR}, 1")
            A(f"s_cmp_eq_u32 s{sStR}, 3")
            A(f"s_cselect_b32 s{sDelta}, s56, s57")
            A(f"s_cselect_b32 s{sStR}, 0, s{sStR}")
            for r in [vAX, vAX+1, vAX+2, vAX+3, vAW0, vAW1]:
                A(f"v_add_u32 v{r}, s{sDelta}, v{r}")
            A(f"s_add_u32 s{sCH}, s{sCH}, 1")
            A(f"s_cmp_lt_u32 s{sCH}, 9")
        if SKIP0:
            lz = f"{L}_z"
            A(f"s_cmp_eq_u32 s{sCH}, 0")
            A(f"s_cbranch_scc0 {lz}")
            for k_ in range(6):
                xf = vXF; wf = vWF
                A([f"ds_read_b128 v[{xf}:{xf+3}], v{vAX}", f"ds_read_b64_tr_b16 v[{wf}:{wf+1}], v{vAW0}", f"ds_read_b64_tr_b16 v[{wf+2}:{wf+3}], v{vAW0} offset:512",
                   f"ds_read_b128 v[{xf+4}:{xf+7}], v{vAX} offset:4096", f"ds_read_b64_tr_b16 v[{wf+4}:{wf+5}], v{vAW1}", f"ds_read_b64_tr_b16 v[{wf+6}:{wf+7}], v{vAW1} offset:512"][k_])
            A(f"s_branch {lz}_e")
            A.label(lz)
        step(1, 0, False)
        if SKIP0: A.label(f"{lz}_e")
        step(0, 1, True)
        step(1, 2, True)
        step(0, 3, True, tail)
        A(f"s_waitcnt lgkmcnt(0)")
        A(f"s_cbranch_scc1 {L}")
        mfmas(mode, 1)
        A(f"s_nop 15")
        A(f"s_branch {name}_epi{mode}")

    A.label(f"{name}_epi0")
    stamp(A, 3)
    A(f"s_mov_b32 s{sT0}, 1.0")
    A(f"s_cmp_eq_u32 s{sTY}, 0")
    A(f"s_cselect_b32 s{sT0}, {f2u(QSCALE)}, s{sT0}")
    for q in range(8):
        d = vSO + q
        A(f"v_and_b32 v{vT}, 1, v{d}")
        A(f"v_xor_b32 v{d}, v{d}, v{vT}")
        A(f"v_mul_u32_u24 v{vT}, 768, v{vT}")
        A(f"v_sub_u32 v{vT+1+q}, 1024, v{vT}")
        A(f"v_add_u32 v{vT+1+q}, v{vT+1+q}, v{d}")
    A(f"s_cmp_eq_u32 s{sTY}, 0")
    A(f"s_cbranch_scc0 {name}_nomul")
    for i in range(64): A(f"v_mul_f32 v{vACC+i}, s{sT0}, v{vACC+i}")
    A.label(f"{name}_nomul")
    k = 0
    for t in range(2):
        for tt in range(2):
            acc = vACC + (t*2+tt)*16
            p = vP + 8*(k % 4); k += 1
            for i in range(8): A(f"v_cvt_pk_bf16_f32 v{p+i}, v{acc+2*i}, v{acc+2*i+1}")
            for i in range(4):
                ad = (vSO + 4*t + i) if tt == 0 else (vT + 1 + 4*t + i)
                A(f"buffer_store_dwordx2 v[{p+2*i}:{p+2*i+1}], v{ad}, s[{sWS}:{sWS+3}], 0 offen" + QKMOD)
    A(f"s_branch {name}_fin")
    A.label(f"{name}_epi1")
    stamp(A, 3)
    k = 0
    for t in range(2):
        for tt in range(2):
            acc = vACC + (t*2+tt)*16
            p = vP + 8*(k % 4); k += 1
            for i in range(8): A(f"v_cvt_pk_bf16_f32 v{p+i}, v{acc+2*i}, v{acc+2*i+1}")
            A(f"ds_write_b128 v{vSO+t}, v[{p}:{p+3}] offset:{tt*2048}")
            A(f"v_xor_b32 v{vT}, 32, v{vSO+t}")
            A(f"ds_write_b128 v{vT}, v[{p+4}:{p+7}] offset:{tt*2048}")
    A(f"s_lshl_b32 s{sT2}, s{sWV}, 13")
    A(f"v_lshlrev_b32 v{vT+1}, 4, v{vLane}")
    A(f"v_add_u32 v{vT+1}, s{sT2}, v{vT+1}")
    A(f"s_waitcnt lgkmcnt(0)")
    k = 0
    for t in range(2):
        for tt in range(2):
            for j in range(2):
                r = vACC + 4*k; k += 1
                A(f"ds_read_b128 v[{r}:{r+3}], v{vT+1} offset:{t*4096 + tt*2048 + j*1024}")
    k = 0
    for t in range(2):
        for tt in range(2):
            for j in range(2):
                r = vACC + 4*k; k += 1
                A(f"s_waitcnt lgkmcnt({7-(k-1)})")
                A(f"buffer_store_dwordx4 v[{r}:{r+3}], v{vSO+2+2*t+j}, s[{sWS}:{sWS+3}], 0 offen offset:{tt*V_TILE}" + VMOD)
    for t in range(2):
        for j in range(2):
            lb = f"{name}_on{t}{j}"
            A(f"v_bfe_u32 v{vT}, v{vSO+6+t}, {2+j}, 1")
            A(f"v_mul_u32_u24 v{vT}, 0x3f80, v{vT}")
            A(f"v_lshl_or_b32 v{vT+4}, v{vT}, 16, v{vT}")
            for i in range(1, 4): A(f"v_mov_b32 v{vT+4+i}, v{vT+4}")
            A(f"v_bfe_u32 v{vT}, v{vSO+6+t}, {j}, 1")
            A(f"v_cmp_eq_u32 vcc, 1, v{vT}")
            A(f"s_and_saveexec_b64 s[58:59], vcc")
            A(f"s_cbranch_execz {lb}")
            for tt in range(2):
                A(f"buffer_store_dwordx4 v[{vT+4}:{vT+7}], v{vSO+2+2*t+j}, s[{sWS}:{sWS+3}], 0 offen offset:{tt*V_TILE+128}" + VMOD)
            A.label(lb)
            A(f"s_mov_b64 exec, s[58:59]")
    A.label(f"{name}_fin")
    if PROF:
        stamp(A, 4)
        A("s_waitcnt vmcnt(0)")
        stamp(A, 5)
        stamps_out(A, 0, 6, sWS, sWV, vP)
    rt_end(A, 0, sWV, vP)
    A.label(f"{name}_end")
    A(f"s_endpgm")
    return khead(name) + A.finish(True) , kdesc(name, NV, 100)
```

```python
from asmlib import *
from common import *
import os

K1_W0 = 32768
K1_STAGE = 49152
K1_LDS = 3 * K1_STAGE
import os as _os
NX = int(_os.environ.get('NX', '4'))
K1_THREADS = (8 + NX + 2) * 64
K1_GRID = 224
GT2 = int(os.environ.get("GT2", "0"))
GT2AT = int(os.environ.get("GT2AT", "0"))
LPRIO = int(os.environ.get("LPRIO1", os.environ.get("LPRIO", "0")))
SKIP0 = int(os.environ.get("SKIP0", "0"))
QKMOD = " " + os.environ.get("QKMOD", "sc1")
VMOD = " " + os.environ.get("VMOD", "sc1")
TLBW = int(os.environ.get("TLBW", "0"))
LDMOD = (" " + os.environ["LDMOD"]) if os.environ.get("LDMOD") else ""
GT = int(os.environ.get("GT", "0"))
EXP = int(os.environ.get("EXP", "0"))
TOUCH = int(os.environ.get("TOUCH", "0"))

def gen_k1(name):
    A = Asm()
    sX, sWS, sG = 8, 16, 20
    sCG, sTB, sWV, sCH = 24, 25, 26, 27
    sOff, sOffI, sOffC = 28, 29, 30
    sM0, sM0I = 31, 32
    sStL = 33
    sDelta = 34
    sStR = 35
    sT0, sT1, sT2, sT3 = 36, 37, 38, 39
    sFP, sTP, sBLK, sBR, sBETA, sTY = 40, 41, 42, 43, 50, 51
    vLane = 1
    vLo = 2
    vTo, vTd = 3, 4
    vAX = 6
    vAW0, vAW1 = 10, 11
    vT = 12
    vXF = 24
    vWF = 40
    vACC = 56
    vSO = 120
    vP = 24
    NV = 128

    A(f"s_cmp_ge_u32 s2, {K1_GRID}")
    A(f"s_cbranch_scc1 {name}_end")
    stamp(A, 0)
    rt_begin(A)
    A(f"s_load_dwordx4 s[4:7], s[0:1], 0")
    A(f"s_load_dwordx2 s[44:45], s[0:1], {ARG['B_wqkv']}")
    A(f"s_load_dwordx2 s[46:47], s[0:1], {ARG['gate_w']}")
    A(f"s_load_dwordx2 s[48:49], s[0:1], {ARG['ws']}")
    A(f"v_and_b32 v{vLane}, 63, v0")
    A(f"v_lshrrev_b32 v{vT}, 6, v0")
    A(f"s_and_b32 s{sT0}, s2, 7")
    A(f"v_readfirstlane_b32 s{sWV}, v{vT}")
    A(f"s_lshr_b32 s{sT1}, s2, 3")
    A(f"s_lshr_b32 s{sT2}, s{sT0}, 2")
    A(f"s_lshl_b32 s{sT2}, s{sT2}, 2")
    A(f"s_and_b32 s{sT3}, s{sT1}, 3")
    A(f"s_add_u32 s{sTB}, s{sT2}, s{sT3}")
    A(f"s_and_b32 s{sT2}, s{sT0}, 3")
    A(f"s_mul_i32 s{sT2}, s{sT2}, 7")
    A(f"s_lshr_b32 s{sT3}, s{sT1}, 2")
    A(f"s_add_u32 s{sCG}, s{sT2}, s{sT3}")
    A(f"s_cmp_ge_u32 s{sCG}, 27")
    A(f"s_cbranch_scc1 {name}_end")
    A(f"s_cmp_ge_u32 s{sWV}, 8")
    A(f"s_cbranch_scc0 {name}_comp")
    if LPRIO: A(f"s_setprio {LPRIO}")
    A(f"s_cmp_ge_u32 s{sWV}, {8+NX}")
    A(f"s_cbranch_scc1 {name}_ldw")

    A(f"s_sub_u32 s{sT3}, s{sWV}, 8")
    A(f"v_lshrrev_b32 v{vT}, 3, v{vLane}")
    A(f"s_lshl_b32 s{sT0}, s{sT3}, 3")
    A(f"v_add_u32 v{vT}, s{sT0}, v{vT}")
    A(f"v_mul_u32_u24 v{vLo}, 1152, v{vT}")
    A(f"v_lshrrev_b32 v{vT+1}, 4, v{vLane}")
    A(f"s_and_b32 s{sT0}, s{sT3}, 1")
    A(f"s_lshl_b32 s{sT0}, s{sT0}, 2")
    A(f"v_add_u32 v{vT+1}, s{sT0}, v{vT+1}")
    A(f"v_and_b32 v{vT+2}, 7, v{vLane}")
    A(f"v_xor_b32 v{vT+2}, v{vT+2}, v{vT+1}")
    A(f"v_lshl_add_u32 v{vLo}, v{vT+2}, 4, v{vLo}")
    A(f"s_lshr_b32 s{sT0}, s2, 5")
    A(f"s_mul_i32 s{sT0}, s{sT0}, 37")
    A(f"s_mul_i32 s{sT1}, s{sT3}, 10")
    A(f"s_add_u32 s{sT0}, s{sT0}, s{sT1}")
    A(f"v_lshrrev_b32 v{vT+3}, 1, v{vLane}")
    A(f"v_add_u32 v{vT+3}, s{sT0}, v{vT+3}")
    A(f"v_min_u32 v{vT+3}, 255, v{vT+3}")
    A(f"v_mul_u32_u24 v{vTo}, 1152, v{vT+3}")
    A(f"v_and_b32 v{vT+3}, 1, v{vLane}")
    A(f"v_lshl_add_u32 v{vTo}, v{vT+3}, 6, v{vTo}")
    A(f"s_mov_b32 s59, {(1 << 20) - 1}")
    A(f"s_lshl_b32 s{sM0}, s{sT3}, 10")
    A(f"s_mov_b32 s{sM0I}, {NX*1024}")
    A(f"s_mul_i32 s{sOff}, s{sTB}, {256*1152}")
    if EXP == 1: A(f"s_mov_b32 s{sOff}, 0")
    A(f"s_mov_b32 s{sOffI}, {NX*8*1152}")
    A(f"s_mov_b32 s{sOffC}, 128")
    A("s_waitcnt lgkmcnt(0)")
    srd(A, sX, 4, 5, T * D * 2)
    A(f"s_mov_b32 s54, 1")
    A(f"s_branch {name}_lpx")
    A.label(f"{name}_ldw")
    A(f"s_sub_u32 s{sT3}, s{sWV}, {8+NX}")
    A(f"s_lshl_b32 s{sBLK}, s{sCG}, 1")
    A(f"s_add_u32 s{sBLK}, s{sBLK}, s{sT3}")
    A(f"s_cmp_ge_u32 s{sBLK}, 27")
    A(f"s_cselect_b32 s{sBR}, 1, 0")
    A(f"s_mul_i32 s{sT0}, s{sBR}, 27")
    A(f"s_sub_u32 s{sBETA}, s{sBLK}, s{sT0}")
    A(f"v_lshrrev_b32 v{vT}, 3, v{vLane}")
    A(f"v_mul_u32_u24 v{vLo}, 3456, v{vT}")
    A(f"v_bfe_u32 v{vT+1}, v{vLane}, 4, 1")
    A(f"v_lshlrev_b32 v{vT+1}, 2, v{vT+1}")
    A(f"v_and_b32 v{vT+2}, 7, v{vLane}")
    A(f"v_xor_b32 v{vT+2}, v{vT+2}, v{vT+1}")
    A(f"v_lshl_add_u32 v{vLo}, v{vT+2}, 4, v{vLo}")
    A(f"s_and_b32 s{sT0}, s{sTB}, 3")
    A(f"s_lshl_b32 s{sT0}, s{sT0}, 4")
    A(f"v_lshrrev_b32 v{vT+3}, 1, v{vLane}")
    A(f"v_add_u32 v{vT+3}, s{sT0}, v{vT+3}")
    A(f"v_mul_u32_u24 v{vTo}, 3456, v{vT+3}")
    A(f"v_and_b32 v{vT+3}, 1, v{vLane}")
    A(f"v_lshl_add_u32 v{vTo}, v{vT+3}, 6, v{vTo}")
    A(f"s_mov_b32 s59, -1")
    A(f"s_lshl_b32 s{sM0}, s{sT3}, 13")
    A(f"s_add_u32 s{sM0}, s{sM0}, {K1_W0}")
    A(f"s_mov_b32 s{sM0I}, 1024")
    A(f"s_lshl_b32 s{sOff}, s{sBETA}, 7")
    if EXP == 1: A(f"s_mov_b32 s{sOff}, 0")
    A(f"s_mov_b32 s{sOffI}, {8*3456}")
    A(f"s_mov_b32 s{sOffC}, {64*3456}")
    A("s_waitcnt lgkmcnt(0)")
    A(f"s_cmp_eq_u32 s{sBR}, 0")
    A(f"s_cselect_b32 s{sX}, s6, s44")
    A(f"s_cselect_b32 s{sX+1}, s7, s45")
    A(f"s_and_b32 s{sX+1}, s{sX+1}, 0xffff")
    A(f"s_mov_b32 s{sX+2}, {D*3*D*2}")
    A(f"s_mov_b32 s{sX+3}, 0x00020000")
    A(f"s_mov_b32 s54, 0")
    def loader_loop(tag, cnt):
        A.label(f"{name}_lp{tag}")
        def issue():
            A(f"s_add_u32 m0, s{sStL}, s{sM0}")
            A(f"s_mov_b32 s{sT1}, s{sOff}")
            for j in range(cnt):
                if EXP != 2: A(f"buffer_load_dwordx4 v{vLo}, s[{sX}:{sX+3}], s{sT1} offen{LDMOD} lds")
                if j < cnt-1:
                    A(f"s_add_u32 m0, m0, s{sM0I}")
                    A(f"s_add_u32 s{sT1}, s{sT1}, s{sOffI}")
            A(f"s_add_u32 s{sOff}, s{sOff}, s{sOffC}")
            A(f"s_add_u32 s{sStL}, s{sStL}, {K1_STAGE}")
            A(f"s_cmp_eq_u32 s{sStL}, {3*K1_STAGE}")
            A(f"s_cselect_b32 s{sStL}, 0, s{sStL}")
        stamp(A, 1)
        A(f"s_mov_b32 s{sStL}, 0")
        A(f"s_mov_b32 s{sCH}, -2")
        A.label(f"{name}_lp{tag}_loop")
        A(f"s_cmp_lt_i32 s{sCH}, 0")
        A(f"s_cbranch_scc1 {name}_lp{tag}_issue")
        A(f"s_cmp_eq_u32 s{sCH}, 8")
        A(f"s_cbranch_scc1 {name}_lp{tag}_last")
        A(f"s_waitcnt vmcnt({cnt})")
        A(f"s_barrier")
        A(f"s_cmp_eq_u32 s{sCH}, 7")
        A(f"s_cbranch_scc1 {name}_lp{tag}_skip")
        A.label(f"{name}_lp{tag}_issue")
        issue()
        A.label(f"{name}_lp{tag}_skip")
        A(f"s_add_u32 s{sCH}, s{sCH}, 1")
        A(f"s_branch {name}_lp{tag}_loop")
        A.label(f"{name}_lp{tag}_last")
        A(f"s_waitcnt vmcnt(0)")
        A(f"s_barrier")
        if tag == "w": code_prefetch(A, "k2_attn_kernel", 9728, "k1", 12)
        A(f"s_endpgm")
    loader_loop("w", 8)
    loader_loop("x", 32 // NX)

    A.label(f"{name}_comp")
    A(f"s_lshr_b32 s{sFP}, s{sWV}, 2")
    A(f"s_and_b32 s{sTP}, s{sWV}, 3")
    A(f"s_lshl_b32 s{sBLK}, s{sCG}, 1")
    A(f"s_add_u32 s{sBLK}, s{sBLK}, s{sFP}")
    A(f"s_cmp_ge_u32 s{sBLK}, 27")
    A(f"s_cselect_b32 s{sBR}, 1, 0")
    A(f"s_mul_i32 s{sT0}, s{sBR}, 27")
    A(f"s_sub_u32 s{sBETA}, s{sBLK}, s{sT0}")
    A(f"s_mov_b32 s{sTY}, 0")
    A(f"s_cmp_ge_u32 s{sBETA}, 9")
    A(f"s_addc_u32 s{sTY}, s{sTY}, 0")
    A(f"s_cmp_ge_u32 s{sBETA}, 18")
    A(f"s_addc_u32 s{sTY}, s{sTY}, 0")
    vG = vACC
    for i in range(24): A(f"v_mov_b32 v{vG+i}, 0")
    A("s_waitcnt lgkmcnt(0)")
    srd(A, sX, 4, 5, T * D * 2)
    srd(A, sWS, 48, 49, WS_SIZE)
    def gtouch(GT, lab):
            A(f"s_lshl_b32 s{sT0}, s{sCG}, 3")
            A(f"s_add_u32 s{sT0}, s{sT0}, s{sTB}")
            A(f"v_mul_u32_u24 v{vT}, {GT}, v{vLane}")
            nper = 64 * GT
            nx = -(-11008 // nper); nw = -(-9216 // nper)
            A(f"s_cmp_lt_u32 s{sWV}, {nx}")
            A(f"s_cbranch_scc0 {lab}_w")
            A(f"s_mul_i32 s{sT1}, s{sT0}, 11008")
            A(f"s_mul_i32 s{sT2}, s{sWV}, {nper}")
            A(f"s_add_u32 s{sT1}, s{sT1}, s{sT2}")
            A(f"buffer_load_dword v{vTd}, v{vT}, s[{sX}:{sX+3}], s{sT1} offen")
            A(f"s_branch {lab}_e")
            A.label(f"{lab}_w")
            A(f"s_sub_u32 s{sT3}, s{sWV}, {nx}")
            A(f"s_cmp_lt_u32 s{sT3}, {2*nw}")
            A(f"s_cbranch_scc0 {lab}_e")
            A(f"s_cmp_lt_u32 s{sT3}, {nw}")
            A(f"s_cselect_b32 s{sG}, s6, s44")
            A(f"s_cselect_b32 s{sG+1}, s7, s45")
            A(f"s_cselect_b32 s{sT2}, 0, {nw}")
            A(f"s_sub_u32 s{sT3}, s{sT3}, s{sT2}")
            A(f"s_and_b32 s{sG+1}, s{sG+1}, 0xffff")
            A(f"s_mov_b32 s{sG+2}, {D*3*D*2}")
            A(f"s_mov_b32 s{sG+3}, 0x00020000")
            A(f"s_mul_i32 s{sT1}, s{sT0}, 9216")
            A(f"s_mul_i32 s{sT2}, s{sT3}, {nper}")
            A(f"s_add_u32 s{sT1}, s{sT1}, s{sT2}")
            A(f"buffer_load_dword v{vTd}, v{vT}, s[{sG}:{sG+3}], s{sT1} offen")
            A.label(f"{lab}_e")

    if GT: gtouch(GT, f"{name}_gt")
    srd(A, sG, 46, 47, D * 2)
    A(f"s_mov_b32 s60, s{sCG}")
    A(f"s_cmp_ge_u32 s{sCG}, 9")
    A(f"s_cselect_b32 s60, 99, s60")
    A(f"s_sub_u32 s{sT0}, s{sCG}, 14")
    A(f"s_cmp_lt_u32 s{sT0}, 7")
    A(f"s_cbranch_scc0 {name}_gsel")
    A(f"s_add_u32 s60, s{sT0}, 9")
    A.label(f"{name}_gsel")
    A(f"s_cmp_ge_u32 s60, 16")
    A(f"s_cbranch_scc1 {name}_nog1")
    A(f"s_lshl_b32 s{sT0}, s{sTB}, 8")
    A(f"s_lshl_b32 s{sT1}, s60, 4")
    A(f"s_add_u32 s{sT0}, s{sT0}, s{sT1}")
    A(f"s_lshl_b32 s{sT1}, s{sWV}, 1")
    A(f"s_add_u32 s52, s{sT0}, s{sT1}")
    A(f"s_mul_i32 s{sT0}, s52, 1152")
    A(f"v_lshlrev_b32 v{vT}, 5, v{vLane}")
    A(f"s_bfm_b64 exec, 36, 0")
    A(f"buffer_load_dwordx4 v[{vG}:{vG+3}], v{vT}, s[{sX}:{sX+3}], s{sT0} offen")
    A(f"buffer_load_dwordx4 v[{vG+4}:{vG+7}], v{vT}, s[{sX}:{sX+3}], s{sT0} offen offset:16")
    A(f"buffer_load_dwordx4 v[{vG+8}:{vG+11}], v{vT}, s[{sX}:{sX+3}], s{sT0} offen offset:1152")
    A(f"buffer_load_dwordx4 v[{vG+12}:{vG+15}], v{vT}, s[{sX}:{sX+3}], s{sT0} offen offset:1168")
    A(f"buffer_load_dwordx4 v[{vG+16}:{vG+19}], v{vT}, s[{sG}:{sG+3}], 0 offen")
    A(f"buffer_load_dwordx4 v[{vG+20}:{vG+23}], v{vT}, s[{sG}:{sG+3}], 0 offen offset:16")
    A(f"s_mov_b64 exec, -1")
    A.label(f"{name}_nog1")
    A(f"v_and_b32 v{vT}, 31, v{vLane}")
    A(f"v_lshrrev_b32 v{vT+1}, 5, v{vLane}")
    A(f"v_bfe_u32 v{vT+2}, v{vLane}, 1, 3")
    A(f"v_xor_b32 v{vT+2}, v{vT+2}, v{vT+1}")
    A(f"v_lshlrev_b32 v{vT+2}, 4, v{vT+2}")
    A(f"s_lshl_b32 s{sT0}, s{sTP}, 6")
    A(f"v_add_u32 v{vT}, s{sT0}, v{vT}")
    A(f"v_lshlrev_b32 v{vT}, 7, v{vT}")
    for s_ in range(4):
        A(f"v_xor_b32 v{vT+3}, {32*s_}, v{vT+2}")
        A(f"v_add_u32 v{vAX+s_}, v{vT}, v{vT+3}")
    A(f"v_bfe_u32 v{vT+2}, v{vLane}, 2, 2")
    A(f"v_lshl_add_u32 v{vT+3}, v{vT+1}, 3, v{vT+2}")
    A(f"v_lshlrev_b32 v{vT+3}, 7, v{vT+3}")
    A(f"v_bfe_u32 v{vT+4}, v{vLane}, 4, 1")
    A(f"v_lshlrev_b32 v{vT+4}, 5, v{vT+4}")
    A(f"v_and_b32 v{vT+5}, 3, v{vLane}")
    A(f"v_lshl_add_u32 v{vT+4}, v{vT+5}, 3, v{vT+4}")
    A(f"v_lshrrev_b32 v{vT+2}, 1, v{vT+2}")
    A(f"v_lshlrev_b32 v{vT+2}, 6, v{vT+2}")
    A(f"v_xor_b32 v{vT+4}, v{vT+4}, v{vT+2}")
    A(f"s_lshl_b32 s{sT0}, s{sFP}, 13")
    A(f"s_add_u32 s{sT0}, s{sT0}, {K1_W0}")
    A(f"v_add3_u32 v{vAW0}, v{vT+3}, v{vT+4}, s{sT0}")
    A(f"v_xor_b32 v{vAW1}, 64, v{vAW0}")
    A(f"s_lshl_b32 s{sT0}, s{sTB}, 3")
    A(f"s_lshl_b32 s{sT1}, s{sTP}, 1")
    A(f"s_add_u32 s53, s{sT0}, s{sT1}")
    A(f"s_cmp_eq_u32 s{sTY}, 2")
    A(f"s_cbranch_scc1 {name}_sov")
    A(f"s_mul_i32 s{sT0}, s{sTY}, 9")
    A(f"s_sub_u32 s{sT0}, s{sBETA}, s{sT0}")
    A(f"s_lshl_b32 s{sT0}, s{sT0}, 4")
    A(f"s_mul_i32 s{sT1}, s{sTY}, {WS_KM-WS_QM}")
    A(f"s_lshl_b32 s{sT2}, s{sBR}, 21")
    A(f"s_add_u32 s{sT1}, s{sT1}, s{sT2}")
    A(f"s_lshl_b32 s{sT2}, s53, 10")
    A(f"s_add_u32 s{sT1}, s{sT1}, s{sT2}")
    A(f"s_add_u32 s54, s{sT1}, {WS_QM}")
    A(f"s_mul_i32 s{sT1}, s{sTY}, {WS_KX-WS_QX}")
    A(f"s_lshl_b32 s{sT2}, s{sBR}, 18")
    A(f"s_add_u32 s{sT1}, s{sT1}, s{sT2}")
    A(f"s_lshl_b32 s{sT2}, s53, 8")
    A(f"s_add_u32 s{sT1}, s{sT1}, s{sT2}")
    A(f"s_add_u32 s55, s{sT1}, {WS_QX}")
    A(f"v_and_b32 v{vT}, 31, v{vLane}")
    A(f"v_lshlrev_b32 v{vT+6}, 3, v{vT}")
    A(f"v_add_u32 v{vT+6}, s54, v{vT+6}")
    A(f"v_lshlrev_b32 v{vT+7}, 3, v{vT}")
    A(f"v_add_u32 v{vT+7}, s55, v{vT+7}")
    A(f"v_add_u32 v{vT+8}, s{sT0}, v{vT+1}")
    for t in range(2):
        for i in range(4):
            d = vSO + 4*t + i
            A(f"v_add_u32 v{vT}, {8*t+2*i}, v{vT+8}")
            A(f"v_mul_u32_u24 v{vT+2}, 7282, v{vT}")
            A(f"v_lshrrev_b32 v{vT+2}, 16, v{vT+2}")
            A(f"v_mul_u32_u24 v{vT+3}, 9, v{vT+2}")
            A(f"v_sub_u32 v{vT+3}, v{vT}, v{vT+3}")
            A(f"v_cmp_lt_u32 vcc, 4, v{vT+3}")
            A(f"v_cndmask_b32 v{vT+4}, 0, 1, vcc")
            A(f"v_lshl_add_u32 v{vT+5}, v{vT+2}, 1, v{vT+4}")
            A(f"v_lshlrev_b32 v{vT+5}, 16, v{vT+5}")
            A(f"v_mul_u32_u24 v{vT+4}, 5, v{vT+4}")
            A(f"v_sub_u32 v{vT+4}, v{vT+3}, v{vT+4}")
            A(f"v_and_b32 v{vT+9}, 1, v{vT+4}")
            A(f"v_lshl_add_u32 v{vT+5}, v{vT+9}, 9, v{vT+5}")
            A(f"v_lshrrev_b32 v{vT+9}, 1, v{vT+4}")
            A(f"v_lshl_add_u32 v{vT+5}, v{vT+9}, 8, v{vT+5}")
            A(f"v_add_u32 v{vT+5}, v{vT+5}, v{vT+6}")
            A(f"v_lshl_add_u32 v{vT+9}, v{vT+2}, 14, v{vT+7}")
            A(f"v_cmp_eq_u32 vcc, 4, v{vT+3}")
            A(f"v_cndmask_b32 v{d}, v{vT+5}, v{vT+9}, vcc")
            A(f"v_cndmask_b32 v{vT+9}, 0, 1, vcc")
            A(f"v_or_b32 v{d}, v{d}, v{vT+9}")
    A(f"s_branch {name}_sod")
    A.label(f"{name}_sov")
    A(f"s_sub_u32 s{sT0}, s{sBETA}, 18")
    A(f"s_lshl_b32 s{sT0}, s{sT0}, 6")
    A(f"s_mul_i32 s{sT1}, s{sBR}, {32*V_HEAD}")
    A(f"s_mul_i32 s{sT2}, s53, {V_TILE}")
    A(f"s_add_u32 s{sT1}, s{sT1}, s{sT2}")
    A(f"s_add_u32 s54, s{sT1}, {WS_V}")
    A(f"s_mov_b32 s55, {V_HEAD}")
    def head_row(fv, hv, rv, t1, t2):
        A(f"v_mul_u32_u24 v{hv}, 3641, v{fv}")
        A(f"v_lshrrev_b32 v{hv}, 16, v{hv}")
        A(f"v_mul_u32_u24 v{t1}, 18, v{hv}")
        A(f"v_sub_u32 v{t1}, v{fv}, v{t1}")
        A(f"v_add_u32 v{rv}, 16, v{t1}")
        A(f"v_subrev_u32 v{t2}, 18, v{rv}")
        A(f"v_min_u32 v{rv}, v{rv}, v{t2}")
        A(f"v_and_b32 v{t2}, 1, v{hv}")
        A(f"v_cmp_eq_u32 vcc, 1, v{t2}")
        A(f"v_cndmask_b32 v{rv}, v{t1}, v{rv}, vcc")
    A(f"s_lshl_b32 s{sT2}, s{sWV}, 13")
    for t in range(2):
        A(f"v_and_b32 v{vT}, 31, v{vLane}")
        A(f"v_add_u32 v{vT}, s{sT0}, v{vT}")
        if t: A(f"v_add_u32 v{vT}, 32, v{vT}")
        head_row(vT, vT+2, vT+3, vT+4, vT+5)
        A(f"v_bfe_u32 v{vT+4}, v{vT+3}, 2, 2")
        A(f"v_xor_b32 v{vT+4}, v{vT+4}, v{vT+1}")
        A(f"v_lshlrev_b32 v{vT+4}, 4, v{vT+4}")
        A(f"v_and_b32 v{vT+5}, 31, v{vLane}")
        A(f"v_lshl_add_u32 v{vT+4}, v{vT+5}, 6, v{vT+4}")
        A(f"v_add_u32 v{vT+4}, s{sT2}, v{vT+4}")
        A(f"v_add_u32 v{vSO+t}, {t*4096}, v{vT+4}")
        A(f"v_mov_b32 v{vSO+6+t}, 0")
        for j in range(2):
            A(f"v_lshrrev_b32 v{vT}, 2, v{vLane}")
            A(f"v_add_u32 v{vT}, s{sT0}, v{vT}")
            A(f"v_add_u32 v{vT}, {32*t + 16*j}, v{vT}")
            head_row(vT, vT+2, vT+3, vT+4, vT+5)
            A(f"v_mul_lo_u32 v{vT+2}, v{vT+2}, s55")
            A(f"v_lshl_add_u32 v{vT+2}, v{vT+3}, 6, v{vT+2}")
            A(f"v_and_b32 v{vT+4}, 3, v{vLane}")
            A(f"v_lshl_add_u32 v{vT+2}, v{vT+4}, 4, v{vT+2}")
            A(f"v_add_u32 v{vSO+2+2*t+j}, s54, v{vT+2}")
            A(f"v_cmp_le_u32 vcc, 16, v{vT+3}")
            A(f"v_cndmask_b32 v{vT+4}, 0, 1, vcc")
            A(f"v_lshl_or_b32 v{vSO+6+t}, v{vT+4}, {j}, v{vSO+6+t}")
            A(f"v_cmp_eq_u32 vcc, 16, v{vT+3}")
            A(f"v_cndmask_b32 v{vT+4}, 0, 1, vcc")
            A(f"v_lshl_or_b32 v{vSO+6+t}, v{vT+4}, {2+j}, v{vSO+6+t}")
    A.label(f"{name}_sod")
    if TLBW:
        for q_ in (0, 1, 4, 5):
            A(f"buffer_load_dword v{vTd+1}, v{vSO+q_}, s[{sWS}:{sWS+3}], 0 offen")
    A(f"s_cmp_ge_u32 s60, 16")
    A(f"s_cbranch_scc1 {name}_nog2")
    A(f"s_waitcnt vmcnt(0)")
    for tk in range(2):
        A(f"v_mov_b32 v{vT}, 0")
        for i in range(8): A(f"v_dot2c_f32_bf16 v{vT}, v{vG+8*tk+i}, v{vG+16+i}")
        A(f"s_nop 2")
        A(f"v_add_f32_dpp v{vT}, v{vT}, v{vT} quad_perm:[1,0,3,2] row_mask:0xf bank_mask:0xf")
        A(f"v_add_f32_dpp v{vT}, v{vT}, v{vT} quad_perm:[2,3,0,1] row_mask:0xf bank_mask:0xf")
        A(f"v_add_f32_dpp v{vT}, v{vT}, v{vT} row_half_mirror row_mask:0xf bank_mask:0xf")
        A(f"v_add_f32_dpp v{vT}, v{vT}, v{vT} row_mirror row_mask:0xf bank_mask:0xf")
        A(f"v_readlane_b32 s56, v{vT}, 0")
        A(f"v_readlane_b32 s57, v{vT}, 16")
        A(f"v_readlane_b32 s58, v{vT}, 32")
        A(f"v_mov_b32 v{vT+1}, s56")
        A(f"v_add_f32 v{vT+1}, s57, v{vT+1}")
        A(f"v_add_f32 v{vT+1}, s58, v{vT+1}")
        A(f"v_mul_f32 v{vT+1}, {f2u(-1.4426950408889634)}, v{vT+1}")
        A(f"v_exp_f32 v{vT+1}, v{vT+1}")
        A(f"v_add_f32 v{vT+1}, 1.0, v{vT+1}")
        A(f"v_rcp_f32 v{vT+1}, v{vT+1}")
        A(f"s_lshl_b32 s{sT0}, s52, 2")
        A(f"s_add_u32 s{sT0}, s{sT0}, {WS_G + 4*tk}")
        A(f"v_mov_b32 v{vT+2}, 0")
        A(f"s_mov_b64 exec, 1")
        A(f"buffer_store_dword v{vT+1}, v{vT+2}, s[{sWS}:{sWS+3}], s{sT0} offen" + STORE_MOD)
        A(f"s_mov_b64 exec, -1")
    A.label(f"{name}_nog2")
    for i in range(64): A(f"v_mov_b32 v{vACC+i}, 0")
    for i in range(8):
        A(f"v_mov_b32 v{vXF+8+i}, 0")
        A(f"v_mov_b32 v{vWF+8+i}, 0")
    A(f"s_mov_b32 s56, {(-2*K1_STAGE) & 0xffffffff}")
    A(f"s_mov_b32 s57, {K1_STAGE}")
    stamp(A, 1)
    A(f"s_mov_b32 s{sCH}, 0")
    A(f"s_mov_b32 s{sStR}, 0")
    A(f"s_cmp_eq_u32 s{sTY}, 2")
    A(f"s_cbranch_scc1 {name}_loop1")

    def reads(s_, buf):
        xf = vXF + 8*buf; wf = vWF + 8*buf
        A(f"ds_read_b128 v[{xf}:{xf+3}], v{vAX+s_}")
        A(f"ds_read_b128 v[{xf+4}:{xf+7}], v{vAX+s_} offset:4096")
        A(f"ds_read_b64_tr_b16 v[{wf}:{wf+1}], v{vAW0} offset:{s_*2048}")
        A(f"ds_read_b64_tr_b16 v[{wf+2}:{wf+3}], v{vAW0} offset:{s_*2048+512}")
        A(f"ds_read_b64_tr_b16 v[{wf+4}:{wf+5}], v{vAW1} offset:{s_*2048}")
        A(f"ds_read_b64_tr_b16 v[{wf+6}:{wf+7}], v{vAW1} offset:{s_*2048+512}")
    def mfmas(mode, buf):
        xf = vXF + 8*buf; wf = vWF + 8*buf
        for t in range(2):
            for tt in range(2):
                acc = vACC + (t*2+tt)*16
                W = f"v[{wf+4*t}:{wf+4*t+3}]"; X = f"v[{xf+4*tt}:{xf+4*tt+3}]"
                if mode == 1:
                    A(f"v_mfma_f32_32x32x16_bf16 v[{acc}:{acc+15}], {X}, {W}, v[{acc}:{acc+15}]")
                else:
                    A(f"v_mfma_f32_32x32x16_bf16 v[{acc}:{acc+15}], {W}, {X}, v[{acc}:{acc+15}]")

    for mode in range(2):
        L = f"{name}_loop{mode}"
        A.label(L)
        A(f"s_barrier")
        if GT2:
            A(f"s_cmp_eq_u32 s{sCH}, {GT2AT}")
            A(f"s_cbranch_scc0 {L}_ngt")
            gtouch(GT2, f"{L}_gt")
            A.label(f"{L}_ngt")
        if PROF:
            A(f"s_cmp_eq_u32 s{sCH}, 0")
            A(f"s_cbranch_scc0 {L}_ns")
            stamp(A, 2)
            A.label(f"{L}_ns")
        def mf1(buf, t, tt):
            xf = vXF + 8*buf; wf = vWF + 8*buf
            acc = vACC + (t*2+tt)*16
            W = f"v[{wf+4*t}:{wf+4*t+3}]"; X = f"v[{xf+4*tt}:{xf+4*tt+3}]"
            if mode == 1: A(f"v_mfma_f32_32x32x16_bf16 v[{acc}:{acc+15}], {X}, {W}, v[{acc}:{acc+15}]")
            else: A(f"v_mfma_f32_32x32x16_bf16 v[{acc}:{acc+15}], {W}, {X}, v[{acc}:{acc+15}]")
        def step(buf, nxt, waits, tail=None):
            xf = vXF + 8*(1-buf); wf = vWF + 8*(1-buf)
            if waits: A(f"s_waitcnt lgkmcnt(3)")
            mf1(buf, 0, 0)
            A(f"ds_read_b128 v[{xf}:{xf+3}], v{vAX+nxt}")
            A(f"ds_read_b64_tr_b16 v[{wf}:{wf+1}], v{vAW0} offset:{nxt*2048}")
            if waits: A(f"s_waitcnt lgkmcnt(4)")
            mf1(buf, 0, 1)
            A(f"ds_read_b64_tr_b16 v[{wf+2}:{wf+3}], v{vAW0} offset:{nxt*2048+512}")
            A(f"ds_read_b128 v[{xf+4}:{xf+7}], v{vAX+nxt} offset:4096")
            if waits: A(f"s_waitcnt lgkmcnt(4)")
            mf1(buf, 1, 0)
            A(f"ds_read_b64_tr_b16 v[{wf+4}:{wf+5}], v{vAW1} offset:{nxt*2048}")
            A(f"ds_read_b64_tr_b16 v[{wf+6}:{wf+7}], v{vAW1} offset:{nxt*2048+512}")
            if tail: tail()
            mf1(buf, 1, 1)
        def tail():
            A(f"s_add_u32 s{sStR}, s{sStR}, 1")
            A(f"s_cmp_eq_u32 s{sStR}, 3")
            A(f"s_cselect_b32 s{sDelta}, s56, s57")
            A(f"s_cselect_b32 s{sStR}, 0, s{sStR}")
            for r in [vAX, vAX+1, vAX+2, vAX+3, vAW0, vAW1]:
                A(f"v_add_u32 v{r}, s{sDelta}, v{r}")
            A(f"s_add_u32 s{sCH}, s{sCH}, 1")
            A(f"s_cmp_lt_u32 s{sCH}, 9")
        if SKIP0:
            lz = f"{L}_z"
            A(f"s_cmp_eq_u32 s{sCH}, 0")
            A(f"s_cbranch_scc0 {lz}")
            for k_ in range(6):
                xf = vXF; wf = vWF
                A([f"ds_read_b128 v[{xf}:{xf+3}], v{vAX}", f"ds_read_b64_tr_b16 v[{wf}:{wf+1}], v{vAW0}", f"ds_read_b64_tr_b16 v[{wf+2}:{wf+3}], v{vAW0} offset:512",
                   f"ds_read_b128 v[{xf+4}:{xf+7}], v{vAX} offset:4096", f"ds_read_b64_tr_b16 v[{wf+4}:{wf+5}], v{vAW1}", f"ds_read_b64_tr_b16 v[{wf+6}:{wf+7}], v{vAW1} offset:512"][k_])
            A(f"s_branch {lz}_e")
            A.label(lz)
        step(1, 0, False)
        if SKIP0: A.label(f"{lz}_e")
        step(0, 1, True)
        step(1, 2, True)
        step(0, 3, True, tail)
        A(f"s_waitcnt lgkmcnt(0)")
        A(f"s_cbranch_scc1 {L}")
        mfmas(mode, 1)
        A(f"s_nop 15")
        A(f"s_branch {name}_epi{mode}")

    A.label(f"{name}_epi0")
    stamp(A, 3)
    A(f"s_mov_b32 s{sT0}, 1.0")
    A(f"s_cmp_eq_u32 s{sTY}, 0")
    A(f"s_cselect_b32 s{sT0}, {f2u(QSCALE)}, s{sT0}")
    for q in range(8):
        d = vSO + q
        A(f"v_and_b32 v{vT}, 1, v{d}")
        A(f"v_xor_b32 v{d}, v{d}, v{vT}")
        A(f"v_mul_u32_u24 v{vT}, 768, v{vT}")
        A(f"v_sub_u32 v{vT+1+q}, 1024, v{vT}")
        A(f"v_add_u32 v{vT+1+q}, v{vT+1+q}, v{d}")
    A(f"s_cmp_eq_u32 s{sTY}, 0")
    A(f"s_cbranch_scc0 {name}_nomul")
    for i in range(64): A(f"v_mul_f32 v{vACC+i}, s{sT0}, v{vACC+i}")
    A.label(f"{name}_nomul")
    k = 0
    for t in range(2):
        for tt in range(2):
            acc = vACC + (t*2+tt)*16
            p = vP + 8*(k % 4); k += 1
            for i in range(8): A(f"v_cvt_pk_bf16_f32 v{p+i}, v{acc+2*i}, v{acc+2*i+1}")
            for i in range(4):
                ad = (vSO + 4*t + i) if tt == 0 else (vT + 1 + 4*t + i)
                A(f"buffer_store_dwordx2 v[{p+2*i}:{p+2*i+1}], v{ad}, s[{sWS}:{sWS+3}], 0 offen" + QKMOD)
    A(f"s_branch {name}_fin")
    A.label(f"{name}_epi1")
    stamp(A, 3)
    k = 0
    for t in range(2):
        for tt in range(2):
            acc = vACC + (t*2+tt)*16
            p = vP + 8*(k % 4); k += 1
            for i in range(8): A(f"v_cvt_pk_bf16_f32 v{p+i}, v{acc+2*i}, v{acc+2*i+1}")
            A(f"ds_write_b128 v{vSO+t}, v[{p}:{p+3}] offset:{tt*2048}")
            A(f"v_xor_b32 v{vT}, 32, v{vSO+t}")
            A(f"ds_write_b128 v{vT}, v[{p+4}:{p+7}] offset:{tt*2048}")
    A(f"s_lshl_b32 s{sT2}, s{sWV}, 13")
    A(f"v_lshlrev_b32 v{vT+1}, 4, v{vLane}")
    A(f"v_add_u32 v{vT+1}, s{sT2}, v{vT+1}")
    A(f"s_waitcnt lgkmcnt(0)")
    k = 0
    for t in range(2):
        for tt in range(2):
            for j in range(2):
                r = vACC + 4*k; k += 1
                A(f"ds_read_b128 v[{r}:{r+3}], v{vT+1} offset:{t*4096 + tt*2048 + j*1024}")
    k = 0
    for t in range(2):
        for tt in range(2):
            for j in range(2):
                r = vACC + 4*k; k += 1
                A(f"s_waitcnt lgkmcnt({7-(k-1)})")
                A(f"buffer_store_dwordx4 v[{r}:{r+3}], v{vSO+2+2*t+j}, s[{sWS}:{sWS+3}], 0 offen offset:{tt*V_TILE}" + VMOD)
    for t in range(2):
        for j in range(2):
            lb = f"{name}_on{t}{j}"
            A(f"v_bfe_u32 v{vT}, v{vSO+6+t}, {2+j}, 1")
            A(f"v_mul_u32_u24 v{vT}, 0x3f80, v{vT}")
            A(f"v_lshl_or_b32 v{vT+4}, v{vT}, 16, v{vT}")
            for i in range(1, 4): A(f"v_mov_b32 v{vT+4+i}, v{vT+4}")
            A(f"v_bfe_u32 v{vT}, v{vSO+6+t}, {j}, 1")
            A(f"v_cmp_eq_u32 vcc, 1, v{vT}")
            A(f"s_and_saveexec_b64 s[58:59], vcc")
            A(f"s_cbranch_execz {lb}")
            for tt in range(2):
                A(f"buffer_store_dwordx4 v[{vT+4}:{vT+7}], v{vSO+2+2*t+j}, s[{sWS}:{sWS+3}], 0 offen offset:{tt*V_TILE+128}" + VMOD)
            A.label(lb)
            A(f"s_mov_b64 exec, s[58:59]")
    A.label(f"{name}_fin")
    if PROF:
        stamp(A, 4)
        A("s_waitcnt vmcnt(0)")
        stamp(A, 5)
        stamps_out(A, 0, 6, sWS, sWV, vP)
    rt_end(A, 0, sWV, vP)
    A.label(f"{name}_end")
    A(f"s_endpgm")
    return khead(name) + A.finish(True) , kdesc(name, NV, 100)
```
